```python
import torch

def _softmax(x, axis=-1):
    return torch.softmax(x, dim=axis)
def _gelu(x):
    return torch.nn.functional.gelu(x, approximate="tanh")
def _silu(x):
    return torch.nn.functional.silu(x)
def _sigmoid(x):
    return torch.sigmoid(x)
def _layernorm(x, axis=-1, eps=1e-5):
    m = x.mean(dim=axis, keepdim=True)
    v = x.var(dim=axis, keepdim=True, unbiased=False)
    return (x - m) / torch.sqrt(v + eps)
def _scatter_add(tgt, idx, src, axis=0):
    return tgt.clone().index_add_(axis, idx, src)
def _segment_sum(src, seg, n):
    out = torch.zeros((n,) + src.shape[1:], dtype=src.dtype)
    return out.index_add_(0, seg, src)
def _pad(x, pw):
    flat = tuple(v for pair in reversed(pw) for v in pair)
    return torch.nn.functional.pad(x, flat)

kernel_name = 'gated_mix__ssm_conv_s4__mha_block__prompt'

def setup_inputs():

    _w = (lambda a: (lambda t: t.to(torch.bfloat16) if t.is_floating_point() else t)(torch.as_tensor(a)))
    def _A_setup():
        B, L, D, N = 1, 2048, 576, 128
        A_re = -(lambda _x: torch.exp(torch.as_tensor(_x)))((lambda *s: torch.randn(*s, dtype=torch.bfloat16) * 6.4)(D, N))
        A_im = torch.pi * (lambda *s: torch.randn(*s, dtype=torch.bfloat16) * 0.1)(D, N)
        B_re = (lambda *s: torch.randn(*s, dtype=torch.bfloat16) * 0.2)(D, N)
        B_im = (lambda *s: torch.randn(*s, dtype=torch.bfloat16) * 0.2)(D, N)
        C_re = (lambda *s: torch.randn(*s, dtype=torch.bfloat16) * 0.2)(D, N)
        C_im = (lambda *s: torch.randn(*s, dtype=torch.bfloat16) * 0.2)(D, N)
        log_dt = (lambda *s: torch.randn(*s, dtype=torch.bfloat16) * 0.1)(D) * 0.5 - 4.0
        Dskip = (lambda *s: torch.randn(*s, dtype=torch.bfloat16) * 0.1)(D)
        return {
            "u": _w((lambda *s: torch.randn(*s, dtype=torch.bfloat16) * 0.05)(B, L, D)),
            "A_re": _w(A_re),
            "A_im": _w(A_im),
            "B_re": _w(B_re),
            "B_im": _w(B_im),
            "C_re": _w(C_re),
            "C_im": _w(C_im),
            "log_dt": _w(log_dt),
            "Dskip": _w(Dskip),
        }
    _A_in = _A_setup()

    def _B_setup():
        B, S, D, H = 1, 2048, 576, 32
        return {
            "x": _w((lambda *s: torch.randn(*s, dtype=torch.bfloat16) * 0.05)(B, S, D)),
            "wqkv": _w((lambda *s: torch.randn(*s, dtype=torch.bfloat16) * 0.8)(D, 3 * D)),
            "wo": _w((lambda *s: torch.randn(*s, dtype=torch.bfloat16) * 0.05)(D, D)),
        }
    _B_in = _B_setup()

    return {
        "A_u": _A_in["u"],
        "A_A_re": _A_in["A_re"],
        "A_A_im": _A_in["A_im"],
        "A_B_re": _A_in["B_re"],
        "A_B_im": _A_in["B_im"],
        "A_C_re": _A_in["C_re"],
        "A_C_im": _A_in["C_im"],
        "A_log_dt": _A_in["log_dt"],
        "A_Dskip": _A_in["Dskip"],
        "B_x": _B_in["x"],
        "B_wqkv": _B_in["wqkv"],
        "B_wo": _B_in["wo"],
        "gate_w": _w((lambda *s: torch.randn(*s, dtype=torch.bfloat16) * 0.05)(576) * 16.0),
    }

def reference(A_u, A_A_re, A_A_im, A_B_re, A_B_im, A_C_re, A_C_im, A_log_dt, A_Dskip, B_x, B_wqkv, B_wo, gate_w):
    def _A_ref(u, A_re, A_im, B_re, B_im, C_re, C_im, log_dt, Dskip):
        Bsz, L, D = u.shape
        dt = torch.exp(log_dt)[:, None]
        A = A_re + 1j * A_im
        Bc = B_re + 1j * B_im
        Cc = C_re + 1j * C_im
        logdA = dt * A
        dB = dt * Bc
        l = (lambda x, dt: x.to(dt))(torch.arange(L), A_re.dtype)
        P = torch.exp(logdA[:, :, None] * l[None, None, :])
        K = torch.einsum("dn,dnl,dn->dl", Cc, P, dB).real
        L2 = 2 * L
        Kp = _pad(K, ((0, 0), (0, L)))
        up = (lambda x, *d: x.permute(*d))(u, 0, 2, 1)
        up = _pad(up, ((0, 0), (0, 0), (0, L)))
        Kf = (lambda x, axes=(-2,-1): torch.fft.rfft2(x.float(), dim=axes))(Kp[:, None, :], axes=(-2, -1))
        Uf = (lambda x, axes=(-2,-1): torch.fft.rfft2(x.float(), dim=axes))(up[:, :, None, :], axes=(-2, -1))
        Yf = Uf * Kf[None, :, :, :]
        y = (lambda x, s, axes=(-2,-1): torch.fft.irfft2(x, s=s, dim=axes).to(torch.bfloat16))(Yf, (1, L2), axes=(-2, -1))[:, :, 0, :L]
        y = (lambda x, *d: x.permute(*d))(y, 0, 2, 1) + u * Dskip[None, None, :]
        return y

    def _B_ref(x, wqkv, wo):
        B, S, D = x.shape
        H = 32
        Dh = D // H
        qkv = (lambda x, *d: x.permute(*d))((x @ wqkv).reshape(B, S, 3, H, Dh), 2, 0, 3, 1, 4)
        q, k, v = qkv[0], qkv[1], qkv[2]
        scores = torch.einsum("bhqd,bhkd->bhqk", q, k) * (Dh ** -0.5)
        p = _softmax(scores, axis=-1)
        o = torch.einsum("bhqk,bhkd->bhqd", p, v)
        return (lambda x, *d: x.permute(*d))(o, 0, 2, 1, 3).reshape(B, S, D) @ wo

    x = A_u
    g = _sigmoid((x * gate_w).sum(-1, keepdims=True))
    a = _A_ref(x, A_A_re, A_A_im, A_B_re, A_B_im, A_C_re, A_C_im, A_log_dt, A_Dskip)
    b = _B_ref(x, B_wqkv, B_wo)
    return g * a + (1 - g) * b
```

```python
import struct
class Asm:
    def __init__(self):
        self.l = []
    def __call__(self, s):
        for x in s.split("\n"):
            x = x.strip()
            if x: self.l.append("    " + x)
    def label(self, n): self.l.append(n + ":")
    def raw(self, s): self.l.append(s)
    def text(self): return "\n".join(self.l) + "\n"
    def extend(self, o): self.l.extend(o.l)
def v(a, n=1): return f"v{a}" if n == 1 else f"v[{a}:{a+n-1}]"
def s(a, n=1): return f"s{a}" if n == 1 else f"s[{a}:{a+n-1}]"
def f32(x): return "0x%08x" % struct.unpack("<I", struct.pack("<f", x))[0]
def srd(A, d, base, nbytes):
    A(f"s_mov_b32 s{d}, s{base}\ns_mov_b32 s{d+1}, s{base+1}\ns_mov_b32 s{d+2}, {nbytes}\ns_mov_b32 s{d+3}, 0x00020000")
def kd(name, nv, ns=102, acc=None):
    acc = acc or ((nv + 3)//4*4)
    return f""".p2align 6
.amdhsa_kernel {name}
  .amdhsa_next_free_vgpr {nv}
  .amdhsa_next_free_sgpr {ns}
  .amdhsa_accum_offset {acc}
  .amdhsa_group_segment_fixed_size 0
  .amdhsa_kernarg_size 128
  .amdhsa_user_sgpr_count 2
  .amdhsa_user_sgpr_kernarg_segment_ptr 1
  .amdhsa_system_sgpr_workgroup_id_x 1
.end_amdhsa_kernel
"""
def head(A, name):
    A.raw(f".globl {name}\n.p2align 8\n.type {name},@function\n{name}:")
def cost(line):
    op = line.split()[0]
    if op.endswith(":"): return 0
    if op.startswith(("v_exp", "v_sin", "v_cos", "v_rcp", "v_log", "v_rsq", "v_sqrt")): return 8
    if op.startswith(("v_mfma", "v_smfmac")): return 32
    if op.startswith("ds_write"): return 8
    if op.startswith("s_waitcnt"): return 40
    if op.startswith("s_nop"): return 4*(int(line.split()[1])+1)
    return 4
def spread_barriers(lines, nb, frac=1.0):
    tot = sum(cost(x.strip()) for x in lines)*frac
    out = []; acc = 0; k = 0
    for x in lines:
        out.append(x); acc += cost(x.strip())
        if k < nb and acc >= tot*(k+1)/nb:
            out.append("    s_barrier"); k += 1
    while k < nb:
        out.append("    s_barrier"); k += 1
    return out
P_U, P_ARE, P_AIM, P_BRE, P_BIM, P_CRE, P_CIM, P_LDT, P_DSK, P_BX, P_WQKV, P_WO, P_GW, P_OUT, P_DBG, P_WS = [16+2*i for i in range(16)]

import os
DIAG = int(os.environ.get("DIAG", "0"))
STAMP_OFF = 32 << 20
TIMER = "s_memtime" if DIAG == 2 else "s_memrealtime"
STAMP_ON = [True]
def stamp(A, i):
    if DIAG and STAMP_ON[0]: A(f"{TIMER} s[{72+2*i}:{73+2*i}]")
def stamp_init(A):
    if DIAG:
        for i in range(1, 12): A(f"s_mov_b32 s{72+2*i}, 0")
        stamp(A, 0)
def endpgm(A, kern, wave="s3"):
    if DIAG:
        A(f"""
        s_waitcnt vmcnt(0)
        {TIMER} s[94:95]
        s_waitcnt lgkmcnt(0)
        s_mov_b64 exec, -1
        s_mov_b32 s64, s{P_WS}
        s_mov_b32 s65, s{P_WS+1}
        s_mov_b32 s66, {STAMP_OFF + (1<<22)}
        s_mov_b32 s67, 0x00020000
        s_lshl_b32 s68, s2, 4
        s_add_u32 s68, s68, {wave}
        s_lshl_b32 s68, s68, 6
        s_add_u32 s68, s68, {STAMP_OFF + kern*(1<<19)}
        v_mov_b32 v1, 0
        """)
        for i in range(12): A(f"v_mov_b32 v{4+i}, s{72+2*i}")
        for i in range(3): A(f"buffer_store_dwordx4 v[{4+4*i}:{7+4*i}], v1, s[64:67], s68 offen offset:{16*i}")
    A("s_endpgm")

def stampc(A, i):
    if DIAG: A(f"s_memtime s[{72+2*i}:{73+2*i}]")
```

```python
import math
from asmlib import *
from layouts import *
LOG2E = 1.4426950408889634
QSCALE = LOG2E / math.sqrt(18.0)
ST = ""
STA = ""

def gemm(A):
    VX, VW = 4, 8
    AX, AW = 12, 20
    FR = 24
    ACC = 56
    sRG, sCG, sWB, sT, sT2 = 48, 49, 50, 51, 52
    A(f"""
    s_and_b32 s53, s2, 7
    s_lshr_b32 s54, s2, 3
    s_lshr_b32 s55, s53, 1
    s_lshl_b32 s55, s55, 2
    s_and_b32 s56, s54, 3
    s_add_u32 s{sRG}, s55, s56
    s_and_b32 s53, s53, 1
    s_mul_i32 s53, s53, 7
    s_lshr_b32 s54, s54, 2
    s_add_u32 s{sCG}, s53, s54
    s_lshl_b32 s{sWB}, s3, 12
    s_lshl_b32 s53, s{sRG}, 7
    s_lshl_b32 s54, s3, 5
    s_add_u32 s53, s53, s54
    v_lshrrev_b32 v1, 3, v0
    v_add_u32 v1, s53, v1
    v_mul_u32_u24 v1, 1152, v1
    v_lshrrev_b32 v2, 4, v0
    v_and_b32 v3, 7, v0
    v_xor_b32 v3, v3, v2
    v_lshl_add_u32 v{VX}, v3, 4, v1
    v_xor_b32 v3, 4, v3
    v_lshl_add_u32 v{VX+1}, v3, 4, v1
    v_add_u32 v{VX+1}, 8192, v{VX+1}
    v_add_u32 v{VX+2}, 16384, v{VX}
    v_add_u32 v{VX+3}, 16384, v{VX+1}
    s_lshl_b32 s53, s3, 4
    v_add_u32 v1, s53, v2
    v_mul_u32_u24 v1, 3456, v1
    v_and_b32 v3, 15, v0
    v_lshlrev_b32 v2, 2, v2
    v_xor_b32 v3, v3, v2
    v_lshl_add_u32 v1, v3, 4, v1
    s_lshl_b32 s53, s{sCG}, 8
    v_add_u32 v{VW}, s53, v1
    v_add_u32 v{VW+1}, 12800, v{VW}
    v_add_u32 v{VW+2}, 25600, v{VW}
    v_add_u32 v{VW+3}, 38400, v{VW}
    s_waitcnt lgkmcnt(0)
    """)
    srd(A, 4, P_U, 2048*1152)
    srd(A, 8, P_WQKV, 576*3456)
    def dma(c):
        sl = c % 4
        A(f"s_add_u32 m0, s{sWB}, {sl*32768}\ns_movk_i32 s{sT}, {c*128}")
        for n in range(4): A(f"buffer_load_dwordx4 v{VX+n}, s[4:7], s{sT} offen offset:{1024*n} lds")
        A(f"s_add_u32 m0, s{sWB}, {sl*32768+16384}\ns_mov_b32 s{sT2}, {c*64*3456}")
        for n in range(4): A(f"buffer_load_dwordx4 v{VW+n}, s[8:11], s{sT2} offen offset:{1024*n} lds")
    stamp(A, 1)
    for c in range(4): dma(c)
    stamp(A, 2)
    srd(A, 12, P_WS, WS_USED)
    A(f"""
    s_and_b32 s53, s3, 1
    s_lshr_b32 s54, s3, 1
    s_lshl_b32 s55, s53, 13
    v_and_b32 v1, 31, v0
    v_lshlrev_b32 v1, 7, v1
    v_add_u32 v1, s55, v1
    v_lshrrev_b32 v2, 5, v0
    v_bfe_u32 v3, v0, 1, 3
    v_xor_b32 v3, v3, v2
    v_lshl_add_u32 v{AX}, v3, 4, v1
    v_xor_b32 v{AX+1}, 32, v{AX}
    v_xor_b32 v{AX+2}, 64, v{AX}
    v_xor_b32 v{AX+3}, 0x60, v{AX}
    """)
    for i in range(4): A(f"v_add_u32 v{AX+4+i}, 0x10000, v{AX+i}")
    A(f"""
    v_bfe_u32 v1, v0, 2, 2
    v_lshl_add_u32 v3, v2, 3, v1
    v_lshlrev_b32 v3, 8, v3
    s_lshl_b32 s55, s54, 1
    v_xor_b32 v1, s55, v1
    v_lshl_add_u32 v3, v1, 6, v3
    v_bfe_u32 v1, v0, 4, 1
    v_lshl_add_u32 v3, v1, 5, v3
    v_and_b32 v1, 3, v0
    v_lshl_add_u32 v3, v1, 3, v3
    v_add_u32 v{AW}, 16384, v3
    v_xor_b32 v{AW+1}, 64, v{AW}
    v_add_u32 v{AW+2}, 0x10000, v{AW}
    v_add_u32 v{AW+3}, 0x10000, v{AW+1}
    """)
    def reads(c, ks):
        sl = c % 4; hi = sl >> 1; off = (sl & 1)*32768
        b = FR + 16*((4*c+ks) & 1)
        for t in range(2):
            A(f"ds_read_b128 {v(b+4*t,4)}, v{AX+4*hi+ks} offset:{off+4096*t}")
        for f in range(2):
            for t in range(2):
                A(f"ds_read_b64_tr_b16 {v(b+8+4*f+2*t,2)}, v{AW+2*hi+f} offset:{off+ks*4096+t*1024}")
    def mf(c, ks, i, vtype):
        b = FR + 16*((4*c+ks) & 1)
        t, f = i >> 1, i & 1
        d = v(ACC+16*i, 16); x = v(b+4*t, 4); w = v(b+8+4*f, 4)
        cin = "0" if (c == 0 and ks == 0) else d
        A(f"v_mfma_f32_32x32x16_bf16 {d}, {x if vtype else w}, {w if vtype else x}, {cin}")
    def main(vtype):
        A("s_waitcnt vmcnt(24)"); stamp(A, 3); A("s_barrier"); stamp(A, 4)
        reads(0, 0)
        for c in range(9):
            for ks in range(4):
                if ks == 0 and c in (2, 4, 6, 8): stamp(A, 4 + c//2)
                A("s_waitcnt lgkmcnt(0)")
                if ks < 3:
                    mf(c, ks, 0, vtype); reads(c, ks+1)
                    for i in (1, 2, 3): mf(c, ks, i, vtype)
                else:
                    if c < 8:
                        A(f"s_waitcnt vmcnt({8*(min(c+3,8)-(c+1))})\ns_barrier")
                        mf(c, ks, 0, vtype); reads(c+1, 0); mf(c, ks, 1, vtype)
                        if c+4 <= 8: dma(c+4)
                        mf(c, ks, 2, vtype); mf(c, ks, 3, vtype)
                    else:
                        for i in range(4): mf(c, ks, i, vtype)
        stamp(A, 9)
    A(f"""
    s_lshl_b32 s56, s{sRG}, 1
    s_add_u32 s56, s56, s53
    s_lshl_b32 s57, s{sCG}, 1
    s_add_u32 s57, s57, s54
    s_cmp_ge_u32 s{sCG}, 9
    s_cbranch_scc1 L_k1_vtype
    """)
    main(False)
    A(f"""
    s_mul_i32 s58, s56, {2*QKQ_TT}
    s_lshl_b32 s59, s57, 12
    s_add_u32 s58, s58, s59
    s_add_u32 s59, s58, {QKQ_TT}
    s_cmp_lt_u32 s57, 9
    s_cselect_b32 s60, {f32(QSCALE)}, 1.0
    s_mov_b32 s61, s60
    v_and_b32 v1, 0x33, v0
    v_bfe_u32 v2, v0, 2, 1
    v_lshl_or_b32 v1, v2, 3, v1
    v_bfe_u32 v2, v0, 3, 1
    v_lshl_or_b32 v1, v2, 2, v1
    v_lshlrev_b32 v1, 3, v1
    s_nop 4
    """)
    for i in range(4):
        t, f = i >> 1, i & 1
        a = ACC + 16*i
        for j in range(8): A(f"v_pk_mul_f32 {v(a+2*j,2)}, {v(a+2*j,2)}, s[60:61]")
        for j in range(8): A(f"v_cvt_pk_bf16_f32 v{a+j}, v{a+2*j}, v{a+2*j+1}")
        for g in range(4):
            A(f"buffer_store_dwordx2 {v(a+2*g,2)}, v1, s[12:15], s{58+t} offen offset:{f*2048+g*512} {ST}")
    endpgm(A, 0)
    A.label("L_k1_vtype")
    main(True)
    A(f"""
    s_mul_i32 s58, s56, {2*VT_TT}
    s_lshl_b32 s59, s57, 10
    s_add_u32 s58, s58, s59
    s_add_u32 s58, s58, {VT_OFF - 18*1024}
    s_add_u32 s59, s58, {2*VT_ROW}
    s_add_u32 s60, s58, {VT_TT}
    s_add_u32 s61, s59, {VT_TT}
    v_lshrrev_b32 v2, 5, v0
    v_mul_u32_u24 v2, {VT_ROW}, v2
    v_and_b32 v1, 31, v0
    v_lshl_add_u32 v1, v1, 4, v2
    s_cmp_eq_u32 s57, 27
    s_cbranch_scc1 L_k1_ones
    s_nop 5
    """)
    for i in range(4):
        t, f = i >> 1, i & 1
        a = ACC + 16*i
        for j in range(8): A(f"v_cvt_pk_bf16_f32 v{a+j}, v{a+2*j}, v{a+2*j+1}")
        for m in range(2):
            A(f"buffer_store_dwordx4 {v(a+4*m,4)}, v1, s[12:15], s{58+2*t+m} offen offset:{f*512} {ST}")
    endpgm(A, 0)
    A.label("L_k1_ones")
    A("v_mov_b32 v4, 0x3f803f80\nv_mov_b32 v5, v4\nv_mov_b32 v6, v4\nv_mov_b32 v7, v4")
    A("s_mov_b32 exec_lo, 0xff\ns_mov_b32 exec_hi, 0xff")
    for q in range(4):
        A(f"buffer_store_dwordx4 v[4:7], v1, s[12:15], s{58+q} offen {ST}")
    endpgm(A, 0)

NROW = [[0,1,2,3,4,5,6,7, 14,15,16, 20,21, 22,23, 0], [9,9,10,11,11,11,12,13, 17,18,19, 24,25, 26,27, 0]]
def kgen_table():
    T = []
    for lane in range(64):
        i = lane & 31; hh = lane >> 5
        g, h2, ii = i >> 3, (i >> 2) & 1, i & 3
        n = NROW[h2][4*g + ii]
        ra = n*128 + ((hh ^ (n >> 2)) << 4)
        b = 8*(i & 3) + (i >> 2)
        rb = 4096 + b*128 + ((hh ^ (b >> 2)) << 4)
        if b > 0: pb, ph = b-1, hh
        else: pb, ph = 31, 0
        pl = 32*ph + 4*(pb & 7) + (pb >> 3)
        so = (7 - (b & 7))*1536 + (16 + (b >> 3))*32
        T += [ra, rb, pl*4, so]
    return T

def kgen(A):
    B = Asm()
    PR = 4
    TB = 16
    vDT, vDS = 20, 21
    C1R, C1I, C2R, C2I = 22, 23, 24, 25
    WA = 26
    M = 34
    X = 74
    T = 82
    R = 90
    RA = 218
    U = 226
    A(f"""
    s_getpc_b64 s[50:51]
    L_kg_pc:
    s_add_u32 s50, s50, kgen_tab-L_kg_pc
    s_addc_u32 s51, s51, 0
    v_lshlrev_b32 v1, 4, v0
    global_load_dwordx4 {v(TB,4)}, v1, s[50:51]
    v_and_b32 v1, 31, v0
    s_lshl_b32 s52, s48, 8
    v_lshl_add_u32 v2, v1, 3, s52
    s_lshl_b32 s52, s48, 1
    v_mov_b32 v3, s52
    s_waitcnt lgkmcnt(0)
    global_load_ushort v{vDT}, v3, {s(P_LDT,2)}
    global_load_ushort v{vDS}, v3, {s(P_DSK,2)}
    """)
    for i, p in enumerate([P_ARE, P_AIM, P_BRE, P_BIM, P_CRE, P_CIM]):
        A(f"global_load_dwordx2 {v(PR+2*i,2)}, v2, {s(p,2)}")
    srd(A, 12, P_WS, WS_USED)
    A(f"""
    v_mov_b32 v{C1R}, {f32(LOG2E)}
    v_mov_b32 v{C1I}, {f32(1/(2*math.pi))}
    v_mov_b32 v{C2R}, {f32(248*LOG2E)}
    v_mov_b32 v{C2I}, {f32(248/(2*math.pi))}
    s_mov_b32 exec_lo, 0
    v_mov_b32 v{C1R}, {f32(8*LOG2E)}
    v_mov_b32 v{C1I}, {f32(-8/(2*math.pi))}
    v_mov_b32 v{C2R}, v{C1R}
    v_mov_b32 v{C2I}, v{C1I}
    s_mov_b32 exec_lo, -1
    v_lshrrev_b32 v2, 5, v0
    v_lshlrev_b32 v2, 12, v2
    v_lshl_add_u32 v2, v1, 2, v2
    v_add_u32 v2, s49, v2
    """)
    for q in range(8):
        A(f"v_xor_b32 v{WA+q}, {q*16}, v2")
        if q: A(f"v_add_u32 v{WA+q}, {q*512}, v{WA+q}")
    A(f"""
    v_mov_b32 v{U}, 0
    v_mov_b32 v{U+1}, 0
    v_mov_b32 v{U+2}, 0
    v_mov_b32 v{U+3}, 0
    v_lshrrev_b32 v2, 5, v0
    v_mul_u32_u24 v2, 1536, v2
    v_lshl_add_u32 v2, v1, 4, v2
    s_mul_i32 s53, s48, {KC_CH}
    s_add_u32 s53, s53, {KC_OFF}
    s_add_u32 s54, s53, 6144
    buffer_store_dwordx4 {v(U,4)}, v2, s[12:15], s53 offen {STA}
    buffer_store_dwordx4 {v(U,4)}, v2, s[12:15], s53 offen offset:3072 {STA}
    buffer_store_dwordx4 {v(U,4)}, v2, s[12:15], s54 offen {STA}
    buffer_store_dwordx4 {v(U,4)}, v2, s[12:15], s54 offen offset:3072 {STA}
    s_mul_i32 s54, s48, {UT_ROW}
    s_add_u32 s54, s54, {UT_OFF}
    v_lshlrev_b32 v2, 2, v1
    s_mov_b32 exec_hi, 0
    buffer_store_dword v{U}, v2, s[12:15], s54 offen {STA}
    s_mov_b32 exec_hi, -1
    s_barrier
    """)
    stamp(A, 4)
    B(f"""
    s_waitcnt vmcnt(5)
    v_lshlrev_b32 v{vDT}, 16, v{vDT}
    v_mul_f32 v{vDT}, {f32(LOG2E)}, v{vDT}
    v_exp_f32 v{vDT}, v{vDT}
    v_lshlrev_b32 v{vDS}, 16, v{vDS}
    v_cvt_pk_bf16_f32 v{vDT}, v{vDT}, v{vDT}
    v_and_b32 v{vDT}, 0xffff0000, v{vDT}
    """)
    def unpack(d, arr, k):
        src = PR + 2*arr + (k >> 1)
        B(f"v_and_b32 v{d}, 0xffff0000, v{src}" if k & 1 else f"v_lshlrev_b32 v{d}, 16, v{src}")
    Mx = lambda j, k: M + 8*j + 2*k
    def cmul(B, d, x, m, t):
        B(f"v_pk_mul_f32 {v(t,2)}, {v(x,2)}, {v(m,2)} op_sel:[0,0] op_sel_hi:[0,1]")
        return f"v_pk_fma_f32 {v(d,2)}, {v(x,2)}, {v(m,2)}, {v(t,2)} op_sel:[1,1,0] op_sel_hi:[1,0,1] neg_lo:[1,0,0]"
    for k in range(4):
        unpack(U+2*k, 0, k); unpack(U+2*k+1, 1, k)
    for k in range(4):
        B(f"v_mul_f32 v{U+2*k}, v{vDT}, v{U+2*k}\nv_mul_f32 v{U+2*k+1}, v{vDT}, v{U+2*k+1}")
    for (j, cr, ci) in ((0, C1R, C1I), (4, C2R, C2I)):
        for k in range(4):
            B(f"v_mul_f32 v{T+2*k}, v{cr}, v{U+2*k}\nv_mul_f32 v{T+2*k+1}, v{ci}, v{U+2*k+1}")
        for k in range(4):
            B(f"v_fract_f32 v{T+2*k+1}, v{T+2*k+1}\nv_exp_f32 v{T+2*k}, v{T+2*k}")
        for k in range(4):
            B(f"v_cos_f32 v{Mx(j,k)}, v{T+2*k+1}\nv_sin_f32 v{Mx(j,k)+1}, v{T+2*k+1}")
        B("s_nop 0")
        for k in range(4):
            B(f"v_pk_mul_f32 {v(Mx(j,k),2)}, {v(Mx(j,k),2)}, {v(T+2*k,2)} op_sel:[0,0] op_sel_hi:[1,0]")
    B("s_mov_b32 exec_lo, 0")
    for k in range(4):
        for j in (1, 2, 3): B(f"v_pk_mov_b32 {v(Mx(j,k),2)}, {v(Mx(0,k),2)}, {v(Mx(0,k),2)} op_sel:[0,1]")
        B(f"v_mov_b32 v{X+2*k}, 1.0\nv_mov_b32 v{X+2*k+1}, 0")
    B("s_mov_b32 exec_lo, -1\ns_mov_b32 exec_hi, 0")
    for j in (1, 2, 3):
        l = [cmul(B, Mx(j,k), Mx(j-1,k), Mx(j-1,k), T+2*k) for k in range(4)]
        for x in l: B(x)
    for k in range(4):
        unpack(U+2*k, 2, k); unpack(U+2*k+1, 3, k); unpack(U+8+2*k, 4, k); unpack(U+8+2*k+1, 5, k)
    for k in range(4):
        B(f"v_mul_f32 v{U+2*k}, v{vDT}, v{U+2*k}\nv_mul_f32 v{U+2*k+1}, v{vDT}, v{U+2*k+1}")
    l = [cmul(B, X+2*k, U+2*k, U+8+2*k, T+2*k) for k in range(4)]
    for x in l: B(x)
    B("s_mov_b32 exec_hi, -1")
    stamp(B, 5)
    mult = [0]*8 + [4] + [1]*4 + [4] + [2]*2 + [4] + [2]*2 + [4, 3, 4, 3, 4, 3, 4, 3] + [3]*4
    assert len(mult) == 31
    for n in range(32):
        if n < 31:
            l = [cmul(B, X+2*k, X+2*k, Mx(mult[n], k), T+2*k) for k in range(4)]
        for k in range(4): B(f"v_cvt_pk_bf16_f32 v{R+4*n+k}, v{X+2*k}, v{X+2*k+1}")
        if n < 31:
            for x in l: B(x)
    stamp(B, 6)
    for sd in range(2):
        B(f"v_add_u32 v{RA+4*sd}, s49, v{TB+sd}")
        for q in (1, 2, 3): B(f"v_xor_b32 v{RA+4*sd+q}, {q*32}, v{RA+4*sd}")
    FR = M
    AC = 66
    for p in range(4):
        for q in range(8):
            B(f"ds_write2_b32 v{WA+q}, v{R+4*(4*q)+p}, v{R+4*(4*q+1)+p} offset0:0 offset1:32")
            B(f"ds_write2_b32 v{WA+q}, v{R+4*(4*q+2)+p}, v{R+4*(4*q+3)+p} offset0:64 offset1:96")
        for q in range(4):
            B(f"ds_read_b128 {v(FR+8*q,4)}, v{RA+q}\nds_read_b128 {v(FR+8*q+4,4)}, v{RA+4+q}")
        for q in range(4):
            B(f"s_waitcnt lgkmcnt({6-2*q})")
            B(f"v_mfma_f32_32x32x16_bf16 {v(AC,16)}, {v(FR+8*q,4)}, {v(FR+8*q+4,4)}, {'0' if p == 0 and q == 0 else v(AC,16)}")
    A.l.extend(spread_barriers(B.l, 8, 0.97))
    stamp(A, 9)
    O = AC; PV = 82; P3 = 83; P4 = 84; D = 90
    A(f"""
    s_nop 15
    ds_bpermute_b32 v{PV}, v{TB+2}, v{O+7}
    s_mov_b64 exec, 1
    v_add_f32 v{O}, v{O}, v{vDS}
    s_waitcnt lgkmcnt(0)
    v_mov_b32 v{PV}, 0
    s_mov_b64 exec, -1
    s_mov_b32 vcc_lo, 0xf0f0f0f0
    s_mov_b32 vcc_hi, 0xf0f0f0f0
    v_cndmask_b32 v{P3}, v{O+11}, v{O+12}, vcc
    v_cndmask_b32 v{P4}, v{O+13}, v{O+14}, vcc
    v_lshrrev_b32 v2, 5, v0
    v_lshl_add_u32 v3, v2, 7, v{TB+3}
    v_lshl_add_u32 v2, v2, 8, v{TB+3}
    """)
    groups = [([O+i for i in range(8)], PV, 3, 0),
              ([O+8]*3 + [O+9]*3 + [O+10]*2, O+8, 3, 8*32),
              ([O+11]*4 + [P3] + [O+12]*3, O+11, 2, 16*32),
              ([O+13]*4 + [P4] + [O+14]*3, O+13, 2, 20*32)]
    for gi, (o, pv, areg, off) in enumerate(groups):
        d = D + 8*gi
        c0 = [o[6], o[5], o[4], o[3], o[2], o[1], o[0], pv]
        c1 = [o[7], o[6], o[5], o[4], o[3], o[2], o[1], o[0]]
        for j in range(4): A(f"v_cvt_pk_bf16_f32 v{d+j}, v{c0[2*j]}, v{c0[2*j+1]}")
        for j in range(4): A(f"v_cvt_pk_bf16_f32 v{d+4+j}, v{c1[2*j]}, v{c1[2*j+1]}")
        A(f"buffer_store_dwordx4 {v(d,4)}, v{areg}, s[12:15], s53 offen offset:{off} {STA}")
        A(f"buffer_store_dwordx4 {v(d+4,4)}, v{areg}, s[12:15], s53 offen offset:{off+16} {STA}")
    endpgm(A, 0)

def trans_u(A):
    A(f"""
    s_mul_i32 s50, s48, 7282
    s_lshr_b32 s50, s50, 16
    s_mul_i32 s51, s50, 9
    s_sub_u32 s51, s48, s51
    s_mul_i32 s52, s50, {64*1152}
    s_lshl_b32 s53, s51, 7
    s_add_u32 s52, s52, s53
    v_lshrrev_b32 v1, 3, v0
    v_mul_u32_u24 v2, 1152, v1
    v_bfe_u32 v3, v0, 4, 1
    v_lshlrev_b32 v3, 2, v3
    v_and_b32 v4, 7, v0
    v_xor_b32 v3, v3, v4
    v_lshl_add_u32 v2, v3, 4, v2
    s_waitcnt lgkmcnt(0)
    """)
    srd(A, 4, P_U, 2048*1152)
    for n in range(8):
        A(f"s_add_u32 m0, s49, {n*1024}\ns_add_u32 s53, s52, {n*9216}")
        A(f"buffer_load_dwordx4 v2, s[4:7], s53 offen lds")
    srd(A, 12, P_WS, WS_USED)
    A(f"""
    v_bfe_u32 v3, v0, 2, 2
    v_lshrrev_b32 v5, 4, v0
    v_lshlrev_b32 v5, 5, v5
    v_and_b32 v6, 3, v0
    v_lshl_add_u32 v5, v6, 3, v5
    v_bfe_u32 v6, v0, 3, 1
    v_lshlrev_b32 v6, 6, v6
    v_xor_b32 v5, v5, v6
    v_lshl_add_u32 v5, v3, 7, v5
    v_add_u32 v5, s49, v5
    v_lshlrev_b32 v6, 7, v0
    v_lshl_add_u32 v6, v4, 4, v6
    v_add_u32 v6, s49, v6
    v_lshl_add_u32 v7, v0, 4, s49
    v_xor_b32 v3, v4, v1
    v_mul_u32_u24 v2, {UT_ROW}, v1
    v_lshl_add_u32 v2, v3, 4, v2
    s_mul_i32 s52, s51, {64*UT_ROW}
    s_lshl_b32 s53, s50, 7
    s_add_u32 s52, s52, s53
    s_add_u32 s52, s52, {UT_OFF+128}
    s_barrier
    s_waitcnt vmcnt(0)
    """)
    for p in range(8):
        for t in range(2):
            A(f"ds_read_b64_tr_b16 {v(8+4*p+2*t,2)}, v5 offset:{(8*p+4*t)*128}")
    for p in range(8): A(f"v_xor_b32 v{40+p}, {16*p}, v6")
    A("s_waitcnt lgkmcnt(0)")
    for p in range(8): A(f"ds_write_b128 v{40+p}, {v(8+4*p,4)}")
    for n in range(8): A(f"ds_read_b128 {v(48+4*n,4)}, v7 offset:{1024*n}")
    for n in range(8):
        A(f"s_waitcnt lgkmcnt({7-n})")
        A(f"buffer_store_dwordx4 {v(48+4*n,4)}, v2, s[12:15], s52 offen {STA}")
        if n < 7: A(f"s_add_u32 s52, s52, {8*UT_ROW}")
    endpgm(A, 0)

def trans_wo(A):
    A(f"""
    s_mul_i32 s50, s48, 3641
    s_lshr_b32 s50, s50, 16
    s_mul_i32 s51, s50, 18
    s_sub_u32 s51, s48, s51
    s_mul_i32 s52, s50, {72*1152}
    s_lshl_b32 s53, s51, 6
    s_add_u32 s52, s52, s53
    v_lshrrev_b32 v1, 2, v0
    v_mul_u32_u24 v2, 1152, v1
    v_and_b32 v4, 3, v0
    v_lshl_add_u32 v2, v4, 4, v2
    s_waitcnt lgkmcnt(0)
    """)
    srd(A, 4, P_WO, 576*1152)
    for n in range(5):
        A(f"s_add_u32 m0, s49, {n*1024}\ns_add_u32 s53, s52, {n*16*1152}")
        A(f"buffer_load_dwordx4 v2, s[4:7], s53 offen lds")
    srd(A, 12, P_WS, WS_USED)
    A(f"""
    v_and_b32 v5, 1, v0
    v_lshlrev_b32 v5, 5, v5
    v_bfe_u32 v6, v0, 1, 1
    v_lshl_add_u32 v5, v6, 3, v5
    v_bfe_u32 v6, v0, 4, 1
    v_lshl_add_u32 v5, v6, 4, v5
    v_add_u32 v5, s49, v5
    v_bfe_u32 v3, v0, 2, 2
    v_lshrrev_b32 v6, 5, v0
    v_lshl_add_u32 v6, v6, 2, v3
    v_lshl_add_u32 v6, v6, 6, v5
    v_bfe_u32 v7, v0, 3, 1
    v_mul_u32_u24 v7, {18*64}, v7
    v_bfe_u32 v3, v0, 2, 1
    v_lshl_add_u32 v7, v3, 6, v7
    v_add_u32 v7, v7, v5
    v_lshlrev_b32 v2, 4, v0
    s_mul_i32 s52, s50, {4*18*1024}
    s_lshl_b32 s53, s51, 10
    s_add_u32 s53, s53, {WOT_OFF}
    s_add_u32 s52, s52, s53
    s_lshr_b32 s54, s50, 1
    s_add_u32 s54, s54, 32
    s_mul_i32 s54, s54, {18*1024}
    s_add_u32 s54, s54, s53
    s_and_b32 s55, s50, 1
    s_lshl_b32 s55, s55, 9
    s_add_u32 s54, s54, s55
    s_barrier
    s_waitcnt vmcnt(0)
    """)
    for h in range(4):
        for t in range(2):
            A(f"ds_read_b64_tr_b16 {v(8+4*h+2*t,2)}, v6 offset:{(18*h+8*t)*64}")
    for t in range(2):
        A(f"ds_read_b64_tr_b16 {v(24+2*t,2)}, v7 offset:{(36*t+16)*64}")
    for h in range(4):
        A(f"s_waitcnt lgkmcnt({8-2*h})")
        A(f"buffer_store_dwordx4 {v(8+4*h,4)}, v2, s[12:15], s52 offen {STA}")
        if h < 3: A(f"s_add_u32 s52, s52, {18*1024}")
    A(f"""
    s_waitcnt lgkmcnt(0)
    s_mov_b32 exec_hi, 0
    buffer_store_dwordx4 v[24:27], v2, s[12:15], s54 offen {STA}
    """)
    endpgm(A, 0)

def gate(A):
    GW = 8; XD = 44
    A(f"""
    v_and_b32 v4, 7, v0
    v_lshlrev_b32 v4, 4, v4
    v_lshrrev_b32 v1, 3, v0
    v_mul_u32_u24 v2, 1152, v1
    v_add_u32 v2, v2, v4
    s_mul_i32 s52, s48, {32*1152}
    s_waitcnt lgkmcnt(0)
    """)
    srd(A, 4, P_U, 2048*1152)
    for j in range(9): A(f"global_load_dwordx4 {v(GW+4*j,4)}, v4, {s(P_GW,2)} offset:{128*j}")
    for n in range(4):
        for j in range(9): A(f"buffer_load_dwordx4 {v(XD+36*n+4*j,4)}, v2, s[4:7], s52 offen offset:{128*j}")
        if n < 3: A(f"s_add_u32 s52, s52, {8*1152}")
    srd(A, 12, P_WS, WS_USED)
    A("s_barrier")
    Z = 190
    for n in range(4):
        A(f"s_waitcnt vmcnt({27-9*n})\nv_mov_b32 v{Z+n}, 0\nv_mov_b32 v{Z+4+n}, 0")
        for j in range(36):
            A(f"v_dot2c_f32_bf16 v{Z+n+4*(j&1)}, v{XD+36*n+j}, v{GW+j}")
    A("s_nop 2")
    for n in range(4): A(f"v_add_f32 v{Z+n}, v{Z+n}, v{Z+4+n}")
    A("s_nop 1")
    for n in range(4): A(f"v_add_f32_dpp v{Z+n}, v{Z+n}, v{Z+n} quad_perm:[1,0,3,2] row_mask:0xf bank_mask:0xf")
    A("s_nop 1")
    for n in range(4): A(f"v_add_f32_dpp v{Z+n}, v{Z+n}, v{Z+n} quad_perm:[2,3,0,1] row_mask:0xf bank_mask:0xf")
    A("s_nop 1")
    for n in range(4): A(f"v_add_f32_dpp v{Z+n}, v{Z+n}, v{Z+n} row_half_mirror row_mask:0xf bank_mask:0xf")
    A(f"""
    v_and_b32 v5, 3, v0
    v_cmp_eq_u32 vcc, 1, v5
    s_nop 1
    v_cndmask_b32 v{Z}, v{Z}, v{Z+1}, vcc
    v_cmp_eq_u32 vcc, 2, v5
    s_nop 1
    v_cndmask_b32 v{Z}, v{Z}, v{Z+2}, vcc
    v_cmp_eq_u32 vcc, 3, v5
    s_nop 1
    v_cndmask_b32 v{Z}, v{Z}, v{Z+3}, vcc
    v_cvt_pk_bf16_f32 v{Z}, v{Z}, v{Z}
    v_and_b32 v{Z}, 0xffff0000, v{Z}
    v_mul_f32 v{Z}, {f32(-LOG2E)}, v{Z}
    v_exp_f32 v{Z}, v{Z}
    v_lshl_add_u32 v5, v5, 3, v1
    v_add_f32 v{Z}, 1.0, v{Z}
    v_rcp_f32 v{Z}, v{Z}
    v_lshlrev_b32 v5, 3, v5
    v_cvt_pk_bf16_f32 v{Z}, v{Z}, v{Z}
    v_and_b32 v{Z}, 0xffff0000, v{Z}
    v_sub_f32 v{Z+1}, 1.0, v{Z}
    v_cvt_pk_bf16_f32 v{Z+1}, v{Z+1}, v{Z+1}
    v_and_b32 v{Z+1}, 0xffff0000, v{Z+1}
    s_lshl_b32 s52, s48, 8
    s_add_u32 s52, s52, {G_OFF}
    buffer_store_dwordx2 {v(Z,2)}, v5, s[12:15], s52 offen {STA}
    """)
    endpgm(A, 0)

def k1(A):
    head(A, "k1_kernel")
    stamp_init(A)
    A(f"""
    s_load_dwordx16 s[16:31], s[0:1], 0
    s_load_dwordx16 s[32:47], s[0:1], 64
    v_lshrrev_b32 v1, 6, v0
    v_and_b32 v0, 63, v0
    v_readfirstlane_b32 s3, v1
    s_getpc_b64 s[50:51]
    v_lshlrev_b32 v2, 7, v0
    v_lshl_add_u32 v2, v1, 13, v2
    s_cmp_ge_u32 s3, 3
    s_cbranch_scc1 L_k1_nopf
    global_load_dword v255, v2, s[50:51]
    L_k1_nopf:
    s_cmp_ge_u32 s2, 224
    s_cbranch_scc1 L_k1_auxwg
    s_cmp_ge_u32 s3, 4
    s_cbranch_scc1 L_k1_auxwave
    """)
    gemm(A)
    A.label("L_k1_auxwg")
    A(f"""
    s_cmp_ge_u32 s2, 256
    s_cbranch_scc1 L_k1_end
    s_cmp_ge_u32 s3, 6
    s_cbranch_scc1 L_k1_end
    s_sub_u32 s48, s2, 224
    s_cmp_ge_u32 s3, 4
    s_cbranch_scc1 L_k1_gate
    s_lshl_b32 s48, s48, 2
    s_add_u32 s48, s48, s3
    s_add_u32 s48, s48, 448
    s_lshl_b32 s49, s3, 13
    s_branch L_k1_kgen
    L_k1_end:
    s_endpgm
    L_k1_auxwave:
    {"s_endpgm" if os.environ.get("NOAUX") else ""}
    s_lshl_b32 s49, s3, 13
    s_add_u32 s49, s49, {131072 - 4*8192}
    s_and_b32 s48, s3, 1
    s_lshl_b32 s50, s2, 1
    s_add_u32 s48, s48, s50
    s_cmp_ge_u32 s3, 6
    s_cbranch_scc1 L_k1_trans
    L_k1_kgen:
    """)
    kgen(A)
    A.label("L_k1_trans")
    A(f"""
    s_cmp_ge_u32 s48, 288
    s_cbranch_scc1 L_k1_trwo
    """)
    trans_u(A)
    A.label("L_k1_trwo")
    A(f"""
    s_sub_u32 s48, s48, 288
    s_cmp_ge_u32 s48, 144
    s_cbranch_scc1 L_k1_end
    """)
    trans_wo(A)
    A.label("L_k1_gate")
    A("s_lshl_b32 s48, s48, 1\ns_add_u32 s48, s48, s3\ns_sub_u32 s48, s48, 4")
    gate(A)
    A.raw(".p2align 4\n.type kgen_tab,@object\nkgen_tab:")
    T = kgen_table()
    for i in range(0, len(T), 8): A.raw("    .long " + ", ".join(str(x) for x in T[i:i+8]))
    A.raw(f".size kgen_tab, {4*len(T)}")
```

```python
import math
from asmlib import *
from layouts import *
NV = 168
ST = ""
HALF = 81920
GRP = 10240
PRIO = int(os.environ.get("PRIO", "1"))

IDX, AK, AV, OMG = 1, 2, 3, 4
QM = 6
QE = 14
KF = 22
KE = 26
VF = 30
S = 38
O = 70
TMP = 102

def attn(A):
    A(f"""
    s_and_b32 s50, s3, 3
    s_lshr_b32 s51, s3, 2
    s_lshl_b32 s52, s49, 3
    s_lshl_b32 s50, s50, 1
    s_add_u32 s52, s52, s50
    s_add_u32 s53, s52, s51
    s_xor_b32 s54, s53, 1
    s_lshr_b32 s55, s48, 1
    s_mul_i32 s55, s55, {9*256}
    s_and_b32 s56, s48, 1
    s_mul_i32 s57, s56, {5*256}
    s_add_u32 s57, s57, s55
    s_add_u32 s55, s55, {4*256}
    s_mul_i32 s58, s53, {QKQ_TT}
    s_mul_i32 s59, s54, {QKQ_TT}
    s_add_u32 s60, s58, s55
    s_add_u32 s61, s59, s55
    s_add_u32 s58, s58, s57
    s_add_u32 s59, s59, s57
    v_lshlrev_b32 v{AK}, 3, v0
    v_and_b32 v{TMP}, 31, v0
    v_lshlrev_b32 v{TMP+1}, 3, v{TMP}
    v_and_b32 v{TMP+2}, 0x13, v0
    v_bfe_u32 v{TMP+3}, v0, 2, 1
    v_lshl_or_b32 v{TMP+2}, v{TMP+3}, 3, v{TMP+2}
    v_bfe_u32 v{TMP+3}, v0, 3, 1
    v_lshl_or_b32 v{TMP+2}, v{TMP+3}, 2, v{TMP+2}
    v_lshlrev_b32 v{TMP+2}, 3, v{TMP+2}
    s_lshl_b32 s62, s53, 8
    s_add_u32 s62, s62, {G_OFF}
    s_waitcnt lgkmcnt(0)
    """)
    srd(A, 12, P_WS, WS_USED)
    for j in range(2):
        A(f"""
        buffer_load_dwordx2 {v(QM+4*j,2)}, v{AK}, s[12:15], s{58+j} offen
        buffer_load_dwordx2 {v(QM+4*j+2,2)}, v{AK}, s[12:15], s{58+j} offen offset:512
        buffer_load_dwordx2 {v(QE+4*j,2)}, v{TMP+1}, s[12:15], s{60+j} offen
        """)
    A(f"buffer_load_dword v{OMG}, v{TMP+2}, s[12:15], s62 offen offset:4")
    stamp(A, 1)
    A(f"""
    s_mul_i32 s63, s51, {HALF}
    v_add_u32 v{AK}, s63, v{AK}
    v_min_u32 v{TMP}, 18, v{TMP}
    v_lshrrev_b32 v{TMP+1}, 5, v0
    v_mad_u32_u24 v{TMP}, v{TMP+1}, 20, v{TMP}
    s_add_u32 s63, s63, 5120
    v_lshl_add_u32 v{AV}, v{TMP}, 4, s63
    v_mov_b32 v{IDX}, 0xdddddddd
    """)
    for i in range(32): A(f"v_mov_b32 v{O+i}, 0")
    for i in range(8): A(f"v_mov_b32 v{S+16+8+i}, 0")
    for i in range(4): A(f"v_mov_b32 v{VF+4+i}, 0")
    A(f"""
    s_cmp_eq_u32 s56, 0
    s_cselect_b32 s64, -1, 0
    s_not_b32 s65, s64
    s_waitcnt vmcnt(1)
    """)
    for j in range(2):
        e = QE + 4*j
        A(f"v_and_b32 v{e}, s64, v{e}\nv_and_b32 v{e+1}, s65, v{e+1}\nv_mov_b32 v{e+2}, 0\nv_mov_b32 v{e+3}, 0")
    A("s_mov_b32 exec_lo, 0")
    for j in range(2):
        e = QE + 4*j
        A(f"v_mov_b32 v{e+2}, v{e}\nv_mov_b32 v{e+3}, v{e+1}\nv_mov_b32 v{e}, 0\nv_mov_b32 v{e+1}, 0")
    A("s_mov_b32 exec_lo, -1")
    stamp(A, 2)
    A("s_barrier")
    stamp(A, 3)
    rdK = lambda t: f"ds_read2st64_b64 {v(KF,4)}, v{AK} offset0:{(t//4)*20+2*(t%4)} offset1:{(t//4)*20+2*(t%4)+1}"
    rdE = lambda g: f"ds_read2st64_b64 {v(KE,4)}, v{AK} offset0:{g*20+8} offset1:{g*20+9}"
    rdV = lambda t, m: f"ds_read_b128 {v(VF+4*m,4)}, v{AV} offset:{(t//4)*GRP+(4*(t%4)+2*m)*320}"
    M16 = lambda q: f"v_mfma_f32_32x32x16_bf16 {v(S+16*q,16)}, {v(KF,4)}, {v(QM+4*q,4)}, 0"
    M8 = lambda q, t: f"v_mfma_f32_32x32x8_bf16 {v(S+16*q,16)}, {v(KE+2*((t%4)>>1),2)}, {v(QE+4*q+2*(t&1),2)}, {v(S+16*q,16)}"
    PV = lambda q, m: f"v_smfmac_f32_32x32x32_bf16 {v(O+16*q,16)}, {v(VF+4*m,4)}, {v(S+16*q+8*m,8)}, v{IDX}"
    E = lambda q, i: f"v_exp_f32 v{S+16*q+i}, v{S+16*q+i}"
    A(rdK(0)); A(rdE(0)); A(rdV(0, 0))
    A("s_mov_b32 s66, 0")
    if PRIO: A("s_setprio 2")
    A("s_waitcnt lgkmcnt(1)")
    A(M16(0)); A(M8(0, 0)); A("s_nop 15")
    A.raw(".p2align 6")
    A.label("L_k2_loop")
    for t in range(4):
        for q in range(2):
            if t == 3 and q == 0:
                A("s_cmp_lg_u32 s66, 0\ns_cbranch_scc1 L_k2_nobar\ns_barrier\nL_k2_nobar:")
            tn = t + q
            A(E(q, 0)); A(E(q, 1))
            A(PV(1-q, 1))
            if q == 0: A(rdV(t, 1))
            else: A("s_waitcnt lgkmcnt(0)")
            for i in (2, 3, 4): A(E(q, i))
            A(M16(1-q))
            if q == 0: A("s_waitcnt lgkmcnt(1)"); A(rdK(t+1))
            elif t == 3: A("s_add_u32 s66, s66, 1")
            elif t == 0 and PRIO: A("s_cmp_eq_u32 s66, 7")
            for i in (5, 6, 7): A(E(q, i))
            A(M8(1-q, tn))
            for i in (8, 9, 10, 11): A(E(q, i))
            A(PV(q, 0))
            if q == 0:
                A("s_waitcnt lgkmcnt(1)")
                if t == 3: A(rdE(1))
            else:
                if t == 3: A("s_cmp_lt_u32 s66, 8")
                elif t == 0 and PRIO: A("s_cbranch_scc1 L_k2_lowprio\nL_k2_lowprio_ret:")
                A(rdV(t+1, 0))
            for i in (12, 13, 14, 15): A(E(q, i))
    A(f"v_add_u32 v{AK}, {GRP}, v{AK}\nv_add_u32 v{AV}, {GRP}, v{AV}")
    A("s_cbranch_scc1 L_k2_loop")
    A(PV(1, 1))
    stamp(A, 4)
    A(f"""
    s_mul_i32 s63, s3, 3072
    v_lshl_add_u32 v{AK}, v0, 4, s63
    s_xor_b32 s63, s3, 4
    s_mul_i32 s63, s63, 3072
    v_lshl_add_u32 v{AV}, v0, 4, s63
    s_waitcnt lgkmcnt(0)
    s_barrier
    s_nop 7
    """)
    stamp(A, 5)
    for i in range(3): A(f"ds_write_b128 v{AK}, {v(O+16+4*i,4)} offset:{1024*i}")
    A("s_waitcnt lgkmcnt(0)\ns_barrier")
    for i in range(3): A(f"ds_read_b128 {v(S+4*i,4)}, v{AV} offset:{1024*i}")
    A(f"""
    s_mul_i32 s58, s53, {OF_TT}
    s_add_u32 s58, s58, {OF_OFF}
    s_lshl_b32 s59, s48, 10
    s_add_u32 s59, s59, s58
    s_lshr_b32 s60, s48, 2
    s_lshl_b32 s60, s60, 9
    s_and_b32 s61, s48, 3
    s_lshl_b32 s61, s61, 2
    s_add_u32 s60, s60, s61
    s_add_u32 s60, s60, s58
    s_add_u32 s60, s60, {32*1024}
    s_mov_b32 s61, {f32(2.0**-60)}
    s_mov_b32 s62, {f32(2.0**40)}
    s_waitcnt lgkmcnt(0)
    """)
    for i in range(6): A(f"v_pk_add_f32 {v(O+2*i,2)}, {v(O+2*i,2)}, {v(S+2*i,2)}")
    A(f"""
    v_cmp_le_f32 vcc, s61, v{O+11}
    v_cmp_ge_f32 s[64:65], s62, v{O+11}
    s_and_b64 vcc, vcc, s[64:65]
    s_cmp_eq_u64 vcc, -1
    s_cbranch_scc0 L_k2_fallback
    L_k2_fin:
    v_rcp_f32 v{TMP}, v{O+11}
    v_lshlrev_b32 v{AK}, 4, v0
    s_waitcnt vmcnt(0)
    v_mul_f32 v{TMP}, v{TMP}, v{OMG}
    """)
    for i in range(10): A(f"v_mul_f32 v{O+i}, v{TMP}, v{O+i}")
    for i in range(5): A(f"v_cvt_pk_bf16_f32 v{O+i}, v{O+2*i}, v{O+2*i+1}")
    A(f"""
    buffer_store_dwordx4 {v(O,4)}, v{AK}, s[12:15], s59 offen {ST}
    s_mov_b32 exec_hi, 0
    buffer_store_dword v{O+4}, v{AK}, s[12:15], s60 offen {ST}
    """)
    endpgm(A, 1)
    if PRIO:
        A("L_k2_lowprio:\ns_setprio 0\ns_branch L_k2_lowprio_ret")
    MX = TMP + 4
    A.label("L_k2_fallback")
    A(f"""
    v_lshlrev_b32 v{AK}, 3, v0
    v_and_b32 v{TMP}, 31, v0
    v_lshlrev_b32 v{TMP+1}, 3, v{TMP}
    s_mul_i32 s63, s48, 18
    v_add_u32 v{TMP+2}, s63, v{TMP}
    v_mov_b32 v{TMP+3}, 576
    v_cmp_gt_u32 vcc, 18, v{TMP}
    v_lshrrev_b32 v{AV}, 5, v0
    v_mul_u32_u24 v{AV}, {VT_ROW}, v{AV}
    v_cndmask_b32 v{TMP+2}, v{TMP+3}, v{TMP+2}, vcc
    v_lshl_add_u32 v{AV}, v{TMP+2}, 4, v{AV}
    v_mov_b32 v{MX}, 0xff800000
    s_mov_b32 s67, 0
    """)
    for i in range(16): A(f"v_mov_b32 v{O+i}, 0")
    A(f"""
    L_k2_fb_pass:
    s_add_u32 s63, s57, {144*256}
    s_add_u32 s64, s55, {144*256}
    s_mov_b32 s65, {VT_OFF}
    s_mov_b32 s66, 0
    L_k2_fb_loop:
    s_add_u32 s68, s65, {2*VT_ROW}
    buffer_load_dwordx2 {v(KF,2)}, v{AK}, s[12:15], s63 offen
    buffer_load_dwordx2 {v(KF+2,2)}, v{AK}, s[12:15], s63 offen offset:512
    buffer_load_dwordx2 {v(KE,2)}, v{TMP+1}, s[12:15], s64 offen
    buffer_load_dwordx4 {v(VF,4)}, v{AV}, s[12:15], s65 offen
    buffer_load_dwordx4 {v(VF+4,4)}, v{AV}, s[12:15], s68 offen
    s_waitcnt vmcnt(0)
    {M16(0)}
    {M8(0, 0)}
    s_add_u32 s63, s63, {QKQ_TT}
    s_add_u32 s64, s64, {QKQ_TT}
    s_add_u32 s65, s65, {VT_TT}
    s_add_u32 s66, s66, 1
    s_nop 15
    s_cmp_lg_u32 s67, 0
    s_cbranch_scc1 L_k2_fb_p2
    """)
    for i in range(8): A(f"v_max3_f32 v{MX}, v{MX}, v{S+2*i}, v{S+2*i+1}")
    A(f"""
    s_cmp_lt_u32 s66, 64
    s_cbranch_scc1 L_k2_fb_loop
    v_mov_b32 v{MX+1}, v{MX}
    s_nop 1
    v_permlane32_swap_b32 v{MX}, v{MX+1}
    s_mov_b32 s67, 1
    v_max_f32 v{MX}, v{MX}, v{MX+1}
    s_branch L_k2_fb_pass
    L_k2_fb_p2:
    """)
    for i in range(16): A(f"v_sub_f32 v{S+i}, v{S+i}, v{MX}")
    for i in range(16): A(E(0, i))
    A(f"""
    s_nop 2
    {PV(0, 0)}
    {PV(0, 1)}
    s_cmp_lt_u32 s66, 64
    s_cbranch_scc1 L_k2_fb_loop
    s_nop 15
    s_branch L_k2_fin
    """)

def loader_conv(A):
    VD = 4
    A(f"""
    s_setprio 3
    s_and_b32 s50, s3, 1
    s_bfe_u32 s51, s3, 0x10001
    s_mul_i32 s52, s51, {HALF}
    s_cmp_eq_u32 s50, 0
    s_cbranch_scc0 L_k2_ldv
    s_lshr_b32 s55, s48, 1
    s_mul_i32 s55, s55, {9*256}
    s_and_b32 s56, s48, 1
    s_mul_i32 s57, s56, {5*256}
    v_lshl_add_u32 v{VD}, v0, 4, s57
    v_add_u32 v{VD+1}, {QKQ_TT-1024}, v{VD}
    v_add_u32 v{VD+2}, {2*(QKQ_TT-1024)}, v{VD}
    v_add_u32 v{VD+3}, {3*(QKQ_TT-1024)}, v{VD}
    v_lshrrev_b32 v1, 4, v0
    v_mul_u32_u24 v1, {QKQ_TT}, v1
    v_and_b32 v2, 15, v0
    v_lshl_add_u32 v1, v2, 4, v1
    v_add_u32 v{VD+4}, 1024, v1
    s_mul_i32 s53, s51, {32*QKQ_TT}
    s_add_u32 s53, s53, s55
    s_add_u32 s53, s53, {144*256}
    s_mov_b32 s54, {4*QKQ_TT}
    s_branch L_k2_ldgo
    L_k2_ldv:
    s_mul_i32 s55, s48, 18
    v_mov_b32 v10, 576
    """)
    for n in range(5):
        A(f"""
        v_add_u32 v1, {64*n}, v0
        v_mul_u32_u24 v2, 3277, v1
        v_lshrrev_b32 v2, 16, v2
        v_mul_u32_u24 v3, 20, v2
        v_sub_u32 v1, v1, v3
        v_cmp_gt_u32 vcc, 18, v1
        v_add_u32 v1, s55, v1
        v_mul_u32_u24 v2, {VT_ROW}, v2
        v_cndmask_b32 v1, v10, v1, vcc
        v_lshl_add_u32 v{VD+n}, v1, 4, v2
        """)
        if n % 4: A(f"v_subrev_u32 v{VD+n}, {1024*n}, v{VD+n}")
    A(f"""
    s_mul_i32 s53, s51, {32*VT_TT}
    s_add_u32 s53, s53, {VT_OFF}
    s_mov_b32 s54, {4*VT_TT}
    s_add_u32 s52, s52, 5120
    L_k2_ldgo:
    s_waitcnt lgkmcnt(0)
    """)
    srd(A, 12, P_WS, WS_USED)
    stamp(A, 1)
    A("s_mov_b32 s66, 0")
    A.label("L_k2_ldloop")
    A("s_mov_b32 m0, s52\ns_add_u32 s66, s66, 1")
    for n in range(4): A(f"buffer_load_dwordx4 v{VD+n}, s[12:15], s53 offen offset:{1024*n} lds")
    A(f"""
    s_add_u32 m0, s52, 4096
    s_add_u32 s52, s52, {GRP}
    buffer_load_dwordx4 v{VD+4}, s[12:15], s53 offen lds
    s_add_u32 s53, s53, s54
    s_cmp_lg_u32 s66, 2
    s_cbranch_scc1 L_k2_ldnb
    s_waitcnt vmcnt(5)
    s_barrier
    L_k2_ldnb:
    s_cmp_lt_u32 s66, 8
    s_cbranch_scc1 L_k2_ldloop
    """)
    stamp(A, 2)
    A(f"""
    s_and_b32 s50, s2, 7
    s_lshr_b32 s51, s2, 3
    s_cmp_eq_u32 s3, 11
    s_cbranch_scc1 L_k2_noconv
    s_cmp_eq_u32 s3, 10
    s_cbranch_scc0 L_k2_ch01
    s_cmp_ge_u32 s51, 8
    s_cbranch_scc1 L_k2_noconv
    s_lshl_b32 s50, s50, 3
    s_add_u32 s50, s50, 512
    s_branch L_k2_chgo
    L_k2_noconv:
    s_waitcnt vmcnt(0)
    s_barrier
    """)
    endpgm(A, 1)
    VU, VK = 1, 2
    AC = 4
    BUF = 36
    A(f"""
    L_k2_ch01:
    s_lshl_b32 s50, s50, 5
    s_and_b32 s52, s3, 1
    s_lshl_b32 s52, s52, 8
    s_add_u32 s50, s50, s52
    L_k2_chgo:
    s_add_u32 s50, s50, s51
    s_and_b32 s51, s50, 0x3e3
    s_bfe_u32 s52, s50, 0x10002
    s_lshl_b32 s52, s52, 4
    s_or_b32 s51, s51, s52
    s_bfe_u32 s52, s50, 0x20003
    s_lshl_b32 s52, s52, 2
    s_or_b32 s51, s51, s52
    s_mul_i32 s52, s51, {UT_ROW}
    s_add_u32 s52, s52, {UT_OFF+4}
    s_mul_i32 s56, s51, {KC_CH}
    s_add_u32 s56, s56, {KC_OFF+512-32}
    s_add_u32 s57, s56, 3072
    s_add_u32 s58, s56, 6144
    s_add_u32 s59, s56, 9216
    v_and_b32 v3, 31, v0
    v_lshrrev_b32 v{VK}, 5, v0
    v_lshlrev_b32 v{VU}, 4, v{VK}
    v_lshl_add_u32 v{VU}, v3, 2, v{VU}
    v_mul_u32_u24 v{VK}, 1536, v{VK}
    v_lshl_add_u32 v{VK}, v3, 4, v{VK}
    """)
    def loads(q):
        b = BUF + 16*q
        A(f"""
        buffer_load_dwordx4 {v(b,4)}, v{VU}, s[12:15], s52 offen offset:{32*q}
        buffer_load_dwordx4 {v(b+4,4)}, v{VK}, s[12:15], s{56+q%4} offen offset:{32*(1-q//4)}
        buffer_load_dwordx4 {v(b+8,4)}, v{VK}, s[12:15], s{56+q%4} offen offset:{32*(1-q//4)+512}
        buffer_load_dwordx4 {v(b+12,4)}, v{VU}, s[12:15], s52 offen offset:{32*q+2048}
        """)
    A("s_waitcnt vmcnt(28)")
    for q in range(8): loads(q)
    for i in range(32): A(f"v_mov_b32 v{AC+i}, 0")
    A("s_mov_b32 s66, 0\ns_waitcnt vmcnt(32)\ns_barrier")
    stamp(A, 3)
    A.label("L_k2_cvloop")
    A("s_add_u32 s52, s52, 256\ns_add_u32 s66, s66, 1")
    for j in range(4): A(f"s_sub_u32 s{56+j}, s{56+j}, 64")
    for q in range(8):
        b = BUF + 16*q
        A(f"""
        s_waitcnt vmcnt(28)
        v_mfma_f32_32x32x16_bf16 {v(AC,16)}, {v(b,4)}, {v(b+4,4)}, {v(AC,16)}
        v_mfma_f32_32x32x16_bf16 {v(AC+16,16)}, {v(b,4)}, {v(b+8,4)}, {v(AC+16,16)}
        v_mfma_f32_32x32x16_bf16 {v(AC+16,16)}, {v(b+12,4)}, {v(b+4,4)}, {v(AC+16,16)}
        """)
        loads(q)
    A("s_cmp_lt_u32 s66, 8\ns_cbranch_scc1 L_k2_cvloop")
    stamp(A, 4)
    A(f"""
    v_bfe_u32 v1, v0, 1, 4
    v_lshlrev_b32 v1, 3, v1
    v_and_b32 v2, 1, v0
    v_lshl_add_u32 v1, v2, 1, v1
    v_lshrrev_b32 v2, 5, v0
    v_add_u32 v1, v1, v2
    v_mul_u32_u24 v1, {AT_ROW}, v1
    s_lshl_b32 s52, s50, 4
    s_add_u32 s52, s52, {AT_OFF}
    s_add_u32 s53, s52, {4*AT_ROW}
    s_add_u32 s54, s52, {128*AT_ROW}
    s_add_u32 s55, s53, {128*AT_ROW}
    s_nop 7
    """)
    for cb in range(2):
        a = AC + 16*cb
        for j in range(8): A(f"v_cvt_pk_bf16_f32 v{a+j}, v{a+2*j}, v{a+2*j+1}")
        for m in range(2): A(f"buffer_store_dwordx4 {v(a+4*m,4)}, v1, s[12:15], s{52+2*cb+m} offen {ST}")
    endpgm(A, 1)

def k2(A):
    head(A, "k2_kernel")
    stamp_init(A)
    A(f"""
    s_load_dwordx2 {s(P_WS,2)}, s[0:1], 120
    v_lshrrev_b32 v1, 6, v0
    v_and_b32 v0, 63, v0
    v_readfirstlane_b32 s3, v1
    s_cmp_ge_u32 s2, 256
    s_cbranch_scc1 L_k2_end
    s_and_b32 s48, s2, 7
    s_lshl_b32 s48, s48, 2
    s_lshr_b32 s49, s2, 6
    s_add_u32 s48, s48, s49
    s_bfe_u32 s49, s2, 0x30003
    s_cmp_ge_u32 s3, 8
    s_cbranch_scc1 L_k2_ld
    """)
    attn(A)
    A.label("L_k2_ld")
    loader_conv(A)
    A("L_k2_end:\ns_endpgm")
```

```python
from asmlib import *
from layouts import *
NV = 256; GRID = 192; BLOCK = 256; LDS = 2*OF_TT
def k3(A):
    head(A, "k3_kernel")
    stamp_init(A)
    WF = 16
    AF = 160
    DG = 176
    AC = 192
    OB = 224
    G = 4
    A(f"""
    s_load_dwordx2 {s(P_WS,2)}, s[0:1], 120
    s_load_dwordx2 {s(P_OUT,2)}, s[0:1], 104
    v_lshrrev_b32 v1, 6, v0
    v_and_b32 v0, 63, v0
    v_readfirstlane_b32 s3, v1
    s_cmp_ge_u32 s2, {GRID}
    s_cbranch_scc1 L_k3_end
    s_and_b32 s48, s2, 7
    s_lshl_b32 s48, s48, 2
    s_bfe_u32 s49, s2, 0x20003
    s_add_u32 s48, s48, s49
    s_lshr_b32 s49, s2, 5
    v_lshlrev_b32 v2, 4, v0
    s_cmp_eq_u32 s3, 3
    s_cbranch_scc1 L_k3_ld
    s_mul_i32 s49, s49, 3
    s_add_u32 s49, s49, s3
    v_and_b32 v1, 31, v0
    v_lshrrev_b32 v3, 5, v0
    v_mul_u32_u24 v6, {AT_ROW}, v3
    v_lshl_add_u32 v6, v1, 4, v6
    v_and_b32 v7, 0x13, v0
    v_bfe_u32 v8, v0, 2, 1
    v_lshl_or_b32 v7, v8, 3, v7
    v_bfe_u32 v8, v0, 3, 1
    v_lshl_or_b32 v7, v8, 2, v7
    v_lshlrev_b32 v8, 3, v7
    s_lshl_b32 s50, s48, 9
    s_add_u32 s50, s50, {G_OFF}
    s_mul_i32 s51, s48, {8*AT_ROW}
    s_lshl_b32 s52, s49, 9
    s_add_u32 s51, s51, s52
    s_add_u32 s51, s51, {AT_OFF}
    s_lshl_b32 s52, s49, 10
    s_add_u32 s52, s52, {WOT_OFF}
    s_waitcnt lgkmcnt(0)
    """)
    srd(A, 12, P_WS, WS_USED)
    stamp(A, 1)
    A(f"buffer_load_dword v{G}, v8, s[12:15], s50 offen\nbuffer_load_dword v{G+1}, v8, s[12:15], s50 offen offset:256")
    for i in range(4):
        A(f"buffer_load_dwordx4 {v(AF+4*i,4)}, v6, s[12:15], s51 offen")
        if i < 3: A(f"s_add_u32 s51, s51, {2*AT_ROW}")
    for ks in range(36):
        A(f"buffer_load_dwordx4 {v(WF+4*ks,4)}, v2, s[12:15], s52 offen")
        if ks < 35: A(f"s_add_u32 s52, s52, {18*1024}")
    stamp(A, 2)
    srd(A, 8, P_OUT, 2048*1152)
    A(f"""
    v_mul_u32_u24 v7, 1152, v7
    v_lshl_add_u32 v7, v3, 5, v7
    s_mul_i32 s53, s48, {64*1152}
    s_lshl_b32 s54, s49, 6
    s_add_u32 s53, s53, s54
    s_add_u32 s54, s53, {32*1152}
    v_bfe_u32 v9, v0, 1, 1
    v_lshlrev_b32 v9, 4, v9
    v_sub_u32 v9, 16, v9
    s_waitcnt vmcnt(40)
    v_lshrrev_b32 v{G}, v9, v{G}
    v_lshrrev_b32 v{G+1}, v9, v{G+1}
    """)
    for c in range(2):
        for r in range(4):
            A(f"s_mov_b32 vcc_lo, {hex(0x5 << (8*r+c))}\ns_mov_b32 vcc_hi, {hex(0x50 << (8*r+c))}")
            for t in range(2): A(f"v_cndmask_b32 v{DG+8*t+4*c+r}, 0, v{G+t}, vcc")
    A("s_waitcnt vmcnt(36)")
    for c in range(2):
        for t in range(2):
            d = v(AC+16*t, 16)
            A(f"v_mfma_f32_32x32x16_bf16 {d}, {v(AF+8*t+4*c,4)}, {v(DG+8*t+4*c,4)}, {'0' if c == 0 else d}")
    def rd(ks):
        for t in range(2): A(f"ds_read_b128 {v(OB+8*(ks%4)+4*t,4)}, v{2 if t == 0 else 10} offset:{ks*1024}")
    A(f"v_add_u32 v10, {OF_TT}, v2")
    for ch in range(4):
        A(f"s_waitcnt vmcnt({27-9*ch})\ns_barrier")
        stamp(A, 3+ch)
        k0 = 9*ch
        for i in range(3): rd(k0+i)
        for i in range(9):
            ks = k0 + i
            A(f"s_waitcnt lgkmcnt({2*min(2, 8-i)})")
            for t in range(2):
                d = v(AC+16*t, 16)
                A(f"v_mfma_f32_32x32x16_bf16 {d}, {v(WF+4*ks,4)}, {v(OB+8*(ks%4)+4*t,4)}, {d}")
            if i + 3 < 9: rd(ks+3)
    stamp(A, 7)
    A("s_nop 15")
    for t in range(2):
        a = AC + 16*t
        for j in range(8): A(f"v_cvt_pk_bf16_f32 v{a+j}, v{a+2*j}, v{a+2*j+1}")
        for m in range(2): A(f"buffer_store_dwordx4 {v(a+4*m,4)}, v7, s[8:11], s{53+t} offen offset:{16*m}")
    endpgm(A, 2)
    A.label("L_k3_ld")
    A(f"""
    s_mul_i32 s50, s48, {2*OF_TT}
    s_add_u32 s50, s50, {OF_OFF}
    s_mov_b32 s52, 0
    s_waitcnt lgkmcnt(0)
    """)
    srd(A, 12, P_WS, WS_USED)
    def issue(ch):
        for i in range(3):
            for t in range(2):
                off = t*OF_TT + (9*ch + 3*i)*1024
                A(f"s_mov_b32 m0, {off}\ns_add_u32 s51, s50, {off}")
                for n in range(3): A(f"buffer_load_dwordx4 v2, s[12:15], s51 offen offset:{1024*n} lds")
    issue(0); issue(1); issue(2)
    A("s_waitcnt vmcnt(36)\ns_barrier")
    issue(3)
    A("s_waitcnt vmcnt(36)\ns_barrier\ns_waitcnt vmcnt(18)\ns_barrier\ns_waitcnt vmcnt(0)\ns_barrier")
    endpgm(A, 2)
    A("L_k3_end:\ns_endpgm")
```

```python
QKQ_OFF = 0
QKQ_TT = 288*256
QKQ_SZ = 64*QKQ_TT
VT_OFF = QKQ_OFF + QKQ_SZ
VT_ROW = 584*16
VT_TT = 4*VT_ROW
VT_SZ = 64*VT_TT
UT_OFF = VT_OFF + VT_SZ
UT_ROW = 4224
UT_SZ = 576*UT_ROW
KC_OFF = UT_OFF + UT_SZ
KC_CH = 12288
KC_SZ = 576*KC_CH
G_OFF = KC_OFF + KC_SZ
G_SZ = 2048*8
OF_OFF = G_OFF + G_SZ
OF_TT = 36*1024
OF_SZ = 64*OF_TT
AT_OFF = OF_OFF + OF_SZ
AT_ROW = 576*16
AT_SZ = 64*4*AT_ROW
WOT_OFF = AT_OFF + AT_SZ
WOT_SZ = 36*18*1024
WS_USED = WOT_OFF + WOT_SZ
if __name__ == "__main__":
    for k, v in list(globals().items()):
        if k.isupper(): print(k, v, hex(v), v % 128)
```

```python
import sys
from asmlib import *
import k1 as K1
HDR = open("gated_mix__ssm_conv_s4__mha_block__prompt.s.ref").read().split("; Override launch")[0]
def build(path, stages=(1,2,3)):
    A = Asm()
    launches = []; kds = ""
    if 1 in stages:
        K1.k1(A); launches.append(("k1_kernel", 256, 512, 163840)); kds += kd("k1_kernel", 256)
    if 2 in stages:
        import k2 as K2
        K2.k2(A); launches.append(("k2_kernel", 256, 768, 163840)); kds += kd("k2_kernel", K2.NV)
    if 3 in stages:
        import k3 as K3
        K3.k3(A); launches.append(("k3_kernel", K3.GRID, K3.BLOCK, K3.LDS)); kds += kd("k3_kernel", K3.NV)
    out = HDR
    for n, g, b, l in launches: out += f"; @launch kernel={n} grid=({g},1,1) block=({b},1,1) lds={l}\n"
    out += '.amdgcn_target "amdgcn-amd-amdhsa--gfx950"\n.text\n' + A.text() + '.section .rodata,"a"\n' + kds
    open(path, "w").write(out)
if __name__ == "__main__":
    st = tuple(int(c) for c in sys.argv[2]) if len(sys.argv) > 2 else (1,2,3)
    build(sys.argv[1], st)
```

```python
import math
from asmlib import *
from lay2 import *
LOG2E = 1.4426950408889634
QSCALE = LOG2E / math.sqrt(18.0)
NONCE = 70
CAP = 71
_uid = [0]
def uid(p):
    _uid[0] += 1
    return f"L_{p}{_uid[0]}"

def ws_setup(A):
    srd(A, 12, P_WS, WS_USED)
    A(f"s_add_u32 s100, s{P_WS}, {EP_OFF}\ns_addc_u32 s101, s{P_WS+1}, 0\ns_load_dword s{NONCE}, s[100:101], 0")
def get_nonce(A):
    A(f"s_waitcnt lgkmcnt(0)\ns_mul_i32 s{NONCE}, s{NONCE}, 0x9e3779b1\ns_add_u32 s{NONCE}, s{NONCE}, 0x7f4a7c15")
def gpoll(A, voffs, vt, soff="0", sleep=2):
    l = uid("gp"); e = uid("ge")
    A(f"s_mov_b32 s{CAP}, 0x40000\n{l}:")
    for i, vo in enumerate(voffs): A(f"buffer_load_dword v{vt+i}, v{vo}, s[12:15], {soff} offen sc1")
    A(f"s_sub_u32 s{CAP}, s{CAP}, 1\ns_cbranch_scc1 {e}\ns_waitcnt vmcnt(0)")
    for i in range(len(voffs)): A(f"v_xor_b32 v{vt+i}, s{NONCE}, v{vt+i}")
    for i in range(1, len(voffs)): A(f"v_or_b32 v{vt}, v{vt}, v{vt+i}")
    A(f"v_cmp_ne_u32 vcc, 0, v{vt}\ns_cbranch_vccz {e}\ns_sleep {sleep}\ns_branch {l}\n{e}:")
def gflag(A, soff, vt):
    A(f"""
    v_mov_b32 v{vt}, s{NONCE}
    v_mov_b32 v{vt+1}, 0
    s_mov_b64 exec, 1
    buffer_store_dword v{vt}, v{vt+1}, s[12:15], {soff} offen sc1
    s_mov_b64 exec, -1
    """)
def lpoll(A, va, off, n, val, vt, st=69, sleep=1):
    l = uid("lp"); e = uid("le")
    op = {1: "ds_read_b32", 2: "ds_read_b64", 4: "ds_read_b128"}[n]
    A(f"s_mov_b32 s{CAP}, 0x100000\n{l}:\n{op} {v(vt,n)}, v{va} offset:{off}\ns_sub_u32 s{CAP}, s{CAP}, 1\ns_cbranch_scc1 {e}\ns_waitcnt lgkmcnt(0)")
    if n == 2: A(f"v_min_u32 v{vt}, v{vt}, v{vt+1}\ns_nop 0")
    if n == 4: A(f"v_min3_u32 v{vt}, v{vt}, v{vt+1}, v{vt+2}\nv_min_u32 v{vt}, v{vt}, v{vt+3}\ns_nop 0")
    A(f"v_readfirstlane_b32 s{st}, v{vt}\ns_cmp_ge_u32 s{st}, {val}\ns_cbranch_scc1 {e}\ns_sleep {sleep}\ns_branch {l}\n{e}:")
def lset(A, va, off, val, vt):
    A(f"v_mov_b32 v{vt}, {val}\ns_mov_b64 exec, 1\nds_write_b32 v{va}, v{vt} offset:{off}\ns_mov_b64 exec, -1")

def rgcg(A):
    A(f"""
    s_and_b32 s53, s2, 7
    s_lshr_b32 s54, s2, 3
    s_lshr_b32 s55, s53, 1
    s_lshl_b32 s55, s55, 2
    s_and_b32 s56, s54, 3
    s_add_u32 s48, s55, s56
    s_and_b32 s53, s53, 1
    s_mul_i32 s53, s53, 7
    s_lshr_b32 s54, s54, 2
    s_add_u32 s49, s53, s54
    """)

def gemm_loader(A, isx):
    VD = 4; VF = 8; VT = 10
    rgcg(A)
    if isx:
        A(f"""
        s_lshl_b32 s53, s48, 7
        v_lshrrev_b32 v1, 3, v0
        v_add_u32 v1, s53, v1
        v_mul_u32_u24 v1, 1152, v1
        v_lshrrev_b32 v2, 4, v0
        v_and_b32 v3, 7, v0
        v_xor_b32 v3, v3, v2
        v_lshl_add_u32 v{VD}, v3, 4, v1
        v_xor_b32 v3, 4, v3
        v_lshl_add_u32 v{VD+1}, v3, 4, v1
        v_add_u32 v{VD+1}, 8192, v{VD+1}
        v_add_u32 v{VD+2}, 16384, v{VD}
        v_add_u32 v{VD+3}, 16384, v{VD+1}
        """)
    else:
        A(f"""
        v_lshrrev_b32 v2, 4, v0
        v_mul_u32_u24 v1, 3456, v2
        v_and_b32 v3, 15, v0
        v_lshlrev_b32 v2, 2, v2
        v_xor_b32 v3, v3, v2
        v_lshl_add_u32 v1, v3, 4, v1
        s_lshl_b32 s53, s49, 8
        v_add_u32 v{VD}, s53, v1
        v_add_u32 v{VD+1}, 12800, v{VD}
        v_add_u32 v{VD+2}, 25600, v{VD}
        v_add_u32 v{VD+3}, 38400, v{VD}
        """)
    A(f"v_mov_b32 v{VF}, {L_FL}\ns_waitcnt lgkmcnt(0)")
    if isx: srd(A, 4, P_U, 2048*1152)
    else: srd(A, 4, P_WQKV, 576*3456)
    stamp(A, 1)
    def issue(c):
        base = (XSLOT[c % 4] if isx else WSLOT[c % 3])*16384
        for g in range(4):
            so = c*128 + g*32*1152 if isx else c*64*3456 + g*16*3456
            A(f"s_mov_b32 m0, {base+g*4096}\ns_mov_b32 s50, {so}")
            for n in range(4): A(f"buffer_load_dwordx4 v{VD+n}, s[4:7], s50 offen offset:{1024*n} lds")
    fo = F_RX if isx else F_RW
    issue(0); ws_setup(A); issue(1); issue(2); get_nonce(A)
    if isx:
        for c in range(3, 9):
            A("s_waitcnt vmcnt(32)");
            if c == 3: stamp(A, 2)
            lset(A, VF, fo, c-2, VT)
            if c > 3: lpoll(A, VF, F_DONE, 4, c-3, VT+2)
            issue(c)
        for i, n in enumerate((32, 16, 0)):
            A(f"s_waitcnt vmcnt({n})"); lset(A, VF, fo, 7+i, VT)
    else:
        A("s_waitcnt vmcnt(32)"); stamp(A, 2); lset(A, VF, fo, 1, VT)
        for c in range(3, 9):
            A("s_waitcnt vmcnt(16)"); lset(A, VF, fo, c-1, VT)
            lpoll(A, VF, F_DONE, 4, c-2, VT+2)
            issue(c)
        for i, n in enumerate((16, 0)):
            A(f"s_waitcnt vmcnt({n})"); lset(A, VF, fo, 8+i, VT)
    stamp(A, 3)

def gemm_compute(A, done_label):
    AX, AW = 4, 12
    VFL, VDN, PT = 14, 15, 16
    FR = 20
    ACC = 52
    rgcg(A)
    A(f"""
    s_and_b32 s53, s3, 1
    s_lshr_b32 s54, s3, 1
    s_lshl_b32 s55, s53, 13
    v_and_b32 v1, 31, v0
    v_lshlrev_b32 v1, 7, v1
    v_add_u32 v1, s55, v1
    v_lshrrev_b32 v2, 5, v0
    v_bfe_u32 v3, v0, 1, 3
    v_xor_b32 v3, v3, v2
    v_lshl_add_u32 v{AX}, v3, 4, v1
    v_xor_b32 v{AX+1}, 32, v{AX}
    v_xor_b32 v{AX+2}, 64, v{AX}
    v_xor_b32 v{AX+3}, 0x60, v{AX}
    """)
    for i in range(4): A(f"v_add_u32 v{AX+4+i}, {5*16384}, v{AX+i}")
    A(f"""
    v_bfe_u32 v1, v0, 2, 2
    v_lshl_add_u32 v3, v2, 3, v1
    v_lshlrev_b32 v3, 8, v3
    s_lshl_b32 s55, s54, 1
    v_xor_b32 v1, s55, v1
    v_lshl_add_u32 v3, v1, 6, v3
    v_bfe_u32 v1, v0, 4, 1
    v_lshl_add_u32 v3, v1, 5, v3
    v_and_b32 v1, 3, v0
    v_lshl_add_u32 v3, v1, 3, v3
    v_add_u32 v{AW}, 32768, v3
    v_xor_b32 v{AW+1}, 64, v{AW}
    v_mov_b32 v{VFL}, {L_FL}
    s_lshl_b32 s55, s3, 2
    s_add_u32 s55, s55, {L_FL+F_DONE}
    v_mov_b32 v{VDN}, s55
    s_lshl_b32 s56, s48, 1
    s_add_u32 s56, s56, s53
    s_lshl_b32 s57, s49, 1
    s_add_u32 s57, s57, s54
    s_waitcnt lgkmcnt(0)
    """)
    ws_setup(A); get_nonce(A)
    def reads(c, ks):
        ps = XSLOT[c % 4]; hi = int(ps >= 5); xo = (ps - 5*hi)*16384
        wo = (WSLOT[c % 3]-2)*16384
        b = FR + 16*(ks & 1)
        for t in range(2): A(f"ds_read_b128 {v(b+4*t,4)}, v{AX+4*hi+ks} offset:{xo+4096*t}")
        for f in range(2):
            for t in range(2): A(f"ds_read_b64_tr_b16 {v(b+8+4*f+2*t,2)}, v{AW+f} offset:{wo+ks*4096+t*1024}")
    def mf(c, ks, i, vtype):
        b = FR + 16*(ks & 1)
        t, f = i >> 1, i & 1
        d = v(ACC+16*i, 16); x = v(b+4*t, 4); w = v(b+8+4*f, 4)
        cin = "0" if (c == 0 and ks == 0) else d
        A(f"v_mfma_f32_32x32x16_bf16 {d}, {x if vtype else w}, {w if vtype else x}, {cin}")
    def main(vtype):
        lpoll(A, VFL, F_RX, 2, 1, PT)
        stamp(A, 1)
        reads(0, 0)
        for c in range(9):
            for ks in range(4):
                if ks == 0 and c in (3, 6): stamp(A, 1 + c//3)
                A("s_waitcnt lgkmcnt(0)")
                if ks < 3:
                    mf(c, ks, 0, vtype); reads(c, ks+1)
                    if ks == 2 and c < 8: A(f"ds_read_b64 {v(PT,2)}, v{VFL} offset:{F_RX}")
                    if ks == 1: A(f"v_mov_b32 v{PT+2}, {c+1}")
                    for i in (1, 2, 3): mf(c, ks, i, vtype)
                else:
                    A(f"s_mov_b64 exec, 1\nds_write_b32 v{VDN}, v{PT+2}\ns_mov_b64 exec, -1")
                    if c < 8:
                        ok = uid("gok")
                        A(f"v_min_u32 v{PT}, v{PT}, v{PT+1}")
                        mf(c, ks, 0, vtype)
                        A(f"v_readfirstlane_b32 s69, v{PT}\ns_cmp_ge_u32 s69, {c+2}\ns_cbranch_scc1 {ok}")
                        lpoll(A, VFL, F_RX, 2, c+2, PT)
                        A(f"{ok}:")
                        reads(c+1, 0)
                        for i in (1, 2, 3): mf(c, ks, i, vtype)
                    else:
                        for i in range(4): mf(c, ks, i, vtype)
        stamp(A, 4)
    A(f"s_cmp_ge_u32 s49, 9\ns_cbranch_scc1 L_g_vtype")
    main(False)
    A(f"""
    s_mul_i32 s58, s56, {2*QKQ_TT}
    s_lshl_b32 s59, s57, 12
    s_add_u32 s58, s58, s59
    s_add_u32 s59, s58, {QKQ_TT}
    s_cmp_lt_u32 s57, 9
    s_cselect_b32 s60, {f32(QSCALE)}, 1.0
    s_mov_b32 s61, s60
    v_and_b32 v1, 15, v0
    v_lshlrev_b32 v1, 4, v1
    v_bfe_u32 v2, v0, 4, 1
    v_lshl_or_b32 v1, v2, 9, v1
    v_lshrrev_b32 v2, 5, v0
    v_lshl_or_b32 v1, v2, 8, v1
    """)
    for i in range(4):
        t, f = i >> 1, i & 1
        a = ACC + 16*i
        for j in range(8): A(f"v_pk_mul_f32 {v(a+2*j,2)}, {v(a+2*j,2)}, s[60:61]")
        for j in range(8): A(f"v_cvt_pk_bf16_f32 v{a+j}, v{a+2*j}, v{a+2*j+1}")
        A(f"v_permlane16_swap_b32 v{a}, v{a+2}\nv_permlane16_swap_b32 v{a+1}, v{a+3}")
        A(f"v_permlane16_swap_b32 v{a+4}, v{a+6}\nv_permlane16_swap_b32 v{a+5}, v{a+7}")
        for g in range(2):
            A(f"buffer_store_dwordx4 {v(a+4*g,4)}, v1, s[12:15], s{58+t} offen offset:{f*2048+g*1024} sc1")
    A(f"s_branch L_g_pub")
    A.label("L_g_vtype")
    main(True)
    A(f"""
    s_mul_i32 s58, s56, {2*VT_TT}
    s_lshl_b32 s59, s57, 10
    s_add_u32 s58, s58, s59
    s_add_u32 s58, s58, {VT_OFF - 18*1024}
    s_add_u32 s59, s58, {2*VT_ROW}
    s_add_u32 s60, s58, {VT_TT}
    s_add_u32 s61, s59, {VT_TT}
    v_lshrrev_b32 v2, 5, v0
    v_mul_u32_u24 v2, {VT_ROW}, v2
    v_and_b32 v1, 31, v0
    v_lshl_add_u32 v1, v1, 4, v2
    s_cmp_eq_u32 s57, 27
    s_cbranch_scc1 L_g_pub
    """)
    for i in range(4):
        t, f = i >> 1, i & 1
        a = ACC + 16*i
        if i == 1: A("s_nop 1")
        for j in range(8): A(f"v_cvt_pk_bf16_f32 v{a+j}, v{a+2*j}, v{a+2*j+1}")
        for m in range(2):
            A(f"buffer_store_dwordx4 {v(a+4*m,4)}, v1, s[12:15], s{58+2*t+m} offen offset:{f*512} sc1")
    A.label("L_g_pub")
    stamp(A, 5)
    A("s_waitcnt vmcnt(0)")
    stamp(A, 6)
    A(f"""
    v_mov_b32 v{PT}, 1
    s_mov_b64 exec, 1
    ds_add_rtn_u32 v{PT}, v{VFL}, v{PT} offset:{F_STD}
    s_mov_b64 exec, -1
    s_lshl_b32 s58, s49, 4
    s_add_u32 s58, s58, s48
    s_mul_i32 s58, s58, {FS}
    s_add_u32 s58, s58, {FQ_OFF}
    s_waitcnt lgkmcnt(0)
    v_readfirstlane_b32 s69, v{PT}
    s_cmp_lg_u32 s69, 3
    s_cbranch_scc1 {done_label}
    """)
    gflag(A, "s58", PT)
    A(f"s_branch {done_label}")

NROW = [[0,1,2,3,4,5,6,7, 14,15,16, 20,21, 22,23, 0], [9,9,10,11,11,11,12,13, 17,18,19, 24,25, 26,27, 0]]
def kg_rowaddr(side, n):
    a = side*256 + n*512
    if side == 1 and n >= 30: a -= 1280
    return a
def kgen_table():
    T = []
    for lane in range(64):
        i = lane & 31; hh = lane >> 5
        g, h2, ii = i >> 3, (i >> 2) & 1, i & 3
        n = NROW[h2][4*g + ii]
        ra = kg_rowaddr(0, n) + ((hh ^ ((n >> 1) & 7)) << 4)
        b = 8*(i & 3) + (i >> 2)
        rb = kg_rowaddr(1, b) + ((hh ^ ((b >> 1) & 7)) << 4)
        if b > 0: pb, ph = b-1, hh
        else: pb, ph = 31, 0
        pl = 32*ph + 4*(pb & 7) + (pb >> 3)
        so = (7 - (b & 7))*1536 + (16 + (b >> 3))*32
        T += [ra, rb, pl*4, so]
    return T

def kgen(A):
    PR = 4; TB = 16; vDT, vDS = 20, 21
    C1R, C1I, C2R, C2I = 22, 23, 24, 25
    WA = 26
    M = 34
    X = 74; T = 82
    RA = 90
    AC = 98
    R = 114
    U = 114
    FR = 130
    A(f"""
    s_getpc_b64 s[50:51]
    L_kg_pc:
    s_add_u32 s50, s50, kgen_tab-L_kg_pc
    s_addc_u32 s51, s51, 0
    v_lshlrev_b32 v1, 4, v0
    global_load_dwordx4 {v(TB,4)}, v1, s[50:51]
    v_and_b32 v1, 31, v0
    s_lshl_b32 s52, s48, 8
    v_lshl_add_u32 v2, v1, 3, s52
    s_lshl_b32 s52, s48, 1
    v_mov_b32 v3, s52
    s_waitcnt lgkmcnt(0)
    global_load_ushort v{vDT}, v3, {s(P_LDT,2)}
    """)
    for i, p in enumerate([P_ARE, P_AIM, P_BRE, P_BIM, P_CRE, P_CIM]):
        A(f"global_load_dwordx2 {v(PR+2*i,2)}, v2, {s(p,2)}")
    A(f"global_load_ushort v{vDS}, v3, {s(P_DSK,2)}")
    ws_setup(A); get_nonce(A)
    A(f"""
    v_mov_b32 v{C1R}, {f32(LOG2E)}
    v_mov_b32 v{C1I}, {f32(1/(2*math.pi))}
    v_mov_b32 v{C2R}, {f32(248*LOG2E)}
    v_mov_b32 v{C2I}, {f32(248/(2*math.pi))}
    s_mov_b32 exec_lo, 0
    v_mov_b32 v{C1R}, {f32(8*LOG2E)}
    v_mov_b32 v{C1I}, {f32(-8/(2*math.pi))}
    v_mov_b32 v{C2R}, v{C1R}
    v_mov_b32 v{C2I}, v{C1I}
    """)
    for k in range(4): A(f"v_mov_b32 v{X+2*k}, 1.0\nv_mov_b32 v{X+2*k+1}, 0")
    A(f"""
    s_mov_b32 exec_lo, -1
    v_lshl_add_u32 v2, v0, 3, s49
    """)
    for q in range(8): A(f"v_xor_b32 v{WA+q}, {q*16}, v2")
    A(f"""
    s_waitcnt vmcnt(5)
    v_lshlrev_b32 v{vDT}, 16, v{vDT}
    v_mul_f32 v{vDT}, {f32(LOG2E)}, v{vDT}
    v_exp_f32 v{vDT}, v{vDT}
    """)
    stamp(A, 1)
    def unpack(d, arr, k):
        src = PR + 2*arr + (k >> 1)
        A(f"v_and_b32 v{d}, 0xffff0000, v{src}" if k & 1 else f"v_lshlrev_b32 v{d}, 16, v{src}")
    Mx = lambda j, k: M + 8*j + 2*k
    def cmul(d, x, m, t):
        A(f"v_pk_mul_f32 {v(t,2)}, {v(x,2)}, {v(m,2)} op_sel:[0,0] op_sel_hi:[0,1]")
        return f"v_pk_fma_f32 {v(d,2)}, {v(x,2)}, {v(m,2)}, {v(t,2)} op_sel:[1,1,0] op_sel_hi:[1,0,1] neg_lo:[1,0,0]"
    for k in range(4):
        unpack(U+2*k, 0, k); unpack(U+2*k+1, 1, k)
    A(f"v_cvt_pk_bf16_f32 v{vDT}, v{vDT}, v{vDT}\nv_and_b32 v{vDT}, 0xffff0000, v{vDT}")
    for k in range(4): A(f"v_pk_mul_f32 {v(U+2*k,2)}, {v(U+2*k,2)}, {v(vDT,2)} op_sel_hi:[1,0]")
    for (j, cr) in ((0, C1R), (4, C2R)):
        for k in range(4): A(f"v_pk_mul_f32 {v(T+2*k,2)}, {v(U+2*k,2)}, {v(cr,2)}")
        for k in range(4): A(f"v_fract_f32 v{T+2*k+1}, v{T+2*k+1}\nv_exp_f32 v{T+2*k}, v{T+2*k}")
        for k in range(4): A(f"v_cos_f32 v{Mx(j,k)}, v{T+2*k+1}\nv_sin_f32 v{Mx(j,k)+1}, v{T+2*k+1}")
        A("s_nop 0")
        for k in range(4): A(f"v_pk_mul_f32 {v(Mx(j,k),2)}, {v(Mx(j,k),2)}, {v(T+2*k,2)} op_sel:[0,0] op_sel_hi:[1,0]")
    A("s_mov_b32 exec_lo, 0")
    for k in range(4):
        for j in (1, 2, 3): A(f"v_pk_mov_b32 {v(Mx(j,k),2)}, {v(Mx(0,k),2)}, {v(Mx(0,k),2)} op_sel:[0,1]")
    A("s_mov_b32 exec_lo, -1\ns_mov_b32 exec_hi, 0")
    for j in (1, 2, 3):
        l = [cmul(Mx(j,k), Mx(j-1,k), Mx(j-1,k), T+2*k) for k in range(4)]
        for x in l: A(x)
    A("s_waitcnt vmcnt(0)")
    for k in range(4):
        unpack(U+2*k, 2, k); unpack(U+2*k+1, 3, k); unpack(U+8+2*k, 4, k); unpack(U+8+2*k+1, 5, k)
    for k in range(4): A(f"v_pk_mul_f32 {v(U+2*k,2)}, {v(U+2*k,2)}, {v(vDT,2)} op_sel_hi:[1,0]")
    l = [cmul(X+2*k, U+2*k, U+8+2*k, T+2*k) for k in range(4)]
    for x in l: A(x)
    A("s_mov_b32 exec_hi, -1")
    for sd in range(2):
        A(f"v_add_u32 v{RA+4*sd}, s49, v{TB+sd}")
        for q in (1, 2, 3): A(f"v_xor_b32 v{RA+4*sd+q}, {q*32}, v{RA+4*sd}")
    A(f"v_subrev_u32 v3, 1280, v{WA+7}\nv_lshlrev_b32 v{vDS}, 16, v{vDS}")
    stamp(A, 2)
    mult = [0]*8 + [4] + [1]*4 + [4] + [2]*2 + [4] + [2]*2 + [4, 3, 4, 3, 4, 3, 4, 3] + [3]*4
    A("s_mov_b32 s52, 0")
    for i in range(16): A(f"v_mov_b32 v{AC+i}, 0")
    A.label("L_kg_pass")
    for n in range(32):
        if n == 28: A("s_mov_b32 exec_lo, 0")
        if n < 31: l = [cmul(X+2*k, X+2*k, Mx(mult[n], k), T+2*k) for k in range(2)]
        r = R + 2*(n % 8)
        for k in range(2): A(f"v_cvt_pk_bf16_f32 v{r+k}, v{X+2*k}, v{X+2*k+1}")
        if n < 31:
            for x in l: A(x)
        if n % 4 == 3:
            for n0 in (n-3, n-1):
                wa = 3 if n0 == 30 else WA + ((n0 >> 1) & 7)
                A(f"ds_write2st64_b64 v{wa}, {v(R+2*(n0%8),2)}, {v(R+2*((n0+1)%8),2)} offset0:{n0} offset1:{n0+1}")
    A("s_mov_b32 exec_lo, -1")
    for hf in range(2):
        for q in range(4): A(f"ds_read_b128 {v(FR+8*q,4)}, v{RA+q} offset:{128*hf}\nds_read_b128 {v(FR+8*q+4,4)}, v{RA+4+q} offset:{128*hf}")
        if hf == 0:
            for j in range(5): A(f"v_pk_mov_b32 {v(Mx(j,0),2)}, {v(Mx(j,2),2)}, {v(Mx(j,2),2)} op_sel:[0,1]\nv_pk_mov_b32 {v(Mx(j,1),2)}, {v(Mx(j,3),2)}, {v(Mx(j,3),2)} op_sel:[0,1]")
            A(f"v_pk_mov_b32 {v(X,2)}, {v(X+4,2)}, {v(X+4,2)} op_sel:[0,1]\nv_pk_mov_b32 {v(X+2,2)}, {v(X+6,2)}, {v(X+6,2)} op_sel:[0,1]")
        for q in range(4):
            A(f"s_waitcnt lgkmcnt({6-2*q})")
            A(f"v_mfma_f32_32x32x16_bf16 {v(AC,16)}, {v(FR+8*q,4)}, {v(FR+8*q+4,4)}, {v(AC,16)}")
    A("s_add_u32 s52, s52, 1\ns_cmp_lt_u32 s52, 2\ns_cbranch_scc1 L_kg_pass")
    stamp(A, 3)
    O = AC; PV = 82; P3 = 83; P4 = 84; D = 130; Z = 86
    A(f"""
    v_mov_b32 v{Z}, 0
    v_mov_b32 v{Z+1}, 0
    v_mov_b32 v{Z+2}, 0
    v_mov_b32 v{Z+3}, 0
    v_lshrrev_b32 v2, 5, v0
    v_mul_u32_u24 v3, 1536, v2
    v_lshl_add_u32 v3, v1, 4, v3
    v_add_u32 v3, s49, v3
    ds_write_b128 v3, {v(Z,4)}
    ds_write_b128 v3, {v(Z,4)} offset:3072
    ds_write_b128 v3, {v(Z,4)} offset:6144
    ds_write_b128 v3, {v(Z,4)} offset:9216
    v_add_u32 v{TB+3}, s49, v{TB+3}
    v_lshl_add_u32 v3, v2, 7, v{TB+3}
    v_lshl_add_u32 v2, v2, 8, v{TB+3}
    ds_bpermute_b32 v{PV}, v{TB+2}, v{O+7}
    s_mov_b32 vcc_lo, 0xf0f0f0f0
    s_mov_b32 vcc_hi, 0xf0f0f0f0
    v_cndmask_b32 v{P3}, v{O+11}, v{O+12}, vcc
    v_cndmask_b32 v{P4}, v{O+13}, v{O+14}, vcc
    """)
    groups = [([O+8]*3 + [O+9]*3 + [O+10]*2, O+8, 3, 8*32),
              ([O+11]*4 + [P3] + [O+12]*3, O+11, 2, 16*32),
              ([O+13]*4 + [P4] + [O+14]*3, O+13, 2, 20*32),
              ([O+i for i in range(8)], PV, 3, 0)]
    for gi, (o, pv, areg, off) in enumerate(groups):
        d = D + 8*gi
        if gi == 3:
            A(f"s_waitcnt lgkmcnt(0)\ns_mov_b64 exec, 1\nv_add_f32 v{O}, v{O}, v{vDS}\nv_mov_b32 v{PV}, 0\ns_mov_b64 exec, -1")
        c0 = [o[6], o[5], o[4], o[3], o[2], o[1], o[0], pv]
        c1 = [o[7], o[6], o[5], o[4], o[3], o[2], o[1], o[0]]
        for j in range(4): A(f"v_cvt_pk_bf16_f32 v{d+j}, v{c0[2*j]}, v{c0[2*j+1]}")
        for j in range(4): A(f"v_cvt_pk_bf16_f32 v{d+4+j}, v{c1[2*j]}, v{c1[2*j+1]}")
    for gi, (o, pv, areg, off) in enumerate(groups):
        d = D + 8*gi
        A(f"ds_write_b128 v{areg}, {v(d,4)} offset:{off}\nds_write_b128 v{areg}, {v(d+4,4)} offset:{off+16}")

def trans_u(A):
    A(f"""
    s_mul_i32 s50, s48, 7282
    s_lshr_b32 s50, s50, 16
    s_mul_i32 s51, s50, 9
    s_sub_u32 s51, s48, s51
    s_mul_i32 s52, s50, {64*1152}
    s_lshl_b32 s53, s51, 7
    s_add_u32 s52, s52, s53
    v_lshrrev_b32 v1, 3, v0
    v_mul_u32_u24 v2, 1152, v1
    v_bfe_u32 v3, v0, 4, 1
    v_lshlrev_b32 v3, 2, v3
    v_and_b32 v4, 7, v0
    v_xor_b32 v3, v3, v4
    v_lshl_add_u32 v2, v3, 4, v2
    s_waitcnt lgkmcnt(0)
    """)
    srd(A, 4, P_U, 2048*1152)
    for n in range(8):
        A(f"s_add_u32 m0, s49, {n*1024}\ns_add_u32 s53, s52, {n*9216}")
        A(f"buffer_load_dwordx4 v2, s[4:7], s53 offen lds")
    ws_setup(A); get_nonce(A)
    A(f"""
    v_bfe_u32 v3, v0, 2, 2
    v_lshrrev_b32 v5, 4, v0
    v_lshlrev_b32 v5, 5, v5
    v_and_b32 v6, 3, v0
    v_lshl_add_u32 v5, v6, 3, v5
    v_bfe_u32 v6, v0, 3, 1
    v_lshlrev_b32 v6, 6, v6
    v_xor_b32 v5, v5, v6
    v_lshl_add_u32 v5, v3, 7, v5
    v_add_u32 v5, s49, v5
    v_lshlrev_b32 v6, 7, v0
    v_lshl_add_u32 v6, v4, 4, v6
    v_add_u32 v6, s49, v6
    v_lshl_add_u32 v7, v0, 4, s49
    v_xor_b32 v3, v4, v1
    v_mul_u32_u24 v2, {UT_ROW}, v1
    v_lshl_add_u32 v2, v3, 4, v2
    s_mul_i32 s52, s51, {64*UT_ROW}
    s_add_u32 s52, s52, {UT_OFF}
    s_cmp_lg_u32 s50, 0
    s_cbranch_scc1 L_tu_nopad
    v_mov_b32 v8, 0
    v_mov_b32 v9, 0
    v_mov_b32 v10, 0
    v_mov_b32 v11, 0
    s_mov_b32 s53, s52
    """)
    for n in range(8):
        A(f"buffer_store_dwordx4 v[8:11], v2, s[12:15], s53 offen sc1\ns_add_u32 s53, s53, {8*UT_ROW}")
    A(f"""
    L_tu_nopad:
    s_lshl_b32 s53, s50, 7
    s_add_u32 s52, s52, s53
    s_lshl_b32 s54, s51, 5
    s_add_u32 s54, s54, s50
    s_mul_i32 s54, s54, {FS}
    s_add_u32 s54, s54, {FU_OFF}
    """)
    for p in range(8): A(f"v_xor_b32 v{40+p}, {16*p}, v6")
    A("s_waitcnt vmcnt(0)")
    stamp(A, 1)
    for p in range(8):
        for t in range(2): A(f"ds_read_b64_tr_b16 {v(8+4*p+2*t,2)}, v5 offset:{(8*p+4*t)*128}")
    A("s_waitcnt lgkmcnt(0)")
    for p in range(8): A(f"ds_write_b128 v{40+p}, {v(8+4*p,4)}")
    for n in range(8): A(f"ds_read_b128 {v(48+4*n,4)}, v7 offset:{1024*n}")
    for n in range(8):
        A(f"s_waitcnt lgkmcnt({7-n})")
        A(f"buffer_store_dwordx4 {v(48+4*n,4)}, v2, s[12:15], s52 offen offset:128 sc1")
        if n < 7: A(f"s_add_u32 s52, s52, {8*UT_ROW}")
    stamp(A, 2)
    A("s_waitcnt vmcnt(0)")
    gflag(A, "s54", 8)
    stamp(A, 3)

def trans_wo(A):
    A(f"""
    s_mul_i32 s50, s48, 3641
    s_lshr_b32 s50, s50, 16
    s_mul_i32 s51, s50, 18
    s_sub_u32 s51, s48, s51
    s_mul_i32 s52, s50, {72*1152}
    s_lshl_b32 s53, s51, 6
    s_add_u32 s52, s52, s53
    v_lshrrev_b32 v1, 2, v0
    v_mul_u32_u24 v2, 1152, v1
    v_and_b32 v4, 3, v0
    v_lshl_add_u32 v2, v4, 4, v2
    s_waitcnt lgkmcnt(0)
    """)
    srd(A, 4, P_WO, 576*1152)
    for n in range(5):
        A(f"s_add_u32 m0, s49, {n*1024}\ns_add_u32 s53, s52, {n*16*1152}")
        A(f"buffer_load_dwordx4 v2, s[4:7], s53 offen lds")
    ws_setup(A); get_nonce(A)
    A(f"""
    v_and_b32 v5, 1, v0
    v_lshlrev_b32 v5, 5, v5
    v_bfe_u32 v6, v0, 1, 1
    v_lshl_add_u32 v5, v6, 3, v5
    v_bfe_u32 v6, v0, 4, 1
    v_lshl_add_u32 v5, v6, 4, v5
    v_add_u32 v5, s49, v5
    v_bfe_u32 v3, v0, 2, 2
    v_lshrrev_b32 v6, 5, v0
    v_lshl_add_u32 v6, v6, 2, v3
    v_lshl_add_u32 v6, v6, 6, v5
    v_bfe_u32 v7, v0, 3, 1
    v_mul_u32_u24 v7, {18*64}, v7
    v_bfe_u32 v3, v0, 2, 1
    v_lshl_add_u32 v7, v3, 6, v7
    v_add_u32 v7, v7, v5
    v_lshlrev_b32 v2, 4, v0
    s_mul_i32 s52, s50, {4*18*1024}
    s_lshl_b32 s53, s51, 10
    s_add_u32 s53, s53, {WOT_OFF}
    s_add_u32 s52, s52, s53
    s_lshr_b32 s54, s50, 1
    s_add_u32 s54, s54, 32
    s_mul_i32 s54, s54, {18*1024}
    s_add_u32 s54, s54, s53
    s_and_b32 s55, s50, 1
    s_lshl_b32 s55, s55, 9
    s_add_u32 s54, s54, s55
    s_waitcnt vmcnt(0)
    """)
    for h in range(4):
        for t in range(2): A(f"ds_read_b64_tr_b16 {v(8+4*h+2*t,2)}, v6 offset:{(18*h+8*t)*64}")
    for t in range(2): A(f"ds_read_b64_tr_b16 {v(24+2*t,2)}, v7 offset:{(36*t+16)*64}")
    for h in range(4):
        A(f"s_waitcnt lgkmcnt({8-2*h})")
        A(f"buffer_store_dwordx4 {v(8+4*h,4)}, v2, s[12:15], s52 offen sc1")
        if h < 3: A(f"s_add_u32 s52, s52, {18*1024}")
    A(f"""
    s_waitcnt lgkmcnt(0)
    s_mov_b32 exec_hi, 0
    buffer_store_dwordx4 v[24:27], v2, s[12:15], s54 offen sc1
    s_mov_b32 exec_hi, -1
    """)

def gate(A):
    GW = 8; XD = 44; Z = 120
    A(f"""
    v_and_b32 v4, 7, v0
    v_lshlrev_b32 v4, 4, v4
    v_lshrrev_b32 v1, 3, v0
    v_mul_u32_u24 v2, 1152, v1
    v_add_u32 v2, v2, v4
    s_mul_i32 s52, s48, {32*1152}
    s_waitcnt lgkmcnt(0)
    """)
    srd(A, 4, P_U, 2048*1152)
    for j in range(9): A(f"global_load_dwordx4 {v(GW+4*j,4)}, v4, {s(P_GW,2)} offset:{128*j}")
    def ld(n):
        for j in range(9): A(f"buffer_load_dwordx4 {v(XD+36*(n&1)+4*j,4)}, v2, s[4:7], s52 offen offset:{128*j}")
        if n < 3: A(f"s_add_u32 s52, s52, {8*1152}")
    ld(0); ld(1)
    ws_setup(A); get_nonce(A)
    for n in range(4):
        A(f"s_waitcnt vmcnt({9 if n < 3 else 0})\nv_mov_b32 v{Z+n}, 0\nv_mov_b32 v{Z+4+n}, 0")
        for j in range(36): A(f"v_dot2c_f32_bf16 v{Z+n+4*(j&1)}, v{XD+36*(n&1)+j}, v{GW+j}")
        if n < 2: ld(n+2)
    A("s_nop 2")
    for n in range(4): A(f"v_add_f32 v{Z+n}, v{Z+n}, v{Z+4+n}")
    for pat in ("quad_perm:[1,0,3,2]", "quad_perm:[2,3,0,1]", "row_half_mirror"):
        A("s_nop 1")
        for n in range(4): A(f"v_add_f32_dpp v{Z+n}, v{Z+n}, v{Z+n} {pat} row_mask:0xf bank_mask:0xf")
    A(f"v_and_b32 v5, 3, v0")
    for n in (1, 2, 3): A(f"v_cmp_eq_u32 vcc, {n}, v5\ns_nop 1\nv_cndmask_b32 v{Z}, v{Z}, v{Z+n}, vcc")
    A(f"""
    v_cvt_pk_bf16_f32 v{Z}, v{Z}, v{Z}
    v_and_b32 v{Z}, 0xffff0000, v{Z}
    v_mul_f32 v{Z}, {f32(-LOG2E)}, v{Z}
    v_exp_f32 v{Z}, v{Z}
    v_lshl_add_u32 v5, v5, 3, v1
    v_add_f32 v{Z}, 1.0, v{Z}
    v_rcp_f32 v{Z}, v{Z}
    v_lshlrev_b32 v5, 3, v5
    v_cvt_pk_bf16_f32 v{Z}, v{Z}, v{Z}
    v_and_b32 v{Z}, 0xffff0000, v{Z}
    v_sub_f32 v{Z+1}, 1.0, v{Z}
    v_cvt_pk_bf16_f32 v{Z+1}, v{Z+1}, v{Z+1}
    v_and_b32 v{Z+1}, 0xffff0000, v{Z+1}
    s_lshl_b32 s52, s48, 8
    s_add_u32 s52, s52, {G_OFF}
    s_mov_b32 exec_lo, 0x0f0f0f0f
    s_mov_b32 exec_hi, 0x0f0f0f0f
    buffer_store_dwordx2 {v(Z,2)}, v5, s[12:15], s52 offen sc1
    s_mov_b64 exec, -1
    s_mul_i32 s54, s48, {FS}
    s_add_u32 s54, s54, {FG_OFF}
    """)
    A("s_waitcnt vmcnt(0)")
    gflag(A, "s54", 8)
```

```python
QKQ_OFF = 0
QKQ_TT = 288*256
QKQ_SZ = 64*QKQ_TT
VT_OFF = QKQ_OFF + QKQ_SZ
VT_ROW = 584*16
VT_TT = 4*VT_ROW
VT_SZ = 64*VT_TT
UT_OFF = VT_OFF + VT_SZ
UT_ROW = 4224
UT_SZ = 576*UT_ROW + 1024
G_OFF = UT_OFF + UT_SZ
G_SZ = 2048*8
OF_OFF = G_OFF + G_SZ
OF_TT = 36*1024
OF_SZ = 64*OF_TT
AT_OFF = OF_OFF + OF_SZ
AT_CH = 4096
AT_SZ = 576*AT_CH
WOT_OFF = AT_OFF + AT_SZ
WOT_SZ = 36*18*1024
FS = 128
FU_OFF = WOT_OFF + WOT_SZ
FQ_OFF = FU_OFF + 288*FS
FG_OFF = FQ_OFF + 224*FS
FB_OFF = FG_OFF + 64*FS
FO_OFF = FB_OFF + 256*FS
EP_OFF = FO_OFF + 2048*FS
WS_USED = EP_OFF + FS
L_UC = 81920
UC_COPY = 4288
UC_CH = 4*UC_COPY
L_FL = 116224
L_KG = 116736
KG_SZ = 15360
L_TR = 147456
SET1 = 81920
XSLOT = [0, 5, 6, 1]
WSLOT = [2, 3, 4]
F_RX, F_RW, F_DONE, F_STD, F_URDY, F_KRDY, F_XCH = 0, 4, 16, 32, 48, 64, 96
```

```python
from f1 import *
NV = 168
GRP = 20480
HOFF = 10240
PRIO = int(os.environ.get("PRIO", "1"))
NE = 2

def head_qb(A):
    A("""
    s_and_b32 s96, s2, 7
    s_lshl_b32 s96, s96, 2
    s_lshr_b32 s97, s2, 6
    s_add_u32 s96, s96, s97
    s_bfe_u32 s97, s2, 0x30003
    """)

def conv(A):
    VU, VK, VFL, PT = 1, 2, 3, 4
    AC = 8
    BUF = 40
    A(f"""
    s_and_b32 s50, s3, 1
    s_bfe_u32 s51, s3, 0x10001
    s_mul_i32 s52, s50, {UC_CH}
    s_add_u32 s52, s52, {L_UC}
    s_sub_u32 s52, s52, s98
    s_lshl_b32 s53, s51, 10
    s_add_u32 s52, s52, s53
    s_mul_i32 s53, s50, {KG_SZ}
    s_add_u32 s53, s53, {L_KG + 512 - 32}
    s_sub_u32 s53, s53, s98
    s_lshl_b32 s54, s51, 8
    s_sub_u32 s53, s53, s54
    v_and_b32 v{PT}, 3, v0
    v_mul_u32_u24 v{PT}, {UC_COPY}, v{PT}
    v_bfe_u32 v{PT+1}, v0, 2, 3
    v_lshrrev_b32 v{PT+2}, 5, v0
    v_add_u32 v{PT+1}, v{PT+1}, v{PT+2}
    v_lshl_add_u32 v{VU}, v{PT+1}, 4, v{PT}
    v_add_u32 v{VU}, s52, v{VU}
    v_mul_u32_u24 v{PT+2}, 1536, v{PT+2}
    v_and_b32 v{PT}, 31, v0
    v_lshl_add_u32 v{VK}, v{PT}, 4, v{PT+2}
    v_add_u32 v{VK}, s53, v{VK}
    s_cmp_lg_u32 s98, 0
    s_cselect_b32 s55, 1, 0
    s_lshl_b32 s56, s55, 3
    s_lshl_b32 s57, s50, 2
    s_add_u32 s56, s56, s57
    s_add_u32 s56, s56, {L_FL}
    v_mov_b32 v{VFL}, s56
    """)
    VX = 104
    A(f"""
    s_and_b32 s52, s3, 3
    s_lshl_b32 s56, s55, 4
    s_lshl_b32 s57, s52, 2
    s_add_u32 s56, s56, s57
    s_add_u32 s56, s56, {L_FL+F_XCH}
    v_mov_b32 v{VX}, s56
    v_xor_b32 v{VX+1}, 8, v{VX}
    """)
    lset(A, VX, 0, 1, PT)
    for i in range(32): A(f"v_mov_b32 v{AC+i}, 0")
    lpoll(A, VX+1, 0, 1, 1, PT, sleep=4)
    lpoll(A, VFL, F_KRDY, 1, 1, PT, sleep=2)
    stamp(A, 4)
    lpoll(A, VFL, F_URDY, 1, 1, PT, sleep=2)
    stamp(A, 5)
    def reads(q):
        b = BUF + 16*(q % 4)
        ko = 3072*(q % 4) + 32*(1 - q//4)
        A(f"""
        ds_read_b128 {v(b,4)}, v{VU} offset:{32*q}
        ds_read_b128 {v(b+4,4)}, v{VK} offset:{ko}
        ds_read_b128 {v(b+8,4)}, v{VK} offset:{ko+512}
        ds_read_b128 {v(b+12,4)}, v{VU} offset:{32*q+2048}
        """)
    for q in range(3): reads(q)
    A("s_mov_b32 s58, 0")
    A.label("L_cv_loop")
    for q in range(4):
        b = BUF + 16*q
        A("s_waitcnt lgkmcnt(8)")
        A(f"v_mfma_f32_32x32x16_bf16 {v(AC,16)}, {v(b,4)}, {v(b+4,4)}, {v(AC,16)}")
        reads(q+3)
        A(f"v_mfma_f32_32x32x16_bf16 {v(AC+16,16)}, {v(b,4)}, {v(b+8,4)}, {v(AC+16,16)}")
        if q == 3: A(f"v_add_u32 v{VU}, 128, v{VU}\nv_subrev_u32 v{VK}, 32, v{VK}\ns_add_u32 s58, s58, 1\ns_cmp_lt_u32 s58, 8")
        A(f"v_mfma_f32_32x32x16_bf16 {v(AC+16,16)}, {v(b+12,4)}, {v(b+4,4)}, {v(AC+16,16)}")
    A("s_cbranch_scc1 L_cv_loop")
    stamp(A, 6)
    A(f"""
    s_lshl_b32 s52, s50, 13
    s_lshl_b32 s53, s51, 12
    s_add_u32 s53, s53, s52
    s_add_u32 s53, s53, {L_TR}
    s_sub_u32 s53, s53, s98
    v_lshl_add_u32 v{VU}, v0, 4, s53
    v_xor_b32 v{VK}, 0x1000, v{VU}
    s_nop 3
    s_waitcnt lgkmcnt(0)
    s_cmp_eq_u32 s51, 0
    s_cbranch_scc1 L_cv_s0
    """)
    for i in range(4): A(f"ds_write_b128 v{VU}, {v(AC+4*i,4)} offset:{1024*i}")
    for i in range(8): A(f"v_pk_mov_b32 {v(BUF+16+2*i,2)}, {v(AC+16+2*i,2)}, {v(AC+16+2*i,2)} op_sel:[0,1]")
    A("s_branch L_cv_j\nL_cv_s0:")
    for i in range(4): A(f"ds_write_b128 v{VU}, {v(AC+16+4*i,4)} offset:{1024*i}")
    for i in range(8): A(f"v_pk_mov_b32 {v(BUF+16+2*i,2)}, {v(AC+2*i,2)}, {v(AC+2*i,2)} op_sel:[0,1]")
    A("L_cv_j:")
    lset(A, VX, 0, 2, PT)
    lpoll(A, VX+1, 0, 1, 2, PT)
    for i in range(4): A(f"ds_read_b128 {v(BUF+4*i,4)}, v{VK} offset:{1024*i}")
    A(f"""
    v_bfe_u32 v{PT}, v0, 1, 4
    v_lshlrev_b32 v{PT}, 7, v{PT}
    v_and_b32 v{PT+1}, 1, v0
    v_lshl_add_u32 v{PT}, v{PT+1}, 5, v{PT}
    v_lshrrev_b32 v{PT+1}, 5, v0
    v_lshl_add_u32 v{PT}, v{PT+1}, 4, v{PT}
    s_lshl_b32 s52, s99, 12
    s_lshl_b32 s53, s51, 11
    s_add_u32 s52, s52, s53
    s_add_u32 s52, s52, {AT_OFF}
    s_waitcnt lgkmcnt(0)
    """)
    for i in range(8): A(f"v_pk_add_f32 {v(BUF+2*i,2)}, {v(BUF+2*i,2)}, {v(BUF+16+2*i,2)}")
    D = 110
    for j in range(8): A(f"v_cvt_pk_bf16_f32 v{D+j}, v{BUF+2*j}, v{BUF+2*j+1}")
    for m in range(2): A(f"buffer_store_dwordx4 {v(D+4*m,4)}, v{PT}, s[12:15], s52 offen offset:{64*m} sc1")
    stamp(A, 7)

def ucopy(A, isgemm_s):
    A(f"""
    s_lshr_b32 s50, s99, 6
    s_mul_i32 s50, s50, {32*FS}
    s_add_u32 s50, s50, {FU_OFF}
    v_and_b32 v1, 31, v0
    v_mul_u32_u24 v1, {FS}, v1
    v_mov_b32 v3, {L_FL}
    v_lshlrev_b32 v2, 4, v0
    """)
    stamp(A, 1)
    gpoll(A, [1], 4, "s50")
    stamp(A, 2)
    A(f"s_cmp_ge_u32 s2, 224\ns_cbranch_scc1 L_uc_go")
    lpoll(A, 3, F_DONE, 4, 7, 4, sleep=2)
    A(f"""
    L_uc_go:
    s_and_b32 s51, s3, 1
    s_add_u32 s52, s99, s51
    s_mul_i32 s52, s52, {UT_ROW}
    s_add_u32 s52, s52, {UT_OFF+4}
    s_mul_i32 s53, s51, {UC_CH}
    s_add_u32 s53, s53, {L_UC}
    s_lshl_b32 s54, s51, 2
    v_add_u32 v3, s54, v3
    L_uc_set:
    """)
    for k in range(4):
        A(f"s_add_u32 m0, s53, {k*UC_COPY}\ns_add_u32 s55, s52, {4*k}")
        for n in range(4): A(f"buffer_load_dwordx4 v2, s[12:15], s55 offen offset:{1024*n} sc1 lds")
    A("s_mov_b64 exec, 0xff")
    for k in range(4):
        A(f"s_add_u32 m0, s53, {k*UC_COPY+4096}\ns_add_u32 s55, s52, {4*k+4096}")
        A(f"buffer_load_dwordx4 v2, s[12:15], s55 offen sc1 lds")
    A("s_mov_b64 exec, -1\ns_waitcnt vmcnt(0)")
    lset(A, 3, F_URDY, 1, 4)
    A(f"""
    s_cmp_lt_u32 s2, 224
    s_cbranch_scc1 L_uc_done
    s_cmp_lt_u32 s53, {L_UC}
    s_cbranch_scc1 L_uc_done
    s_sub_u32 s53, s53, {SET1}
    s_add_u32 s52, s52, {2*UT_ROW}
    v_add_u32 v3, 8, v3
    s_branch L_uc_set
    L_uc_done:
    """)
    stamp(A, 3)

IDX, AK, AV, OMG = 1, 2, 3, 4
QM = 6; QE = 14; KF = 22; KE = 26; VF = 30; S = 38; O = 70; TMP = 102

def attn(A):
    head_qb(A)
    A(f"""
    s_and_b32 s50, s3, 3
    s_lshr_b32 s51, s3, 2
    s_lshl_b32 s52, s97, 3
    s_lshl_b32 s50, s50, 1
    s_add_u32 s52, s52, s50
    s_add_u32 s53, s52, s51
    s_xor_b32 s54, s53, 1
    s_lshr_b32 s55, s96, 1
    s_mul_i32 s55, s55, {9*256}
    s_and_b32 s56, s96, 1
    s_mul_i32 s57, s56, {5*256}
    s_add_u32 s57, s57, s55
    s_add_u32 s55, s55, {4*256}
    s_mul_i32 s58, s53, {QKQ_TT}
    s_mul_i32 s59, s54, {QKQ_TT}
    s_add_u32 s60, s58, s55
    s_add_u32 s61, s59, s55
    s_add_u32 s58, s58, s57
    s_add_u32 s59, s59, s57
    s_min_u32 s63, s55, s57
    s_add_u32 s64, s63, {4*256}
    s_lshr_b32 s63, s63, 13
    s_lshr_b32 s64, s64, 13
    s_lshr_b32 s65, s52, 2
    s_lshl_b32 s63, s63, 4
    s_lshl_b32 s64, s64, 4
    s_add_u32 s63, s63, s65
    s_add_u32 s64, s64, s65
    s_mul_i32 s63, s63, {FS}
    s_mul_i32 s64, s64, {FS}
    s_mul_i32 s65, s53, {FS}
    s_add_u32 s65, s65, {FG_OFF-FQ_OFF}
    v_mov_b32 v{TMP}, s63
    v_writelane_b32 v{TMP}, s64, 1
    v_writelane_b32 v{TMP}, s65, 2
    s_mov_b32 s63, {FQ_OFF}
    v_and_b32 v{TMP+4}, 15, v0
    v_lshlrev_b32 v{TMP+4}, 4, v{TMP+4}
    v_bfe_u32 v{TMP+5}, v0, 4, 1
    v_lshl_or_b32 v{TMP+4}, v{TMP+5}, 3, v{TMP+4}
    v_lshrrev_b32 v{TMP+5}, 5, v0
    v_lshl_or_b32 v{TMP+5}, v{TMP+5}, 8, v{TMP+4}
    v_and_b32 v{TMP+6}, 31, v0
    v_lshlrev_b32 v{TMP+7}, 3, v{TMP+6}
    s_lshl_b32 s62, s53, 8
    s_add_u32 s62, s62, {G_OFF}
    """)
    gpoll(A, [TMP], TMP+1, "s63")
    stamp(A, 8)
    for j in range(2):
        A(f"""
        buffer_load_dwordx2 {v(QM+4*j,2)}, v{TMP+5}, s[12:15], s{58+j} offen sc1
        buffer_load_dwordx2 {v(QM+4*j+2,2)}, v{TMP+5}, s[12:15], s{58+j} offen offset:512 sc1
        buffer_load_dwordx2 {v(QE+4*j,2)}, v{TMP+4}, s[12:15], s{60+j} offen sc1
        """)
    A(f"buffer_load_dword v{OMG}, v{TMP+7}, s[12:15], s62 offen offset:4 sc1")
    A(f"""
    v_and_b32 v{AK}, 0x13f, v{TMP+5}
    v_bfe_u32 v{TMP}, v0, 2, 1
    v_lshl_or_b32 v{AK}, v{TMP}, 7, v{AK}
    v_bfe_u32 v{TMP}, v0, 3, 1
    v_lshl_or_b32 v{AK}, v{TMP}, 6, v{AK}
    s_mul_i32 s63, s51, {HOFF}
    v_add_u32 v{AK}, s63, v{AK}
    v_min_u32 v{TMP}, 18, v{TMP+6}
    v_lshrrev_b32 v{TMP+1}, 5, v0
    v_mad_u32_u24 v{TMP}, v{TMP+1}, 20, v{TMP}
    s_add_u32 s63, s63, 5120
    v_lshl_add_u32 v{AV}, v{TMP}, 4, s63
    v_mov_b32 v{IDX}, 0xdddddddd
    """)
    for i in range(32): A(f"v_mov_b32 v{O+i}, 0")
    for i in range(8): A(f"v_mov_b32 v{S+16+8+i}, 0")
    for i in range(4): A(f"v_mov_b32 v{VF+4+i}, 0")
    A(f"""
    s_cmp_eq_u32 s56, 0
    s_cselect_b32 s64, -1, 0
    s_not_b32 s65, s64
    s_waitcnt vmcnt(1)
    """)
    for j in range(2):
        e = QE + 4*j
        A(f"v_and_b32 v{e}, s64, v{e}\nv_and_b32 v{e+1}, s65, v{e+1}\nv_mov_b32 v{e+2}, 0\nv_mov_b32 v{e+3}, 0")
    A("s_mov_b32 exec_lo, 0")
    for j in range(2):
        e = QE + 4*j
        A(f"v_mov_b32 v{e+2}, v{e}\nv_mov_b32 v{e+3}, v{e+1}\nv_mov_b32 v{e}, 0\nv_mov_b32 v{e+1}, 0")
    A("s_mov_b32 exec_lo, -1")
    A("s_cmp_lt_u32 s2, 224\ns_cbranch_scc1 L_at_b1\ns_barrier\nL_at_b1:\ns_barrier")
    stamp(A, 9)
    GU = GRP//512
    rdK = lambda t: f"ds_read2st64_b64 {v(KF,4)}, v{AK} offset0:{(t//4)*GU+2*(t%4)} offset1:{(t//4)*GU+2*(t%4)+1}"
    rdE = lambda g: f"ds_read2st64_b64 {v(KE,4)}, v{AK} offset0:{g*GU+8} offset1:{g*GU+9}"
    rdV = lambda t, m: f"ds_read_b128 {v(VF+4*m,4)}, v{AV} offset:{(t//4)*GRP+(4*(t%4)+2*m)*320}"
    M16 = lambda q: f"v_mfma_f32_32x32x16_bf16 {v(S+16*q,16)}, {v(KF,4)}, {v(QM+4*q,4)}, 0"
    M8 = lambda q, t: f"v_mfma_f32_32x32x8_bf16 {v(S+16*q,16)}, {v(KE+2*((t%4)>>1),2)}, {v(QE+4*q+2*(t&1),2)}, {v(S+16*q,16)}"
    PV = lambda q, m: f"v_smfmac_f32_32x32x32_bf16 {v(O+16*q,16)}, {v(VF+4*m,4)}, {v(S+16*q+8*m,8)}, v{IDX}"
    E = lambda q, i: f"v_exp_f32 v{S+16*q+i}, v{S+16*q+i}"
    A(rdK(0)); A(rdE(0)); A(rdV(0, 0))
    A("s_mov_b32 s66, 0")
    if PRIO: A("s_setprio 2")
    A("s_waitcnt lgkmcnt(1)")
    A(M16(0)); A(M8(0, 0)); A("s_nop 15")
    A.raw(".p2align 6")
    A.label("L_at_loop")
    for t in range(4):
        for q in range(2):
            if t == 3 and q == 0:
                A("s_cmp_gt_u32 s66, 1\ns_cbranch_scc1 L_at_nobar\ns_waitcnt vmcnt(0)\ns_barrier\nL_at_nobar:")
            tn = t + q
            A(E(q, 0)); A(E(q, 1))
            A(PV(1-q, 1))
            if q == 0: A(rdV(t, 1))
            else: A("s_waitcnt lgkmcnt(0)")
            for i in (2, 3, 4): A(E(q, i))
            A(M16(1-q))
            if q == 0: A("s_waitcnt lgkmcnt(1)"); A(rdK(t+1))
            elif t == 3: A("s_add_u32 s66, s66, 1")
            elif t == 0 and PRIO: A("s_cmp_eq_u32 s66, 7")
            for i in (5, 6, 7): A(E(q, i))
            A(M8(1-q, tn))
            for i in (8, 9, 10, 11): A(E(q, i))
            A(PV(q, 0))
            if q == 0:
                A("s_waitcnt lgkmcnt(1)")
                if t == 3: A(rdE(1))
            else:
                if t == 3: A("s_cmp_lt_u32 s66, 8")
                elif t == 0 and PRIO: A("s_cbranch_scc1 L_at_lowprio\nL_at_lowprio_ret:")
                A(rdV(t+1, 0))
            for i in (12, 13, 14, 15): A(E(q, i))
    A(f"v_add_u32 v{AK}, {GRP}, v{AK}\nv_add_u32 v{AV}, {GRP}, v{AV}")
    A("s_cbranch_scc1 L_at_loop")
    A(PV(1, 1))
    stamp(A, 10)
    A(f"""
    s_mul_i32 s63, s3, 3072
    v_lshl_add_u32 v{AK}, v0, 4, s63
    s_xor_b32 s63, s3, 4
    s_mul_i32 s63, s63, 3072
    v_lshl_add_u32 v{AV}, v0, 4, s63
    s_waitcnt lgkmcnt(0)
    s_barrier
    s_nop 7
    """)
    for i in range(3): A(f"ds_write_b128 v{AK}, {v(O+16+4*i,4)} offset:{1024*i}")
    A("s_waitcnt lgkmcnt(0)\ns_barrier")
    for i in range(3): A(f"ds_read_b128 {v(S+4*i,4)}, v{AV} offset:{1024*i}")
    A(f"""
    s_mul_i32 s58, s53, {OF_TT}
    s_add_u32 s58, s58, {OF_OFF}
    s_lshl_b32 s59, s96, 10
    s_add_u32 s59, s59, s58
    s_lshl_b32 s60, s96, 7
    s_add_u32 s60, s60, s58
    s_add_u32 s60, s60, {32*1024}
    s_mov_b32 s61, {f32(2.0**-60)}
    s_mov_b32 s62, {f32(2.0**40)}
    s_waitcnt lgkmcnt(0)
    """)
    for i in range(6): A(f"v_pk_add_f32 {v(O+2*i,2)}, {v(O+2*i,2)}, {v(S+2*i,2)}")
    A(f"""
    v_cmp_le_f32 vcc, s61, v{O+11}
    v_cmp_ge_f32 s[64:65], s62, v{O+11}
    s_and_b64 vcc, vcc, s[64:65]
    s_cmp_eq_u64 vcc, -1
    s_cbranch_scc0 L_at_fallback
    L_at_fin:
    v_rcp_f32 v{TMP}, v{O+11}
    v_lshlrev_b32 v{AK}, 4, v0
    v_mul_f32 v{TMP}, v{TMP}, v{OMG}
    v_lshlrev_b32 v{AV}, 2, v0
    """)
    for i in range(5): A(f"v_pk_mul_f32 {v(O+2*i,2)}, {v(O+2*i,2)}, {v(TMP,2)} op_sel_hi:[1,0]")
    for i in range(5): A(f"v_cvt_pk_bf16_f32 v{O+i}, v{O+2*i}, v{O+2*i+1}")
    A(f"""
    buffer_store_dwordx4 {v(O,4)}, v{AK}, s[12:15], s59 offen sc1
    s_mov_b32 exec_hi, 0
    buffer_store_dword v{O+4}, v{AV}, s[12:15], s60 offen sc1
    s_mov_b32 exec_hi, -1
    s_lshl_b32 s58, s53, 5
    s_add_u32 s58, s58, s96
    s_mul_i32 s58, s58, {FS}
    s_add_u32 s58, s58, {FO_OFF}
    s_waitcnt vmcnt(0)
    """)
    gflag(A, "s58", TMP)
    A(f"""
    s_cmp_lg_u32 s3, 0
    s_cbranch_scc1 L_end
    s_cmp_ge_u32 s2, 128
    s_cbranch_scc1 L_end
    s_branch L_op_p2
    """)
    if PRIO: A("L_at_lowprio:\ns_setprio 0\ns_branch L_at_lowprio_ret")
    MX = TMP + 4
    A.label("L_at_fallback")
    A(f"""
    v_and_b32 v{TMP+1}, 3, v0
    v_lshlrev_b32 v{TMP+1}, 4, v{TMP+1}
    v_bfe_u32 v{TMP}, v0, 2, 1
    v_lshl_or_b32 v{TMP+1}, v{TMP}, 7, v{TMP+1}
    v_bfe_u32 v{TMP}, v0, 3, 1
    v_lshl_or_b32 v{TMP+1}, v{TMP}, 6, v{TMP+1}
    v_bfe_u32 v{TMP}, v0, 4, 1
    v_lshl_or_b32 v{TMP+1}, v{TMP}, 3, v{TMP+1}
    v_lshrrev_b32 v{AV}, 5, v0
    v_lshl_or_b32 v{AK}, v{AV}, 8, v{TMP+1}
    v_and_b32 v{TMP}, 31, v0
    s_mul_i32 s63, s96, 18
    v_add_u32 v{TMP+2}, s63, v{TMP}
    v_mul_u32_u24 v{AV}, {VT_ROW}, v{AV}
    v_lshl_add_u32 v{AV}, v{TMP+2}, 4, v{AV}
    v_mov_b32 v{MX}, 0xff800000
    s_mov_b32 s67, 0
    """)
    for i in range(16): A(f"v_mov_b32 v{O+i}, 0")
    for i in range(8): A(f"v_mov_b32 v{VF+i}, 0x3f803f80")
    A(f"""
    L_fb_pass:
    s_add_u32 s63, s57, {144*256}
    s_add_u32 s64, s55, {144*256}
    s_mov_b32 s65, {VT_OFF}
    s_mov_b32 s66, 0
    L_fb_loop:
    s_add_u32 s68, s65, {2*VT_ROW}
    buffer_load_dwordx2 {v(KF,2)}, v{AK}, s[12:15], s63 offen sc1
    buffer_load_dwordx2 {v(KF+2,2)}, v{AK}, s[12:15], s63 offen offset:512 sc1
    buffer_load_dwordx2 {v(KE,2)}, v{TMP+1}, s[12:15], s64 offen sc1
    s_mov_b32 exec_lo, 0x3ffff
    s_mov_b32 exec_hi, 0x3ffff
    buffer_load_dwordx4 {v(VF,4)}, v{AV}, s[12:15], s65 offen sc1
    buffer_load_dwordx4 {v(VF+4,4)}, v{AV}, s[12:15], s68 offen sc1
    s_mov_b64 exec, -1
    s_waitcnt vmcnt(0)
    {M16(0)}
    {M8(0, 0)}
    s_add_u32 s63, s63, {QKQ_TT}
    s_add_u32 s64, s64, {QKQ_TT}
    s_add_u32 s65, s65, {VT_TT}
    s_add_u32 s66, s66, 1
    s_nop 15
    s_cmp_lg_u32 s67, 0
    s_cbranch_scc1 L_fb_p2
    """)
    for i in range(8): A(f"v_max3_f32 v{MX}, v{MX}, v{S+2*i}, v{S+2*i+1}")
    A(f"""
    s_cmp_lt_u32 s66, 64
    s_cbranch_scc1 L_fb_loop
    v_mov_b32 v{MX+1}, v{MX}
    s_nop 1
    v_permlane32_swap_b32 v{MX}, v{MX+1}
    s_mov_b32 s67, 1
    v_max_f32 v{MX}, v{MX}, v{MX+1}
    s_branch L_fb_pass
    L_fb_p2:
    """)
    for i in range(16): A(f"v_sub_f32 v{S+i}, v{S+i}, v{MX}")
    for i in range(16): A(E(0, i))
    A(f"""
    s_nop 2
    {PV(0, 0)}
    {PV(0, 1)}
    s_cmp_lt_u32 s66, 64
    s_cbranch_scc1 L_fb_loop
    s_nop 15
    s_branch L_at_fin
    """)

def kv_loader(A):
    VD = 4; VP = 9; PT = 12
    head_qb(A)
    A(f"""
    s_and_b32 s50, s3, 1
    s_bfe_u32 s51, s3, 0x10001
    s_mul_i32 s52, s51, {HOFF}
    s_cmp_eq_u32 s50, 0
    s_cbranch_scc0 L_kv_v
    s_lshr_b32 s55, s96, 1
    s_mul_i32 s55, s55, {9*256}
    s_and_b32 s56, s96, 1
    s_mul_i32 s57, s56, {5*256}
    v_lshl_add_u32 v{VD}, v0, 4, s57
    v_add_u32 v{VD+1}, {QKQ_TT-1024}, v{VD}
    v_add_u32 v{VD+2}, {2*(QKQ_TT-1024)}, v{VD}
    v_add_u32 v{VD+3}, {3*(QKQ_TT-1024)}, v{VD}
    v_lshrrev_b32 v1, 4, v0
    v_mul_u32_u24 v1, {QKQ_TT}, v1
    v_and_b32 v2, 15, v0
    v_lshl_add_u32 v1, v2, 4, v1
    v_add_u32 v{VD+4}, 1024, v1
    s_add_u32 s55, s55, {144*256}
    s_mul_i32 s53, s51, {32*QKQ_TT}
    s_add_u32 s53, s53, s55
    s_mov_b32 s54, {4*QKQ_TT}
    s_lshl_b32 s56, s56, 10
    s_add_u32 s58, s55, s56
    s_add_u32 s59, s58, {4*256}
    s_lshr_b32 s58, s58, 13
    s_lshr_b32 s59, s59, 13
    s_branch L_kv_go
    L_kv_v:
    s_mul_i32 s55, s96, 18
    s_and_b32 s56, s2, 15
    s_mul_i32 s56, s56, {VT_ROW}
    s_add_u32 s56, s56, {576*16}
    s_mul_i32 s53, s51, {32*VT_TT}
    s_add_u32 s53, s53, {VT_OFF}
    v_mul_u32_u24 v1, {4*VT_TT}, v0
    v_add_u32 v1, s56, v1
    v_mov_b32 v16, 0x3f803f80
    v_mov_b32 v17, v16
    v_mov_b32 v18, v16
    v_mov_b32 v19, v16
    s_mov_b64 exec, 0xff
    buffer_store_dwordx4 v[16:19], v1, s[12:15], s53 offen sc1
    s_mov_b64 exec, -1
    v_mov_b32 v10, s56
    """)
    for n in range(5):
        A(f"""
        v_add_u32 v1, {64*n}, v0
        v_mul_u32_u24 v2, 3277, v1
        v_lshrrev_b32 v2, 16, v2
        v_mul_u32_u24 v3, 20, v2
        v_sub_u32 v1, v1, v3
        v_cmp_gt_u32 vcc, 18, v1
        v_add_u32 v1, s55, v1
        v_mul_u32_u24 v2, {VT_ROW}, v2
        v_lshl_add_u32 v1, v1, 4, v2
        v_cndmask_b32 v{VD+n}, v10, v1, vcc
        """)
        if n % 4: A(f"v_subrev_u32 v{VD+n}, {1024*n}, v{VD+n}")
    A(f"""
    s_mov_b32 s54, {4*VT_TT}
    s_add_u32 s52, s52, 5120
    s_lshr_b32 s58, s55, 7
    s_add_u32 s59, s55, 17
    s_lshr_b32 s59, s59, 7
    s_add_u32 s58, s58, 9
    s_add_u32 s59, s59, 9
    L_kv_go:
    s_sub_u32 s59, s59, s58
    s_lshl_b32 s59, s59, 4
    v_bfe_u32 v1, v0, 3, 1
    v_mul_u32_u24 v1, s59, v1
    v_and_b32 v2, 7, v0
    v_add_u32 v1, v1, v2
    v_mul_u32_u24 v{VP}, {FS}, v1
    s_lshl_b32 s58, s58, 4
    s_lshl_b32 s59, s51, 3
    s_add_u32 s58, s58, s59
    s_mul_i32 s58, s58, {FS}
    s_add_u32 s58, s58, {FQ_OFF}
    v_mov_b32 v3, {L_FL}
    """)
    stamp(A, 4)
    gpoll(A, [VP], PT, "s58")
    stamp(A, 5)
    A(f"s_cmp_lt_u32 s2, 224\ns_cbranch_scc1 L_kv_g\ns_barrier\ns_branch L_kv_g2\nL_kv_g:")
    lpoll(A, 3, F_DONE, 4, 9, PT)
    A("L_kv_g2:\ns_mov_b32 s66, 0")
    A.label("L_kv_loop")
    A("s_mov_b32 m0, s52\ns_add_u32 s66, s66, 1")
    for n in range(4): A(f"buffer_load_dwordx4 v{VD+n}, s[12:15], s53 offen offset:{1024*n} sc1 lds")
    A(f"""
    s_add_u32 m0, s52, 4096
    s_add_u32 s52, s52, {GRP}
    buffer_load_dwordx4 v{VD+4}, s[12:15], s53 offen sc1 lds
    s_add_u32 s53, s53, s54
    s_cmp_lg_u32 s66, {NE}
    s_cbranch_scc1 L_kv_nb
    s_waitcnt vmcnt({5*(NE-1)})
    """)
    stamp(A, 6)
    A(f"""
    s_barrier
    L_kv_nb:
    s_cmp_lt_u32 s66, 8
    s_cbranch_scc1 L_kv_loop
    s_waitcnt vmcnt(30)
    s_barrier
    s_waitcnt vmcnt(0)
    """)
    stamp(A, 7)
    A(f"s_cmp_lg_u32 s3, 8\ns_cbranch_scc1 L_kv_nf\ns_mul_i32 s58, s2, {FS}\ns_add_u32 s58, s58, {FB_OFF}")
    gflag(A, "s58", PT)
    A("L_kv_nf:\ns_barrier")

def outproj(A):
    AC = 4; WF = 20; OB = 148
    L_O = 32768
    L_WE = L_O + OF_TT
    A.label("L_op_p2")
    AF = WF; DG = WF + 8; G = WF + 16
    A(f"""
    s_and_b32 s48, s2, 7
    s_lshl_b32 s48, s48, 3
    s_bfe_u32 s49, s2, 0x30003
    s_add_u32 s48, s48, s49
    s_lshr_b32 s51, s2, 6
    s_mul_i32 s49, s51, 5
    s_cmp_eq_u32 s51, 3
    s_subb_u32 s49, s49, 0
    s_sub_u32 s50, s3, 8
    s_cmp_eq_u32 s3, 0
    s_cselect_b32 s50, 4, s50
    s_add_u32 s49, s49, s50
    s_lshl_b32 s52, s49, 4
    s_lshl_b32 s53, s49, 3
    s_add_u32 s53, s53, 112
    s_cmp_lt_u32 s49, 14
    s_cselect_b32 s52, s52, s53
    s_cselect_b32 s53, 15, 7
    v_and_b32 v4, s53, v0
    v_add_u32 v4, s52, v4
    v_and_b32 v5, 7, v0
    v_mad_u32_u24 v5, v5, 18, s49
    v_lshrrev_b32 v5, 1, v5
    v_add_u32 v5, 144, v5
    s_mov_b32 vcc_lo, 0x00ff0000
    s_mov_b32 vcc_hi, 0
    v_cndmask_b32 v4, v4, v5, vcc
    s_lshr_b32 s52, s48, 1
    s_add_u32 s52, s52, 224
    v_writelane_b32 v4, s52, 24
    v_mul_u32_u24 v4, {FS}, v4
    s_mov_b32 s58, {FB_OFF}
    """)
    gpoll(A, [4], 5, "s58", sleep=16)
    stamp(A, 8)
    A(f"""
    v_and_b32 v1, 3, v0
    v_bfe_u32 v2, v0, 2, 1
    v_lshl_or_b32 v1, v2, 4, v1
    v_bfe_u32 v2, v0, 3, 2
    v_lshl_or_b32 v1, v2, 2, v1
    v_lshlrev_b32 v1, 12, v1
    v_lshrrev_b32 v3, 5, v0
    v_lshl_or_b32 v1, v3, 4, v1
    v_and_b32 v2, 31, v0
    v_lshlrev_b32 v{G+1}, 3, v2
    s_lshl_b32 s52, s48, 8
    s_add_u32 s52, s52, {G_OFF}
    s_lshl_b32 s53, s49, 17
    s_lshl_b32 s54, s48, 6
    s_add_u32 s53, s53, s54
    s_add_u32 s53, s53, {AT_OFF}
    buffer_load_dword v{G}, v{G+1}, s[12:15], s52 offen sc1
    buffer_load_dwordx4 {v(AF,4)}, v1, s[12:15], s53 offen sc1
    buffer_load_dwordx4 {v(AF+4,4)}, v1, s[12:15], s53 offen offset:32 sc1
    v_lshlrev_b32 v1, 4, v0
    s_lshl_b32 s52, s49, 10
    s_add_u32 s52, s52, {WOT_OFF + 5*18*1024}
    """)
    for ks in range(5, 32):
        A(f"buffer_load_dwordx4 {v(WF+4*ks,4)}, v1, s[12:15], s52 offen sc1\ns_add_u32 s52, s52, {18*1024}")
    A(f"""
    v_bfe_u32 v{G+2}, v0, 1, 1
    v_lshlrev_b32 v{G+2}, 4, v{G+2}
    v_sub_u32 v{G+2}, 16, v{G+2}
    s_waitcnt vmcnt(27)
    v_lshrrev_b32 v{G}, v{G+2}, v{G}
    """)
    for c in range(2):
        for r in range(4):
            m = 0x5 << (16*(r >> 1) + 4*(r & 1) + c)
            A(f"s_mov_b32 vcc_lo, {hex(m)}\ns_mov_b32 vcc_hi, {hex(m << 8)}\nv_cndmask_b32 v{DG+4*c+r}, 0, v{G}, vcc")
    A("s_nop 1")
    for c in range(2): A(f"v_mfma_f32_32x32x16_bf16 {v(AC,16)}, {v(AF+4*c,4)}, {v(DG+4*c,4)}, {'0' if c == 0 else v(AC,16)}")
    A(f"s_sub_u32 s53, s52, {32*18*1024}")
    for ks in range(5):
        A(f"buffer_load_dwordx4 {v(WF+4*ks,4)}, v1, s[12:15], s53 offen sc1\ns_add_u32 s53, s53, {18*1024}")
    srd(A, 8, P_OUT, 2048*1152)
    A(f"""
    s_cmp_eq_u32 s3, 0
    s_cbranch_scc1 L_op_p3
    s_lshl_b32 s55, s2, 4
    s_add_u32 s55, s55, s3
    s_cmp_lg_u32 s55, 11
    s_cbranch_scc1 L_op_noep
    v_mul_u32_u24 v{OB}, {FS}, v0
    v_add_u32 v{OB+1}, {64*FS}, v{OB}
    v_add_u32 v{OB+2}, {128*FS}, v{OB}
    v_add_u32 v{OB+3}, {192*FS}, v{OB}
    """)
    gpoll(A, [OB, OB+1, OB+2, OB+3], OB+4, "s58", sleep=16)
    A(f"s_mov_b32 s55, {EP_OFF}")
    gflag(A, "s55", OB)
    A("L_op_noep:\ns_barrier\ns_barrier\nL_op_p3:")
    stamp(A, 9)
    A(f"s_lshl_b32 s54, s50, 12\ns_add_u32 s54, s54, {L_WE}")
    for e in range(4):
        A(f"s_add_u32 m0, s54, {1024*e}\ns_nop 0\nbuffer_load_dwordx4 v1, s[12:15], s52 offen sc1 lds\ns_add_u32 s52, s52, {18*1024}")
    A(f"""
    s_cmp_eq_u32 s3, 0
    s_cbranch_scc1 L_op_b5
    s_lshl_b32 s55, s48, 5
    s_lshl_b32 s56, s50, 3
    s_add_u32 s55, s55, s56
    s_mul_i32 s55, s55, {FS}
    s_add_u32 s55, s55, {FO_OFF}
    v_and_b32 v{OB}, 7, v0
    v_mul_u32_u24 v{OB}, {FS}, v{OB}
    s_mul_i32 s57, s48, {OF_TT}
    s_add_u32 s57, s57, {OF_OFF}
    s_lshl_b32 s58, s50, 13
    s_lshl_b32 s59, s50, 10
    s_add_u32 s59, s59, {32*1024}
    """)
    gpoll(A, [OB], OB+1, "s55")
    stamp(A, 10)
    for g in range(2):
        A(f"s_add_u32 m0, s58, {L_O + 4096*g}\ns_add_u32 s60, s57, s58")
        if g: A(f"s_add_u32 s60, s60, 4096")
        for n in range(4): A(f"buffer_load_dwordx4 v1, s[12:15], s60 offen offset:{1024*n} sc1 lds")
    A(f"""
    s_add_u32 m0, s59, {L_O}
    s_add_u32 s60, s57, s59
    buffer_load_dwordx4 v1, s[12:15], s60 offen sc1 lds
    L_op_b5:
    v_add_u32 v{OB+16}, s54, v1
    v_add_u32 v1, {L_O}, v1
    v_lshlrev_b32 v{OB+17}, 9, v3
    v_lshl_add_u32 v{OB+17}, v2, 2, v{OB+17}
    v_add_u32 v{OB+17}, {L_O + 32*1024}, v{OB+17}
    v_mul_u32_u24 v2, 1152, v2
    v_lshl_add_u32 v2, v3, 5, v2
    s_mul_i32 s53, s48, {32*1152}
    s_lshl_b32 s55, s49, 6
    s_add_u32 s53, s53, s55
    s_waitcnt vmcnt(0)
    s_barrier
    """)
    rd = lambda ks: f"ds_read_b128 {v(OB+4*(ks%4),4)}, v1 offset:{ks*1024}"
    for ks in range(3): A(rd(ks))
    for ks in range(32):
        nout = min(2, 31-ks)
        extra = 0
        if ks >= 29: extra = 12 if ks > 28 else 0
        A(f"s_waitcnt lgkmcnt({min(15, nout + extra)})")
        A(f"v_mfma_f32_32x32x16_bf16 {v(AC,16)}, {v(WF+4*ks,4)}, {v(OB+4*(ks%4),4)}, {v(AC,16)}")
        if ks + 3 < 32: A(rd(ks+3))
        if ks == 28:
            for e in range(4):
                A(f"ds_read_b128 {v(WF+8*e,4)}, v{OB+16} offset:{1024*e}")
                if e: A(f"v_add_u32 v{OB+17}, 1024, v{OB+17}")
                A(f"ds_read2_b32 {v(WF+8*e+4,2)}, v{OB+17} offset0:0 offset1:32\nds_read2_b32 {v(WF+8*e+6,2)}, v{OB+17} offset0:64 offset1:96")
    for e in range(4):
        A(f"s_waitcnt lgkmcnt({9-3*e})")
        A(f"v_mfma_f32_32x32x16_bf16 {v(AC,16)}, {v(WF+8*e,4)}, {v(WF+8*e+4,4)}, {v(AC,16)}")
    A("s_nop 15")
    for j in range(8): A(f"v_cvt_pk_bf16_f32 v{AC+j}, v{AC+2*j}, v{AC+2*j+1}")
    for m in range(2): A(f"buffer_store_dwordx4 {v(AC+4*m,4)}, v2, s[8:11], s53 offen offset:{16*m}")

def fused(A, name):
    head(A, name)
    stamp_init(A)
    A(f"""
    v_lshrrev_b32 v1, 6, v0
    v_and_b32 v0, 63, v0
    v_readfirstlane_b32 s3, v1
    s_cmp_ge_u32 s2, 256
    s_cbranch_scc1 L_exit
    s_cmp_lg_u32 s3, 11
    s_cbranch_scc1 L_b0
    v_mov_b32 v2, 0
    v_lshlrev_b32 v3, 2, v0
    v_add_u32 v3, {L_FL}, v3
    ds_write_b32 v3, v2
    s_waitcnt lgkmcnt(0)
    L_b0:
    s_load_dwordx16 s[16:31], s[0:1], 0
    s_load_dwordx16 s[32:47], s[0:1], 64
    s_barrier
    s_cmp_ge_u32 s2, 224
    s_cbranch_scc1 L_aux
    s_lshl_b32 s99, s2, 1
    s_mov_b32 s98, 0
    s_cmp_eq_u32 s3, 8
    s_cbranch_scc1 L_ldx
    s_cmp_eq_u32 s3, 9
    s_cbranch_scc1 L_ldw
    s_cmp_ge_u32 s3, 10
    s_cbranch_scc1 L_util
    s_cmp_ge_u32 s3, 6
    s_cbranch_scc1 L_trans
    s_cmp_ge_u32 s3, 4
    s_cbranch_scc1 L_kgen
    """)
    gemm_compute(A, "L_attn")
    A.label("L_ldx"); gemm_loader(A, True); A("s_branch L_kv")
    A.label("L_ldw"); gemm_loader(A, False); A("s_branch L_kv")
    A.label("L_aux")
    A(f"""
    s_sub_u32 s50, s2, 224
    s_lshl_b32 s99, s50, 2
    s_add_u32 s99, s99, 448
    s_mov_b32 s98, 0
    s_cmp_ge_u32 s3, 10
    s_cbranch_scc1 L_util
    s_cmp_ge_u32 s3, 8
    s_cbranch_scc1 L_kv0
    s_cmp_ge_u32 s3, 6
    s_cbranch_scc1 L_gate
    s_cmp_ge_u32 s3, 4
    s_cbranch_scc1 L_kgen
    s_mov_b32 s98, {SET1}
    s_add_u32 s99, s99, 2
    s_cmp_ge_u32 s3, 2
    s_cbranch_scc1 L_kgen
    L_idle:
    s_waitcnt lgkmcnt(0)
    """)
    ws_setup(A); get_nonce(A)
    A("s_branch L_conv")
    A.label("L_gate")
    A("s_lshl_b32 s48, s50, 1\ns_add_u32 s48, s48, s3\ns_sub_u32 s48, s48, 6")
    gate(A)
    A("s_branch L_conv")
    A.label("L_trans")
    A(f"""
    s_and_b32 s48, s3, 1
    s_lshl_b32 s49, s48, 13
    s_add_u32 s49, s49, {L_TR}
    s_add_u32 s48, s48, s99
    s_cmp_ge_u32 s48, 288
    s_cbranch_scc1 L_trwo
    """)
    trans_u(A)
    A("s_branch L_conv")
    A.label("L_trwo")
    A("s_sub_u32 s48, s48, 288\ns_cmp_ge_u32 s48, 144\ns_cbranch_scc1 L_idle")
    trans_wo(A)
    A("s_branch L_conv")
    A.label("L_kgen")
    A(f"""
    s_and_b32 s50, s3, 1
    s_add_u32 s48, s99, s50
    s_mul_i32 s49, s50, {KG_SZ}
    s_add_u32 s49, s49, {L_KG}
    s_sub_u32 s49, s49, s98
    """)
    kgen(A)
    A(f"""
    s_cmp_lg_u32 s98, 0
    s_cselect_b32 s50, 8, 0
    s_and_b32 s51, s3, 1
    s_lshl_b32 s51, s51, 2
    s_add_u32 s50, s50, s51
    s_add_u32 s50, s50, {L_FL}
    v_mov_b32 v3, s50
    """)
    lset(A, 3, F_KRDY, 1, 2)
    A.label("L_conv")
    A("s_and_b32 s50, s3, 1\ns_add_u32 s99, s99, s50")
    conv(A)
    A.label("L_attn")
    attn(A)
    A.label("L_util")
    A("s_waitcnt lgkmcnt(0)")
    ws_setup(A); get_nonce(A)
    ucopy(A, None)
    A("s_branch L_kv")
    A.label("L_kv0")
    A("s_waitcnt lgkmcnt(0)")
    ws_setup(A); get_nonce(A)
    A.label("L_kv")
    kv_loader(A)
    outproj(A)
    A.label("L_end")
    endpgm(A, 0)
    A("L_exit:\ns_endpgm")
    A.raw(".p2align 4\n.type kgen_tab,@object\nkgen_tab:")
    T = kgen_table()
    for i in range(0, len(T), 8): A.raw("    .long " + ", ".join(str(x) for x in T[i:i+8]))
    A.raw(f".size kgen_tab, {4*len(T)}")

if __name__ == "__main__":
    import sys
    NAME = "gated_mix__ssm_conv_s4__mha_block__prompt_kernel"
    HDR = open("gated_mix__ssm_conv_s4__mha_block__prompt.s.ref").read().split("; Override launch")[0]
    A = Asm(); fused(A, NAME)
    aslist = len(sys.argv) > 2
    out = HDR + (f"; @launch kernel={NAME} grid=(256,1,1) block=(768,1,1) lds=163840\n" if aslist else "; @launch grid=(256,1,1) block=(768,1,1) lds=163840\n")
    out += '.amdgcn_target "amdgcn-amd-amdhsa--gfx950"\n.text\n' + A.text() + '.section .rodata,"a"\n' + kd(NAME, NV)
    open(sys.argv[1], "w").write(out)
```

```python
import math
from asmlib import *
from lay2 import *
LOG2E = 1.4426950408889634
QSCALE = LOG2E / math.sqrt(18.0)
FINE = int(os.environ.get("FINE", "0"))
if FINE:
    _st = stamp
    import asmlib
PFF = os.environ.get("PFF", "")
LSL = int(os.environ.get("LSL", "0"))
NOKG = os.environ.get("NOKG")
NOTR = os.environ.get("NOTR")
NONCE = 70
CAP = 71
_uid = [0]
def uid(p):
    _uid[0] += 1
    return f"L_{p}{_uid[0]}"

def ws_setup(A):
    srd(A, 12, P_WS, WS_USED)
    A(f"s_add_u32 s100, s{P_WS}, {EP_OFF}\ns_addc_u32 s101, s{P_WS+1}, 0\ns_load_dword s{NONCE}, s[100:101], 0")
def get_nonce(A):
    A(f"s_waitcnt lgkmcnt(0)\ns_mul_i32 s{NONCE}, s{NONCE}, 0x9e3779b1\ns_add_u32 s{NONCE}, s{NONCE}, 0x7f4a7c15")
def gpoll(A, voffs, vt, soff="0", sleep=2):
    l = uid("gp"); e = uid("ge")
    A(f"s_mov_b32 s{CAP}, 0x40000\n{l}:")
    for i, vo in enumerate(voffs): A(f"buffer_load_dword v{vt+i}, v{vo}, s[12:15], {soff} offen sc1")
    A(f"s_sub_u32 s{CAP}, s{CAP}, 1\ns_cbranch_scc1 {e}\ns_waitcnt vmcnt(0)")
    for i in range(len(voffs)): A(f"v_xor_b32 v{vt+i}, s{NONCE}, v{vt+i}")
    for i in range(1, len(voffs)): A(f"v_or_b32 v{vt}, v{vt}, v{vt+i}")
    A(f"v_cmp_ne_u32 vcc, 0, v{vt}\ns_cbranch_vccz {e}\ns_sleep {sleep}\ns_branch {l}\n{e}:")
def gflag(A, soff, vt):
    A(f"""
    v_mov_b32 v{vt}, s{NONCE}
    v_mov_b32 v{vt+1}, 0
    s_mov_b64 exec, 1
    buffer_store_dword v{vt}, v{vt+1}, s[12:15], {soff} offen sc1
    s_mov_b64 exec, -1
    """)
def lpoll(A, va, off, n, val, vt, st=69, sleep=1):
    l = uid("lp"); e = uid("le")
    if sleep and os.environ.get("BIGSL"): sleep = 40
    op = {1: "ds_read_b32", 2: "ds_read_b64", 4: "ds_read_b128"}[n]
    A(f"s_mov_b32 s{CAP}, 0x100000\n{l}:\n{op} {v(vt,n)}, v{va} offset:{off}\ns_sub_u32 s{CAP}, s{CAP}, 1\ns_cbranch_scc1 {e}\ns_waitcnt lgkmcnt(0)")
    if n == 2: A(f"v_min_u32 v{vt}, v{vt}, v{vt+1}\ns_nop 0")
    if n == 4: A(f"v_min3_u32 v{vt}, v{vt}, v{vt+1}, v{vt+2}\nv_min_u32 v{vt}, v{vt}, v{vt+3}\ns_nop 0")
    A(f"v_readfirstlane_b32 s{st}, v{vt}\ns_cmp_ge_u32 s{st}, {val}\ns_cbranch_scc1 {e}\n{('s_sleep %d' % sleep) if sleep else ''}\ns_branch {l}\n{e}:")
def lset(A, va, off, val, vt):
    A(f"v_mov_b32 v{vt}, {val}\ns_mov_b64 exec, 1\nds_write_b32 v{va}, v{vt} offset:{off}\ns_mov_b64 exec, -1")

def acc_t(A, slot):
    if FINE and DIAG:
        A(f"s_memtime s[58:59]\ns_waitcnt lgkmcnt(0)\ns_sub_u32 s61, s58, s60\ns_mov_b32 s60, s58")
        if slot is not None: A(f"s_add_u32 s{72+2*slot}, s{72+2*slot}, s61")
def gb(A, n=1):
    sk = uid("gb")
    A(f"s_cmp_ge_u32 s2, 224\ns_cbranch_scc1 {sk}\n" + "s_barrier\n"*n + f"{sk}:")
def rgcg(A):
    A(f"""
    s_and_b32 s53, s2, 7
    s_lshr_b32 s54, s2, 3
    s_lshr_b32 s55, s53, 1
    s_lshl_b32 s55, s55, 2
    s_and_b32 s56, s54, 3
    s_add_u32 s48, s55, s56
    s_and_b32 s53, s53, 1
    s_mul_i32 s53, s53, 7
    s_lshr_b32 s54, s54, 2
    s_add_u32 s49, s53, s54
    """)

ROT = int(os.environ.get("ROT", "0"))
def rot_code(cs):
    if ROT == 0: return "s_mov_b32 s50, 0"
    if ROT == 1:
        return f"""s_bfe_u32 s50, s2, 0x20003
    s_lshr_b32 s51, s2, 5
    s_add_u32 s50, s50, s51
    s_lshl_b32 s50, s50, 1
    s_cmp_ge_u32 s50, 9
    s_cselect_b32 s51, 9, 0
    s_sub_u32 s50, s50, s51
    s_cmp_ge_u32 s50, 9
    s_cselect_b32 s51, 9, 0
    s_sub_u32 s50, s50, s51
    s_mul_i32 s50, s50, {cs}"""
    if ROT == 2:
        return f"""s_and_b32 s50, s2, 7
    s_lshr_b32 s51, s50, 1
    s_lshl_b32 s51, s51, 1
    s_and_b32 s50, s50, 1
    s_mul_i32 s50, s50, 4
    s_add_u32 s50, s50, s51
    s_cmp_ge_u32 s50, 9
    s_cselect_b32 s51, 9, 0
    s_sub_u32 s50, s50, s51
    s_mul_i32 s50, s50, {cs}"""
    if ROT == 3:
        return f"""s_bfe_u32 s50, s2, 0x10003
    s_bfe_u32 s51, s2, 0x10005
    s_xor_b32 s50, s50, s51
    s_mul_i32 s50, s50, {4*cs}"""
def gemm_loader(A, isx):
    VD = 4; VF = 8; VT = 10
    rgcg(A)
    if isx:
        A(f"""
        s_lshl_b32 s53, s48, 7
        v_lshrrev_b32 v1, 3, v0
        v_add_u32 v1, s53, v1
        v_mul_u32_u24 v1, 1152, v1
        v_lshrrev_b32 v2, 4, v0
        v_and_b32 v3, 7, v0
        v_xor_b32 v3, v3, v2
        v_lshl_add_u32 v{VD}, v3, 4, v1
        v_xor_b32 v3, 4, v3
        v_lshl_add_u32 v{VD+1}, v3, 4, v1
        v_add_u32 v{VD+1}, 8192, v{VD+1}
        v_add_u32 v{VD+2}, 16384, v{VD}
        v_add_u32 v{VD+3}, 16384, v{VD+1}
        """)
    else:
        A(f"""
        v_lshrrev_b32 v2, 4, v0
        v_mul_u32_u24 v1, 3456, v2
        v_and_b32 v3, 15, v0
        v_lshlrev_b32 v2, 2, v2
        v_xor_b32 v3, v3, v2
        v_lshl_add_u32 v1, v3, 4, v1
        s_lshl_b32 s53, s49, 8
        v_add_u32 v{VD}, s53, v1
        v_add_u32 v{VD+1}, 12800, v{VD}
        v_add_u32 v{VD+2}, 25600, v{VD}
        v_add_u32 v{VD+3}, 38400, v{VD}
        """)
    cs, gs = (128, 32*1152) if isx else (64*3456, 16*3456)
    lp = uid("ld")
    A(f"""
    {rot_code(cs)}
    s_mov_b32 s51, {0 if isx else 16384}
    s_mov_b32 s52, 0x10000
    s_mov_b32 s53, 0
    s_waitcnt lgkmcnt(0)
    """)
    if isx: srd(A, 4, P_U, 2048*1152)
    else: srd(A, 4, P_WQKV, 576*3456)
    stamp(A, 1)
    acc_t(A, None)
    A(f"{lp}:\ns_mov_b32 m0, s51\ns_add_u32 s54, s50, {gs}")
    for g in range(4):
        so = (50, 54, 55, 56)[g]
        for n in range(4): A(f"buffer_load_dwordx4 v{VD+n}, s[4:7], s{so} offen offset:{1024*n} lds")
        if g < 3: A(f"s_add_u32 m0, s51, {4096*(g+1)}")
        if g < 2: A(f"s_add_u32 s{(55, 56)[g]}, s50, {gs*(g+2)}")
        elif g == 2: A(f"s_add_u32 s50, s50, {cs}" + (f"\ns_cmp_eq_u32 s50, {9*cs}\ns_cselect_b32 s50, 0, s50" if ROT else ""))
    acc_t(A, 4)
    A(f"""
    s_xor_b32 s51, s51, s52
    s_xor_b32 s52, s52, 0x18000
    s_add_u32 s53, s53, 1
    s_cmp_lt_u32 s53, 2
    s_cbranch_scc1 {lp}
    s_waitcnt vmcnt(16)
    """)
    acc_t(A, 5)
    A("s_barrier")
    acc_t(A, 6)
    A(f"s_cmp_lt_u32 s53, 9\ns_cbranch_scc1 {lp}")
    ws_setup(A)
    A("s_waitcnt vmcnt(0)\ns_barrier")
    get_nonce(A)
    stamp(A, 3)

def gemm_compute(A, done_label):
    AX, AW = 4, 8
    VFL, VDN, PT = 10, 11, 12
    FR = 16
    ACC = 80
    rgcg(A)
    A(f"""
    s_and_b32 s53, s3, 1
    s_lshr_b32 s54, s3, 1
    s_lshl_b32 s55, s53, 13
    v_and_b32 v1, 31, v0
    v_lshlrev_b32 v1, 7, v1
    v_add_u32 v1, s55, v1
    v_lshrrev_b32 v2, 5, v0
    v_bfe_u32 v3, v0, 1, 3
    v_xor_b32 v3, v3, v2
    v_lshl_add_u32 v{AX}, v3, 4, v1
    v_xor_b32 v{AX+1}, 32, v{AX}
    v_xor_b32 v{AX+2}, 0x40040, v{AX}
    v_xor_b32 v{AX+3}, 0x40060, v{AX}
    v_bfe_u32 v1, v0, 2, 2
    v_lshl_add_u32 v3, v2, 3, v1
    v_lshlrev_b32 v3, 8, v3
    s_lshl_b32 s55, s54, 1
    v_xor_b32 v1, s55, v1
    v_lshl_add_u32 v3, v1, 6, v3
    v_bfe_u32 v1, v0, 4, 1
    v_lshl_add_u32 v3, v1, 5, v3
    v_and_b32 v1, 3, v0
    v_lshl_add_u32 v3, v1, 3, v3
    v_add_u32 v{AW}, 0x44000, v3
    v_xor_b32 v{AW+1}, 64, v{AW}
    v_mov_b32 v{VFL}, {L_FL}
    s_lshl_b32 s56, s48, 1
    s_add_u32 s56, s56, s53
    s_lshl_b32 s57, s49, 1
    s_add_u32 s57, s57, s54
    s_waitcnt lgkmcnt(0)
    """)
    ws_setup(A); get_nonce(A)
    for i in range(32): A(f"v_mov_b32 v{FR+i}, 0")
    for i in range(64): A(f"v_mov_b32 v{ACC+i}, 0")
    A("s_mov_b32 s62, 0\ns_mov_b32 s63, 0x40000\ns_mov_b32 s64, 0x10000")
    def reads(ks, part):
        b = FR + 16*ks
        if part == 0:
            for t in range(2): A(f"ds_read_b128 {v(b+4*t,4)}, v{AX+ks} offset:{4096*t}")
        else:
            f = part - 1
            for t in range(2): A(f"ds_read_b64_tr_b16 {v(b+8+4*f+2*t,2)}, v{AW+f} offset:{ks*4096+t*1024}")
    def mf(ks, i, vtype):
        b = FR + 16*ks
        t, f = i >> 1, i & 1
        d = v(ACC+16*i, 16); x = v(b+4*t, 4); w = v(b+8+4*f, 4)
        if "m" in os.environ.get("GX", ""): A("s_nop 0"); return
        A(f"v_mfma_f32_32x32x16_bf16 {d}, {x if vtype else w}, {w if vtype else x}, {d}")
    def main(vtype):
        lp = uid("gm"); nb = uid("gnb")
        A.raw(".p2align 6")
        A.label(lp)
        for ks in range(4):
            A(f"s_waitcnt lgkmcnt(6)")
            mf(ks, 0, vtype)
            if ks == 2:
                A(f"s_cbranch_scc1 {nb}")
                if FINE and DIAG: A("s_memtime s[58:59]")
                A("s_barrier")
                if FINE and DIAG: A("s_memtime s[60:61]\ns_waitcnt lgkmcnt(0)\ns_sub_u32 s60, s60, s58\ns_add_u32 s86, s86, s60")
                if DIAG and os.environ.get("CS"):
                    sk = uid("sk"); A(f"s_cmp_lg_u32 s62, 0\ns_cbranch_scc1 {sk}"); stamp(A, 1); A(f"{sk}:")
                A(f"{nb}:")
            kn = (ks+2) & 3
            reads(kn, 0)
            mf(ks, 1, vtype)
            reads(kn, 1)
            if ks == 3: A("s_add_u32 s62, s62, 1")
            mf(ks, 2, vtype)
            reads(kn, 2)
            if ks == 1: A("s_cmp_eq_u32 s62, 9")
            if ks == 3: A(f"v_xor_b32 v{AX+kn}, s64, v{AX+kn}\ns_mov_b32 s63, s64\ns_xor_b32 s64, s64, 0x18000\ns_cmp_lt_u32 s62, 10")
            mf(ks, 3, vtype)
            if ks < 3: A(f"v_xor_b32 v{AX+kn}, s{63 if ks < 2 else 64}, v{AX+kn}")
            if ks == 1: A(f"v_xor_b32 v{AW}, s63, v{AW}\nv_xor_b32 v{AW+1}, s63, v{AW+1}")
        A(f"s_cbranch_scc1 {lp}")
        stamp(A, 4)
    A(f"s_cmp_ge_u32 s49, 9\ns_cbranch_scc1 L_g_vtype")
    main(False)
    A(f"""
    s_mul_i32 s58, s56, {2*QKQ_TT}
    s_lshl_b32 s59, s57, 12
    s_add_u32 s58, s58, s59
    s_add_u32 s59, s58, {QKQ_TT}
    s_mov_b32 s60, {f32(QSCALE)}
    s_cmp_lt_u32 s57, 9
    s_nop 0
    v_and_b32 v1, 15, v0
    v_lshlrev_b32 v1, 4, v1
    v_bfe_u32 v2, v0, 4, 1
    v_lshl_or_b32 v1, v2, 9, v1
    v_lshrrev_b32 v2, 5, v0
    v_lshl_or_b32 v1, v2, 8, v1
    """)
    for i in range(4):
        t, f = i >> 1, i & 1
        a = ACC + 16*i
        sk = uid("ns")
        A(f"s_cbranch_scc0 {sk}")
        for j in range(16): A(f"v_mul_f32 v{a+j}, s60, v{a+j}")
        A(f"{sk}:")
        for j in range(8): A(f"v_cvt_pk_bf16_f32 v{a+j}, v{a+2*j}, v{a+2*j+1}")
        A(f"v_permlane16_swap_b32 v{a}, v{a+2}\nv_permlane16_swap_b32 v{a+1}, v{a+3}")
        A(f"v_permlane16_swap_b32 v{a+4}, v{a+6}\nv_permlane16_swap_b32 v{a+5}, v{a+7}")
        for g in range(2):
            A(f"buffer_store_dwordx4 {v(a+4*g,4)}, v1, s[12:15], s{58+t} offen offset:{f*2048+g*1024} sc1")
    A(f"s_branch L_g_pub")
    A.label("L_g_vtype")
    main(True)
    A(f"""
    s_mul_i32 s58, s56, {2*VT_TT}
    s_lshl_b32 s59, s57, 10
    s_add_u32 s58, s58, s59
    s_add_u32 s58, s58, {VT_OFF - 18*1024}
    s_add_u32 s59, s58, {2*VT_ROW}
    s_add_u32 s60, s58, {VT_TT}
    s_add_u32 s61, s59, {VT_TT}
    v_lshrrev_b32 v2, 5, v0
    v_mul_u32_u24 v2, {VT_ROW}, v2
    v_and_b32 v1, 31, v0
    v_lshl_add_u32 v1, v1, 4, v2
    s_cmp_eq_u32 s57, 27
    s_cbranch_scc1 L_g_pub
    """)
    for i in range(4):
        t, f = i >> 1, i & 1
        a = ACC + 16*i
        if i == 1: A("s_nop 1")
        for j in range(8): A(f"v_cvt_pk_bf16_f32 v{a+j}, v{a+2*j}, v{a+2*j+1}")
        for m in range(2):
            A(f"buffer_store_dwordx4 {v(a+4*m,4)}, v1, s[12:15], s{58+2*t+m} offen offset:{f*512} sc1")
    A.label("L_g_pub")
    if not FINE: stamp(A, 5)
    A("s_waitcnt vmcnt(0)")
    if not FINE: stamp(A, 6)
    A(f"""
    v_mov_b32 v{PT}, 1
    s_mov_b64 exec, 1
    ds_add_rtn_u32 v{PT}, v{VFL}, v{PT} offset:{F_STD}
    s_mov_b64 exec, -1
    s_lshl_b32 s58, s49, 4
    s_add_u32 s58, s58, s48
    s_mul_i32 s58, s58, {FS}
    s_add_u32 s58, s58, {FQ_OFF}
    s_waitcnt lgkmcnt(0)
    v_readfirstlane_b32 s69, v{PT}
    s_cmp_lg_u32 s69, 3
    s_cbranch_scc1 {done_label}
    """)
    gflag(A, "s58", PT)
    A(f"s_branch {done_label}")

NROW = [[0,1,2,3,4,5,6,7, 14,15,16, 20,21, 22,23, 0], [9,9,10,11,11,11,12,13, 17,18,19, 24,25, 26,27, 0]]
def kg_rowaddr(side, n):
    a = side*128 + n*256
    if side == 1 and n >= 30: a -= 640
    return a
def kgen_table():
    T = []
    for lane in range(64):
        i = lane & 31; hh = lane >> 5
        g, h2, ii = i >> 3, (i >> 2) & 1, i & 3
        n = NROW[h2][4*g + ii]
        ra = kg_rowaddr(0, n) + ((hh ^ ((n >> 1) & 7)) << 4)
        b = 8*(i & 3) + (i >> 2)
        rb = kg_rowaddr(1, b) + ((hh ^ ((b >> 1) & 7)) << 4)
        if b > 0: pb, ph = b-1, hh
        else: pb, ph = 31, 0
        pl = 32*ph + 4*(pb & 7) + (pb >> 3)
        so = (7 - (b & 7))*1536 + (16 + (b >> 3))*32
        T += [ra, rb, pl*4, so]
    return T

def kgen(A):
    PR = 4
    VRL = 11; T = 12
    TB = 16; vDT, vDS = 20, 21
    C1R, C1I, C2R, C2I = 22, 23, 24, 25
    WA = 26
    M = 34
    X = 44; U = 46
    RA = 52
    AC = 60
    R = 76
    ptrs = [P_ARE, P_AIM, P_BRE, P_BIM, P_CRE, P_CIM]
    A(f"""
    s_getpc_b64 s[50:51]
    L_kg_pc:
    s_add_u32 s50, s50, kgen_tab-L_kg_pc
    s_addc_u32 s51, s51, 0
    v_and_b32 v1, 31, v0
    s_lshl_b32 s52, s48, 8
    s_lshl_b32 s53, s63, 7
    s_add_u32 s52, s52, s53
    v_lshl_add_u32 v2, v1, 2, s52
    s_lshl_b32 s52, s48, 1
    v_mov_b32 v10, s52
    v_lshlrev_b32 v{T}, 4, v0
    s_waitcnt lgkmcnt(0)
    global_load_ushort v{vDT}, v10, {s(P_LDT,2)}
    """)
    for i in range(6): A(f"global_load_dword v{PR+i}, v2, {s(ptrs[i],2)}")
    A(f"global_load_ushort v{vDS}, v10, {s(P_DSK,2)}\nglobal_load_dwordx4 {v(TB,4)}, v{T}, s[50:51]")
    ws_setup(A)
    A(f"""
    v_mov_b32 v{C1R}, {f32(LOG2E)}
    v_mov_b32 v{C1I}, {f32(1/(2*math.pi))}
    v_mov_b32 v{C2R}, {f32(248*LOG2E)}
    v_mov_b32 v{C2I}, {f32(248/(2*math.pi))}
    s_mov_b32 exec_lo, 0
    v_mov_b32 v{C1R}, {f32(8*LOG2E)}
    v_mov_b32 v{C1I}, {f32(-8/(2*math.pi))}
    v_mov_b32 v{C2R}, v{C1R}
    v_mov_b32 v{C2I}, v{C1I}
    s_mov_b32 exec_lo, -1
    v_lshl_add_u32 v2, v0, 2, s49
    """)
    for q in range(8): A(f"v_xor_b32 v{WA+q}, {q*16}, v2")
    A(f"v_subrev_u32 v{VRL}, 640, v{WA+7}")
    A(f"""
    s_mov_b32 s52, 0
    s_waitcnt vmcnt(2)
    v_lshlrev_b32 v{vDT}, 16, v{vDT}
    v_mul_f32 v{vDT}, {f32(LOG2E)}, v{vDT}
    v_exp_f32 v{vDT}, v{vDT}
    s_nop 0
    v_cvt_pk_bf16_f32 v{vDT}, v{vDT}, v{vDT}
    v_and_b32 v{vDT}, 0xffff0000, v{vDT}
    """)
    stamp(A, 1)
    Mx = lambda j: M + 2*j
    mult = [0]*8 + [4] + [1]*4 + [4] + [2]*2 + [4] + [2]*2 + [4, 3, 4, 3, 4, 3, 4, 3] + [3]*4
    A.label("L_kg_pass")
    for i in range(6): A(f"v_and_b32 v{U+i}, 0xffff0000, v{PR+i}")
    A(f"""
    v_mul_f32 v{U}, v{vDT}, v{U}
    v_mul_f32 v{U+1}, v{vDT}, v{U+1}
    v_mul_f32 v{T}, v{C1R}, v{U}
    v_mul_f32 v{T+1}, v{C1I}, v{U+1}
    v_mul_f32 v{T+2}, v{C2R}, v{U}
    v_mul_f32 v{T+3}, v{C2I}, v{U+1}
    v_fract_f32 v{T+1}, v{T+1}
    v_fract_f32 v{T+3}, v{T+3}
    v_exp_f32 v{T}, v{T}
    v_cos_f32 v{Mx(0)}, v{T+1}
    v_sin_f32 v{Mx(0)+1}, v{T+1}
    v_exp_f32 v{T+2}, v{T+2}
    v_cos_f32 v{Mx(4)}, v{T+3}
    v_sin_f32 v{Mx(4)+1}, v{T+3}
    v_mul_f32 v{U+2}, v{vDT}, v{U+2}
    v_mul_f32 v{U+3}, v{vDT}, v{U+3}
    v_mul_f32 v{X}, v{U+3}, v{U+5}
    v_mul_f32 v{X+1}, v{U+3}, v{U+4}
    v_fmac_f32 v{X+1}, v{U+2}, v{U+5}
    v_fma_f32 v{X}, v{U+2}, v{U+4}, -v{X}
    v_mul_f32 v{Mx(0)}, v{T}, v{Mx(0)}
    v_mul_f32 v{Mx(0)+1}, v{T}, v{Mx(0)+1}
    v_mul_f32 v{Mx(4)}, v{T+2}, v{Mx(4)}
    v_mul_f32 v{Mx(4)+1}, v{T+2}, v{Mx(4)+1}
    """)
    for j in (1, 2, 3):
        d, x = Mx(j), Mx(j-1)
        A(f"v_mul_f32 v{d}, v{x+1}, v{x+1}\nv_add_f32 v{d+1}, v{x}, v{x}\nv_mul_f32 v{d+1}, v{d+1}, v{x+1}\nv_fma_f32 v{d}, v{x}, v{x}, -v{d}")
    A("s_mov_b32 exec_lo, 0")
    for j in (1, 2, 3): A(f"v_mov_b32 v{Mx(j)}, v{Mx(0)}\nv_mov_b32 v{Mx(j)+1}, v{Mx(0)+1}")
    A(f"v_mov_b32 v{X}, 1.0\nv_mov_b32 v{X+1}, 0\ns_mov_b32 exec_lo, -1")
    for n in range(32):
        A(f"v_cvt_pk_bf16_f32 v{R+n}, v{X}, v{X+1}")
        if n < 31:
            m = Mx(mult[n])
            A(f"v_mul_f32 v{T}, v{X+1}, v{m+1}\nv_mul_f32 v{X+1}, v{X+1}, v{m}\nv_fmac_f32 v{X+1}, v{X}, v{m+1}\nv_fma_f32 v{X}, v{X}, v{m}, -v{T}")
        if n in (0, 11, 22, 31): gb(A)
    A("s_cmp_lg_u32 s52, 0\ns_cbranch_scc1 L_kg_cd")
    for n in range(32): A(f"v_mov_b32 v{R+32+n}, v{R+n}")
    for i in range(6): A(f"v_lshlrev_b32 v{PR+i}, 16, v{PR+i}")
    A("s_mov_b32 s52, 1\ns_branch L_kg_pass\nL_kg_cd:\ns_waitcnt vmcnt(0)")
    stamp(A, 2)
    for sd in range(2):
        A(f"v_add_u32 v{RA+4*sd}, s49, v{TB+sd}")
        for q in (1, 2, 3): A(f"v_xor_b32 v{RA+4*sd+q}, {q*32}, v{RA+4*sd}")
    O = AC; PV = 12; P3 = 13; P4 = 14; D = R; Z = 4
    A(f"""
    v_lshlrev_b32 v{vDS}, 16, v{vDS}
    v_mov_b32 v{Z}, 0
    v_mov_b32 v{Z+1}, 0
    v_mov_b32 v{Z+2}, 0
    v_mov_b32 v{Z+3}, 0
    v_lshrrev_b32 v2, 5, v0
    v_mul_u32_u24 v8, 1536, v2
    v_lshl_add_u32 v8, v1, 4, v8
    v_add_u32 v8, s62, v8
    v_add_u32 v{TB+3}, s62, v{TB+3}
    v_lshl_add_u32 v9, v2, 7, v{TB+3}
    v_lshl_add_u32 v10, v2, 8, v{TB+3}
    s_cmp_eq_u32 s63, 0
    s_cselect_b32 s53, s64, s49
    v_lshl_add_u32 v2, v0, 4, s53
    """)
    get_nonce(A)
    gb(A, 1)
    stamp(A, 3)
    for p in range(2):
        r = R + 32*p
        for n0 in range(0, 32, 2):
            if n0 == 28: A("s_mov_b32 exec_lo, 0")
            wa = VRL if n0 == 30 else WA + ((n0 >> 1) & 7)
            A(f"ds_write2st64_b32 v{wa}, v{r+n0}, v{r+n0+1} offset0:{n0} offset1:{n0+1}")
        A("s_mov_b32 exec_lo, -1")
        for q in range(4): A(f"ds_read_b128 {v(r+8*q,4)}, v{RA+q}\nds_read_b128 {v(r+8*q+4,4)}, v{RA+4+q}")
    if FINE: stamp(A, 4)
    for p in range(2):
        r = R + 32*p
        if FINE and p == 1: stamp(A, 5)
        for q in range(4):
            A(f"s_waitcnt lgkmcnt({8 if p == 0 else 6-2*q})")
            A(f"v_mfma_f32_32x32x16_bf16 {v(AC,16)}, {v(r+8*q,4)}, {v(r+8*q+4,4)}, {'0' if p+q == 0 else v(AC,16)}")
    if FINE: stamp(A, 6)
    A("s_cmp_eq_u32 s63, 0\ns_cbranch_scc1 L_kg_fin")
    for i in range(4): A(f"ds_write_b128 v8, {v(Z,4)} offset:{3072*i}")
    A("s_nop 7")
    for i in range(4): A(f"ds_write_b128 v2, {v(AC+4*i,4)} offset:{1024*i}")
    lset(A, 3, F_KP, 1, 12)
    if FINE: stamp(A, 7)
    A("s_branch L_conv\nL_kg_fin:")
    lpoll(A, 3, F_KP, 1, 1, 12, sleep=0)
    if FINE: stamp(A, 7)
    for i in range(4): A(f"ds_read_b128 {v(R+32+4*i,4)}, v2 offset:{1024*i}")
    A("s_mov_b32 vcc_lo, 0xf0f0f0f0\ns_mov_b32 vcc_hi, 0xf0f0f0f0\ns_waitcnt lgkmcnt(0)")
    for i in range(15): A(f"v_add_f32 v{AC+i}, v{AC+i}, v{R+32+i}")
    A(f"""
    ds_bpermute_b32 v{PV}, v{TB+2}, v{O+7}
    v_cndmask_b32 v{P3}, v{O+11}, v{O+12}, vcc
    v_cndmask_b32 v{P4}, v{O+13}, v{O+14}, vcc
    """)
    groups = [([O+8]*3 + [O+9]*3 + [O+10]*2, O+8, 9, 8*32),
              ([O+11]*4 + [P3] + [O+12]*3, O+11, 10, 16*32),
              ([O+13]*4 + [P4] + [O+14]*3, O+13, 10, 20*32),
              ([O+i for i in range(8)], PV, 9, 0)]
    for gi, (o, pv, areg, off) in enumerate(groups):
        d = D + 8*gi
        if gi == 3:
            A(f"s_waitcnt lgkmcnt(6)\ns_mov_b64 exec, 1\nv_add_f32 v{O}, v{O}, v{vDS}\nv_mov_b32 v{PV}, 0\ns_mov_b64 exec, -1")
        c0 = [o[6], o[5], o[4], o[3], o[2], o[1], o[0], pv]
        c1 = [o[7], o[6], o[5], o[4], o[3], o[2], o[1], o[0]]
        for j in range(4): A(f"v_cvt_pk_bf16_f32 v{d+j}, v{c0[2*j]}, v{c0[2*j+1]}")
        for j in range(4): A(f"v_cvt_pk_bf16_f32 v{d+4+j}, v{c1[2*j]}, v{c1[2*j+1]}")
        A(f"ds_write_b128 v{areg}, {v(d,4)} offset:{off}\nds_write_b128 v{areg}, {v(d+4,4)} offset:{off+16}")
    if FINE: stamp(A, 8)
    lset(A, 3, F_KRDY, 1, 15)
    if FINE: A("s_waitcnt lgkmcnt(0)"); stamp(A, 9)

def trans_u(A):
    A(f"""
    s_mul_i32 s52, s50, {64*1152}
    s_lshl_b32 s53, s51, 7
    s_add_u32 s52, s52, s53
    v_lshrrev_b32 v1, 3, v0
    v_mul_u32_u24 v2, 1152, v1
    v_bfe_u32 v3, v0, 4, 1
    v_lshlrev_b32 v3, 2, v3
    v_and_b32 v4, 7, v0
    v_xor_b32 v3, v3, v4
    v_lshl_add_u32 v2, v3, 4, v2
    s_waitcnt lgkmcnt(0)
    """)
    srd(A, 4, P_U, 2048*1152)
    for n in range(8):
        A(f"s_add_u32 m0, s49, {n*1024}\ns_add_u32 s53, s52, {n*9216}")
        A(f"buffer_load_dwordx4 v2, s[4:7], s53 offen lds")
    ws_setup(A)
    A(f"""
    v_bfe_u32 v3, v0, 2, 2
    v_and_b32 v5, 1, v0
    v_lshl_add_u32 v3, v5, 5, v3
    v_lshlrev_b32 v3, 7, v3
    v_and_b32 v5, 0x30, v0
    v_add_u32 v3, v3, v5
    v_bfe_u32 v5, v0, 1, 1
    v_lshl_add_u32 v3, v5, 3, v3
    v_bfe_u32 v5, v0, 3, 1
    v_lshl_add_u32 v3, v5, 6, v3
    v_add_u32 v5, s49, v3
    v_xor_b32 v6, 64, v5
    v_mul_u32_u24 v2, {4*UT_ROW}, v1
    v_lshl_add_u32 v2, v4, 4, v2
    s_mul_i32 s52, s51, {64*UT_ROW}
    s_add_u32 s52, s52, {UT_OFF}
    s_lshl_b32 s54, s51, 5
    s_add_u32 s54, s54, s50
    s_mul_i32 s54, s54, {FS}
    s_add_u32 s54, s54, {FU_OFF}
    s_lshl_b32 s53, s50, 7
    s_add_u32 s55, s52, s53
    """)
    get_nonce(A)
    A("s_barrier\ns_barrier\ns_waitcnt vmcnt(0)")
    stamp(A, 1)
    B0, B1 = 8, 40
    for G in range(8):
        for t in range(2): A(f"ds_read_b64_tr_b16 {v(B0+4*G+2*t,2)}, v{5+(G>>2)} offset:{(8*(G&3)+4*t)*128}")
    def stage(src, dst, bit, qp, m0):
        for sel in range(2):
            m = m0 if sel == 0 else (~m0 & 0xffffffff)
            A(f"s_mov_b32 vcc_lo, {hex(m)}\ns_mov_b32 vcc_hi, {hex(m)}")
            for G in range(8):
                if ((G >> bit) & 1) != sel: continue
                for k in range(4):
                    A(f"v_cndmask_b32_dpp v{dst+4*G+k}, v{src+4*(G^(1<<bit))+k}, v{src+4*G+k}, vcc quad_perm:{qp} row_mask:0xf bank_mask:0xf")
    A("s_waitcnt lgkmcnt(0)")
    stage(B0, B1, 0, "[1,0,3,2]", 0x55555555)
    A("s_barrier")
    stage(B1, B0, 1, "[2,3,0,1]", 0x33333333)
    for G in range(8):
        A(f"s_add_u32 s53, s55, {(32*(G>>2)+(G&3))*UT_ROW}")
        A(f"buffer_store_dwordx4 {v(B0+4*G,4)}, v2, s[12:15], s53 offen offset:128 sc1")
    A("s_barrier\ns_cmp_lg_u32 s50, 0\ns_cbranch_scc1 L_tu_nopad")
    for k in range(4): A(f"v_mov_b32 v{B1+k}, 0")
    for G in range(8):
        A(f"s_add_u32 s53, s52, {(32*(G>>2)+(G&3))*UT_ROW}")
        A(f"buffer_store_dwordx4 {v(B1,4)}, v2, s[12:15], s53 offen sc1")
    A("L_tu_nopad:\ns_barrier\ns_barrier\ns_waitcnt vmcnt(0)")
    gflag(A, "s54", 8)
    stamp(A, 2)

def trans_wo(A):
    A(f"""
    s_mul_i32 s52, s50, {72*1152}
    s_lshl_b32 s53, s51, 6
    s_add_u32 s52, s52, s53
    v_lshrrev_b32 v1, 2, v0
    v_mul_u32_u24 v2, 1152, v1
    v_and_b32 v4, 3, v0
    v_lshl_add_u32 v2, v4, 4, v2
    s_waitcnt lgkmcnt(0)
    """)
    srd(A, 4, P_WO, 576*1152)
    for n in range(5):
        A(f"s_add_u32 m0, s49, {n*1024}\ns_add_u32 s53, s52, {n*16*1152}")
        A(f"buffer_load_dwordx4 v2, s[4:7], s53 offen lds")
    ws_setup(A); get_nonce(A)
    A(f"""
    v_and_b32 v5, 1, v0
    v_lshlrev_b32 v5, 5, v5
    v_bfe_u32 v6, v0, 1, 1
    v_lshl_add_u32 v5, v6, 3, v5
    v_bfe_u32 v6, v0, 4, 1
    v_lshl_add_u32 v5, v6, 4, v5
    v_add_u32 v5, s49, v5
    v_bfe_u32 v3, v0, 2, 2
    v_lshrrev_b32 v6, 5, v0
    v_lshl_add_u32 v6, v6, 2, v3
    v_lshl_add_u32 v6, v6, 6, v5
    v_bfe_u32 v7, v0, 3, 1
    v_mul_u32_u24 v7, {18*64}, v7
    v_bfe_u32 v3, v0, 2, 1
    v_lshl_add_u32 v7, v3, 6, v7
    v_add_u32 v7, v7, v5
    v_lshlrev_b32 v2, 4, v0
    s_mul_i32 s52, s50, {4*18*1024}
    s_lshl_b32 s53, s51, 10
    s_add_u32 s53, s53, {WOT_OFF}
    s_add_u32 s52, s52, s53
    s_lshr_b32 s54, s50, 1
    s_add_u32 s54, s54, 32
    s_mul_i32 s54, s54, {18*1024}
    s_add_u32 s54, s54, s53
    s_and_b32 s55, s50, 1
    s_lshl_b32 s55, s55, 9
    s_add_u32 s54, s54, s55
    s_barrier
    s_barrier
    s_waitcnt vmcnt(0)
    """)
    for h in range(4):
        for t in range(2): A(f"ds_read_b64_tr_b16 {v(8+4*h+2*t,2)}, v6 offset:{(18*h+8*t)*64}")
    for t in range(2): A(f"ds_read_b64_tr_b16 {v(24+2*t,2)}, v7 offset:{(36*t+16)*64}")
    for h in range(4):
        A(f"s_waitcnt lgkmcnt({8-2*h})")
        A(f"buffer_store_dwordx4 {v(8+4*h,4)}, v2, s[12:15], s52 offen sc1")
        if h < 3: A(f"s_add_u32 s52, s52, {18*1024}")
    A(f"""
    s_waitcnt lgkmcnt(0)
    s_mov_b32 exec_hi, 0
    buffer_store_dwordx4 v[24:27], v2, s[12:15], s54 offen sc1
    s_mov_b32 exec_hi, -1
    s_barrier
    s_barrier
    s_barrier
    s_barrier
    """)

def gate(A):
    GW = 8; XD = 44; Z = 120
    A(f"""
    v_and_b32 v4, 7, v0
    v_lshlrev_b32 v4, 4, v4
    v_lshrrev_b32 v1, 3, v0
    v_mul_u32_u24 v2, 1152, v1
    v_add_u32 v2, v2, v4
    s_mul_i32 s52, s48, {32*1152}
    s_waitcnt lgkmcnt(0)
    """)
    srd(A, 4, P_U, 2048*1152)
    for j in range(9): A(f"global_load_dwordx4 {v(GW+4*j,4)}, v4, {s(P_GW,2)} offset:{128*j}")
    def ld(n):
        for j in range(9): A(f"buffer_load_dwordx4 {v(XD+36*(n&1)+4*j,4)}, v2, s[4:7], s52 offen offset:{128*j}")
        if n < 3: A(f"s_add_u32 s52, s52, {8*1152}")
    ld(0); ld(1)
    ws_setup(A); get_nonce(A)
    for n in range(4):
        A(f"s_waitcnt vmcnt({9 if n < 3 else 0})\nv_mov_b32 v{Z+n}, 0\nv_mov_b32 v{Z+4+n}, 0")
        for j in range(36): A(f"v_dot2c_f32_bf16 v{Z+n+4*(j&1)}, v{XD+36*(n&1)+j}, v{GW+j}")
        if n < 2: ld(n+2)
    A("s_nop 2")
    for n in range(4): A(f"v_add_f32 v{Z+n}, v{Z+n}, v{Z+4+n}")
    for pat in ("quad_perm:[1,0,3,2]", "quad_perm:[2,3,0,1]", "row_half_mirror"):
        A("s_nop 1")
        for n in range(4): A(f"v_add_f32_dpp v{Z+n}, v{Z+n}, v{Z+n} {pat} row_mask:0xf bank_mask:0xf")
    A(f"v_and_b32 v5, 3, v0")
    for n in (1, 2, 3): A(f"v_cmp_eq_u32 vcc, {n}, v5\ns_nop 1\nv_cndmask_b32 v{Z}, v{Z}, v{Z+n}, vcc")
    A(f"""
    v_cvt_pk_bf16_f32 v{Z}, v{Z}, v{Z}
    v_and_b32 v{Z}, 0xffff0000, v{Z}
    v_mul_f32 v{Z}, {f32(-LOG2E)}, v{Z}
    v_exp_f32 v{Z}, v{Z}
    v_lshl_add_u32 v5, v5, 3, v1
    v_add_f32 v{Z}, 1.0, v{Z}
    v_rcp_f32 v{Z}, v{Z}
    v_lshlrev_b32 v5, 3, v5
    v_cvt_pk_bf16_f32 v{Z}, v{Z}, v{Z}
    v_and_b32 v{Z}, 0xffff0000, v{Z}
    v_sub_f32 v{Z+1}, 1.0, v{Z}
    v_cvt_pk_bf16_f32 v{Z+1}, v{Z+1}, v{Z+1}
    v_and_b32 v{Z+1}, 0xffff0000, v{Z+1}
    s_lshl_b32 s52, s48, 8
    s_add_u32 s52, s52, {G_OFF}
    s_mov_b32 exec_lo, 0x0f0f0f0f
    s_mov_b32 exec_hi, 0x0f0f0f0f
    buffer_store_dwordx2 {v(Z,2)}, v5, s[12:15], s52 offen sc1
    s_mov_b64 exec, -1
    s_mul_i32 s54, s48, {FS}
    s_add_u32 s54, s54, {FG_OFF}
    """)
    A("s_waitcnt vmcnt(0)")
    gflag(A, "s54", 8)
```

```python
QKQ_OFF = 0
QKQ_TT = 288*256
QKQ_SZ = 64*QKQ_TT
VT_OFF = QKQ_OFF + QKQ_SZ
VT_ROW = 584*16
VT_TT = 4*VT_ROW
VT_SZ = 64*VT_TT
UT_OFF = VT_OFF + VT_SZ
UT_ROW = 4224
UT_SZ = 576*UT_ROW + 1024
G_OFF = UT_OFF + UT_SZ
G_SZ = 2048*8
OF_OFF = G_OFF + G_SZ
OF_TT = 36*1024
OF_SZ = 64*OF_TT
AT_OFF = OF_OFF + OF_SZ
AT_CH = 4096
AT_SZ = 576*AT_CH
WOT_OFF = AT_OFF + AT_SZ
WOT_SZ = 36*18*1024
FS = 128
FU_OFF = WOT_OFF + WOT_SZ
FQ_OFF = FU_OFF + 288*FS
FG_OFF = FQ_OFF + 224*FS
FB_OFF = FG_OFF + 64*FS
FO_OFF = FB_OFF + 256*FS
EP_OFF = FO_OFF + 2048*FS
WS_USED = EP_OFF + FS
PH = [0, 65536, 98304, 32768]
L_UC = 65536
UC_COPY = 4288
UC_CH = 4*UC_COPY
L_KC = L_UC + 2*UC_CH
KC_CH = 12288
L_KG = 131072
KG_SZ = 7680
L_FL = 146432
L_TR = 147456
SET1 = 65536
F_RX, F_RW, F_DONE, F_STD, F_URDY, F_KRDY, F_XCH = 0, 4, 16, 32, 48, 64, 96
F_KG3 = 36
F_KP = 80
```

```python
from f1 import *
NV = 168
GRP = 20480
HOFF = 10240
PRIO = int(os.environ.get("PRIO", "1"))
ATD = 112
NE = 2

def head_qb(A):
    A("""
    s_and_b32 s96, s2, 7
    s_lshl_b32 s96, s96, 2
    s_lshr_b32 s97, s2, 6
    s_add_u32 s96, s96, s97
    s_bfe_u32 s97, s2, 0x30003
    """)

def conv(A):
    VU, VK, VFL, PT = 1, 2, 3, 4
    AC = 8
    BUF = 40
    A(f"""
    s_and_b32 s50, s3, 1
    s_bfe_u32 s51, s3, 0x10001
    s_mul_i32 s52, s50, {UC_CH}
    s_add_u32 s52, s52, {L_UC}
    s_sub_u32 s52, s52, s98
    s_lshl_b32 s53, s51, 10
    s_add_u32 s52, s52, s53
    s_mul_i32 s53, s50, {KC_CH}
    s_add_u32 s53, s53, {L_KC + 512 - 32}
    s_sub_u32 s53, s53, s98
    s_lshl_b32 s54, s51, 8
    s_sub_u32 s53, s53, s54
    v_and_b32 v{PT}, 3, v0
    v_mul_u32_u24 v{PT}, {UC_COPY}, v{PT}
    v_bfe_u32 v{PT+1}, v0, 2, 3
    v_lshrrev_b32 v{PT+2}, 5, v0
    v_add_u32 v{PT+1}, v{PT+1}, v{PT+2}
    v_lshl_add_u32 v{VU}, v{PT+1}, 4, v{PT}
    v_add_u32 v{VU}, s52, v{VU}
    v_mul_u32_u24 v{PT+2}, 1536, v{PT+2}
    v_and_b32 v{PT}, 31, v0
    v_lshl_add_u32 v{VK}, v{PT}, 4, v{PT+2}
    v_add_u32 v{VK}, s53, v{VK}
    s_cmp_lg_u32 s98, 0
    s_cselect_b32 s55, 1, 0
    s_lshl_b32 s56, s55, 3
    s_lshl_b32 s57, s50, 2
    s_add_u32 s56, s56, s57
    s_add_u32 s56, s56, {L_FL}
    v_mov_b32 v{VFL}, s56
    """)
    VX = 104
    A(f"""
    s_and_b32 s52, s3, 3
    s_lshl_b32 s56, s55, 4
    s_lshl_b32 s57, s52, 2
    s_add_u32 s56, s56, s57
    s_add_u32 s56, s56, {L_FL+F_XCH}
    v_mov_b32 v{VX}, s56
    v_xor_b32 v{VX+1}, 8, v{VX}
    """)
    for i in range(32): A(f"v_mov_b32 v{AC+i}, 0")
    lpoll(A, VFL, F_KRDY, 1, 1, PT, sleep=1)
    stamp(A, 4)
    lpoll(A, VFL, F_URDY, 1, 1, PT, sleep=1)
    stamp(A, 5)
    def reads(q):
        b = BUF + 16*(q % 4)
        ko = 3072*(q % 4) + 32*(1 - q//4)
        A(f"""
        ds_read_b128 {v(b,4)}, v{VU} offset:{32*q}
        ds_read_b128 {v(b+4,4)}, v{VK} offset:{ko}
        ds_read_b128 {v(b+8,4)}, v{VK} offset:{ko+512}
        ds_read_b128 {v(b+12,4)}, v{VU} offset:{32*q+2048}
        """)
    for q in range(3): reads(q)
    A("s_mov_b32 s58, 0")
    A.label("L_cv_loop")
    for q in range(4):
        b = BUF + 16*q
        A("s_waitcnt lgkmcnt(8)")
        A(f"v_mfma_f32_32x32x16_bf16 {v(AC,16)}, {v(b,4)}, {v(b+4,4)}, {v(AC,16)}")
        reads(q+3)
        A(f"v_mfma_f32_32x32x16_bf16 {v(AC+16,16)}, {v(b,4)}, {v(b+8,4)}, {v(AC+16,16)}")
        if q == 3: A(f"v_add_u32 v{VU}, 128, v{VU}\nv_subrev_u32 v{VK}, 32, v{VK}\ns_add_u32 s58, s58, 1\ns_cmp_lt_u32 s58, 8")
        A(f"v_mfma_f32_32x32x16_bf16 {v(AC+16,16)}, {v(b+12,4)}, {v(b+4,4)}, {v(AC+16,16)}")
    A("s_cbranch_scc1 L_cv_loop")
    stamp(A, 6)
    A(f"""
    s_mul_i32 s52, s50, {UC_CH}
    s_add_u32 s52, s52, {L_UC}
    s_sub_u32 s52, s52, s98
    s_lshl_b32 s53, s51, 12
    s_xor_b32 s54, s53, 0x1000
    s_add_u32 s53, s53, s52
    s_add_u32 s54, s54, s52
    s_waitcnt lgkmcnt(0)
    """)
    lset(A, VX, 0, 1, PT)
    A(f"v_lshl_add_u32 v{VU}, v0, 4, s53\nv_lshl_add_u32 v{VK}, v0, 4, s54")
    lpoll(A, VX+1, 0, 1, 1, PT, sleep=0)
    A(f"""
    s_cmp_eq_u32 s51, 0
    s_cbranch_scc1 L_cv_s0
    """)
    for i in range(4): A(f"ds_write_b128 v{VU}, {v(AC+4*i,4)} offset:{1024*i}")
    for i in range(16): A(f"v_mov_b32 v{BUF+16+i}, v{AC+16+i}")
    A("s_branch L_cv_j\nL_cv_s0:")
    for i in range(4): A(f"ds_write_b128 v{VU}, {v(AC+16+4*i,4)} offset:{1024*i}")
    for i in range(16): A(f"v_mov_b32 v{BUF+16+i}, v{AC+i}")
    A("L_cv_j:")
    lset(A, VX, 0, 2, PT)
    lpoll(A, VX+1, 0, 1, 2, PT, sleep=0)
    for i in range(4): A(f"ds_read_b128 {v(BUF+4*i,4)}, v{VK} offset:{1024*i}")
    A(f"""
    v_bfe_u32 v{PT}, v0, 1, 4
    v_lshlrev_b32 v{PT}, 7, v{PT}
    v_and_b32 v{PT+1}, 1, v0
    v_lshl_add_u32 v{PT}, v{PT+1}, 5, v{PT}
    v_lshrrev_b32 v{PT+1}, 5, v0
    v_lshl_add_u32 v{ATD+8}, v{PT+1}, 4, v{PT}
    s_lshl_b32 s52, s99, 12
    s_lshl_b32 s53, s51, 11
    s_add_u32 s52, s52, s53
    s_add_u32 s98, s52, {AT_OFF}
    s_waitcnt lgkmcnt(0)
    """)
    for i in range(16): A(f"v_add_f32 v{BUF+i}, v{BUF+i}, v{BUF+16+i}")
    for j in range(8): A(f"v_cvt_pk_bf16_f32 v{ATD+j}, v{BUF+2*j}, v{BUF+2*j+1}")
    stamp(A, 7)

def ucopy(A, isgemm_s):
    A(f"""
    s_lshr_b32 s50, s99, 6
    s_mul_i32 s50, s50, {32*FS}
    s_add_u32 s50, s50, {FU_OFF}
    v_and_b32 v1, 31, v0
    v_mul_u32_u24 v1, {FS}, v1
    v_mov_b32 v3, {L_FL}
    v_lshlrev_b32 v2, 4, v0
    """)
    A(f"""
    s_cmp_ge_u32 s2, 224
    s_cbranch_scc1 L_uc_aux
    s_barrier
    s_barrier
    buffer_load_dword v4, v1, s[12:15], s50 offen sc1
    s_barrier
    s_waitcnt vmcnt(0)
    v_cmp_ne_u32 vcc, s{NONCE}, v4
    s_cbranch_vccz L_uc_go
    s_branch L_uc_poll
    L_uc_aux:
    """)
    lpoll(A, 3, F_KRDY, 4, 1, 4, sleep=4)
    A("L_uc_poll:")
    gpoll(A, [1], 4, "s50")
    A("L_uc_go:")
    stamp(A, 3)
    A(f"""
    s_and_b32 s51, s3, 1
    s_add_u32 s52, s99, s51
    s_mul_i32 s52, s52, {UT_ROW}
    s_add_u32 s52, s52, {UT_OFF+4}
    s_mul_i32 s53, s51, {UC_CH}
    s_add_u32 s53, s53, {L_UC}
    s_lshl_b32 s54, s51, 2
    v_add_u32 v3, s54, v3
    L_uc_set:
    """)
    for k in range(4):
        A(f"s_add_u32 m0, s53, {k*UC_COPY}\ns_add_u32 s55, s52, {4*k}")
        for n in range(4): A(f"buffer_load_dwordx4 v2, s[12:15], s55 offen offset:{1024*n} sc1 lds")
    A("s_mov_b64 exec, 0xff")
    for k in range(4):
        A(f"s_add_u32 m0, s53, {k*UC_COPY+4096}\ns_add_u32 s55, s52, {4*k+4096}")
        A(f"buffer_load_dwordx4 v2, s[12:15], s55 offen sc1 lds")
    A("s_mov_b64 exec, -1\ns_waitcnt vmcnt(0)")
    lset(A, 3, F_URDY, 1, 4)
    A(f"""
    s_cmp_lt_u32 s2, 224
    s_cbranch_scc1 L_uc_done
    s_cmp_lt_u32 s53, {L_UC}
    s_cbranch_scc1 L_uc_done
    s_sub_u32 s53, s53, {SET1}
    s_add_u32 s52, s52, {2*UT_ROW}
    v_add_u32 v3, 8, v3
    s_branch L_uc_set
    L_uc_done:
    """)

IDX, AK, AV, OMG = 1, 2, 3, 4
QM = 6; QE = 14; KF = 22; KE = 26; VF = 30; S = 38; O = 70; TMP = 102

def attn(A):
    head_qb(A)
    A(f"""
    s_and_b32 s50, s3, 3
    s_lshr_b32 s51, s3, 2
    s_lshl_b32 s52, s97, 3
    s_lshl_b32 s50, s50, 1
    s_add_u32 s52, s52, s50
    s_add_u32 s53, s52, s51
    s_xor_b32 s54, s53, 1
    s_lshr_b32 s55, s96, 1
    s_mul_i32 s55, s55, {9*256}
    s_and_b32 s56, s96, 1
    s_mul_i32 s57, s56, {5*256}
    s_add_u32 s57, s57, s55
    s_add_u32 s55, s55, {4*256}
    s_mul_i32 s58, s53, {QKQ_TT}
    s_mul_i32 s59, s54, {QKQ_TT}
    s_add_u32 s60, s58, s55
    s_add_u32 s61, s59, s55
    s_add_u32 s58, s58, s57
    s_add_u32 s59, s59, s57
    s_min_u32 s63, s55, s57
    s_add_u32 s64, s63, {4*256}
    s_lshr_b32 s63, s63, 13
    s_lshr_b32 s64, s64, 13
    s_lshr_b32 s65, s52, 2
    s_lshl_b32 s63, s63, 4
    s_lshl_b32 s64, s64, 4
    s_add_u32 s63, s63, s65
    s_add_u32 s64, s64, s65
    s_mul_i32 s63, s63, {FS}
    s_mul_i32 s64, s64, {FS}
    s_mul_i32 s65, s53, {FS}
    s_add_u32 s65, s65, {FG_OFF-FQ_OFF}
    v_mov_b32 v{TMP}, s63
    v_writelane_b32 v{TMP}, s64, 1
    v_writelane_b32 v{TMP}, s65, 2
    s_mov_b32 s63, {FQ_OFF}
    v_and_b32 v{TMP+4}, 15, v0
    v_lshlrev_b32 v{TMP+4}, 4, v{TMP+4}
    v_bfe_u32 v{TMP+5}, v0, 4, 1
    v_lshl_or_b32 v{TMP+4}, v{TMP+5}, 3, v{TMP+4}
    v_lshrrev_b32 v{TMP+5}, 5, v0
    v_lshl_or_b32 v{TMP+5}, v{TMP+5}, 8, v{TMP+4}
    v_and_b32 v{TMP+6}, 31, v0
    v_lshlrev_b32 v{TMP+7}, 3, v{TMP+6}
    s_lshl_b32 s62, s53, 8
    s_add_u32 s62, s62, {G_OFF}
    """)
    gpoll(A, [TMP], TMP+1, "s63")
    stamp(A, 8)
    for j in range(2):
        A(f"""
        buffer_load_dwordx2 {v(QM+4*j,2)}, v{TMP+5}, s[12:15], s{58+j} offen sc1
        buffer_load_dwordx2 {v(QM+4*j+2,2)}, v{TMP+5}, s[12:15], s{58+j} offen offset:512 sc1
        buffer_load_dwordx2 {v(QE+4*j,2)}, v{TMP+4}, s[12:15], s{60+j} offen sc1
        """)
    A(f"buffer_load_dword v{OMG}, v{TMP+7}, s[12:15], s62 offen offset:4 sc1")
    A(f"""
    v_and_b32 v{AK}, 0x13f, v{TMP+5}
    v_bfe_u32 v{TMP}, v0, 2, 1
    v_lshl_or_b32 v{AK}, v{TMP}, 7, v{AK}
    v_bfe_u32 v{TMP}, v0, 3, 1
    v_lshl_or_b32 v{AK}, v{TMP}, 6, v{AK}
    s_mul_i32 s63, s51, {HOFF}
    v_add_u32 v{AK}, s63, v{AK}
    v_min_u32 v{TMP}, 18, v{TMP+6}
    v_lshrrev_b32 v{TMP+1}, 5, v0
    v_mad_u32_u24 v{TMP}, v{TMP+1}, 20, v{TMP}
    s_add_u32 s63, s63, 5120
    v_lshl_add_u32 v{AV}, v{TMP}, 4, s63
    v_mov_b32 v{IDX}, 0xdddddddd
    """)
    for i in range(32): A(f"v_mov_b32 v{O+i}, 0")
    for i in range(8): A(f"v_mov_b32 v{S+16+8+i}, 0")
    for i in range(4): A(f"v_mov_b32 v{VF+4+i}, 0")
    A(f"""
    s_cmp_eq_u32 s56, 0
    s_cselect_b32 s64, -1, 0
    s_not_b32 s65, s64
    s_waitcnt vmcnt(1)
    """)
    for j in range(2):
        e = QE + 4*j
        A(f"v_and_b32 v{e}, s64, v{e}\nv_and_b32 v{e+1}, s65, v{e+1}\nv_mov_b32 v{e+2}, 0\nv_mov_b32 v{e+3}, 0")
    A("s_mov_b32 exec_lo, 0")
    for j in range(2):
        e = QE + 4*j
        A(f"v_mov_b32 v{e+2}, v{e}\nv_mov_b32 v{e+3}, v{e+1}\nv_mov_b32 v{e}, 0\nv_mov_b32 v{e+1}, 0")
    A("s_mov_b32 exec_lo, -1")
    A("s_cmp_eq_u32 s98, 0\ns_cbranch_scc1 L_at_nost")
    for m in range(2): A(f"buffer_store_dwordx4 {v(ATD+4*m,4)}, v{ATD+8}, s[12:15], s98 offen offset:{64*m} sc1")
    A("L_at_nost:\ns_cmp_lt_u32 s2, 224\ns_cbranch_scc1 L_at_b1\ns_barrier\nL_at_b1:\ns_barrier")
    stamp(A, 9)
    GU = GRP//512
    rdK = lambda t: f"ds_read2st64_b64 {v(KF,4)}, v{AK} offset0:{(t//4)*GU+2*(t%4)} offset1:{(t//4)*GU+2*(t%4)+1}"
    rdE = lambda g: f"ds_read2st64_b64 {v(KE,4)}, v{AK} offset0:{g*GU+8} offset1:{g*GU+9}"
    rdV = lambda t, m: f"ds_read_b128 {v(VF+4*m,4)}, v{AV} offset:{(t//4)*GRP+(4*(t%4)+2*m)*320}"
    M16 = lambda q: f"v_mfma_f32_32x32x16_bf16 {v(S+16*q,16)}, {v(KF,4)}, {v(QM+4*q,4)}, 0"
    M8 = lambda q, t: f"v_mfma_f32_32x32x8_bf16 {v(S+16*q,16)}, {v(KE+2*((t%4)>>1),2)}, {v(QE+4*q+2*(t&1),2)}, {v(S+16*q,16)}"
    PV = lambda q, m: f"v_smfmac_f32_32x32x32_bf16 {v(O+16*q,16)}, {v(VF+4*m,4)}, {v(S+16*q+8*m,8)}, v{IDX}"
    E = lambda q, i: f"v_exp_f32 v{S+16*q+i}, v{S+16*q+i}"
    A(rdK(0)); A(rdE(0)); A(rdV(0, 0))
    A("s_mov_b32 s66, 0")
    if PRIO: A("s_setprio 2")
    A("s_waitcnt lgkmcnt(1)")
    A(M16(0)); A(M8(0, 0)); A("s_nop 15")
    A.raw(".p2align 6")
    A.label("L_at_loop")
    for t in range(4):
        for q in range(2):
            if t == 3 and q == 0:
                A("s_cmp_gt_u32 s66, 1\ns_cbranch_scc1 L_at_nobar\ns_waitcnt vmcnt(0)\ns_barrier\nL_at_nobar:")
            tn = t + q
            A(E(q, 0)); A(E(q, 1))
            A(PV(1-q, 1))
            if q == 0: A(rdV(t, 1))
            else: A("s_waitcnt lgkmcnt(0)")
            for i in (2, 3, 4): A(E(q, i))
            A(M16(1-q))
            if q == 0: A("s_waitcnt lgkmcnt(1)"); A(rdK(t+1))
            elif t == 3: A("s_add_u32 s66, s66, 1")
            elif t == 0 and PRIO: A("s_cmp_eq_u32 s66, 7")
            for i in (5, 6, 7): A(E(q, i))
            A(M8(1-q, tn))
            for i in (8, 9, 10, 11): A(E(q, i))
            A(PV(q, 0))
            if q == 0:
                A("s_waitcnt lgkmcnt(1)")
                if t == 3: A(rdE(1))
            else:
                if t == 3: A("s_cmp_lt_u32 s66, 8")
                elif t == 0 and PRIO: A("s_cbranch_scc1 L_at_lowprio\nL_at_lowprio_ret:")
                A(rdV(t+1, 0))
            for i in (12, 13, 14, 15): A(E(q, i))
    A(f"v_add_u32 v{AK}, {GRP}, v{AK}\nv_add_u32 v{AV}, {GRP}, v{AV}")
    A("s_cbranch_scc1 L_at_loop")
    A(PV(1, 1))
    stamp(A, 10)
    A(f"""
    s_mul_i32 s63, s3, 3072
    v_lshl_add_u32 v{AK}, v0, 4, s63
    s_xor_b32 s63, s3, 4
    s_mul_i32 s63, s63, 3072
    v_lshl_add_u32 v{AV}, v0, 4, s63
    s_waitcnt lgkmcnt(0)
    s_barrier
    s_nop 7
    """)
    for i in range(3): A(f"ds_write_b128 v{AK}, {v(O+16+4*i,4)} offset:{1024*i}")
    A("s_waitcnt lgkmcnt(0)\ns_barrier")
    for i in range(3): A(f"ds_read_b128 {v(S+4*i,4)}, v{AV} offset:{1024*i}")
    A(f"""
    s_mul_i32 s58, s53, {OF_TT}
    s_add_u32 s58, s58, {OF_OFF}
    s_lshl_b32 s59, s96, 10
    s_add_u32 s59, s59, s58
    s_lshl_b32 s60, s96, 7
    s_add_u32 s60, s60, s58
    s_add_u32 s60, s60, {32*1024}
    s_mov_b32 s61, {f32(2.0**-60)}
    s_mov_b32 s62, {f32(2.0**40)}
    s_waitcnt lgkmcnt(0)
    """)
    for i in range(6): A(f"v_pk_add_f32 {v(O+2*i,2)}, {v(O+2*i,2)}, {v(S+2*i,2)}")
    A(f"""
    v_cmp_le_f32 vcc, s61, v{O+11}
    v_cmp_ge_f32 s[64:65], s62, v{O+11}
    s_and_b64 vcc, vcc, s[64:65]
    s_cmp_eq_u64 vcc, -1
    s_cbranch_scc0 L_at_fallback
    L_at_fin:
    v_rcp_f32 v{TMP}, v{O+11}
    v_lshlrev_b32 v{AK}, 4, v0
    v_mul_f32 v{TMP}, v{TMP}, v{OMG}
    v_lshlrev_b32 v{AV}, 2, v0
    """)
    for i in range(5): A(f"v_pk_mul_f32 {v(O+2*i,2)}, {v(O+2*i,2)}, {v(TMP,2)} op_sel_hi:[1,0]")
    for i in range(5): A(f"v_cvt_pk_bf16_f32 v{O+i}, v{O+2*i}, v{O+2*i+1}")
    A(f"""
    buffer_store_dwordx4 {v(O,4)}, v{AK}, s[12:15], s59 offen sc1
    s_mov_b32 exec_hi, 0
    buffer_store_dword v{O+4}, v{AV}, s[12:15], s60 offen sc1
    s_mov_b32 exec_hi, -1
    s_lshl_b32 s58, s53, 5
    s_add_u32 s58, s58, s96
    s_mul_i32 s58, s58, {FS}
    s_add_u32 s58, s58, {FO_OFF}
    s_waitcnt vmcnt(0)
    """)
    gflag(A, "s58", TMP)
    A(f"""
    s_cmp_lg_u32 s3, 0
    s_cbranch_scc1 L_end
    s_cmp_ge_u32 s2, 128
    s_cbranch_scc1 L_end
    s_branch L_op_p2
    """)
    if PRIO: A("L_at_lowprio:\ns_setprio 0\ns_branch L_at_lowprio_ret")
    MX = TMP + 4
    A.label("L_at_fallback")
    A(f"""
    v_and_b32 v{TMP+1}, 3, v0
    v_lshlrev_b32 v{TMP+1}, 4, v{TMP+1}
    v_bfe_u32 v{TMP}, v0, 2, 1
    v_lshl_or_b32 v{TMP+1}, v{TMP}, 7, v{TMP+1}
    v_bfe_u32 v{TMP}, v0, 3, 1
    v_lshl_or_b32 v{TMP+1}, v{TMP}, 6, v{TMP+1}
    v_bfe_u32 v{TMP}, v0, 4, 1
    v_lshl_or_b32 v{TMP+1}, v{TMP}, 3, v{TMP+1}
    v_lshrrev_b32 v{AV}, 5, v0
    v_lshl_or_b32 v{AK}, v{AV}, 8, v{TMP+1}
    v_and_b32 v{TMP}, 31, v0
    s_mul_i32 s63, s96, 18
    v_add_u32 v{TMP+2}, s63, v{TMP}
    v_mul_u32_u24 v{AV}, {VT_ROW}, v{AV}
    v_lshl_add_u32 v{AV}, v{TMP+2}, 4, v{AV}
    v_mov_b32 v{MX}, 0xff800000
    s_mov_b32 s67, 0
    """)
    for i in range(16): A(f"v_mov_b32 v{O+i}, 0")
    for i in range(8): A(f"v_mov_b32 v{VF+i}, 0x3f803f80")
    A(f"""
    L_fb_pass:
    s_add_u32 s63, s57, {144*256}
    s_add_u32 s64, s55, {144*256}
    s_mov_b32 s65, {VT_OFF}
    s_mov_b32 s66, 0
    L_fb_loop:
    s_add_u32 s68, s65, {2*VT_ROW}
    buffer_load_dwordx2 {v(KF,2)}, v{AK}, s[12:15], s63 offen sc1
    buffer_load_dwordx2 {v(KF+2,2)}, v{AK}, s[12:15], s63 offen offset:512 sc1
    buffer_load_dwordx2 {v(KE,2)}, v{TMP+1}, s[12:15], s64 offen sc1
    s_mov_b32 exec_lo, 0x3ffff
    s_mov_b32 exec_hi, 0x3ffff
    buffer_load_dwordx4 {v(VF,4)}, v{AV}, s[12:15], s65 offen sc1
    buffer_load_dwordx4 {v(VF+4,4)}, v{AV}, s[12:15], s68 offen sc1
    s_mov_b64 exec, -1
    s_waitcnt vmcnt(0)
    {M16(0)}
    {M8(0, 0)}
    s_add_u32 s63, s63, {QKQ_TT}
    s_add_u32 s64, s64, {QKQ_TT}
    s_add_u32 s65, s65, {VT_TT}
    s_add_u32 s66, s66, 1
    s_nop 15
    s_cmp_lg_u32 s67, 0
    s_cbranch_scc1 L_fb_p2
    """)
    for i in range(8): A(f"v_max3_f32 v{MX}, v{MX}, v{S+2*i}, v{S+2*i+1}")
    A(f"""
    s_cmp_lt_u32 s66, 64
    s_cbranch_scc1 L_fb_loop
    v_mov_b32 v{MX+1}, v{MX}
    s_nop 1
    v_permlane32_swap_b32 v{MX}, v{MX+1}
    s_mov_b32 s67, 1
    v_max_f32 v{MX}, v{MX}, v{MX+1}
    s_branch L_fb_pass
    L_fb_p2:
    """)
    for i in range(16): A(f"v_sub_f32 v{S+i}, v{S+i}, v{MX}")
    for i in range(16): A(E(0, i))
    A(f"""
    s_nop 2
    {PV(0, 0)}
    {PV(0, 1)}
    s_cmp_lt_u32 s66, 64
    s_cbranch_scc1 L_fb_loop
    s_nop 15
    s_branch L_at_fin
    """)

def kv_loader(A):
    VD = 4; VP = 9; PT = 12
    head_qb(A)
    A(f"""
    s_and_b32 s50, s3, 1
    s_bfe_u32 s51, s3, 0x10001
    s_mul_i32 s52, s51, {HOFF}
    s_cmp_eq_u32 s50, 0
    s_cbranch_scc0 L_kv_v
    s_lshr_b32 s55, s96, 1
    s_mul_i32 s55, s55, {9*256}
    s_and_b32 s56, s96, 1
    s_mul_i32 s57, s56, {5*256}
    v_lshl_add_u32 v{VD}, v0, 4, s57
    v_add_u32 v{VD+1}, {QKQ_TT-1024}, v{VD}
    v_add_u32 v{VD+2}, {2*(QKQ_TT-1024)}, v{VD}
    v_add_u32 v{VD+3}, {3*(QKQ_TT-1024)}, v{VD}
    v_lshrrev_b32 v1, 4, v0
    v_mul_u32_u24 v1, {QKQ_TT}, v1
    v_and_b32 v2, 15, v0
    v_lshl_add_u32 v1, v2, 4, v1
    v_add_u32 v{VD+4}, 1024, v1
    s_add_u32 s55, s55, {144*256}
    s_mul_i32 s53, s51, {32*QKQ_TT}
    s_add_u32 s53, s53, s55
    s_mov_b32 s54, {4*QKQ_TT}
    s_lshl_b32 s56, s56, 10
    s_add_u32 s58, s55, s56
    s_add_u32 s59, s58, {4*256}
    s_lshr_b32 s58, s58, 13
    s_lshr_b32 s59, s59, 13
    s_branch L_kv_go
    L_kv_v:
    s_mul_i32 s55, s96, 18
    s_and_b32 s56, s2, 15
    s_mul_i32 s56, s56, {VT_ROW}
    s_add_u32 s56, s56, {576*16}
    s_mul_i32 s53, s51, {32*VT_TT}
    s_add_u32 s53, s53, {VT_OFF}
    v_mul_u32_u24 v1, {4*VT_TT}, v0
    v_add_u32 v1, s56, v1
    v_mov_b32 v16, 0x3f803f80
    v_mov_b32 v17, v16
    v_mov_b32 v18, v16
    v_mov_b32 v19, v16
    s_mov_b64 exec, 0xff
    buffer_store_dwordx4 v[16:19], v1, s[12:15], s53 offen sc1
    s_mov_b64 exec, -1
    v_mov_b32 v10, s56
    """)
    for n in range(5):
        A(f"""
        v_add_u32 v1, {64*n}, v0
        v_mul_u32_u24 v2, 3277, v1
        v_lshrrev_b32 v2, 16, v2
        v_mul_u32_u24 v3, 20, v2
        v_sub_u32 v1, v1, v3
        v_cmp_gt_u32 vcc, 18, v1
        v_add_u32 v1, s55, v1
        v_mul_u32_u24 v2, {VT_ROW}, v2
        v_lshl_add_u32 v1, v1, 4, v2
        v_cndmask_b32 v{VD+n}, v10, v1, vcc
        """)
        if n % 4: A(f"v_subrev_u32 v{VD+n}, {1024*n}, v{VD+n}")
    A(f"""
    s_mov_b32 s54, {4*VT_TT}
    s_add_u32 s52, s52, 5120
    s_lshr_b32 s58, s55, 7
    s_add_u32 s59, s55, 17
    s_lshr_b32 s59, s59, 7
    s_add_u32 s58, s58, 9
    s_add_u32 s59, s59, 9
    L_kv_go:
    s_sub_u32 s59, s59, s58
    s_lshl_b32 s59, s59, 4
    v_bfe_u32 v1, v0, 3, 1
    v_mul_u32_u24 v1, s59, v1
    v_and_b32 v2, 7, v0
    v_add_u32 v1, v1, v2
    v_mul_u32_u24 v{VP}, {FS}, v1
    s_lshl_b32 s58, s58, 4
    s_lshl_b32 s59, s51, 3
    s_add_u32 s58, s58, s59
    s_mul_i32 s58, s58, {FS}
    s_add_u32 s58, s58, {FQ_OFF}
    v_mov_b32 v3, {L_FL}
    """)
    A(f"s_cmp_lt_u32 s2, 224\ns_cbranch_scc1 L_kv_g")
    lpoll(A, 3, F_URDY, 4, 1, PT, sleep=4)
    A("s_branch L_kv_g1\nL_kv_g:")
    lpoll(A, 3, F_STD, 1, 4, PT, sleep=2)
    A("L_kv_g1:")
    stamp(A, 4)
    gpoll(A, [VP], PT, "s58")
    stamp(A, 5)
    A(f"s_cmp_lt_u32 s2, 224\ns_cbranch_scc1 L_kv_g2\ns_barrier")
    A("L_kv_g2:\ns_mov_b32 s66, 0")
    A.label("L_kv_loop")
    A("s_mov_b32 m0, s52\ns_add_u32 s66, s66, 1")
    for n in range(4): A(f"buffer_load_dwordx4 v{VD+n}, s[12:15], s53 offen offset:{1024*n} sc1 lds")
    A(f"""
    s_add_u32 m0, s52, 4096
    s_add_u32 s52, s52, {GRP}
    buffer_load_dwordx4 v{VD+4}, s[12:15], s53 offen sc1 lds
    s_add_u32 s53, s53, s54
    s_cmp_lg_u32 s66, {NE}
    s_cbranch_scc1 L_kv_nb
    s_waitcnt vmcnt({5*(NE-1)})
    """)
    stamp(A, 6)
    A(f"""
    s_barrier
    L_kv_nb:
    s_cmp_lt_u32 s66, 8
    s_cbranch_scc1 L_kv_loop
    s_waitcnt vmcnt(30)
    s_barrier
    s_waitcnt vmcnt(0)
    """)
    stamp(A, 7)
    A(f"s_cmp_lg_u32 s3, 8\ns_cbranch_scc1 L_kv_nf\ns_mul_i32 s58, s2, {FS}\ns_add_u32 s58, s58, {FB_OFF}")
    gflag(A, "s58", PT)
    A("L_kv_nf:\ns_barrier")

def outproj(A):
    AC = 4; WF = 20; OB = 148
    L_O = 32768
    L_WE = L_O + OF_TT
    A.label("L_op_p2")
    AF = WF; DG = WF + 8; G = WF + 16
    A(f"""
    s_and_b32 s48, s2, 7
    s_lshl_b32 s48, s48, 3
    s_bfe_u32 s49, s2, 0x30003
    s_add_u32 s48, s48, s49
    s_lshr_b32 s51, s2, 6
    s_mul_i32 s49, s51, 5
    s_cmp_eq_u32 s51, 3
    s_subb_u32 s49, s49, 0
    s_sub_u32 s50, s3, 8
    s_cmp_eq_u32 s3, 0
    s_cselect_b32 s50, 4, s50
    s_add_u32 s49, s49, s50
    s_lshl_b32 s52, s49, 4
    s_lshl_b32 s53, s49, 3
    s_add_u32 s53, s53, 112
    s_cmp_lt_u32 s49, 14
    s_cselect_b32 s52, s52, s53
    s_cselect_b32 s53, 15, 7
    v_and_b32 v4, s53, v0
    v_add_u32 v4, s52, v4
    s_add_u32 s53, s49, 36
    s_lshr_b32 s53, s53, 1
    s_lshl_b32 s53, s53, 3
    v_and_b32 v5, 7, v0
    v_add_u32 v5, s53, v5
    s_mov_b32 vcc_lo, 0x00ff0000
    s_mov_b32 vcc_hi, 0
    v_cndmask_b32 v4, v4, v5, vcc
    s_lshr_b32 s52, s48, 1
    s_add_u32 s52, s52, 224
    v_writelane_b32 v4, s52, 24
    v_mul_u32_u24 v4, {FS}, v4
    s_mov_b32 s58, {FB_OFF}
    """)
    gpoll(A, [4], 5, "s58", sleep=16)
    stamp(A, 8)
    A(f"""
    v_and_b32 v1, 3, v0
    v_bfe_u32 v2, v0, 2, 1
    v_lshl_or_b32 v1, v2, 4, v1
    v_bfe_u32 v2, v0, 3, 2
    v_lshl_or_b32 v1, v2, 2, v1
    v_lshlrev_b32 v1, 12, v1
    v_lshrrev_b32 v3, 5, v0
    v_lshl_or_b32 v1, v3, 4, v1
    v_and_b32 v2, 31, v0
    v_lshlrev_b32 v{G+1}, 3, v2
    s_lshl_b32 s52, s48, 8
    s_add_u32 s52, s52, {G_OFF}
    s_lshl_b32 s53, s49, 17
    s_lshl_b32 s54, s48, 6
    s_add_u32 s53, s53, s54
    s_add_u32 s53, s53, {AT_OFF}
    buffer_load_dword v{G}, v{G+1}, s[12:15], s52 offen sc1
    buffer_load_dwordx4 {v(AF,4)}, v1, s[12:15], s53 offen sc1
    buffer_load_dwordx4 {v(AF+4,4)}, v1, s[12:15], s53 offen offset:32 sc1
    v_lshlrev_b32 v1, 4, v0
    s_lshl_b32 s52, s49, 10
    s_add_u32 s52, s52, {WOT_OFF + 5*18*1024}
    """)
    for ks in range(5, 32):
        A(f"buffer_load_dwordx4 {v(WF+4*ks,4)}, v1, s[12:15], s52 offen sc1\ns_add_u32 s52, s52, {18*1024}")
    A(f"""
    v_bfe_u32 v{G+2}, v0, 1, 1
    v_lshlrev_b32 v{G+2}, 4, v{G+2}
    v_sub_u32 v{G+2}, 16, v{G+2}
    s_waitcnt vmcnt(27)
    v_lshrrev_b32 v{G}, v{G+2}, v{G}
    """)
    for c in range(2):
        for r in range(4):
            m = 0x5 << (16*(r >> 1) + 4*(r & 1) + c)
            A(f"s_mov_b32 vcc_lo, {hex(m)}\ns_mov_b32 vcc_hi, {hex(m << 8)}\nv_cndmask_b32 v{DG+4*c+r}, 0, v{G}, vcc")
    A("s_nop 1")
    for c in range(2): A(f"v_mfma_f32_32x32x16_bf16 {v(AC,16)}, {v(AF+4*c,4)}, {v(DG+4*c,4)}, {'0' if c == 0 else v(AC,16)}")
    A(f"s_sub_u32 s53, s52, {32*18*1024}")
    for ks in range(5):
        A(f"buffer_load_dwordx4 {v(WF+4*ks,4)}, v1, s[12:15], s53 offen sc1\ns_add_u32 s53, s53, {18*1024}")
    srd(A, 8, P_OUT, 2048*1152)
    A(f"""
    s_cmp_eq_u32 s3, 0
    s_cbranch_scc1 L_op_p3
    s_lshl_b32 s55, s2, 4
    s_add_u32 s55, s55, s3
    s_cmp_lg_u32 s55, 11
    s_cbranch_scc1 L_op_noep
    v_mul_u32_u24 v{OB}, {FS}, v0
    v_add_u32 v{OB+1}, {64*FS}, v{OB}
    v_add_u32 v{OB+2}, {128*FS}, v{OB}
    v_add_u32 v{OB+3}, {192*FS}, v{OB}
    """)
    gpoll(A, [OB, OB+1, OB+2, OB+3], OB+4, "s58", sleep=16)
    A(f"s_mov_b32 s55, {EP_OFF}")
    gflag(A, "s55", OB)
    A("L_op_noep:\ns_barrier\ns_barrier\nL_op_p3:")
    stamp(A, 9)
    A(f"s_lshl_b32 s54, s50, 12\ns_add_u32 s54, s54, {L_WE}")
    for e in range(4):
        A(f"s_add_u32 m0, s54, {1024*e}\ns_nop 0\nbuffer_load_dwordx4 v1, s[12:15], s52 offen sc1 lds\ns_add_u32 s52, s52, {18*1024}")
    A(f"""
    s_cmp_eq_u32 s3, 0
    s_cbranch_scc1 L_op_b5
    s_lshl_b32 s55, s48, 5
    s_lshl_b32 s56, s50, 3
    s_add_u32 s55, s55, s56
    s_mul_i32 s55, s55, {FS}
    s_add_u32 s55, s55, {FO_OFF}
    v_and_b32 v{OB}, 7, v0
    v_mul_u32_u24 v{OB}, {FS}, v{OB}
    s_mul_i32 s57, s48, {OF_TT}
    s_add_u32 s57, s57, {OF_OFF}
    s_lshl_b32 s58, s50, 13
    s_lshl_b32 s59, s50, 10
    s_add_u32 s59, s59, {32*1024}
    """)
    gpoll(A, [OB], OB+1, "s55")
    stamp(A, 10)
    for g in range(2):
        A(f"s_add_u32 m0, s58, {L_O + 4096*g}\ns_add_u32 s60, s57, s58")
        if g: A(f"s_add_u32 s60, s60, 4096")
        for n in range(4): A(f"buffer_load_dwordx4 v1, s[12:15], s60 offen offset:{1024*n} sc1 lds")
    A(f"""
    s_add_u32 m0, s59, {L_O}
    s_add_u32 s60, s57, s59
    buffer_load_dwordx4 v1, s[12:15], s60 offen sc1 lds
    L_op_b5:
    v_add_u32 v{OB+16}, s54, v1
    v_add_u32 v1, {L_O}, v1
    v_lshlrev_b32 v{OB+17}, 9, v3
    v_lshl_add_u32 v{OB+17}, v2, 2, v{OB+17}
    v_add_u32 v{OB+17}, {L_O + 32*1024}, v{OB+17}
    v_mul_u32_u24 v2, 1152, v2
    v_lshl_add_u32 v2, v3, 5, v2
    s_mul_i32 s53, s48, {32*1152}
    s_lshl_b32 s55, s49, 6
    s_add_u32 s53, s53, s55
    s_waitcnt vmcnt(0)
    s_barrier
    """)
    rd = lambda ks: f"ds_read_b128 {v(OB+4*(ks%4),4)}, v1 offset:{ks*1024}"
    for ks in range(3): A(rd(ks))
    for ks in range(32):
        nout = min(2, 31-ks)
        extra = 0
        if ks >= 29: extra = 12 if ks > 28 else 0
        A(f"s_waitcnt lgkmcnt({min(15, nout + extra)})")
        A(f"v_mfma_f32_32x32x16_bf16 {v(AC,16)}, {v(WF+4*ks,4)}, {v(OB+4*(ks%4),4)}, {v(AC,16)}")
        if ks + 3 < 32: A(rd(ks+3))
        if ks == 28:
            for e in range(4):
                A(f"ds_read_b128 {v(WF+8*e,4)}, v{OB+16} offset:{1024*e}")
                if e: A(f"v_add_u32 v{OB+17}, 1024, v{OB+17}")
                A(f"ds_read2_b32 {v(WF+8*e+4,2)}, v{OB+17} offset0:0 offset1:32\nds_read2_b32 {v(WF+8*e+6,2)}, v{OB+17} offset0:64 offset1:96")
    for e in range(4):
        A(f"s_waitcnt lgkmcnt({9-3*e})")
        A(f"v_mfma_f32_32x32x16_bf16 {v(AC,16)}, {v(WF+8*e,4)}, {v(WF+8*e+4,4)}, {v(AC,16)}")
    A("s_nop 15")
    for j in range(8): A(f"v_cvt_pk_bf16_f32 v{AC+j}, v{AC+2*j}, v{AC+2*j+1}")
    for m in range(2): A(f"buffer_store_dwordx4 {v(AC+4*m,4)}, v2, s[8:11], s53 offen offset:{16*m}")

def fused(A, name):
    head(A, name)
    stamp_init(A)
    A(f"""
    v_lshrrev_b32 v1, 6, v0
    v_and_b32 v0, 63, v0
    v_readfirstlane_b32 s3, v1
    s_cmp_ge_u32 s2, 256
    s_cbranch_scc1 L_exit
    s_cmp_lt_u32 s3, 10
    s_cbranch_scc1 L_b0
    s_getpc_b64 s[50:51]
    v_lshlrev_b32 v2, 7, v0
    v_and_b32 v1, 1, v1
    v_lshl_add_u32 v2, v1, 14, v2
    global_load_dword v100, v2, s[50:51]
    v_add_u32 v2, 8192, v2
    global_load_dword v101, v2, s[50:51]
    v_mov_b32 v2, 0
    v_lshlrev_b32 v3, 2, v0
    v_add_u32 v3, {L_FL}, v3
    ds_write_b32 v3, v2
    s_waitcnt lgkmcnt(0)
    L_b0:
    s_load_dwordx16 s[16:31], s[0:1], 0
    s_load_dwordx16 s[32:47], s[0:1], 64
    s_barrier
    s_cmp_ge_u32 s2, 224
    s_cbranch_scc1 L_aux
    s_lshl_b32 s99, s2, 1
    s_mov_b32 s98, 0
    s_cmp_eq_u32 s3, 8
    s_cbranch_scc1 L_ldx
    s_cmp_eq_u32 s3, 9
    s_cbranch_scc1 L_ldw
    s_cmp_ge_u32 s3, 10
    s_cbranch_scc1 L_trans
    s_cmp_ge_u32 s3, 4
    s_cbranch_scc1 L_kgen
    s_branch L_gemm
    """)
    A.label("L_ldx"); gemm_loader(A, True); A("s_branch L_kv")
    A.label("L_ldw"); gemm_loader(A, False); A("s_branch L_kv")
    A.label("L_gemm")
    gemm_compute(A, "L_attn")
    A.label("L_trans")
    A(f"""
    s_and_b32 s48, s3, 1
    s_lshl_b32 s49, s48, 13
    s_add_u32 s49, s49, {L_TR}
    s_lshr_b32 s52, s2, 3
    s_lshl_b32 s52, s52, 1
    s_add_u32 s48, s48, s52
    s_cmp_ge_u32 s48, 36
    s_cbranch_scc1 L_trwo
    s_and_b32 s52, s2, 1
    s_mul_i32 s52, s52, 36
    s_add_u32 s48, s48, s52
    s_mul_i32 s50, s48, 7282
    s_lshr_b32 s50, s50, 16
    s_mul_i32 s51, s50, 9
    s_sub_u32 s51, s48, s51
    s_and_b32 s52, s2, 6
    s_lshl_b32 s52, s52, 2
    s_add_u32 s50, s50, s52
    """)
    trans_u(A)
    A("s_branch L_ucopy")
    A.label("L_trwo")
    A("s_sub_u32 s51, s48, 36\ns_and_b32 s50, s2, 7\ns_cmp_ge_u32 s51, 18\ns_cbranch_scc1 L_util")
    trans_wo(A)
    A("s_branch L_ucopy")
    A.label("L_gate")
    A("s_lshl_b32 s48, s50, 1\ns_add_u32 s48, s48, s3\ns_sub_u32 s48, s48, 8")
    gate(A)
    A("s_branch L_kv")
    A.label("L_aux")
    A(f"""
    s_sub_u32 s50, s2, 224
    s_lshl_b32 s99, s50, 2
    s_add_u32 s99, s99, 448
    s_mov_b32 s98, 0
    s_cmp_ge_u32 s3, 10
    s_cbranch_scc1 L_util
    s_cmp_ge_u32 s3, 8
    s_cbranch_scc1 L_gate
    s_cmp_ge_u32 s3, 4
    s_cbranch_scc1 L_kgen
    s_mov_b32 s98, {SET1}
    s_add_u32 s99, s99, 2
    L_kgen:
    s_and_b32 s50, s3, 1
    s_add_u32 s99, s99, s50
    s_mov_b32 s48, s99
    s_bfe_u32 s63, s3, 0x10001
    s_mul_i32 s49, s50, {KG_SZ}
    s_lshl_b32 s51, s98, 1
    s_sub_u32 s51, {L_KG}, s51
    s_add_u32 s49, s49, s51
    s_add_u32 s64, s49, 16384
    s_cmp_eq_u32 s63, 0
    s_cselect_b32 s49, s49, s64
    s_mul_i32 s62, s50, {KC_CH}
    s_add_u32 s62, s62, {L_KC}
    s_sub_u32 s62, s62, s98
    s_lshr_b32 s51, s98, 13
    s_lshl_b32 s50, s50, 2
    s_add_u32 s50, s50, s51
    s_add_u32 s50, s50, {L_FL}
    v_mov_b32 v3, s50
    """)
    kgen(A)
    A.label("L_conv")
    if FINE: STAMP_ON[0] = False
    conv(A)
    A.label("L_attn")
    attn(A)
    A.label("L_util")
    A("s_waitcnt lgkmcnt(0)")
    ws_setup(A); get_nonce(A)
    gb(A, 6)
    A.label("L_ucopy")
    ucopy(A, None)
    A.label("L_kv")
    kv_loader(A)
    outproj(A)
    A.label("L_end")
    endpgm(A, 0)
    A("L_exit:\ns_endpgm")
    A.raw(".p2align 4\n.type kgen_tab,@object\nkgen_tab:")
    T = kgen_table()
    for i in range(0, len(T), 8): A.raw("    .long " + ", ".join(str(x) for x in T[i:i+8]))
    A.raw(f".size kgen_tab, {4*len(T)}")
    A.raw(f".type code_pad,@object\ncode_pad:\n.fill (33024 - (code_pad - {name})) / 4, 4, 0\n.size code_pad, . - code_pad")

if __name__ == "__main__":
    import sys
    NAME = "gated_mix__ssm_conv_s4__mha_block__prompt_kernel"
    HDR = open("gated_mix__ssm_conv_s4__mha_block__prompt.s.ref").read().split("; Override launch")[0]
    A = Asm(); fused(A, NAME)
    aslist = len(sys.argv) > 2
    out = HDR + (f"; @launch kernel={NAME} grid=(256,1,1) block=(768,1,1) lds=163840\n" if aslist else "; @launch grid=(256,1,1) block=(768,1,1) lds=163840\n")
    out += '.amdgcn_target "amdgcn-amd-amdhsa--gfx950"\n.text\n' + A.text() + '.section .rodata,"a"\n' + kd(NAME, NV)
    open(sys.argv[1], "w").write(out)
```

```python
import math
from asmlib import *
from lay2 import *
LOG2E = 1.4426950408889634
QSCALE = LOG2E / math.sqrt(18.0)
FINE = int(os.environ.get("FINE", "0"))
if FINE:
    _st = stamp
    import asmlib
PFF = os.environ.get("PFF", "")
LSL = int(os.environ.get("LSL", "0"))
NOKG = os.environ.get("NOKG")
NOTR = os.environ.get("NOTR")
NONCE = 70
CAP = 71
_uid = [0]
def uid(p):
    _uid[0] += 1
    return f"L_{p}{_uid[0]}"

def ws_setup(A):
    srd(A, 12, P_WS, WS_USED)
    A(f"s_add_u32 s100, s{P_WS}, {EP_OFF}\ns_addc_u32 s101, s{P_WS+1}, 0\ns_load_dword s{NONCE}, s[100:101], 0")
def get_nonce(A):
    A(f"s_waitcnt lgkmcnt(0)\ns_mul_i32 s{NONCE}, s{NONCE}, 0x9e3779b1\ns_add_u32 s{NONCE}, s{NONCE}, 0x7f4a7c15")
def gpoll(A, voffs, vt, soff="0", sleep=2):
    l = uid("gp"); e = uid("ge")
    A(f"s_mov_b32 s{CAP}, 0x40000\n{l}:")
    for i, vo in enumerate(voffs): A(f"buffer_load_dword v{vt+i}, v{vo}, s[12:15], {soff} offen sc1")
    A(f"s_sub_u32 s{CAP}, s{CAP}, 1\ns_cbranch_scc1 {e}\ns_waitcnt vmcnt(0)")
    for i in range(len(voffs)): A(f"v_xor_b32 v{vt+i}, s{NONCE}, v{vt+i}")
    for i in range(1, len(voffs)): A(f"v_or_b32 v{vt}, v{vt}, v{vt+i}")
    A(f"v_cmp_ne_u32 vcc, 0, v{vt}\ns_cbranch_vccz {e}\ns_sleep {sleep}\ns_branch {l}\n{e}:")
def gflag(A, soff, vt):
    A(f"""
    v_mov_b32 v{vt}, s{NONCE}
    v_mov_b32 v{vt+1}, 0
    s_mov_b64 exec, 1
    buffer_store_dword v{vt}, v{vt+1}, s[12:15], {soff} offen sc1
    s_mov_b64 exec, -1
    """)
def lpoll(A, va, off, n, val, vt, st=69, sleep=1):
    l = uid("lp"); e = uid("le")
    if sleep and os.environ.get("BIGSL"): sleep = 40
    op = {1: "ds_read_b32", 2: "ds_read_b64", 4: "ds_read_b128"}[n]
    A(f"s_mov_b32 s{CAP}, 0x100000\n{l}:\n{op} {v(vt,n)}, v{va} offset:{off}\ns_sub_u32 s{CAP}, s{CAP}, 1\ns_cbranch_scc1 {e}\ns_waitcnt lgkmcnt(0)")
    if n == 2: A(f"v_min_u32 v{vt}, v{vt}, v{vt+1}\ns_nop 0")
    if n == 4: A(f"v_min3_u32 v{vt}, v{vt}, v{vt+1}, v{vt+2}\nv_min_u32 v{vt}, v{vt}, v{vt+3}\ns_nop 0")
    A(f"v_readfirstlane_b32 s{st}, v{vt}\ns_cmp_ge_u32 s{st}, {val}\ns_cbranch_scc1 {e}\n{('s_sleep %d' % sleep) if sleep else ''}\ns_branch {l}\n{e}:")
def lset(A, va, off, val, vt):
    A(f"v_mov_b32 v{vt}, {val}\ns_mov_b64 exec, 1\nds_write_b32 v{va}, v{vt} offset:{off}\ns_mov_b64 exec, -1")

def acc_t(A, slot):
    if FINE and DIAG:
        A(f"s_memtime s[58:59]\ns_waitcnt lgkmcnt(0)\ns_sub_u32 s61, s58, s60\ns_mov_b32 s60, s58")
        if slot is not None: A(f"s_add_u32 s{72+2*slot}, s{72+2*slot}, s61")
def gb(A, n=1):
    sk = uid("gb")
    A(f"s_cmp_ge_u32 s2, 224\ns_cbranch_scc1 {sk}\n" + "s_barrier\n"*n + f"{sk}:")
def rgcg(A):
    A(f"""
    s_and_b32 s53, s2, 7
    s_lshr_b32 s54, s2, 3
    s_lshr_b32 s55, s53, 1
    s_lshl_b32 s55, s55, 2
    s_and_b32 s56, s54, 3
    s_add_u32 s48, s55, s56
    s_and_b32 s53, s53, 1
    s_mul_i32 s53, s53, 7
    s_lshr_b32 s54, s54, 2
    s_add_u32 s49, s53, s54
    """)

ROT = int(os.environ.get("ROT", "2"))
def rot_code(cs):
    if ROT == 0: return "s_mov_b32 s50, 0"
    if ROT == 1:
        return f"""s_bfe_u32 s50, s2, 0x20003
    s_lshr_b32 s51, s2, 5
    s_add_u32 s50, s50, s51
    s_lshl_b32 s50, s50, 1
    s_cmp_ge_u32 s50, 9
    s_cselect_b32 s51, 9, 0
    s_sub_u32 s50, s50, s51
    s_cmp_ge_u32 s50, 9
    s_cselect_b32 s51, 9, 0
    s_sub_u32 s50, s50, s51
    s_mul_i32 s50, s50, {cs}"""
    if ROT == 2:
        return f"""s_and_b32 s50, s2, 7
    s_lshr_b32 s51, s50, 1
    s_lshl_b32 s51, s51, 1
    s_and_b32 s50, s50, 1
    s_mul_i32 s50, s50, 4
    s_add_u32 s50, s50, s51
    s_cmp_ge_u32 s50, 9
    s_cselect_b32 s51, 9, 0
    s_sub_u32 s50, s50, s51
    s_mul_i32 s50, s50, {cs}"""
    if ROT == 3:
        return f"""s_bfe_u32 s50, s2, 0x10003
    s_bfe_u32 s51, s2, 0x10005
    s_xor_b32 s50, s50, s51
    s_mul_i32 s50, s50, {4*cs}"""
def gemm_loader(A, isx):
    VD = 4; VF = 8; VT = 10
    rgcg(A)
    if isx:
        A(f"""
        s_lshl_b32 s53, s48, 7
        v_lshrrev_b32 v1, 3, v0
        v_add_u32 v1, s53, v1
        v_mul_u32_u24 v1, 1152, v1
        v_lshrrev_b32 v2, 4, v0
        v_and_b32 v3, 7, v0
        v_xor_b32 v3, v3, v2
        v_lshl_add_u32 v{VD}, v3, 4, v1
        v_xor_b32 v3, 4, v3
        v_lshl_add_u32 v{VD+1}, v3, 4, v1
        v_add_u32 v{VD+1}, 8192, v{VD+1}
        v_add_u32 v{VD+2}, 16384, v{VD}
        v_add_u32 v{VD+3}, 16384, v{VD+1}
        """)
    else:
        A(f"""
        v_lshrrev_b32 v2, 4, v0
        v_mul_u32_u24 v1, 3456, v2
        v_and_b32 v3, 15, v0
        v_lshlrev_b32 v2, 2, v2
        v_xor_b32 v3, v3, v2
        v_lshl_add_u32 v1, v3, 4, v1
        s_lshl_b32 s53, s49, 8
        v_add_u32 v{VD}, s53, v1
        v_add_u32 v{VD+1}, 12800, v{VD}
        v_add_u32 v{VD+2}, 25600, v{VD}
        v_add_u32 v{VD+3}, 38400, v{VD}
        """)
    cs, gs = (128, 32*1152) if isx else (64*3456, 16*3456)
    lp = uid("ld")
    A(f"""
    {rot_code(cs)}
    s_mov_b32 s51, {0 if isx else 16384}
    s_mov_b32 s52, 0x10000
    s_mov_b32 s53, 0
    s_waitcnt lgkmcnt(0)
    """)
    if isx: srd(A, 4, P_U, 2048*1152)
    else: srd(A, 4, P_WQKV, 576*3456)
    stamp(A, 1)
    acc_t(A, None)
    A(f"{lp}:\ns_mov_b32 m0, s51\ns_add_u32 s54, s50, {gs}")
    for g in range(4):
        so = (50, 54, 55, 56)[g]
        for n in range(4): A(f"buffer_load_dwordx4 v{VD+n}, s[4:7], s{so} offen offset:{1024*n} lds")
        if g < 3: A(f"s_add_u32 m0, s51, {4096*(g+1)}")
        if g < 2: A(f"s_add_u32 s{(55, 56)[g]}, s50, {gs*(g+2)}")
        elif g == 2: A(f"s_add_u32 s50, s50, {cs}" + (f"\ns_cmp_eq_u32 s50, {9*cs}\ns_cselect_b32 s50, 0, s50" if ROT else ""))
    acc_t(A, 4)
    A(f"""
    s_xor_b32 s51, s51, s52
    s_xor_b32 s52, s52, 0x18000
    s_add_u32 s53, s53, 1
    s_cmp_lt_u32 s53, 2
    s_cbranch_scc1 {lp}
    s_waitcnt vmcnt(16)
    """)
    acc_t(A, 5)
    A("s_barrier")
    acc_t(A, 6)
    A(f"s_cmp_lt_u32 s53, 9\ns_cbranch_scc1 {lp}")
    ws_setup(A)
    A("s_waitcnt vmcnt(0)\ns_barrier")
    get_nonce(A)
    stamp(A, 3)

def gemm_compute(A, done_label):
    AX, AW = 4, 8
    VFL, VDN, PT = 10, 11, 12
    FR = 16
    ACC = 80
    rgcg(A)
    A(f"""
    s_and_b32 s53, s3, 1
    s_lshr_b32 s54, s3, 1
    s_lshl_b32 s55, s53, 13
    v_and_b32 v1, 31, v0
    v_lshlrev_b32 v1, 7, v1
    v_add_u32 v1, s55, v1
    v_lshrrev_b32 v2, 5, v0
    v_bfe_u32 v3, v0, 1, 3
    v_xor_b32 v3, v3, v2
    v_lshl_add_u32 v{AX}, v3, 4, v1
    v_xor_b32 v{AX+1}, 32, v{AX}
    v_xor_b32 v{AX+2}, 0x40040, v{AX}
    v_xor_b32 v{AX+3}, 0x40060, v{AX}
    v_bfe_u32 v1, v0, 2, 2
    v_lshl_add_u32 v3, v2, 3, v1
    v_lshlrev_b32 v3, 8, v3
    s_lshl_b32 s55, s54, 1
    v_xor_b32 v1, s55, v1
    v_lshl_add_u32 v3, v1, 6, v3
    v_bfe_u32 v1, v0, 4, 1
    v_lshl_add_u32 v3, v1, 5, v3
    v_and_b32 v1, 3, v0
    v_lshl_add_u32 v3, v1, 3, v3
    v_add_u32 v{AW}, 0x44000, v3
    v_xor_b32 v{AW+1}, 64, v{AW}
    v_mov_b32 v{VFL}, {L_FL}
    s_lshl_b32 s56, s48, 1
    s_add_u32 s56, s56, s53
    s_lshl_b32 s57, s49, 1
    s_add_u32 s57, s57, s54
    s_waitcnt lgkmcnt(0)
    """)
    ws_setup(A); get_nonce(A)
    for i in range(32): A(f"v_mov_b32 v{FR+i}, 0")
    for i in range(64): A(f"v_mov_b32 v{ACC+i}, 0")
    A("s_mov_b32 s62, 0\ns_mov_b32 s63, 0x40000\ns_mov_b32 s64, 0x10000")
    def reads(ks, part):
        b = FR + 16*ks
        if part == 0:
            for t in range(2): A(f"ds_read_b128 {v(b+4*t,4)}, v{AX+ks} offset:{4096*t}")
        else:
            f = part - 1
            for t in range(2): A(f"ds_read_b64_tr_b16 {v(b+8+4*f+2*t,2)}, v{AW+f} offset:{ks*4096+t*1024}")
    def mf(ks, i, vtype):
        b = FR + 16*ks
        t, f = i >> 1, i & 1
        d = v(ACC+16*i, 16); x = v(b+4*t, 4); w = v(b+8+4*f, 4)
        if "m" in os.environ.get("GX", ""): A("s_nop 0"); return
        A(f"v_mfma_f32_32x32x16_bf16 {d}, {x if vtype else w}, {w if vtype else x}, {d}")
    def main(vtype):
        lp = uid("gm"); nb = uid("gnb")
        A.raw(".p2align 6")
        A.label(lp)
        for ks in range(4):
            A(f"s_waitcnt lgkmcnt(6)")
            mf(ks, 0, vtype)
            if ks == 2:
                A(f"s_cbranch_scc1 {nb}")
                if FINE and DIAG: A("s_memtime s[58:59]")
                A("s_barrier")
                if FINE and DIAG: A("s_memtime s[60:61]\ns_waitcnt lgkmcnt(0)\ns_sub_u32 s60, s60, s58\ns_add_u32 s86, s86, s60")
                if DIAG and os.environ.get("CS"):
                    sk = uid("sk"); A(f"s_cmp_lg_u32 s62, 0\ns_cbranch_scc1 {sk}"); stamp(A, 1); A(f"{sk}:")
                A(f"{nb}:")
            kn = (ks+2) & 3
            reads(kn, 0)
            mf(ks, 1, vtype)
            reads(kn, 1)
            if ks == 3: A("s_add_u32 s62, s62, 1")
            mf(ks, 2, vtype)
            reads(kn, 2)
            if ks == 1: A("s_cmp_eq_u32 s62, 9")
            if ks == 3: A(f"v_xor_b32 v{AX+kn}, s64, v{AX+kn}\ns_mov_b32 s63, s64\ns_xor_b32 s64, s64, 0x18000\ns_cmp_lt_u32 s62, 10")
            mf(ks, 3, vtype)
            if ks < 3: A(f"v_xor_b32 v{AX+kn}, s{63 if ks < 2 else 64}, v{AX+kn}")
            if ks == 1: A(f"v_xor_b32 v{AW}, s63, v{AW}\nv_xor_b32 v{AW+1}, s63, v{AW+1}")
        A(f"s_cbranch_scc1 {lp}")
        stamp(A, 4)
    A(f"s_cmp_ge_u32 s49, 9\ns_cbranch_scc1 L_g_vtype")
    main(False)
    A(f"""
    s_mul_i32 s58, s56, {2*QKQ_TT}
    s_lshl_b32 s59, s57, 12
    s_add_u32 s58, s58, s59
    s_add_u32 s59, s58, {QKQ_TT}
    s_mov_b32 s60, {f32(QSCALE)}
    s_cmp_lt_u32 s57, 9
    s_nop 0
    v_and_b32 v1, 15, v0
    v_lshlrev_b32 v1, 4, v1
    v_bfe_u32 v2, v0, 4, 1
    v_lshl_or_b32 v1, v2, 9, v1
    v_lshrrev_b32 v2, 5, v0
    v_lshl_or_b32 v1, v2, 8, v1
    """)
    for i in range(4):
        t, f = i >> 1, i & 1
        a = ACC + 16*i
        sk = uid("ns")
        A(f"s_cbranch_scc0 {sk}")
        for j in range(16): A(f"v_mul_f32 v{a+j}, s60, v{a+j}")
        A(f"{sk}:")
        for j in range(8): A(f"v_cvt_pk_bf16_f32 v{a+j}, v{a+2*j}, v{a+2*j+1}")
        A(f"v_permlane16_swap_b32 v{a}, v{a+2}\nv_permlane16_swap_b32 v{a+1}, v{a+3}")
        A(f"v_permlane16_swap_b32 v{a+4}, v{a+6}\nv_permlane16_swap_b32 v{a+5}, v{a+7}")
        for g in range(2):
            A(f"buffer_store_dwordx4 {v(a+4*g,4)}, v1, s[12:15], s{58+t} offen offset:{f*2048+g*1024} sc1")
    A(f"s_branch L_g_pub")
    A.label("L_g_vtype")
    main(True)
    A(f"""
    s_mul_i32 s58, s56, {2*VT_TT}
    s_lshl_b32 s59, s57, 10
    s_add_u32 s58, s58, s59
    s_add_u32 s58, s58, {VT_OFF - 18*1024}
    s_add_u32 s59, s58, {2*VT_ROW}
    s_add_u32 s60, s58, {VT_TT}
    s_add_u32 s61, s59, {VT_TT}
    v_lshrrev_b32 v2, 5, v0
    v_mul_u32_u24 v2, {VT_ROW}, v2
    v_and_b32 v1, 31, v0
    v_lshl_add_u32 v1, v1, 4, v2
    s_cmp_eq_u32 s57, 27
    s_cbranch_scc1 L_g_pub
    """)
    for i in range(4):
        t, f = i >> 1, i & 1
        a = ACC + 16*i
        if i == 1: A("s_nop 1")
        for j in range(8): A(f"v_cvt_pk_bf16_f32 v{a+j}, v{a+2*j}, v{a+2*j+1}")
        for m in range(2):
            A(f"buffer_store_dwordx4 {v(a+4*m,4)}, v1, s[12:15], s{58+2*t+m} offen offset:{f*512} sc1")
    A.label("L_g_pub")
    if not FINE: stamp(A, 5)
    A("s_waitcnt vmcnt(0)")
    if not FINE: stamp(A, 6)
    A(f"""
    v_mov_b32 v{PT}, 1
    s_mov_b64 exec, 1
    ds_add_rtn_u32 v{PT}, v{VFL}, v{PT} offset:{F_STD}
    s_mov_b64 exec, -1
    s_lshl_b32 s58, s49, 4
    s_add_u32 s58, s58, s48
    s_mul_i32 s58, s58, {FS}
    s_add_u32 s58, s58, {FQ_OFF}
    s_waitcnt lgkmcnt(0)
    v_readfirstlane_b32 s69, v{PT}
    s_cmp_lg_u32 s69, 3
    s_cbranch_scc1 {done_label}
    """)
    gflag(A, "s58", PT)
    A(f"s_branch {done_label}")

NROW = [[0,1,2,3,4,5,6,7, 14,15,16, 20,21, 22,23, 0], [9,9,10,11,11,11,12,13, 17,18,19, 24,25, 26,27, 0]]
def kg_rowaddr(side, n):
    a = side*128 + n*KG_ROW
    if side == 1 and n >= 30: a -= 2*KG_ROW + 128
    return a
def kgen_table():
    T = []
    for lane in range(64):
        i = lane & 31; hh = lane >> 5
        g, h2, ii = i >> 3, (i >> 2) & 1, i & 3
        n = NROW[h2][4*g + ii]
        ra = kg_rowaddr(0, n) + 16*hh
        b = 8*(i & 3) + (i >> 2)
        rb = kg_rowaddr(1, b) + 16*hh
        if b > 0: pb, ph = b-1, hh
        else: pb, ph = 31, 0
        pl = 32*ph + 4*(pb & 7) + (pb >> 3)
        so = (7 - (b & 7))*KC_ROW + (16 + (b >> 3))*32
        T += [ra, rb, pl*4, so]
    return T

KB7 = int(os.environ.get('KB7', '0'))
def kgen(A, pre):
    PR = 4
    VRL = 11; T = 12
    TB = 16; vDT, vDS = 20, 21
    C1R, C1I, C2R, C2I = 22, 23, 24, 25
    M = 28
    X = 38; U = 40
    AC = 46
    R = 62
    ptrs = [P_ARE, P_AIM, P_BRE, P_BIM, P_CRE, P_CIM]
    A(f"""
    s_getpc_b64 s[50:51]
    L_kg_pc:
    s_add_u32 s50, s50, kgen_tab-L_kg_pc
    s_addc_u32 s51, s51, 0
    v_and_b32 v1, 31, v0
    s_lshl_b32 s52, s48, 8
    s_lshl_b32 s53, s63, 7
    s_add_u32 s52, s52, s53
    v_lshl_add_u32 v2, v1, 2, s52
    s_lshl_b32 s52, s48, 1
    v_mov_b32 v10, s52
    v_lshlrev_b32 v{T}, 4, v0
    s_waitcnt lgkmcnt(0)
    global_load_ushort v{vDT}, v10, {s(P_LDT,2)}
    """)
    for i in range(6): A(f"global_load_dword v{PR+i}, v2, {s(ptrs[i],2)}")
    A(f"global_load_ushort v{vDS}, v10, {s(P_DSK,2)}\nglobal_load_dwordx4 {v(TB,4)}, v{T}, s[50:51]")
    ws_setup(A)
    A(f"""
    v_mov_b32 v{C1R}, {f32(LOG2E)}
    v_mov_b32 v{C1I}, {f32(1/(2*math.pi))}
    v_mov_b32 v{C2R}, {f32(248*LOG2E)}
    v_mov_b32 v{C2I}, {f32(248/(2*math.pi))}
    s_mov_b32 exec_lo, 0
    v_mov_b32 v{C1R}, {f32(8*LOG2E)}
    v_mov_b32 v{C1I}, {f32(-8/(2*math.pi))}
    v_mov_b32 v{C2R}, v{C1R}
    v_mov_b32 v{C2I}, v{C1I}
    s_mov_b32 exec_lo, -1
    s_sub_u32 m0, s49, {KG_IB}
    s_mov_b32 s52, 0
    s_waitcnt vmcnt(2)
    v_lshlrev_b32 v{vDT}, 16, v{vDT}
    v_mul_f32 v{vDT}, {f32(LOG2E)}, v{vDT}
    v_exp_f32 v{vDT}, v{vDT}
    s_nop 0
    v_cvt_pk_bf16_f32 v{vDT}, v{vDT}, v{vDT}
    v_and_b32 v{vDT}, 0xffff0000, v{vDT}
    """)
    stamp(A, 1)
    Mx = lambda j: M + 2*j
    mult = [0]*8 + [4] + [1]*4 + [4] + [2]*2 + [4] + [2]*2 + [4, 3, 4, 3, 4, 3, 4, 3] + [3]*4
    A.label("L_kg_pass")
    for i in range(6): A(f"v_and_b32 v{U+i}, 0xffff0000, v{PR+i}")
    A(f"""
    v_mul_f32 v{U}, v{vDT}, v{U}
    v_mul_f32 v{U+1}, v{vDT}, v{U+1}
    v_mul_f32 v{T}, v{C1R}, v{U}
    v_mul_f32 v{T+1}, v{C1I}, v{U+1}
    v_mul_f32 v{T+2}, v{C2R}, v{U}
    v_mul_f32 v{T+3}, v{C2I}, v{U+1}
    v_fract_f32 v{T+1}, v{T+1}
    v_fract_f32 v{T+3}, v{T+3}
    v_exp_f32 v{T}, v{T}
    v_cos_f32 v{Mx(0)}, v{T+1}
    v_sin_f32 v{Mx(0)+1}, v{T+1}
    v_exp_f32 v{T+2}, v{T+2}
    v_cos_f32 v{Mx(4)}, v{T+3}
    v_sin_f32 v{Mx(4)+1}, v{T+3}
    v_mul_f32 v{U+2}, v{vDT}, v{U+2}
    v_mul_f32 v{U+3}, v{vDT}, v{U+3}
    v_mul_f32 v{X}, v{U+3}, v{U+5}
    v_mul_f32 v{X+1}, v{U+3}, v{U+4}
    v_fmac_f32 v{X+1}, v{U+2}, v{U+5}
    v_fma_f32 v{X}, v{U+2}, v{U+4}, -v{X}
    v_mul_f32 v{Mx(0)}, v{T}, v{Mx(0)}
    v_mul_f32 v{Mx(0)+1}, v{T}, v{Mx(0)+1}
    v_mul_f32 v{Mx(4)}, v{T+2}, v{Mx(4)}
    v_mul_f32 v{Mx(4)+1}, v{T+2}, v{Mx(4)+1}
    """)
    for j in (1, 2, 3):
        d, x = Mx(j), Mx(j-1)
        A(f"v_mul_f32 v{d}, v{x+1}, v{x+1}\nv_add_f32 v{d+1}, v{x}, v{x}\nv_mul_f32 v{d+1}, v{d+1}, v{x+1}\nv_fma_f32 v{d}, v{x}, v{x}, -v{d}")
    A("s_mov_b32 exec_lo, 0")
    for j in (1, 2, 3): A(f"v_mov_b32 v{Mx(j)}, v{Mx(0)}\nv_mov_b32 v{Mx(j)+1}, v{Mx(0)+1}")
    A(f"v_mov_b32 v{X}, 1.0\nv_mov_b32 v{X+1}, 0\ns_mov_b32 exec_lo, -1")
    for n in range(32):
        A(f"v_cvt_pk_bf16_f32 v{R+n}, v{X}, v{X+1}")
        if n < 31:
            m = Mx(mult[n])
            A(f"v_mul_f32 v{T}, v{X+1}, v{m+1}\nv_mul_f32 v{X+1}, v{X+1}, v{m}\nv_fmac_f32 v{X+1}, v{X}, v{m+1}\nv_fma_f32 v{X}, v{X}, v{m}, -v{T}")
        if n in ((0, 13, 26) if KB7 else (0, 11, 22, 31)): gb(A)
    A("s_cmp_lg_u32 s52, 0\ns_cbranch_scc1 L_kg_cd")
    for n in range(32): A(f"v_mov_b32 v{R+32+n}, v{R+n}")
    for i in range(6): A(f"v_lshlrev_b32 v{PR+i}, 16, v{PR+i}")
    A("s_mov_b32 s52, 1\ns_branch L_kg_pass\nL_kg_cd:\ns_waitcnt vmcnt(0)")
    stamp(A, 2)
    O = AC; PV = 12; P3 = 13; P4 = 14; D = R; Z = 4
    A(f"""
    v_add_u32 v{TB}, s49, v{TB}
    v_add_u32 v{TB+1}, s49, v{TB+1}
    v_lshlrev_b32 v{vDS}, 16, v{vDS}
    v_mov_b32 v{Z}, 0
    v_mov_b32 v{Z+1}, 0
    v_mov_b32 v{Z+2}, 0
    v_mov_b32 v{Z+3}, 0
    v_lshrrev_b32 v2, 5, v0
    v_mul_u32_u24 v8, {KC_ROW}, v2
    v_lshl_add_u32 v8, v1, 4, v8
    v_add_u32 v8, s62, v8
    v_add_u32 v{TB+3}, s62, v{TB+3}
    v_lshl_add_u32 v9, v2, 7, v{TB+3}
    v_lshl_add_u32 v10, v2, 8, v{TB+3}
    v_lshl_add_u32 v2, v0, 4, s49
    v_lshl_add_u32 v11, v0, 4, s64
    v_xor_b32 v26, 4, v3
    s_mov_b32 vcc_lo, 0xf0f0f0f0
    s_mov_b32 vcc_hi, 0xf0f0f0f0
    """)
    get_nonce(A)
    if KB7: gb(A, 1)
    pre(A)
    gb(A, 1)
    stamp(A, 3)
    for p in range(2):
        r = R + 32*p
        for n in range(32):
            if n == 28: A("s_mov_b32 exec_lo, 0")
            A(f"ds_write_addtid_b32 v{r+n} offset:{KG_IB + kg_rowaddr(1, n) - 128}")
            if p == 1 and n in (8, 12, 16, 20):
                q = (n-8)//4
                if q == 0: A("s_waitcnt lgkmcnt(9)")
                A(f"v_mfma_f32_32x32x16_bf16 {v(AC,16)}, {v(R+8*q,4)}, {v(R+8*q+4,4)}, {'0' if q == 0 else v(AC,16)}")
        A("s_mov_b32 exec_lo, -1")
        for q in range(4): A(f"ds_read_b128 {v(r+8*q,4)}, v{TB} offset:{32*q}\nds_read_b128 {v(r+8*q+4,4)}, v{TB+1} offset:{32*q}")
        if KB7 and p == 0: gb(A, 1)
    if FINE: stamp(A, 4)
    for q in range(4):
        A(f"s_waitcnt lgkmcnt({6-2*q})")
        A(f"v_mfma_f32_32x32x16_bf16 {v(AC,16)}, {v(R+32+8*q,4)}, {v(R+32+8*q+4,4)}, {v(AC,16)}")
    if FINE: stamp(A, 6)
    def pack(o, pv, areg, off, d):
        c0 = [o[6], o[5], o[4], o[3], o[2], o[1], o[0], pv]
        c1 = [o[7], o[6], o[5], o[4], o[3], o[2], o[1], o[0]]
        for j in range(4): A(f"v_cvt_pk_bf16_f32 v{d+4+j}, v{c1[2*j]}, v{c1[2*j+1]}")
        for j in range(4):
            if pv == PV and j == 3: A(f"s_waitcnt lgkmcnt(0)\ns_mov_b64 exec, 1\nv_mov_b32 v{PV}, 0\ns_mov_b64 exec, -1")
            A(f"v_cvt_pk_bf16_f32 v{d+j}, v{c0[2*j]}, v{c0[2*j+1]}")
        A(f"ds_write_b128 v{areg}, {v(d,4)} offset:{off}\nds_write_b128 v{areg}, {v(d+4,4)} offset:{off+16}")
    def xchg(send, keep):
        for i in range(2): A(f"ds_write_b128 v2, {v(AC+send+4*i,4)} offset:{1024*i}")
        lset(A, 3, F_KP, 1, 12)
        lpoll(A, 26, F_KP, 1, 1, 12, sleep=0)
        for i in range(2): A(f"ds_read_b128 {v(R+32+4*i,4)}, v11 offset:{1024*i}")
        A("s_waitcnt lgkmcnt(0)")
        for i in (7, 0, 1, 2, 3, 4, 5, 6): A(f"v_add_f32 v{AC+keep+i}, v{AC+keep+i}, v{R+32+i}")
        if FINE: stamp(A, 7)
    A("s_cmp_eq_u32 s63, 0\ns_cbranch_scc1 L_kg_h0\ns_nop 9")
    xchg(0, 8)
    A(f"v_cndmask_b32 v{P3}, v{O+11}, v{O+12}, vcc\nv_cndmask_b32 v{P4}, v{O+13}, v{O+14}, vcc")
    pack([O+8]*3 + [O+9]*3 + [O+10]*2, O+8, 9, 8*32, D)
    pack([O+11]*4 + [P3] + [O+12]*3, O+11, 10, 16*32, D+8)
    pack([O+13]*4 + [P4] + [O+14]*3, O+13, 10, 20*32, D+16)
    A("s_branch L_kg_end\nL_kg_h0:\ns_nop 9")
    xchg(8, 0)
    A(f"ds_bpermute_b32 v{PV}, v{TB+2}, v{O+7}\ns_mov_b64 exec, 1\nv_add_f32 v{O}, v{O}, v{vDS}\ns_mov_b64 exec, -1")
    pack([O+i for i in range(8)], PV, 9, 0, D)
    for i in range(4): A(f"ds_write_b128 v8, {v(Z,4)} offset:{2*KC_ROW*i}")
    A("L_kg_end:")
    if FINE: stamp(A, 8)
    lset(A, 3, F_KRDY, 1, 15)

TRS = os.environ.get("TRS", "b")
def trans_u(A):
    A(f"""
    s_mul_i32 s52, s50, {64*1152}
    s_lshl_b32 s53, s51, 7
    s_add_u32 s53, s52, s53
    v_lshrrev_b32 v1, 3, v0
    v_mul_u32_u24 v2, 1152, v1
    v_bfe_u32 v3, v0, 4, 1
    v_lshlrev_b32 v3, 2, v3
    v_and_b32 v4, 7, v0
    v_xor_b32 v3, v3, v4
    v_lshl_add_u32 v2, v3, 4, v2
    s_mov_b32 m0, s49
    s_waitcnt lgkmcnt(0)
    """)
    srd(A, 4, P_U, 2048*1152)
    for n in range(8):
        if n: A("s_add_u32 m0, m0, 1024\ns_add_u32 s53, s53, 9216")
        A(f"buffer_load_dwordx4 v2, s[4:7], s53 offen lds")
    ws_setup(A)
    A(f"""
    v_bfe_u32 v3, v0, 2, 2
    v_and_b32 v5, 1, v0
    v_lshl_add_u32 v3, v5, 5, v3
    v_lshlrev_b32 v3, 7, v3
    v_and_b32 v5, 0x30, v0
    v_add_u32 v3, v3, v5
    v_bfe_u32 v5, v0, 1, 1
    v_lshl_add_u32 v3, v5, 3, v3
    v_bfe_u32 v5, v0, 3, 1
    v_lshl_add_u32 v3, v5, 6, v3
    v_add_u32 v5, s49, v3
    v_xor_b32 v6, 64, v5
    v_mul_u32_u24 v2, {4*UT_ROW}, v1
    v_lshl_add_u32 v2, v4, 4, v2
    s_mul_i32 s52, s51, {64*UT_ROW}
    s_add_u32 s52, s52, {UT_OFF}
    s_lshl_b32 s54, s51, 5
    s_add_u32 s54, s54, s50
    s_mul_i32 s54, s54, {FS}
    s_add_u32 s54, s54, {FU_OFF}
    s_lshl_b32 s53, s50, 7
    s_add_u32 s55, s52, s53
    s_cmp_lg_u32 s50, 0
    s_cbranch_scc1 L_tu_nopad
    """)
    B0, B1 = 8, 40
    for k in range(4): A(f"v_mov_b32 v{72+k}, 0")
    for G in range(8):
        A(f"s_add_u32 s53, s52, {(32*(G>>2)+(G&3))*UT_ROW}")
        A(f"buffer_store_dwordx4 v[72:75], v2, s[12:15], s53 offen sc1")
    A("L_tu_nopad:\ns_mov_b32 s56, 0")
    get_nonce(A)
    A("L_tu_loop:")
    for G in range(8):
        for t in range(2): A(f"ds_read_b64_tr_b16 {v(B0+4*G+2*t,2)}, v{5+(G>>2)} offset:{(8*(G&3)+4*t)*128}")
    def stage(src, dst, bit, qp, m0):
        for sel in range(2):
            m = m0 if sel == 0 else (~m0 & 0xffffffff)
            A(f"s_mov_b32 vcc_lo, {hex(m)}\ns_mov_b32 vcc_hi, {hex(m)}")
            for G in range(8):
                if ((G >> bit) & 1) != sel: continue
                for k in range(4):
                    A(f"v_cndmask_b32_dpp v{dst+4*G+k}, v{src+4*(G^(1<<bit))+k}, v{src+4*G+k}, vcc quad_perm:{qp} row_mask:0xf bank_mask:0xf")
    A("s_waitcnt lgkmcnt(0)")
    stage(B0, B1, 0, "[1,0,3,2]", 0x55555555)
    stage(B1, B0, 1, "[2,3,0,1]", 0x33333333)
    A("s_cmp_lg_u32 s56, 0\ns_cbranch_scc1 L_tu_st\ns_mov_b32 s56, 1")
    if TRS == "b": gb(A)
    A("s_cmp_lg_u32 s50, 0\ns_cbranch_scc1 L_tu_w0\ns_waitcnt vmcnt(8)\ns_branch L_tu_loop\nL_tu_w0:\ns_waitcnt vmcnt(0)")
    stamp(A, 1)
    A("s_branch L_tu_loop\nL_tu_st:")
    gb(A)
    for G in range(8):
        if TRS == "c" and G == 4: gb(A)
        A(f"s_add_u32 s53, s55, {(32*(G>>2)+(G&3))*UT_ROW}")
        A(f"buffer_store_dwordx4 {v(B0+4*G,4)}, v2, s[12:15], s53 offen offset:128 sc1")
    gb(A, 3 if TRS == "a" else 2)
    A("s_waitcnt vmcnt(0)")
    gflag(A, "s54", 72)
    stamp(A, 2)

def trans_wo_load(A):
    A(f"""
    s_and_b32 s50, s2, 7
    s_lshr_b32 s51, s2, 3
    s_mul_i32 s52, s50, {72*1152}
    s_lshl_b32 s53, s51, 6
    s_add_u32 s52, s52, s53
    v_lshrrev_b32 v1, 2, v0
    v_mul_u32_u24 v2, 1152, v1
    v_and_b32 v4, 3, v0
    v_lshl_add_u32 v2, v4, 4, v2
    s_waitcnt lgkmcnt(0)
    """)
    srd(A, 4, P_WO, 576*1152)
    for n in range(5):
        A(f"s_mov_b32 m0, {L_WO+n*1024}\ns_add_u32 s53, s52, {n*16*1152}")
        A(f"buffer_load_dwordx4 v2, s[4:7], s53 offen lds")

def trans_wo_store(A):
    A(f"""
    s_and_b32 s50, s2, 7
    s_lshr_b32 s51, s2, 3
    v_and_b32 v5, 1, v0
    v_lshlrev_b32 v5, 5, v5
    v_bfe_u32 v6, v0, 1, 1
    v_lshl_add_u32 v5, v6, 3, v5
    v_bfe_u32 v6, v0, 4, 1
    v_lshl_add_u32 v5, v6, 4, v5
    v_add_u32 v5, {L_WO}, v5
    v_bfe_u32 v3, v0, 2, 2
    v_lshrrev_b32 v6, 5, v0
    v_lshl_add_u32 v6, v6, 2, v3
    v_lshl_add_u32 v6, v6, 6, v5
    v_bfe_u32 v7, v0, 3, 1
    v_mul_u32_u24 v7, {18*64}, v7
    v_bfe_u32 v3, v0, 2, 1
    v_lshl_add_u32 v7, v3, 6, v7
    v_add_u32 v7, v7, v5
    """)
    for h in range(4):
        for t in range(2): A(f"ds_read_b64_tr_b16 {v(28+4*h+2*t,2)}, v6 offset:{(18*h+8*t)*64}")
    for t in range(2): A(f"ds_read_b64_tr_b16 {v(44+2*t,2)}, v7 offset:{(36*t+16)*64}")
    A(f"""
    v_lshlrev_b32 v2, 4, v0
    s_mul_i32 s52, s50, {4*18*1024}
    s_lshl_b32 s53, s51, 10
    s_add_u32 s53, s53, {WOT_OFF}
    s_add_u32 s52, s52, s53
    s_lshr_b32 s54, s50, 1
    s_add_u32 s54, s54, 32
    s_mul_i32 s54, s54, {18*1024}
    s_add_u32 s54, s54, s53
    s_and_b32 s55, s50, 1
    s_lshl_b32 s55, s55, 9
    s_add_u32 s54, s54, s55
    s_waitcnt lgkmcnt(0)
    """)
    for h in range(4):
        A(f"buffer_store_dwordx4 {v(28+4*h,4)}, v2, s[12:15], s52 offen sc1")
        if h < 3: A(f"s_add_u32 s52, s52, {18*1024}")
    A(f"""
    s_mov_b32 exec_hi, 0
    buffer_store_dwordx4 v[44:47], v2, s[12:15], s54 offen sc1
    s_mov_b32 exec_hi, -1
    """)

def gate(A):
    GW = 8; XD = 44; Z = 120
    A(f"""
    v_and_b32 v4, 7, v0
    v_lshlrev_b32 v4, 4, v4
    v_lshrrev_b32 v1, 3, v0
    v_mul_u32_u24 v2, 1152, v1
    v_add_u32 v2, v2, v4
    s_mul_i32 s52, s48, {32*1152}
    s_waitcnt lgkmcnt(0)
    """)
    srd(A, 4, P_U, 2048*1152)
    ws_setup(A); get_nonce(A)
    for j in range(9): A(f"global_load_dwordx4 {v(GW+4*j,4)}, v4, {s(P_GW,2)} offset:{128*j}")
    def ld(n):
        for j in range(9): A(f"buffer_load_dwordx4 {v(XD+36*(n&1)+4*j,4)}, v2, s[4:7], s52 offen offset:{128*j}")
        if n < 3: A(f"s_add_u32 s52, s52, {8*1152}")
    ld(0); ld(1)
    for n in range(4):
        A(f"s_waitcnt vmcnt({9 if n < 3 else 0})\nv_mov_b32 v{Z+n}, 0\nv_mov_b32 v{Z+4+n}, 0")
        for j in range(36): A(f"v_dot2c_f32_bf16 v{Z+n+4*(j&1)}, v{XD+36*(n&1)+j}, v{GW+j}")
        if n < 2: ld(n+2)
    A("s_nop 2")
    for n in range(4): A(f"v_add_f32 v{Z+n}, v{Z+n}, v{Z+4+n}")
    for pat in ("quad_perm:[1,0,3,2]", "quad_perm:[2,3,0,1]", "row_half_mirror"):
        A("s_nop 1")
        for n in range(4): A(f"v_add_f32_dpp v{Z+n}, v{Z+n}, v{Z+n} {pat} row_mask:0xf bank_mask:0xf")
    A(f"v_and_b32 v5, 3, v0")
    for n in (1, 2, 3): A(f"v_cmp_eq_u32 vcc, {n}, v5\ns_nop 1\nv_cndmask_b32 v{Z}, v{Z}, v{Z+n}, vcc")
    A(f"""
    v_cvt_pk_bf16_f32 v{Z}, v{Z}, v{Z}
    v_and_b32 v{Z}, 0xffff0000, v{Z}
    v_mul_f32 v{Z}, {f32(-LOG2E)}, v{Z}
    v_exp_f32 v{Z}, v{Z}
    v_lshl_add_u32 v5, v5, 3, v1
    v_add_f32 v{Z}, 1.0, v{Z}
    v_rcp_f32 v{Z}, v{Z}
    v_lshlrev_b32 v5, 3, v5
    v_cvt_pk_bf16_f32 v{Z}, v{Z}, v{Z}
    v_and_b32 v{Z}, 0xffff0000, v{Z}
    v_sub_f32 v{Z+1}, 1.0, v{Z}
    v_cvt_pk_bf16_f32 v{Z+1}, v{Z+1}, v{Z+1}
    v_and_b32 v{Z+1}, 0xffff0000, v{Z+1}
    s_lshl_b32 s52, s48, 8
    s_add_u32 s52, s52, {G_OFF}
    s_mov_b32 exec_lo, 0x0f0f0f0f
    s_mov_b32 exec_hi, 0x0f0f0f0f
    buffer_store_dwordx2 {v(Z,2)}, v5, s[12:15], s52 offen sc1
    s_mov_b64 exec, -1
    s_mul_i32 s54, s48, {FS}
    s_add_u32 s54, s54, {FG_OFF}
    """)
    A("s_waitcnt vmcnt(0)")
    gflag(A, "s54", 8)
```

```python
QKQ_OFF = 0
QKQ_TT = 288*256
QKQ_SZ = 64*QKQ_TT
VT_OFF = QKQ_OFF + QKQ_SZ
VT_ROW = 584*16
VT_TT = 4*VT_ROW
VT_SZ = 64*VT_TT
UT_OFF = VT_OFF + VT_SZ
UT_ROW = 4096 + 128
UT_SZ = 576*UT_ROW
G_OFF = UT_OFF + UT_SZ
G_SZ = 2048*8
OF_OFF = G_OFF + G_SZ
OF_TT = 36*1024
OF_SZ = 64*OF_TT
AT_OFF = OF_OFF + OF_SZ
AT_CH = 8192
AT_SZ = 576*AT_CH
WOT_OFF = AT_OFF + AT_SZ
WOT_SZ = 36*18*1024
FS = 128
FU_OFF = WOT_OFF + WOT_SZ
FQ_OFF = FU_OFF + 288*FS
FG_OFF = FQ_OFF + 224*FS
FB_OFF = FG_OFF + 64*FS
FO_OFF = FB_OFF + 256*FS
EP_OFF = FO_OFF + 2048*FS
WS_USED = EP_OFF + FS
PH = [0, 98304, 65536, 32768]
L_KG = 65536
KG_ROW = 272
KG_SZ = 30*KG_ROW
KG_IB = 57344
L_UC = 98304
UC_COPY = 4288
UC_CH = 4*UC_COPY
L_KC = L_UC + 2*UC_CH
KC_ROW = 1552
KC_CH = 8*KC_ROW
L_FL = 157696
L_WO = 158208
L_TR = 131072
SET1 = 98304
F_STD = 0
F_TRD = 128
F_URDY = 16
F_KRDY = 32
F_KP = 64
F_CVD = 96
L_QP = 81920
assert L_KC + 2*KC_CH <= L_FL
```

```python
from f1 import *
NV = 168
GRP = 20480
HOFF = 10240
PRIO = int(os.environ.get("PRIO", "1"))
ATD = 112
NE = 2

def head_qb(A):
    A("""
    s_and_b32 s96, s2, 7
    s_lshl_b32 s96, s96, 2
    s_lshr_b32 s97, s2, 6
    s_add_u32 s96, s96, s97
    s_bfe_u32 s97, s2, 0x30003
    """)

CVU, CVK, CVF, CVF2, CVA, CPT = 126, 127, 128, 129, 130, 132
CAC = 136
def conv_pre(A):
    PT = CPT
    A(f"""
    s_and_b32 s50, s3, 1
    s_bfe_u32 s51, s3, 0x10001
    s_mul_i32 s52, s50, {UC_CH}
    s_add_u32 s52, s52, {L_UC}
    s_sub_u32 s52, s52, s98
    s_lshl_b32 s53, s51, 10
    s_add_u32 s52, s52, s53
    s_mul_i32 s53, s50, {KC_CH}
    s_add_u32 s53, s53, {L_KC + 512 - 32}
    s_sub_u32 s53, s53, s98
    s_lshl_b32 s54, s51, 8
    s_sub_u32 s53, s53, s54
    v_and_b32 v{PT}, 3, v0
    v_mul_u32_u24 v{PT}, {UC_COPY}, v{PT}
    v_bfe_u32 v{PT+1}, v0, 2, 3
    v_lshrrev_b32 v{PT+2}, 5, v0
    v_add_u32 v{PT+1}, v{PT+1}, v{PT+2}
    v_lshl_add_u32 v{CVU}, v{PT+1}, 4, v{PT}
    v_add_u32 v{CVU}, s52, v{CVU}
    v_mul_u32_u24 v{PT+1}, {KC_ROW}, v{PT+2}
    v_and_b32 v{PT}, 31, v0
    v_lshl_add_u32 v{CVK}, v{PT}, 4, v{PT+1}
    v_add_u32 v{CVK}, s53, v{CVK}
    s_cmp_lg_u32 s98, 0
    s_cselect_b32 s56, 8, 0
    s_lshl_b32 s57, s50, 2
    s_add_u32 s56, s56, s57
    s_add_u32 s57, s56, {L_FL}
    v_mov_b32 v{CVF}, s57
    s_add_u32 s57, s57, s56
    v_mov_b32 v{CVF2}, s57
    v_bfe_u32 v{PT}, v0, 1, 4
    v_lshlrev_b32 v{PT}, 7, v{PT}
    v_and_b32 v{PT+1}, 1, v0
    v_lshl_add_u32 v{PT}, v{PT+1}, 5, v{PT}
    v_lshl_add_u32 v{CVA}, v{PT+2}, 4, v{PT}
    s_lshl_b32 s52, s99, 13
    s_lshl_b32 s53, s51, 12
    s_add_u32 s52, s52, s53
    s_add_u32 s98, s52, {AT_OFF}
    """)
    for i in range(32): A(f"v_mov_b32 v{CAC+i}, 0")

def conv(A):
    VU, VK, PT, AC = CVU, CVK, CPT, CAC
    BUF = 4
    lpoll(A, CVF, F_URDY, 1, 1, PT, sleep=0)
    stamp(A, 4)
    lpoll(A, CVF2, F_KRDY, 2, 1, PT, sleep=0)
    stamp(A, 5)
    def reads(q, part):
        b = BUF + 16*(q % 4)
        ko = 2*KC_ROW*(q % 4) + 32*(1 - q//4)
        if part == 0: A(f"ds_read_b128 {v(b,4)}, v{VU} offset:{32*q}\nds_read_b128 {v(b+4,4)}, v{VK} offset:{ko}")
        else: A(f"ds_read_b128 {v(b+8,4)}, v{VK} offset:{ko+512}\nds_read_b128 {v(b+12,4)}, v{VU} offset:{32*q+2048}")
    for q in range(3): reads(q, 0); reads(q, 1)
    A("s_mov_b32 s58, 0")
    A.label("L_cv_loop")
    for q in range(4):
        b = BUF + 16*q
        A("s_waitcnt lgkmcnt(8)")
        A(f"v_mfma_f32_32x32x16_bf16 {v(AC,16)}, {v(b,4)}, {v(b+4,4)}, {v(AC,16)}")
        reads(q+3, 0)
        if q == 3: A("s_add_u32 s58, s58, 1\ns_cmp_lt_u32 s58, 8")
        A(f"v_mfma_f32_32x32x16_bf16 {v(AC+16,16)}, {v(b,4)}, {v(b+8,4)}, {v(AC+16,16)}")
        reads(q+3, 1)
        if q == 3: A(f"v_add_u32 v{VU}, 128, v{VU}\nv_subrev_u32 v{VK}, 32, v{VK}")
        A(f"v_mfma_f32_32x32x16_bf16 {v(AC+16,16)}, {v(b+12,4)}, {v(b+4,4)}, {v(AC+16,16)}")
    A("s_cbranch_scc1 L_cv_loop")
    stamp(A, 6)
    A(f"""
    s_waitcnt lgkmcnt(0)
    s_cmp_lt_u32 s3, 4
    s_cbranch_scc1 L_cv_s1
    s_barrier
    s_branch L_attn
    L_cv_s1:
    s_lshl_b32 s52, s3, 2
    s_add_u32 s52, s52, {L_FL+F_CVD}
    v_mov_b32 v{PT}, s52
    """)
    lset(A, PT, 0, 1, PT+1)

def ucopy(A):
    A(f"""
    s_setprio 3
    s_lshr_b32 s50, s99, 6
    s_mul_i32 s50, s50, {32*FS}
    s_add_u32 s50, s50, {FU_OFF}
    v_and_b32 v1, 31, v0
    v_mul_u32_u24 v1, {FS}, v1
    v_lshlrev_b32 v2, 4, v0
    s_and_b32 s51, s3, 1
    s_add_u32 s52, s99, s51
    s_mul_i32 s52, s52, {UT_ROW}
    s_add_u32 s52, s52, {UT_OFF+4}
    s_mul_i32 s53, s51, {UC_CH}
    s_add_u32 s53, s53, {L_UC}
    s_lshl_b32 s54, s51, 2
    s_add_u32 s54, s54, {L_FL}
    v_mov_b32 v3, s54
    s_cmp_ge_u32 s2, 224
    s_cbranch_scc1 L_uc_aux
    """ + "s_barrier\n"*5 + f"""
    s_branch L_uc_poll
    L_uc_aux:
    s_sub_u32 s53, s53, {SET1}
    s_add_u32 s52, s52, {2*UT_ROW}
    v_add_u32 v3, 8, v3
    L_uc_poll:
    """)
    gpoll(A, [1], 4, "s50")
    A("L_uc_set:")
    stamp(A, 3)
    for k in range(4):
        A(f"s_add_u32 m0, s53, {k*UC_COPY}\ns_add_u32 s55, s52, {4*k}")
        for n in range(4): A(f"buffer_load_dwordx4 v2, s[12:15], s55 offen offset:{1024*n} sc1 lds")
    A("s_mov_b64 exec, 0xff")
    for k in range(4):
        A(f"s_add_u32 m0, s53, {k*UC_COPY+4096}\ns_add_u32 s55, s52, {4*k+4096}")
        A(f"buffer_load_dwordx4 v2, s[12:15], s55 offen sc1 lds")
    A("s_mov_b64 exec, -1\ns_waitcnt vmcnt(0)")
    lset(A, 3, F_URDY, 1, 4)
    A(f"""
    s_cmp_ge_u32 s53, {L_UC}
    s_cbranch_scc1 L_uc_done
    s_add_u32 s53, s53, {SET1}
    s_sub_u32 s52, s52, {2*UT_ROW}
    v_subrev_u32 v3, 8, v3
    v_mov_b32 v8, {L_FL}
    """)
    lpoll(A, 8, F_KRDY+16, 4, 1, 4, sleep=1)
    A("s_branch L_uc_set\nL_uc_done:")

IDX, AK, AV, OMG = 1, 2, 3, 4
QM = 6; QE = 14; KF = 22; KE = 26; VF = 30; S = 38; O = 70; TMP = 102

def attn(A):
    head_qb(A)
    A(f"""
    s_and_b32 s50, s3, 3
    s_lshr_b32 s51, s3, 2
    s_lshl_b32 s52, s97, 3
    s_lshl_b32 s50, s50, 1
    s_add_u32 s52, s52, s50
    s_add_u32 s53, s52, s51
    s_xor_b32 s54, s53, 1
    s_lshr_b32 s55, s96, 1
    s_mul_i32 s55, s55, {9*256}
    s_and_b32 s56, s96, 1
    s_mul_i32 s57, s56, {5*256}
    s_add_u32 s57, s57, s55
    s_add_u32 s55, s55, {4*256}
    v_and_b32 v{TMP+4}, 15, v0
    v_lshlrev_b32 v{TMP+4}, 4, v{TMP+4}
    v_bfe_u32 v{TMP+5}, v0, 4, 1
    v_lshl_or_b32 v{TMP+4}, v{TMP+5}, 3, v{TMP+4}
    v_lshrrev_b32 v{TMP+5}, 5, v0
    v_lshl_or_b32 v{TMP+5}, v{TMP+5}, 8, v{TMP+4}
    v_and_b32 v{TMP+6}, 31, v0
    v_lshlrev_b32 v{TMP+7}, 3, v{TMP+6}
    s_lshl_b32 s62, s53, 8
    s_add_u32 s62, s62, {G_OFF}
    s_lshl_b32 s63, s50, 11
    s_add_u32 s63, s63, {L_QP}
    v_lshl_add_u32 v{TMP+3}, v0, 4, s63
    s_cmp_ge_u32 s3, 4
    s_cbranch_scc1 L_at_qb
    s_mul_i32 s58, s53, {QKQ_TT}
    s_mul_i32 s59, s54, {QKQ_TT}
    s_add_u32 s60, s58, s55
    s_add_u32 s61, s59, s55
    s_add_u32 s58, s58, s57
    s_add_u32 s59, s59, s57
    s_min_u32 s63, s55, s57
    s_add_u32 s64, s63, {4*256}
    s_lshr_b32 s63, s63, 13
    s_lshr_b32 s64, s64, 13
    s_lshr_b32 s65, s52, 2
    s_lshl_b32 s63, s63, 4
    s_lshl_b32 s64, s64, 4
    s_add_u32 s63, s63, s65
    s_add_u32 s64, s64, s65
    s_mul_i32 s63, s63, {FS}
    s_mul_i32 s64, s64, {FS}
    s_mul_i32 s65, s53, {FS}
    s_add_u32 s65, s65, {FG_OFF-FQ_OFF}
    v_mov_b32 v{TMP}, s63
    v_writelane_b32 v{TMP}, s64, 1
    v_writelane_b32 v{TMP}, s65, 2
    s_add_u32 s65, s65, {FS}
    v_writelane_b32 v{TMP}, s65, 3
    s_mov_b32 s63, {FQ_OFF}
    """)
    gpoll(A, [TMP], TMP+1, "s63")
    stamp(A, 8)
    for j in range(2):
        A(f"""
        buffer_load_dwordx2 {v(QM+4*j,2)}, v{TMP+5}, s[12:15], s{58+j} offen sc1
        buffer_load_dwordx2 {v(QM+4*j+2,2)}, v{TMP+5}, s[12:15], s{58+j} offen offset:512 sc1
        buffer_load_dwordx2 {v(QE+4*j,2)}, v{TMP+4}, s[12:15], s{60+j} offen sc1
        """)
    A("s_branch L_at_cm\nL_at_qb:")
    for k, d in enumerate((QM+4, QM, QE+4, QE)): A(f"ds_read_b128 {v(d,4)}, v{TMP+3} offset:{1024*k}")
    A("L_at_cm:")
    A(f"buffer_load_dword v{OMG}, v{TMP+7}, s[12:15], s62 offen offset:4 sc1")
    A(f"""
    v_and_b32 v{AK}, 0x13f, v{TMP+5}
    v_bfe_u32 v{TMP}, v0, 2, 1
    v_lshl_or_b32 v{AK}, v{TMP}, 7, v{AK}
    v_bfe_u32 v{TMP}, v0, 3, 1
    v_lshl_or_b32 v{AK}, v{TMP}, 6, v{AK}
    s_mul_i32 s63, s51, {HOFF}
    v_add_u32 v{AK}, s63, v{AK}
    v_min_u32 v{TMP}, 18, v{TMP+6}
    v_lshrrev_b32 v{TMP+1}, 5, v0
    v_mad_u32_u24 v{TMP}, v{TMP+1}, 20, v{TMP}
    s_add_u32 s63, s63, 5120
    v_lshl_add_u32 v{AV}, v{TMP}, 4, s63
    v_mov_b32 v{IDX}, 0xdddddddd
    """)
    for i in range(32): A(f"v_mov_b32 v{O+i}, 0")
    for i in range(8): A(f"v_mov_b32 v{S+16+8+i}, 0")
    for i in range(4): A(f"v_mov_b32 v{VF+4+i}, 0")
    A(f"""
    s_cmp_ge_u32 s3, 4
    s_cbranch_scc1 L_at_st
    v_mov_b32 v{TMP}, {L_FL}
    """)
    lpoll(A, TMP, F_KRDY, 4, 1, TMP+4, sleep=1)
    A(f"""
    s_cmp_eq_u32 s56, 0
    s_cselect_b32 s64, -1, 0
    s_not_b32 s65, s64
    s_waitcnt vmcnt(1)
    """)
    for j in range(2):
        e = QE + 4*j
        A(f"v_and_b32 v{e}, s64, v{e}\nv_and_b32 v{e+1}, s65, v{e+1}\nv_mov_b32 v{e+2}, 0\nv_mov_b32 v{e+3}, 0")
    A("s_mov_b32 exec_lo, 0")
    for j in range(2):
        e = QE + 4*j
        A(f"v_mov_b32 v{e+2}, v{e}\nv_mov_b32 v{e+3}, v{e+1}\nv_mov_b32 v{e}, 0\nv_mov_b32 v{e+1}, 0")
    A("s_mov_b32 exec_lo, -1")
    for k, d in enumerate((QM, QM+4, QE, QE+4)): A(f"ds_write_b128 v{TMP+3}, {v(d,4)} offset:{1024*k}")
    A("L_at_st:\ns_cmp_eq_u32 s98, 0\ns_cbranch_scc1 L_at_nost")
    for cb in range(2):
        a = CAC + 16*cb
        for j in range(8): A(f"v_cvt_pk_bf16_f32 v{a+j}, v{a+2*j}, v{a+2*j+1}")
        for m in range(2): A(f"buffer_store_dwordx4 {v(a+4*m,4)}, v{CVA}, s[12:15], s98 offen offset:{2048*cb+64*m} sc1")
    A("L_at_nost:\ns_waitcnt lgkmcnt(0)\ns_cmp_ge_u32 s3, 4\ns_cbranch_scc1 L_at_go\ns_barrier\nL_at_go:")
    stamp(A, 9)
    if os.environ.get('CLK'): stampc(A, 1)
    GU = GRP//512
    rdK = lambda t: f"ds_read2st64_b64 {v(KF,4)}, v{AK} offset0:{(t//4)*GU+2*(t%4)} offset1:{(t//4)*GU+2*(t%4)+1}"
    rdE = lambda g: f"ds_read2st64_b64 {v(KE,4)}, v{AK} offset0:{g*GU+8} offset1:{g*GU+9}"
    rdV = lambda t, m: f"ds_read_b128 {v(VF+4*m,4)}, v{AV} offset:{(t//4)*GRP+(4*(t%4)+2*m)*320}"
    M16 = lambda q: f"v_mfma_f32_32x32x16_bf16 {v(S+16*q,16)}, {v(KF,4)}, {v(QM+4*q,4)}, 0"
    M8 = lambda q, t: f"v_mfma_f32_32x32x8_bf16 {v(S+16*q,16)}, {v(KE+2*((t%4)>>1),2)}, {v(QE+4*q+2*(t&1),2)}, {v(S+16*q,16)}"
    PV = lambda q, m: f"v_smfmac_f32_32x32x32_bf16 {v(O+16*q,16)}, {v(VF+4*m,4)}, {v(S+16*q+8*m,8)}, v{IDX}"
    E = lambda q, i: f"v_exp_f32 v{S+16*q+i}, v{S+16*q+i}"
    A(rdK(0)); A(rdE(0)); A(rdV(0, 0))
    A("s_mov_b32 s66, 0")
    if PRIO: A("s_setprio 2")
    A("s_waitcnt lgkmcnt(1)")
    A(M16(0)); A(M8(0, 0)); A("s_nop 15")
    A.raw(".p2align 6")
    A.label("L_at_loop")
    for t in range(4):
        for q in range(2):
            if t == 3 and q == 0:
                A("s_and_b32 s63, s66, 5\ns_cbranch_scc1 L_at_nobar\ns_waitcnt vmcnt(0)\ns_barrier\nL_at_nobar:")
            tn = t + q
            A(E(q, 0)); A(E(q, 1))
            A(PV(1-q, 1))
            if q == 0: A(rdV(t, 1))
            else: A("s_waitcnt lgkmcnt(0)")
            for i in (2, 3, 4): A(E(q, i))
            A(M16(1-q))
            if q == 0: A("s_waitcnt lgkmcnt(1)"); A(rdK(t+1))
            elif t == 3: A("s_add_u32 s66, s66, 1")
            elif t == 0 and PRIO: A("s_cmp_eq_u32 s66, 7")
            for i in (5, 6, 7): A(E(q, i))
            A(M8(1-q, tn))
            for i in (8, 9, 10, 11): A(E(q, i))
            A(PV(q, 0))
            if q == 0:
                A("s_waitcnt lgkmcnt(1)")
                if t == 3: A(rdE(1))
            else:
                if t == 3: A("s_cmp_lt_u32 s66, 8")
                elif t == 0 and PRIO: A("s_cbranch_scc1 L_at_lowprio\nL_at_lowprio_ret:")
                A(rdV(t+1, 0))
            for i in (12, 13, 14, 15): A(E(q, i))
    A(f"v_add_u32 v{AK}, {GRP}, v{AK}\nv_add_u32 v{AV}, {GRP}, v{AV}")
    A("s_cbranch_scc1 L_at_loop")
    A(PV(1, 1))
    stamp(A, 10)
    if os.environ.get('CLK'): stampc(A, 2)
    A(f"""
    s_mul_i32 s63, s3, 3072
    v_lshl_add_u32 v{AK}, v0, 4, s63
    s_xor_b32 s63, s3, 4
    s_mul_i32 s63, s63, 3072
    v_lshl_add_u32 v{AV}, v0, 4, s63
    s_waitcnt lgkmcnt(0)
    s_barrier
    s_nop 7
    """)
    for i in range(3): A(f"ds_write_b128 v{AK}, {v(O+16+4*i,4)} offset:{1024*i}")
    A("s_waitcnt lgkmcnt(0)\ns_barrier")
    for i in range(3): A(f"ds_read_b128 {v(S+4*i,4)}, v{AV} offset:{1024*i}")
    A(f"""
    s_mul_i32 s58, s53, {OF_TT}
    s_add_u32 s58, s58, {OF_OFF}
    s_lshl_b32 s59, s96, 10
    s_add_u32 s59, s59, s58
    s_lshl_b32 s60, s96, 7
    s_add_u32 s60, s60, s58
    s_add_u32 s60, s60, {32*1024}
    s_mov_b32 s61, {f32(2.0**-60)}
    s_mov_b32 s62, {f32(2.0**40)}
    s_waitcnt lgkmcnt(0)
    """)
    for i in range(6): A(f"v_pk_add_f32 {v(O+2*i,2)}, {v(O+2*i,2)}, {v(S+2*i,2)}")
    A(f"""
    v_cmp_le_f32 vcc, s61, v{O+11}
    v_cmp_ge_f32 s[64:65], s62, v{O+11}
    s_and_b64 vcc, vcc, s[64:65]
    s_cmp_eq_u64 vcc, -1
    s_cbranch_scc0 L_at_fallback
    L_at_fin:
    v_rcp_f32 v{TMP}, v{O+11}
    v_lshlrev_b32 v{AK}, 4, v0
    v_mul_f32 v{TMP}, v{TMP}, v{OMG}
    v_lshlrev_b32 v{AV}, 2, v0
    """)
    for i in range(5): A(f"v_pk_mul_f32 {v(O+2*i,2)}, {v(O+2*i,2)}, {v(TMP,2)} op_sel_hi:[1,0]")
    for i in range(5): A(f"v_cvt_pk_bf16_f32 v{O+i}, v{O+2*i}, v{O+2*i+1}")
    A(f"""
    buffer_store_dwordx4 {v(O,4)}, v{AK}, s[12:15], s59 offen sc1
    s_mov_b32 exec_hi, 0
    buffer_store_dword v{O+4}, v{AV}, s[12:15], s60 offen sc1
    s_mov_b32 exec_hi, -1
    s_lshl_b32 s58, s53, 5
    s_add_u32 s58, s58, s96
    s_mul_i32 s58, s58, {FS}
    s_add_u32 s58, s58, {FO_OFF}
    s_waitcnt vmcnt(0)
    """)
    gflag(A, "s58", TMP)
    A(f"""
    s_cmp_lg_u32 s3, 0
    s_cbranch_scc1 L_end
    s_cmp_ge_u32 s2, 128
    s_cbranch_scc1 L_end
    s_branch L_op_p2
    """)
    if PRIO: A("L_at_lowprio:\ns_setprio 0\ns_branch L_at_lowprio_ret")
    MX = TMP + 4
    A.label("L_at_fallback")
    A(f"""
    v_and_b32 v{TMP+1}, 3, v0
    v_lshlrev_b32 v{TMP+1}, 4, v{TMP+1}
    v_bfe_u32 v{TMP}, v0, 2, 1
    v_lshl_or_b32 v{TMP+1}, v{TMP}, 7, v{TMP+1}
    v_bfe_u32 v{TMP}, v0, 3, 1
    v_lshl_or_b32 v{TMP+1}, v{TMP}, 6, v{TMP+1}
    v_bfe_u32 v{TMP}, v0, 4, 1
    v_lshl_or_b32 v{TMP+1}, v{TMP}, 3, v{TMP+1}
    v_lshrrev_b32 v{AV}, 5, v0
    v_lshl_or_b32 v{AK}, v{AV}, 8, v{TMP+1}
    v_and_b32 v{TMP}, 31, v0
    s_mul_i32 s63, s96, 18
    v_add_u32 v{TMP+2}, s63, v{TMP}
    v_mul_u32_u24 v{AV}, {VT_ROW}, v{AV}
    v_lshl_add_u32 v{AV}, v{TMP+2}, 4, v{AV}
    v_mov_b32 v{MX}, 0xff800000
    s_mov_b32 s67, 0
    """)
    for i in range(16): A(f"v_mov_b32 v{O+i}, 0")
    for i in range(8): A(f"v_mov_b32 v{VF+i}, 0x3f803f80")
    A(f"""
    L_fb_pass:
    s_add_u32 s63, s57, {144*256}
    s_add_u32 s64, s55, {144*256}
    s_mov_b32 s65, {VT_OFF}
    s_mov_b32 s66, 0
    L_fb_loop:
    s_add_u32 s68, s65, {2*VT_ROW}
    buffer_load_dwordx2 {v(KF,2)}, v{AK}, s[12:15], s63 offen sc1
    buffer_load_dwordx2 {v(KF+2,2)}, v{AK}, s[12:15], s63 offen offset:512 sc1
    buffer_load_dwordx2 {v(KE,2)}, v{TMP+1}, s[12:15], s64 offen sc1
    s_mov_b32 exec_lo, 0x3ffff
    s_mov_b32 exec_hi, 0x3ffff
    buffer_load_dwordx4 {v(VF,4)}, v{AV}, s[12:15], s65 offen sc1
    buffer_load_dwordx4 {v(VF+4,4)}, v{AV}, s[12:15], s68 offen sc1
    s_mov_b64 exec, -1
    s_waitcnt vmcnt(0)
    {M16(0)}
    {M8(0, 0)}
    s_add_u32 s63, s63, {QKQ_TT}
    s_add_u32 s64, s64, {QKQ_TT}
    s_add_u32 s65, s65, {VT_TT}
    s_add_u32 s66, s66, 1
    s_nop 15
    s_cmp_lg_u32 s67, 0
    s_cbranch_scc1 L_fb_p2
    """)
    for i in range(8): A(f"v_max3_f32 v{MX}, v{MX}, v{S+2*i}, v{S+2*i+1}")
    A(f"""
    s_cmp_lt_u32 s66, 64
    s_cbranch_scc1 L_fb_loop
    v_mov_b32 v{MX+1}, v{MX}
    s_nop 1
    v_permlane32_swap_b32 v{MX}, v{MX+1}
    s_mov_b32 s67, 1
    v_max_f32 v{MX}, v{MX}, v{MX+1}
    s_branch L_fb_pass
    L_fb_p2:
    """)
    for i in range(16): A(f"v_sub_f32 v{S+i}, v{S+i}, v{MX}")
    for i in range(16): A(E(0, i))
    A(f"""
    s_nop 2
    {PV(0, 0)}
    {PV(0, 1)}
    s_cmp_lt_u32 s66, 64
    s_cbranch_scc1 L_fb_loop
    s_nop 15
    s_branch L_at_fin
    """)

def kv_loader(A):
    VD = 4; VP = 9; PT = 12
    A("s_setprio 3")
    head_qb(A)
    A(f"""
    s_and_b32 s50, s3, 1
    s_bfe_u32 s51, s3, 0x10001
    s_mul_i32 s52, s51, {HOFF}
    s_cmp_eq_u32 s50, 0
    s_cbranch_scc0 L_kv_v
    s_lshr_b32 s55, s96, 1
    s_mul_i32 s55, s55, {9*256}
    s_and_b32 s56, s96, 1
    s_mul_i32 s57, s56, {5*256}
    v_lshl_add_u32 v{VD}, v0, 4, s57
    v_add_u32 v{VD+1}, {QKQ_TT-1024}, v{VD}
    v_add_u32 v{VD+2}, {2*(QKQ_TT-1024)}, v{VD}
    v_add_u32 v{VD+3}, {3*(QKQ_TT-1024)}, v{VD}
    v_lshrrev_b32 v1, 4, v0
    v_mul_u32_u24 v1, {QKQ_TT}, v1
    v_and_b32 v2, 15, v0
    v_lshl_add_u32 v1, v2, 4, v1
    v_add_u32 v{VD+4}, 1024, v1
    s_add_u32 s55, s55, {144*256}
    s_mul_i32 s53, s51, {32*QKQ_TT}
    s_add_u32 s53, s53, s55
    s_mov_b32 s54, {4*QKQ_TT}
    s_lshl_b32 s56, s56, 10
    s_add_u32 s58, s55, s56
    s_add_u32 s59, s58, {4*256}
    s_lshr_b32 s58, s58, 13
    s_lshr_b32 s59, s59, 13
    s_branch L_kv_go
    L_kv_v:
    s_mul_i32 s55, s96, 18
    s_and_b32 s56, s2, 15
    s_mul_i32 s56, s56, {VT_ROW}
    s_add_u32 s56, s56, {576*16}
    s_mul_i32 s53, s51, {32*VT_TT}
    s_add_u32 s53, s53, {VT_OFF}
    v_mul_u32_u24 v1, {4*VT_TT}, v0
    v_add_u32 v1, s56, v1
    v_mov_b32 v16, 0x3f803f80
    v_mov_b32 v17, v16
    v_mov_b32 v18, v16
    v_mov_b32 v19, v16
    s_mov_b64 exec, 0xff
    buffer_store_dwordx4 v[16:19], v1, s[12:15], s53 offen sc1
    s_mov_b64 exec, -1
    v_mov_b32 v10, s56
    """)
    for n in range(5):
        A(f"""
        v_add_u32 v1, {64*n}, v0
        v_mul_u32_u24 v2, 3277, v1
        v_lshrrev_b32 v2, 16, v2
        v_mul_u32_u24 v3, 20, v2
        v_sub_u32 v1, v1, v3
        v_cmp_gt_u32 vcc, 18, v1
        v_add_u32 v1, s55, v1
        v_mul_u32_u24 v2, {VT_ROW}, v2
        v_lshl_add_u32 v1, v1, 4, v2
        v_cndmask_b32 v{VD+n}, v10, v1, vcc
        """)
        if n % 4: A(f"v_subrev_u32 v{VD+n}, {1024*n}, v{VD+n}")
    A(f"""
    s_mov_b32 s54, {4*VT_TT}
    s_add_u32 s52, s52, 5120
    s_lshr_b32 s58, s55, 7
    s_add_u32 s59, s55, 17
    s_lshr_b32 s59, s59, 7
    s_add_u32 s58, s58, 9
    s_add_u32 s59, s59, 9
    L_kv_go:
    s_sub_u32 s59, s59, s58
    s_lshl_b32 s59, s59, 4
    v_bfe_u32 v1, v0, 3, 1
    v_mul_u32_u24 v1, s59, v1
    v_and_b32 v2, 7, v0
    v_add_u32 v1, v1, v2
    v_mul_u32_u24 v{VP}, {FS}, v1
    s_lshl_b32 s58, s58, 4
    s_lshl_b32 s59, s51, 3
    s_add_u32 s58, s58, s59
    s_mul_i32 s58, s58, {FS}
    s_add_u32 s58, s58, {FQ_OFF}
    v_mov_b32 v3, {L_FL}
    """)
    A(f"s_cmp_lt_u32 s2, 224\ns_cbranch_scc1 L_kv_g")
    lpoll(A, 3, F_CVD, 4, 1, PT, sleep=4)
    A("s_branch L_kv_g1\nL_kv_g:")
    lpoll(A, 3, F_STD, 1, 4, PT, sleep=2)
    A("L_kv_g1:")
    stamp(A, 4)
    gpoll(A, [VP], PT, "s58")
    stamp(A, 5)
    A("s_mov_b32 s66, 0")
    A.label("L_kv_loop")
    A("s_mov_b32 m0, s52\ns_add_u32 s66, s66, 1")
    for n in range(4): A(f"buffer_load_dwordx4 v{VD+n}, s[12:15], s53 offen offset:{1024*n} sc1 lds")
    A(f"""
    s_add_u32 m0, s52, 4096
    s_add_u32 s52, s52, {GRP}
    buffer_load_dwordx4 v{VD+4}, s[12:15], s53 offen sc1 lds
    s_add_u32 s53, s53, s54
    s_cmp_lg_u32 s66, {NE}
    s_cbranch_scc1 L_kv_nb
    s_waitcnt vmcnt({5*(NE-1)})
    """)
    stamp(A, 6)
    A(f"""
    s_barrier
    L_kv_nb:
    s_cmp_lg_u32 s66, 4
    s_cbranch_scc1 L_kv_nb2
    s_waitcnt vmcnt(0)
    s_barrier
    L_kv_nb2:
    s_cmp_lt_u32 s66, 8
    s_cbranch_scc1 L_kv_loop
    s_waitcnt vmcnt(0)
    """)
    stamp(A, 7)
    A(f"s_cmp_lg_u32 s3, 8\ns_cbranch_scc1 L_kv_nf\ns_mul_i32 s58, s2, {FS}\ns_add_u32 s58, s58, {FB_OFF}")
    gflag(A, "s58", PT)
    A("L_kv_nf:\ns_barrier")

def outproj(A):
    AC = 4; WF = 20; OB = 148
    L_O = 32768
    L_WE = L_O + OF_TT
    A.label("L_op_p2")
    AF = WF; DG = WF + 16; G = WF + 24; ND = 7
    A(f"""
    s_and_b32 s48, s2, 7
    s_lshl_b32 s48, s48, 3
    s_bfe_u32 s49, s2, 0x30003
    s_add_u32 s48, s48, s49
    s_lshr_b32 s51, s2, 6
    s_mul_i32 s49, s51, 5
    s_cmp_eq_u32 s51, 3
    s_subb_u32 s49, s49, 0
    s_sub_u32 s50, s3, 8
    s_cmp_eq_u32 s3, 0
    s_cselect_b32 s50, 4, s50
    s_add_u32 s49, s49, s50
    s_lshl_b32 s52, s49, 4
    s_lshl_b32 s53, s49, 3
    s_add_u32 s53, s53, 112
    s_cmp_lt_u32 s49, 14
    s_cselect_b32 s52, s52, s53
    s_cselect_b32 s53, 15, 7
    v_and_b32 v4, s53, v0
    v_add_u32 v4, s52, v4
    s_lshl_b32 s53, s49, 3
    v_and_b32 v5, 7, v0
    v_add_u32 v5, s53, v5
    s_mov_b32 vcc_lo, 0x00ff0000
    s_mov_b32 vcc_hi, 0
    v_cndmask_b32 v4, v4, v5, vcc
    s_lshr_b32 s52, s48, 3
    s_bfe_u32 s53, s48, 0x20001
    s_lshl_b32 s53, s53, 3
    s_add_u32 s52, s52, s53
    s_add_u32 s52, s52, 224
    v_writelane_b32 v4, s52, 24
    v_mul_u32_u24 v4, {FS}, v4
    s_mov_b32 s58, {FB_OFF}
    """)
    gpoll(A, [4], 5, "s58", sleep=16)
    stamp(A, 8)
    A(f"""
    v_and_b32 v1, 3, v0
    v_bfe_u32 v2, v0, 2, 1
    v_lshl_or_b32 v1, v2, 4, v1
    v_bfe_u32 v2, v0, 3, 2
    v_lshl_or_b32 v1, v2, 2, v1
    v_lshlrev_b32 v1, 13, v1
    v_lshrrev_b32 v3, 5, v0
    v_lshl_or_b32 v1, v3, 4, v1
    v_and_b32 v2, 31, v0
    v_lshlrev_b32 v{G+1}, 3, v2
    s_lshl_b32 s52, s48, 8
    s_add_u32 s52, s52, {G_OFF}
    s_lshl_b32 s53, s49, 18
    s_lshl_b32 s54, s48, 6
    s_add_u32 s53, s53, s54
    s_add_u32 s53, s53, {AT_OFF}
    buffer_load_dword v{G}, v{G+1}, s[12:15], s52 offen sc1
    buffer_load_dwordx4 {v(AF,4)}, v1, s[12:15], s53 offen sc1
    buffer_load_dwordx4 {v(AF+4,4)}, v1, s[12:15], s53 offen offset:32 sc1
    s_add_u32 s53, s53, 4096
    buffer_load_dwordx4 {v(AF+8,4)}, v1, s[12:15], s53 offen sc1
    buffer_load_dwordx4 {v(AF+12,4)}, v1, s[12:15], s53 offen offset:32 sc1
    v_lshlrev_b32 v1, 4, v0
    s_lshl_b32 s52, s49, 10
    s_add_u32 s52, s52, {WOT_OFF + ND*18*1024}
    """)
    for ks in range(ND, 32):
        A(f"buffer_load_dwordx4 {v(WF+4*ks,4)}, v1, s[12:15], s52 offen sc1\ns_add_u32 s52, s52, {18*1024}")
    A(f"""
    v_bfe_u32 v{G+2}, v0, 1, 1
    v_lshlrev_b32 v{G+2}, 4, v{G+2}
    v_sub_u32 v{G+2}, 16, v{G+2}
    s_waitcnt vmcnt({32-ND})
    v_lshrrev_b32 v{G}, v{G+2}, v{G}
    """)
    for c in range(2):
        for r in range(4):
            m = 0x5 << (16*(r >> 1) + 4*(r & 1) + c)
            A(f"s_mov_b32 vcc_lo, {hex(m)}\ns_mov_b32 vcc_hi, {hex(m << 8)}\nv_cndmask_b32 v{DG+4*c+r}, 0, v{G}, vcc")
    A("s_nop 1")
    for c in range(4): A(f"v_mfma_f32_32x32x16_bf16 {v(AC,16)}, {v(AF+4*c,4)}, {v(DG+4*(c&1),4)}, {'0' if c == 0 else v(AC,16)}")
    A(f"s_sub_u32 s53, s52, {32*18*1024}")
    for ks in range(ND):
        A(f"buffer_load_dwordx4 {v(WF+4*ks,4)}, v1, s[12:15], s53 offen sc1\ns_add_u32 s53, s53, {18*1024}")
    srd(A, 8, P_OUT, 2048*1152)
    A(f"""
    s_cmp_eq_u32 s3, 0
    s_cbranch_scc1 L_op_p3
    s_lshl_b32 s55, s2, 4
    s_add_u32 s55, s55, s3
    s_cmp_lg_u32 s55, 11
    s_cbranch_scc1 L_op_noep
    v_mul_u32_u24 v{OB}, {FS}, v0
    v_add_u32 v{OB+1}, {64*FS}, v{OB}
    v_add_u32 v{OB+2}, {128*FS}, v{OB}
    v_add_u32 v{OB+3}, {192*FS}, v{OB}
    """)
    gpoll(A, [OB, OB+1, OB+2, OB+3], OB+4, "s58", sleep=16)
    A(f"s_mov_b32 s55, {EP_OFF}")
    gflag(A, "s55", OB)
    A("L_op_noep:\ns_barrier\ns_barrier\nL_op_p3:")
    stamp(A, 9)
    A(f"s_lshl_b32 s54, s50, 12\ns_add_u32 s54, s54, {L_WE}")
    for e in range(4):
        A(f"s_add_u32 m0, s54, {1024*e}\ns_nop 0\nbuffer_load_dwordx4 v1, s[12:15], s52 offen sc1 lds\ns_add_u32 s52, s52, {18*1024}")
    A(f"""
    s_cmp_eq_u32 s3, 0
    s_cbranch_scc1 L_op_b5
    s_lshl_b32 s55, s48, 5
    s_lshl_b32 s56, s50, 3
    s_add_u32 s55, s55, s56
    s_mul_i32 s55, s55, {FS}
    s_add_u32 s55, s55, {FO_OFF}
    v_and_b32 v{OB}, 7, v0
    v_mul_u32_u24 v{OB}, {FS}, v{OB}
    s_mul_i32 s57, s48, {OF_TT}
    s_add_u32 s57, s57, {OF_OFF}
    s_lshl_b32 s58, s50, 13
    s_lshl_b32 s59, s50, 10
    s_add_u32 s59, s59, {32*1024}
    """)
    gpoll(A, [OB], OB+1, "s55")
    stamp(A, 10)
    for g in range(2):
        A(f"s_add_u32 m0, s58, {L_O + 4096*g}\ns_add_u32 s60, s57, s58")
        if g: A(f"s_add_u32 s60, s60, 4096")
        for n in range(4): A(f"buffer_load_dwordx4 v1, s[12:15], s60 offen offset:{1024*n} sc1 lds")
    A(f"""
    s_add_u32 m0, s59, {L_O}
    s_add_u32 s60, s57, s59
    buffer_load_dwordx4 v1, s[12:15], s60 offen sc1 lds
    L_op_b5:
    v_add_u32 v{OB+16}, s54, v1
    v_add_u32 v1, {L_O}, v1
    v_lshlrev_b32 v{OB+17}, 9, v3
    v_lshl_add_u32 v{OB+17}, v2, 2, v{OB+17}
    v_add_u32 v{OB+17}, {L_O + 32*1024}, v{OB+17}
    v_mul_u32_u24 v2, 1152, v2
    v_lshl_add_u32 v2, v3, 5, v2
    s_mul_i32 s53, s48, {32*1152}
    s_lshl_b32 s55, s49, 6
    s_add_u32 s53, s53, s55
    s_waitcnt vmcnt(0)
    s_barrier
    """)
    rd = lambda ks: f"ds_read_b128 {v(OB+4*(ks%4),4)}, v1 offset:{ks*1024}"
    for ks in range(3): A(rd(ks))
    for ks in range(32):
        nout = min(2, 31-ks)
        extra = 0
        if ks >= 29: extra = 12 if ks > 28 else 0
        A(f"s_waitcnt lgkmcnt({min(15, nout + extra)})")
        A(f"v_mfma_f32_32x32x16_bf16 {v(AC,16)}, {v(WF+4*ks,4)}, {v(OB+4*(ks%4),4)}, {v(AC,16)}")
        if ks + 3 < 32: A(rd(ks+3))
        if ks == 28:
            for e in range(4):
                A(f"ds_read_b128 {v(WF+8*e,4)}, v{OB+16} offset:{1024*e}")
                if e: A(f"v_add_u32 v{OB+17}, 1024, v{OB+17}")
                A(f"ds_read2_b32 {v(WF+8*e+4,2)}, v{OB+17} offset0:0 offset1:32\nds_read2_b32 {v(WF+8*e+6,2)}, v{OB+17} offset0:64 offset1:96")
    for e in range(4):
        A(f"s_waitcnt lgkmcnt({9-3*e})")
        A(f"v_mfma_f32_32x32x16_bf16 {v(AC,16)}, {v(WF+8*e,4)}, {v(WF+8*e+4,4)}, {v(AC,16)}")
    A("s_nop 15")
    for j in range(8): A(f"v_cvt_pk_bf16_f32 v{AC+j}, v{AC+2*j}, v{AC+2*j+1}")
    for m in range(2): A(f"buffer_store_dwordx4 {v(AC+4*m,4)}, v2, s[8:11], s53 offen offset:{16*m}")

def fused(A, name):
    head(A, name)
    stamp_init(A)
    A(f"""
    v_lshrrev_b32 v1, 6, v0
    v_and_b32 v0, 63, v0
    v_readfirstlane_b32 s3, v1
    s_cmp_ge_u32 s2, 256
    s_cbranch_scc1 L_exit
    s_cmp_lt_u32 s3, 11
    s_cbranch_scc1 L_b0
    s_getpc_b64 s[50:51]
    v_lshlrev_b32 v2, 7, v0
    s_bfe_u32 s52, s2, 0x20003
    s_min_u32 s52, s52, 2
    s_lshl_b32 s52, s52, 13
    v_add_u32 v2, s52, v2
    global_load_dword v100, v2, s[50:51]
    v_mov_b32 v2, 0
    v_lshlrev_b32 v3, 2, v0
    v_add_u32 v3, {L_FL}, v3
    ds_write_b32 v3, v2
    s_waitcnt lgkmcnt(0)
    L_b0:
    s_load_dwordx16 s[16:31], s[0:1], 0
    s_load_dwordx16 s[32:47], s[0:1], 64
    s_barrier
    s_cmp_ge_u32 s2, 224
    s_cbranch_scc1 L_aux
    s_lshl_b32 s99, s2, 1
    s_mov_b32 s98, 0
    s_cmp_eq_u32 s3, 8
    s_cbranch_scc1 L_ldx
    s_cmp_eq_u32 s3, 9
    s_cbranch_scc1 L_ldw
    s_cmp_eq_u32 s3, 11
    s_cbranch_scc1 L_util
    s_cmp_lt_u32 s3, 4
    s_cbranch_scc1 L_gemm
    s_cmp_lt_u32 s3, 8
    s_cbranch_scc1 L_kgen
    s_lshr_b32 s48, s2, 3
    s_mov_b32 s49, {L_TR}
    s_and_b32 s52, s2, 1
    s_mul_i32 s52, s52, 28
    s_add_u32 s48, s48, s52
    s_mul_i32 s50, s48, 9363
    s_lshr_b32 s50, s50, 16
    s_mul_i32 s51, s50, 7
    s_sub_u32 s51, s48, s51
    s_and_b32 s52, s2, 6
    s_lshl_b32 s52, s52, 2
    s_add_u32 s50, s50, s52
    L_tru:
    s_setprio 3
    """)
    trans_u(A)
    A("s_branch L_ucopy")
    A.label("L_ldx"); gemm_loader(A, True); A("s_branch L_kv")
    A.label("L_ldw"); gemm_loader(A, False); A("s_branch L_kv")
    A.label("L_gemm")
    gemm_compute(A, "L_attn")
    A.label("L_gate")
    A("s_lshl_b32 s48, s50, 1\ns_add_u32 s48, s48, s3\ns_sub_u32 s48, s48, 8")
    gate(A)
    A("s_branch L_kv")
    A.label("L_aux")
    A(f"""
    s_sub_u32 s50, s2, 224
    s_lshl_b32 s99, s50, 2
    s_add_u32 s99, s99, 448
    s_mov_b32 s98, 0
    s_and_b32 s52, s50, 7
    s_lshr_b32 s50, s50, 3
    s_lshl_b32 s52, s52, 2
    s_add_u32 s50, s50, s52
    s_sub_u32 s51, s3, 3
    s_and_b32 s49, s3, 1
    s_mul_i32 s49, s49, {UC_CH}
    s_cmp_ge_u32 s3, 10
    s_cbranch_scc1 L_tru
    s_cmp_ge_u32 s3, 8
    s_cbranch_scc1 L_gate
    s_cmp_ge_u32 s3, 4
    s_cbranch_scc1 L_kgen
    s_mov_b32 s98, {SET1}
    s_add_u32 s99, s99, 2
    L_kgen:
    s_and_b32 s50, s3, 1
    s_add_u32 s99, s99, s50
    s_mov_b32 s48, s99
    s_bfe_u32 s63, s3, 0x10001
    s_cmp_lg_u32 s98, 0
    s_cselect_b32 s51, 32768, 0
    s_cselect_b32 s53, 16, 0
    s_add_u32 s51, s51, {L_KG}
    s_add_u32 s53, s53, {L_FL}
    s_and_b32 s52, s3, 3
    s_mul_i32 s49, s52, {KG_SZ}
    s_add_u32 s49, s49, s51
    s_xor_b32 s52, s52, 2
    s_mul_i32 s64, s52, {KG_SZ}
    s_add_u32 s64, s64, s51
    s_mul_i32 s62, s50, {KC_CH}
    s_add_u32 s62, s62, {L_KC}
    s_sub_u32 s62, s62, s98
    s_lshl_b32 s50, s50, 3
    s_lshl_b32 s51, s63, 2
    s_add_u32 s50, s50, s51
    s_add_u32 s50, s50, s53
    v_mov_b32 v3, s50
    """)
    kgen(A, conv_pre)
    A.label("L_conv")
    if FINE: STAMP_ON[0] = False
    conv(A)
    A.label("L_attn")
    attn(A)
    A.label("L_util")
    A("s_cmp_ge_u32 s2, 144\ns_cbranch_scc1 L_util2")
    trans_wo_load(A)
    A("L_util2:\ns_waitcnt lgkmcnt(0)")
    ws_setup(A); get_nonce(A)
    A("L_utb:\n" + "s_barrier\n"*4)
    A.label("L_ucopy")
    ucopy(A)
    A("s_cmp_eq_u32 s3, 10\ns_cbranch_scc1 L_kv\ns_cmp_ge_u32 s2, 144\ns_cbranch_scc1 L_kv")
    trans_wo_store(A)
    A.label("L_kv")
    kv_loader(A)
    outproj(A)
    A.label("L_end")
    endpgm(A, 0)
    A("L_exit:\ns_endpgm")
    A.raw(".p2align 4\n.type kgen_tab,@object\nkgen_tab:")
    T = kgen_table()
    for i in range(0, len(T), 8): A.raw("    .long " + ", ".join(str(x) for x in T[i:i+8]))
    A.raw(f".size kgen_tab, {4*len(T)}")
    A.raw(f".type code_pad,@object\ncode_pad:\n.fill (24832 - (code_pad - {name})) / 4, 4, 0\n.size code_pad, . - code_pad")

if __name__ == "__main__":
    import sys
    NAME = "gated_mix__ssm_conv_s4__mha_block__prompt_kernel"
    HDR = open("gated_mix__ssm_conv_s4__mha_block__prompt.s.ref").read().split("; Override launch")[0]
    A = Asm(); fused(A, NAME)
    aslist = len(sys.argv) > 2
    out = HDR + (f"; @launch kernel={NAME} grid=(256,1,1) block=(768,1,1) lds=163840\n" if aslist else "; @launch grid=(256,1,1) block=(768,1,1) lds=163840\n")
    out += '.amdgcn_target "amdgcn-amd-amdhsa--gfx950"\n.text\n' + A.text() + '.section .rodata,"a"\n' + kd(NAME, NV)
    open(sys.argv[1], "w").write(out)
```

```python
import math
from asmlib import *
from lay2 import *
LOG2E = 1.4426950408889634
QSCALE = LOG2E / math.sqrt(18.0)
FINE = int(os.environ.get("FINE", "0"))
if FINE:
    _st = stamp
    import asmlib
PFF = os.environ.get("PFF", "")
LSL = int(os.environ.get("LSL", "0"))
NOKG = os.environ.get("NOKG")
NOTR = os.environ.get("NOTR")
NONCE = 70
CAP = 71
_uid = [0]
def uid(p):
    _uid[0] += 1
    return f"L_{p}{_uid[0]}"

def ws_setup(A):
    srd(A, 12, P_WS, WS_USED)
    A(f"s_add_u32 s100, s{P_WS}, {EP_OFF}\ns_addc_u32 s101, s{P_WS+1}, 0\ns_load_dword s{NONCE}, s[100:101], 0")
def get_nonce(A):
    A(f"s_waitcnt lgkmcnt(0)\ns_mul_i32 s{NONCE}, s{NONCE}, 0x9e3779b1\ns_add_u32 s{NONCE}, s{NONCE}, 0x7f4a7c15")
def gpoll(A, voffs, vt, soff="0", sleep=2):
    l = uid("gp"); e = uid("ge")
    A(f"s_mov_b32 s{CAP}, 0x40000\n{l}:")
    for i, vo in enumerate(voffs): A(f"buffer_load_dword v{vt+i}, v{vo}, s[12:15], {soff} offen sc1")
    A(f"s_sub_u32 s{CAP}, s{CAP}, 1\ns_cbranch_scc1 {e}\ns_waitcnt vmcnt(0)")
    for i in range(len(voffs)): A(f"v_xor_b32 v{vt+i}, s{NONCE}, v{vt+i}")
    for i in range(1, len(voffs)): A(f"v_or_b32 v{vt}, v{vt}, v{vt+i}")
    A(f"v_cmp_ne_u32 vcc, 0, v{vt}\ns_cbranch_vccz {e}\n{('s_sleep %d' % sleep) if sleep else ''}\ns_branch {l}\n{e}:")
def gflag(A, soff, vt):
    A(f"""
    v_mov_b32 v{vt}, s{NONCE}
    v_mov_b32 v{vt+1}, 0
    s_mov_b64 exec, 1
    buffer_store_dword v{vt}, v{vt+1}, s[12:15], {soff} offen sc1
    s_mov_b64 exec, -1
    """)
def lpoll(A, va, off, n, val, vt, st=69, sleep=1):
    l = uid("lp"); e = uid("le")
    if sleep and os.environ.get("BIGSL"): sleep = 40
    op = {1: "ds_read_b32", 2: "ds_read_b64", 4: "ds_read_b128"}[n]
    A(f"s_mov_b32 s{CAP}, 0x100000\n{l}:\n{op} {v(vt,n)}, v{va} offset:{off}\ns_sub_u32 s{CAP}, s{CAP}, 1\ns_cbranch_scc1 {e}\ns_waitcnt lgkmcnt(0)")
    if n == 2: A(f"v_min_u32 v{vt}, v{vt}, v{vt+1}\ns_nop 0")
    if n == 4: A(f"v_min3_u32 v{vt}, v{vt}, v{vt+1}, v{vt+2}\nv_min_u32 v{vt}, v{vt}, v{vt+3}\ns_nop 0")
    A(f"v_readfirstlane_b32 s{st}, v{vt}\ns_cmp_ge_u32 s{st}, {val}\ns_cbranch_scc1 {e}\n{('s_sleep %d' % sleep) if sleep else ''}\ns_branch {l}\n{e}:")
def lset(A, va, off, val, vt):
    A(f"v_mov_b32 v{vt}, {val}\ns_mov_b64 exec, 1\nds_write_b32 v{va}, v{vt} offset:{off}\ns_mov_b64 exec, -1")

def acc_t(A, slot):
    if FINE and DIAG:
        A(f"s_memtime s[58:59]\ns_waitcnt lgkmcnt(0)\ns_sub_u32 s61, s58, s60\ns_mov_b32 s60, s58")
        if slot is not None: A(f"s_add_u32 s{72+2*slot}, s{72+2*slot}, s61")
def gb(A, n=1):
    sk = uid("gb")
    A(f"s_cmp_ge_u32 s2, 224\ns_cbranch_scc1 {sk}\n" + "s_barrier\n"*n + f"{sk}:")
def rgcg(A):
    A(f"""
    s_and_b32 s53, s2, 7
    s_lshr_b32 s54, s2, 3
    s_lshr_b32 s55, s53, 1
    s_lshl_b32 s55, s55, 2
    s_and_b32 s56, s54, 3
    s_add_u32 s48, s55, s56
    s_and_b32 s53, s53, 1
    s_mul_i32 s53, s53, 7
    s_lshr_b32 s54, s54, 2
    s_add_u32 s49, s53, s54
    """)

ROT = int(os.environ.get("ROT", "2"))
def rot_code(cs):
    if ROT == 0: return "s_mov_b32 s50, 0"
    if ROT == 1:
        return f"""s_bfe_u32 s50, s2, 0x20003
    s_lshr_b32 s51, s2, 5
    s_add_u32 s50, s50, s51
    s_lshl_b32 s50, s50, 1
    s_cmp_ge_u32 s50, 9
    s_cselect_b32 s51, 9, 0
    s_sub_u32 s50, s50, s51
    s_cmp_ge_u32 s50, 9
    s_cselect_b32 s51, 9, 0
    s_sub_u32 s50, s50, s51
    s_mul_i32 s50, s50, {cs}"""
    if ROT == 2:
        return f"""s_and_b32 s50, s2, 7
    s_lshr_b32 s51, s50, 1
    s_lshl_b32 s51, s51, 1
    s_and_b32 s50, s50, 1
    s_mul_i32 s50, s50, 4
    s_add_u32 s50, s50, s51
    s_cmp_ge_u32 s50, 9
    s_cselect_b32 s51, 9, 0
    s_sub_u32 s50, s50, s51
    s_mul_i32 s50, s50, {cs}"""
    if ROT == 3:
        return f"""s_bfe_u32 s50, s2, 0x10003
    s_bfe_u32 s51, s2, 0x10005
    s_xor_b32 s50, s50, s51
    s_mul_i32 s50, s50, {4*cs}"""
def gemm_loader(A, isx):
    VD = 4; VF = 8; VT = 10
    rgcg(A)
    if isx:
        A(f"""
        s_lshl_b32 s53, s48, 7
        v_lshrrev_b32 v1, 3, v0
        v_add_u32 v1, s53, v1
        v_mul_u32_u24 v1, 1152, v1
        v_lshrrev_b32 v2, 4, v0
        v_and_b32 v3, 7, v0
        v_xor_b32 v3, v3, v2
        v_lshl_add_u32 v{VD}, v3, 4, v1
        v_xor_b32 v3, 4, v3
        v_lshl_add_u32 v{VD+1}, v3, 4, v1
        v_add_u32 v{VD+1}, 8192, v{VD+1}
        v_add_u32 v{VD+2}, 16384, v{VD}
        v_add_u32 v{VD+3}, 16384, v{VD+1}
        """)
    else:
        A(f"""
        v_lshrrev_b32 v2, 4, v0
        v_mul_u32_u24 v1, 3456, v2
        v_and_b32 v3, 15, v0
        v_lshlrev_b32 v2, 2, v2
        v_xor_b32 v3, v3, v2
        v_lshl_add_u32 v1, v3, 4, v1
        s_lshl_b32 s53, s49, 8
        v_add_u32 v{VD}, s53, v1
        v_add_u32 v{VD+1}, 12800, v{VD}
        v_add_u32 v{VD+2}, 25600, v{VD}
        v_add_u32 v{VD+3}, 38400, v{VD}
        """)
    cs, gs = (128, 32*1152) if isx else (64*3456, 16*3456)
    lp = uid("ld")
    A(f"""
    {rot_code(cs)}
    s_mov_b32 s51, {0 if isx else 16384}
    s_mov_b32 s52, 0x18000
    s_mov_b32 s53, 0
    s_waitcnt lgkmcnt(0)
    """)
    if isx: srd(A, 4, P_U, 2048*1152)
    else: srd(A, 4, P_WQKV, 576*3456)
    stamp(A, 1)
    acc_t(A, None)
    A(f"{lp}:\ns_mov_b32 m0, s51\ns_add_u32 s54, s50, {gs}")
    for g in range(4):
        so = (50, 54, 55, 56)[g]
        for n in range(4): A(f"buffer_load_dwordx4 v{VD+n}, s[4:7], s{so} offen offset:{1024*n} lds")
        if g < 3: A(f"s_add_u32 m0, s51, {4096*(g+1)}")
        if g < 2: A(f"s_add_u32 s{(55, 56)[g]}, s50, {gs*(g+2)}")
        elif g == 2: A(f"s_add_u32 s50, s50, {cs}" + (f"\ns_cmp_eq_u32 s50, {9*cs}\ns_cselect_b32 s50, 0, s50" if ROT else ""))
    acc_t(A, 4)
    A(f"""
    s_xor_b32 s51, s51, s52
    s_xor_b32 s52, s52, 0x10000
    s_add_u32 s53, s53, 1
    s_cmp_lt_u32 s53, 2
    s_cbranch_scc1 {lp}
    s_waitcnt vmcnt(16)
    """)
    acc_t(A, 5)
    A("s_barrier")
    acc_t(A, 6)
    A(f"s_cmp_lt_u32 s53, 9\ns_cbranch_scc1 {lp}")
    ws_setup(A)
    A("s_waitcnt vmcnt(0)\ns_barrier")
    get_nonce(A)
    stamp(A, 3)

def gemm_compute(A, done_label):
    AX, AW = 4, 8
    VFL, VDN, PT = 10, 11, 12
    FR = 16
    ACC = 80
    rgcg(A)
    A(f"""
    s_and_b32 s53, s3, 1
    s_lshr_b32 s54, s3, 1
    s_lshl_b32 s55, s53, 13
    v_and_b32 v1, 31, v0
    v_lshlrev_b32 v1, 7, v1
    v_add_u32 v1, s55, v1
    v_lshrrev_b32 v2, 5, v0
    v_bfe_u32 v3, v0, 1, 3
    v_xor_b32 v3, v3, v2
    v_lshl_add_u32 v{AX}, v3, 4, v1
    v_xor_b32 v{AX+1}, 32, v{AX}
    v_xor_b32 v{AX+2}, 0x40040, v{AX}
    v_xor_b32 v{AX+3}, 0x40060, v{AX}
    v_bfe_u32 v1, v0, 2, 2
    v_lshl_add_u32 v3, v2, 3, v1
    v_lshlrev_b32 v3, 8, v3
    s_lshl_b32 s55, s54, 1
    v_xor_b32 v1, s55, v1
    v_lshl_add_u32 v3, v1, 6, v3
    v_bfe_u32 v1, v0, 4, 1
    v_lshl_add_u32 v3, v1, 5, v3
    v_and_b32 v1, 3, v0
    v_lshl_add_u32 v3, v1, 3, v3
    v_add_u32 v{AW}, 0x44000, v3
    v_xor_b32 v{AW+1}, 64, v{AW}
    v_mov_b32 v{VFL}, {L_FL}
    s_lshl_b32 s56, s48, 1
    s_add_u32 s56, s56, s53
    s_lshl_b32 s57, s49, 1
    s_add_u32 s57, s57, s54
    s_waitcnt lgkmcnt(0)
    """)
    ws_setup(A); get_nonce(A)
    for i in range(32): A(f"v_mov_b32 v{FR+i}, 0")
    for i in range(64): A(f"v_mov_b32 v{ACC+i}, 0")
    A("s_mov_b32 s62, 0\ns_mov_b32 s63, 0x40000\ns_mov_b32 s64, 0x18000")
    def reads(ks, part):
        b = FR + 16*ks
        if part == 0:
            for t in range(2): A(f"ds_read_b128 {v(b+4*t,4)}, v{AX+ks} offset:{4096*t}")
        else:
            f = part - 1
            for t in range(2): A(f"ds_read_b64_tr_b16 {v(b+8+4*f+2*t,2)}, v{AW+f} offset:{ks*4096+t*1024}")
    def mf(ks, i, vtype):
        b = FR + 16*ks
        t, f = i >> 1, i & 1
        d = v(ACC+16*i, 16); x = v(b+4*t, 4); w = v(b+8+4*f, 4)
        if "m" in os.environ.get("GX", ""): A("s_nop 0"); return
        A(f"v_mfma_f32_32x32x16_bf16 {d}, {x if vtype else w}, {w if vtype else x}, {d}")
    def main(vtype):
        lp = uid("gm"); nb = uid("gnb")
        A.raw(".p2align 6")
        A.label(lp)
        for ks in range(4):
            A(f"s_waitcnt lgkmcnt(6)")
            mf(ks, 0, vtype)
            if ks == 2:
                A(f"s_cbranch_scc1 {nb}")
                if FINE and DIAG: A("s_memtime s[58:59]")
                A("s_barrier")
                if FINE and DIAG: A("s_memtime s[60:61]\ns_waitcnt lgkmcnt(0)\ns_sub_u32 s60, s60, s58\ns_add_u32 s86, s86, s60")
                if DIAG and os.environ.get("CS"):
                    sk = uid("sk"); A(f"s_cmp_lg_u32 s62, 0\ns_cbranch_scc1 {sk}"); stamp(A, 1); A(f"{sk}:")
                A(f"{nb}:")
            kn = (ks+2) & 3
            reads(kn, 0)
            mf(ks, 1, vtype)
            reads(kn, 1)
            if ks == 3: A("s_add_u32 s62, s62, 1")
            mf(ks, 2, vtype)
            reads(kn, 2)
            if ks == 1: A("s_cmp_eq_u32 s62, 9")
            if ks == 3: A(f"v_xor_b32 v{AX+kn}, s64, v{AX+kn}\ns_mov_b32 s63, s64\ns_xor_b32 s64, s64, 0x10000\ns_cmp_lt_u32 s62, 10")
            mf(ks, 3, vtype)
            if ks < 3: A(f"v_xor_b32 v{AX+kn}, s{63 if ks < 2 else 64}, v{AX+kn}")
            if ks == 1: A(f"v_xor_b32 v{AW}, s63, v{AW}\nv_xor_b32 v{AW+1}, s63, v{AW+1}")
        A(f"s_cbranch_scc1 {lp}")
        A("s_setprio 2")
        stamp(A, 4)
    A(f"s_cmp_ge_u32 s49, 9\ns_cbranch_scc1 L_g_vtype")
    main(False)
    A(f"""
    s_mul_i32 s58, s56, {2*QKQ_TT}
    s_lshl_b32 s59, s57, 12
    s_add_u32 s58, s58, s59
    s_add_u32 s59, s58, {QKQ_TT}
    s_mov_b32 s60, {f32(QSCALE)}
    s_cmp_lt_u32 s57, 9
    s_nop 0
    v_and_b32 v1, 15, v0
    v_lshlrev_b32 v1, 4, v1
    v_bfe_u32 v2, v0, 4, 1
    v_lshl_or_b32 v1, v2, 9, v1
    v_lshrrev_b32 v2, 5, v0
    v_lshl_or_b32 v1, v2, 8, v1
    """)
    for i in range(4):
        t, f = i >> 1, i & 1
        a = ACC + 16*i
        sk = uid("ns")
        A(f"s_cbranch_scc0 {sk}")
        for j in range(16): A(f"v_mul_f32 v{a+j}, s60, v{a+j}")
        A(f"{sk}:")
        for j in range(8): A(f"v_cvt_pk_bf16_f32 v{a+j}, v{a+2*j}, v{a+2*j+1}")
        A(f"v_permlane16_swap_b32 v{a}, v{a+2}\nv_permlane16_swap_b32 v{a+1}, v{a+3}")
        A(f"v_permlane16_swap_b32 v{a+4}, v{a+6}\nv_permlane16_swap_b32 v{a+5}, v{a+7}")
        for g in range(2):
            A(f"buffer_store_dwordx4 {v(a+4*g,4)}, v1, s[12:15], s{58+t} offen offset:{f*2048+g*1024} sc1")
    A(f"s_branch L_g_pub")
    A.label("L_g_vtype")
    main(True)
    A(f"""
    s_mul_i32 s58, s56, {2*VT_TT}
    s_lshl_b32 s59, s57, 10
    s_add_u32 s58, s58, s59
    s_add_u32 s58, s58, {VT_OFF - 18*1024}
    s_add_u32 s59, s58, {2*VT_ROW}
    s_add_u32 s60, s58, {VT_TT}
    s_add_u32 s61, s59, {VT_TT}
    v_lshrrev_b32 v2, 5, v0
    v_mul_u32_u24 v2, {VT_ROW}, v2
    v_and_b32 v1, 31, v0
    v_lshl_add_u32 v1, v1, 4, v2
    s_cmp_eq_u32 s57, 27
    s_cbranch_scc1 L_g_pub
    """)
    for i in range(4):
        t, f = i >> 1, i & 1
        a = ACC + 16*i
        if i == 1: A("s_nop 1")
        for j in range(8): A(f"v_cvt_pk_bf16_f32 v{a+j}, v{a+2*j}, v{a+2*j+1}")
        for m in range(2):
            A(f"buffer_store_dwordx4 {v(a+4*m,4)}, v1, s[12:15], s{58+2*t+m} offen offset:{f*512} sc1")
    A.label("L_g_pub")
    if not FINE: stamp(A, 5)
    A("s_waitcnt vmcnt(0)")
    if not FINE: stamp(A, 6)
    A(f"""
    v_mov_b32 v{PT}, 1
    s_mov_b64 exec, 1
    ds_add_rtn_u32 v{PT}, v{VFL}, v{PT} offset:{F_STD}
    s_mov_b64 exec, -1
    s_lshl_b32 s58, s49, 4
    s_add_u32 s58, s58, s48
    s_mul_i32 s58, s58, {FS}
    s_add_u32 s58, s58, {FQ_OFF}
    s_waitcnt lgkmcnt(0)
    v_readfirstlane_b32 s69, v{PT}
    s_cmp_lg_u32 s69, 3
    s_cbranch_scc1 {done_label}
    """)
    gflag(A, "s58", PT)
    A(f"s_branch {done_label}")

NROW = [[0,1,2,3,4,5,6,7, 14,15,16, 20,21, 22,23, 0], [9,9,10,11,11,11,12,13, 17,18,19, 24,25, 26,27, 0]]
def kg_rowaddr(side, n):
    a = side*128 + n*KG_ROW
    if side == 1 and n >= 30: a -= 2*KG_ROW + 128
    return a
def kgen_table():
    T = []
    for lane in range(64):
        i = lane & 31; hh = lane >> 5
        g, h2, ii = i >> 3, (i >> 2) & 1, i & 3
        n = NROW[h2][4*g + ii]
        ra = kg_rowaddr(0, n) + 16*hh
        b = 8*(i & 3) + (i >> 2)
        rb = kg_rowaddr(1, b) + 16*hh
        if b > 0: pb, ph = b-1, hh
        else: pb, ph = 31, 0
        pl = 32*ph + 4*(pb & 7) + (pb >> 3)
        so = (7 - (b & 7))*KC_ROW + (16 + (b >> 3))*32
        T += [ra, rb, pl*4, so]
    return T

KPTS = (0, 10, 21, 31)
KFIRST = int(os.environ.get('KFIRST', '31'))
KB7 = int(os.environ.get('KB7', '0'))
def kgen(A, pre):
    PR = 4
    VRL = 11; T = 12
    TB = 16; vDT, vDS = 20, 21
    C1R, C1I, C2R, C2I = 22, 23, 24, 25
    M = 40
    X = 50; U = 52
    AC = 46
    R = 62
    ptrs = [P_ARE, P_AIM, P_BRE, P_BIM, P_CRE, P_CIM]
    A(f"""
    s_getpc_b64 s[50:51]
    L_kg_pc:
    s_add_u32 s50, s50, kgen_tab-L_kg_pc
    s_addc_u32 s51, s51, 0
    v_and_b32 v1, 31, v0
    s_lshl_b32 s52, s48, 8
    s_lshl_b32 s53, s63, 7
    s_add_u32 s52, s52, s53
    v_lshl_add_u32 v2, v1, 2, s52
    s_lshl_b32 s52, s48, 1
    v_mov_b32 v10, s52
    v_lshlrev_b32 v{T}, 4, v0
    s_waitcnt lgkmcnt(0)
    global_load_ushort v{vDT}, v10, {s(P_LDT,2)}
    """)
    for i in range(6): A(f"global_load_dword v{PR+i}, v2, {s(ptrs[i],2)}")
    A(f"global_load_ushort v{vDS}, v10, {s(P_DSK,2)}\nglobal_load_dwordx4 {v(TB,4)}, v{T}, s[50:51]")
    ws_setup(A)
    A(f"""
    v_mov_b32 v{C1R}, {f32(LOG2E)}
    v_mov_b32 v{C1I}, {f32(1/(2*math.pi))}
    v_mov_b32 v{C2R}, {f32(248*LOG2E)}
    v_mov_b32 v{C2I}, {f32(248/(2*math.pi))}
    s_mov_b32 exec_lo, 0
    v_mov_b32 v{C1R}, {f32(8*LOG2E)}
    v_mov_b32 v{C1I}, {f32(-8/(2*math.pi))}
    v_mov_b32 v{C2R}, v{C1R}
    v_mov_b32 v{C2I}, v{C1I}
    s_mov_b32 exec_lo, -1
    s_sub_u32 m0, s49, {KG_IB}
    v_lshrrev_b32 v27, 5, v0
    v_mul_u32_u24 v58, {KC_ROW}, v27
    v_lshl_add_u32 v1, v1, 4, v58
    v_add_u32 v1, s67, v1
    v_lshl_add_u32 v2, v0, 4, s49
    v_lshl_add_u32 v11, v0, 4, s64
    v_xor_b32 v26, 4, v3
    """)
    pre(A)
    get_nonce(A)
    A(f"""
    s_mov_b32 vcc_lo, 0xf0f0f0f0
    s_mov_b32 vcc_hi, 0xf0f0f0f0
    s_waitcnt vmcnt(2)
    v_lshlrev_b32 v{vDT}, 16, v{vDT}
    v_mul_f32 v{vDT}, {f32(LOG2E)}, v{vDT}
    v_exp_f32 v{vDT}, v{vDT}
    s_nop 0
    v_cvt_pk_bf16_f32 v{vDT}, v{vDT}, v{vDT}
    v_and_b32 v{vDT}, 0xffff0000, v{vDT}
    """)
    stamp(A, 1)
    Mx = lambda j: M + 2*j
    mult = [0]*8 + [4] + [1]*4 + [4] + [2]*2 + [4] + [2]*2 + [4, 3, 4, 3, 4, 3, 4, 3] + [3]*4
    KP = [int(x) for x in os.environ.get("KP", "21,30,33,41,50,59").split(",")]
    for tr in range(2):
        for i in range(6): A(f"v_and_b32 v{U+i}, 0xffff0000, v{PR+i}" if tr else f"v_lshlrev_b32 v{U+i}, 16, v{PR+i}")
        A(f"""
        v_mul_f32 v{U}, v{vDT}, v{U}
        v_mul_f32 v{U+1}, v{vDT}, v{U+1}
        v_mul_f32 v{T}, v{C1R}, v{U}
        v_mul_f32 v{T+1}, v{C1I}, v{U+1}
        v_mul_f32 v{T+2}, v{C2R}, v{U}
        v_mul_f32 v{T+3}, v{C2I}, v{U+1}
        v_fract_f32 v{T+1}, v{T+1}
        v_fract_f32 v{T+3}, v{T+3}
        v_exp_f32 v{T}, v{T}
        v_cos_f32 v{Mx(0)}, v{T+1}
        v_sin_f32 v{Mx(0)+1}, v{T+1}
        v_exp_f32 v{T+2}, v{T+2}
        v_cos_f32 v{Mx(4)}, v{T+3}
        v_sin_f32 v{Mx(4)+1}, v{T+3}
        v_mul_f32 v{U+2}, v{vDT}, v{U+2}
        v_mul_f32 v{U+3}, v{vDT}, v{U+3}
        v_mul_f32 v{X}, v{U+3}, v{U+5}
        v_mul_f32 v{X+1}, v{U+3}, v{U+4}
        v_fmac_f32 v{X+1}, v{U+2}, v{U+5}
        v_fma_f32 v{X}, v{U+2}, v{U+4}, -v{X}
        v_mul_f32 v{Mx(0)}, v{T}, v{Mx(0)}
        v_mul_f32 v{Mx(0)+1}, v{T}, v{Mx(0)+1}
        v_mul_f32 v{Mx(4)}, v{T+2}, v{Mx(4)}
        v_mul_f32 v{Mx(4)+1}, v{T+2}, v{Mx(4)+1}
        """)
        for j in (1, 2, 3):
            d, x = Mx(j), Mx(j-1)
            A(f"v_mul_f32 v{d}, v{x+1}, v{x+1}\nv_add_f32 v{d+1}, v{x}, v{x}\nv_mul_f32 v{d+1}, v{d+1}, v{x+1}\nv_fma_f32 v{d}, v{x}, v{x}, -v{d}")
        A("s_mov_b32 exec_lo, 0")
        for j in (1, 2, 3): A(f"v_mov_b32 v{Mx(j)}, v{Mx(0)}\nv_mov_b32 v{Mx(j)+1}, v{Mx(0)+1}")
        A(f"v_mov_b32 v{X}, 1.0\nv_mov_b32 v{X+1}, 0\ns_mov_b32 exec_lo, -1")
        for n in range(32):
            A(f"v_cvt_pk_bf16_f32 v{R+32*tr+n}, v{X}, v{X+1}")
            if n < 31:
                m = Mx(mult[n])
                A(f"v_mul_f32 v{T}, v{X+1}, v{m+1}\nv_mul_f32 v{X+1}, v{X+1}, v{m}\nv_fmac_f32 v{X+1}, v{X}, v{m+1}\nv_fma_f32 v{X}, v{X}, v{m}, -v{T}")
            if 32*tr + n in KP: gb(A)
    A("s_waitcnt vmcnt(0)")
    stamp(A, 2)
    O = AC; PV = 12; P3 = 13; P4 = 14; D = R; Z = 4
    A(f"""
    v_add_u32 v{TB}, s49, v{TB}
    v_add_u32 v{TB+1}, s49, v{TB+1}
    v_lshlrev_b32 v{vDS}, 16, v{vDS}
    v_mov_b32 v{Z}, 0
    v_mov_b32 v{Z+1}, 0
    v_mov_b32 v{Z+2}, 0
    v_mov_b32 v{Z+3}, 0
    v_add_u32 v{TB+3}, s67, v{TB+3}
    v_lshl_add_u32 v9, v27, 7, v{TB+3}
    v_lshl_add_u32 v10, v27, 8, v{TB+3}
    """)
    gb(A, 9 - len(KP))
    if os.environ.get("KPRIO"): A("s_setprio 3")
    stamp(A, 3)
    for p in range(2):
        r = R + 32*p
        for n in range(32):
            if n == 28: A("s_mov_b32 exec_lo, 0")
            A(f"ds_write_addtid_b32 v{r+n} offset:{KG_IB + kg_rowaddr(1, n) - 128}")
            if p == 1 and n in (8, 12, 16, 20):
                q = (n-8)//4
                if q == 0:
                    A("s_waitcnt lgkmcnt(9)")
                    if FINE: stamp(A, 5)
                A(f"v_mfma_f32_32x32x16_bf16 {v(AC,16)}, {v(R+8*q,4)}, {v(R+8*q+4,4)}, {'0' if q == 0 else v(AC,16)}")
        A("s_mov_b32 exec_lo, -1")
        if FINE: stamp(A, 1 if p == 0 else 2)
        if os.environ.get("KPRIO") == str(p+1): A("s_setprio 0")
        for q in range(4): A(f"ds_read_b128 {v(r+8*q,4)}, v{TB} offset:{32*q}\nds_read_b128 {v(r+8*q+4,4)}, v{TB+1} offset:{32*q}")
    if FINE: stamp(A, 4)
    for q in range(4):
        A(f"s_waitcnt lgkmcnt({6-2*q})")
        A(f"v_mfma_f32_32x32x16_bf16 {v(AC,16)}, {v(R+32+8*q,4)}, {v(R+32+8*q+4,4)}, {v(AC,16)}")
    if FINE: stamp(A, 6)
    def pack(o, pv, areg, off, d):
        c0 = [o[6], o[5], o[4], o[3], o[2], o[1], o[0], pv]
        c1 = [o[7], o[6], o[5], o[4], o[3], o[2], o[1], o[0]]
        for j in range(4): A(f"v_cvt_pk_bf16_f32 v{d+4+j}, v{c1[2*j]}, v{c1[2*j+1]}")
        for j in range(4):
            if pv == PV and j == 3: A(f"s_waitcnt lgkmcnt(0)\ns_mov_b64 exec, 1\nv_mov_b32 v{PV}, 0\ns_mov_b64 exec, -1")
            A(f"v_cvt_pk_bf16_f32 v{d+j}, v{c0[2*j]}, v{c0[2*j+1]}")
        A(f"ds_write_b128 v{areg}, {v(d,4)} offset:{off}\nds_write_b128 v{areg}, {v(d+4,4)} offset:{off+16}")
    def xchg(send, keep):
        for i in range(2): A(f"ds_write_b128 v2, {v(AC+send+4*i,4)} offset:{1024*i}")
        lset(A, 3, F_KP, 1, 12)
        lpoll(A, 26, F_KP, 1, 1, 12, sleep=0)
        for i in range(2): A(f"ds_read_b128 {v(R+32+4*i,4)}, v11 offset:{1024*i}")
        A("s_waitcnt lgkmcnt(0)")
        for i in (7, 0, 1, 2, 3, 4, 5, 6): A(f"v_add_f32 v{AC+keep+i}, v{AC+keep+i}, v{R+32+i}")
        if FINE: stamp(A, 7)
    A("s_cmp_eq_u32 s63, 0\ns_cbranch_scc1 L_kg_h0\ns_nop 9")
    xchg(0, 8)
    A(f"v_cndmask_b32 v{P3}, v{O+11}, v{O+12}, vcc\nv_cndmask_b32 v{P4}, v{O+13}, v{O+14}, vcc")
    pack([O+8]*3 + [O+9]*3 + [O+10]*2, O+8, 9, 8*32, D)
    pack([O+11]*4 + [P3] + [O+12]*3, O+11, 10, 16*32, D+8)
    pack([O+13]*4 + [P4] + [O+14]*3, O+13, 10, 20*32, D+16)
    A("s_branch L_kg_end\nL_kg_h0:\ns_nop 9")
    xchg(8, 0)
    A(f"ds_bpermute_b32 v{PV}, v{TB+2}, v{O+7}\ns_mov_b64 exec, 1\nv_add_f32 v{O}, v{O}, v{vDS}\ns_mov_b64 exec, -1")
    pack([O+i for i in range(8)], PV, 9, 0, D)
    for i in range(4): A(f"ds_write_b128 v1, {v(Z,4)} offset:{2*KC_ROW*i}")
    A("L_kg_end:")
    if FINE: stamp(A, 8)
    lset(A, 3, F_KRDY, 1, 15)

TRS = os.environ.get("TRS", "b")
def trans_u(A):
    A(f"""
    s_mul_i32 s52, s50, {64*1152}
    s_lshl_b32 s53, s51, 7
    s_add_u32 s53, s52, s53
    v_lshrrev_b32 v1, 3, v0
    v_mul_u32_u24 v2, 1152, v1
    v_bfe_u32 v3, v0, 4, 1
    v_lshlrev_b32 v3, 2, v3
    v_and_b32 v4, 7, v0
    v_xor_b32 v3, v3, v4
    v_lshl_add_u32 v2, v3, 4, v2
    s_mov_b32 m0, s49
    s_waitcnt lgkmcnt(0)
    """)
    srd(A, 4, P_U, 2048*1152)
    for n in range(8):
        if n: A("s_add_u32 m0, m0, 1024\ns_add_u32 s53, s53, 9216")
        A(f"buffer_load_dwordx4 v2, s[4:7], s53 offen lds")
    ws_setup(A)
    A(f"""
    v_bfe_u32 v3, v0, 2, 2
    v_and_b32 v5, 1, v0
    v_lshl_add_u32 v3, v5, 5, v3
    v_lshlrev_b32 v3, 7, v3
    v_and_b32 v5, 0x30, v0
    v_add_u32 v3, v3, v5
    v_bfe_u32 v5, v0, 1, 1
    v_lshl_add_u32 v3, v5, 3, v3
    v_bfe_u32 v5, v0, 3, 1
    v_lshl_add_u32 v3, v5, 6, v3
    v_add_u32 v5, s49, v3
    v_xor_b32 v6, 64, v5
    v_mul_u32_u24 v2, {4*UT_ROW}, v1
    v_lshl_add_u32 v2, v4, 4, v2
    s_mul_i32 s52, s51, {64*UT_ROW}
    s_add_u32 s52, s52, {UT_OFF}
    s_lshl_b32 s54, s51, 5
    s_add_u32 s54, s54, s50
    s_mul_i32 s54, s54, {FS}
    s_add_u32 s54, s54, {FU_OFF}
    s_lshl_b32 s53, s50, 7
    s_add_u32 s55, s52, s53
    s_mov_b32 s56, 0
    """)
    B0, B1 = 8, 40
    get_nonce(A)
    A("L_tu_loop:")
    for G in range(8):
        for t in range(2): A(f"ds_read_b64_tr_b16 {v(B0+4*G+2*t,2)}, v{5+(G>>2)} offset:{(8*(G&3)+4*t)*128}")
    def stage(src, dst, bit, qp, m0):
        for sel in range(2):
            m = m0 if sel == 0 else (~m0 & 0xffffffff)
            A(f"s_mov_b32 vcc_lo, {hex(m)}\ns_mov_b32 vcc_hi, {hex(m)}")
            for G in range(8):
                if ((G >> bit) & 1) != sel: continue
                for k in range(4):
                    A(f"v_cndmask_b32_dpp v{dst+4*G+k}, v{src+4*(G^(1<<bit))+k}, v{src+4*G+k}, vcc quad_perm:{qp} row_mask:0xf bank_mask:0xf")
    A("s_waitcnt lgkmcnt(0)")
    stage(B0, B1, 0, "[1,0,3,2]", 0x55555555)
    stage(B1, B0, 1, "[2,3,0,1]", 0x33333333)
    A("s_cmp_lg_u32 s56, 0\ns_cbranch_scc1 L_tu_st\ns_mov_b32 s56, 1")
    if TRS == "b": gb(A)
    A("s_waitcnt vmcnt(0)")
    stamp(A, 1)
    A("s_branch L_tu_loop\nL_tu_st:")
    gb(A)
    for G in range(8):
        if TRS == "c" and G == 4: gb(A)
        A(f"s_add_u32 s53, s55, {(32*(G>>2)+(G&3))*UT_ROW}")
        A(f"buffer_store_dwordx4 {v(B0+4*G,4)}, v2, s[12:15], s53 offen sc1")
    gb(A, 3 if TRS == "a" else 2)
    A("s_waitcnt vmcnt(0)")
    gflag(A, "s54", 72)
    stamp(A, 2)

def trans_wo_load(A):
    A(f"""
    s_and_b32 s50, s2, 7
    s_lshr_b32 s51, s2, 3
    s_mul_i32 s52, s50, {72*1152}
    s_lshl_b32 s53, s51, 6
    s_add_u32 s52, s52, s53
    v_lshrrev_b32 v1, 2, v0
    v_mul_u32_u24 v2, 1152, v1
    v_and_b32 v4, 3, v0
    v_lshl_add_u32 v2, v4, 4, v2
    s_waitcnt lgkmcnt(0)
    """)
    srd(A, 4, P_WO, 576*1152)
    for n in range(5):
        A(f"s_mov_b32 m0, {L_WO+n*1024}\ns_add_u32 s53, s52, {n*16*1152}")
        A(f"buffer_load_dwordx4 v2, s[4:7], s53 offen lds")

def trans_wo_store(A):
    A(f"""
    s_and_b32 s50, s2, 7
    s_lshr_b32 s51, s2, 3
    v_and_b32 v5, 1, v0
    v_lshlrev_b32 v5, 5, v5
    v_bfe_u32 v6, v0, 1, 1
    v_lshl_add_u32 v5, v6, 3, v5
    v_bfe_u32 v6, v0, 4, 1
    v_lshl_add_u32 v5, v6, 4, v5
    v_add_u32 v5, {L_WO}, v5
    v_bfe_u32 v3, v0, 2, 2
    v_lshrrev_b32 v6, 5, v0
    v_lshl_add_u32 v6, v6, 2, v3
    v_lshl_add_u32 v6, v6, 6, v5
    v_bfe_u32 v7, v0, 3, 1
    v_mul_u32_u24 v7, {18*64}, v7
    v_bfe_u32 v3, v0, 2, 1
    v_lshl_add_u32 v7, v3, 6, v7
    v_add_u32 v7, v7, v5
    """)
    for h in range(4):
        for t in range(2): A(f"ds_read_b64_tr_b16 {v(28+4*h+2*t,2)}, v6 offset:{(18*h+8*t)*64}")
    for t in range(2): A(f"ds_read_b64_tr_b16 {v(44+2*t,2)}, v7 offset:{(36*t+16)*64}")
    A(f"""
    v_lshlrev_b32 v2, 4, v0
    s_mul_i32 s52, s50, {4*18*1024}
    s_lshl_b32 s53, s51, 10
    s_add_u32 s53, s53, {WOT_OFF}
    s_add_u32 s52, s52, s53
    s_lshr_b32 s54, s50, 1
    s_add_u32 s54, s54, 32
    s_mul_i32 s54, s54, {18*1024}
    s_add_u32 s54, s54, s53
    s_and_b32 s55, s50, 1
    s_lshl_b32 s55, s55, 9
    s_add_u32 s54, s54, s55
    s_waitcnt lgkmcnt(0)
    """)
    for h in range(4):
        A(f"buffer_store_dwordx4 {v(28+4*h,4)}, v2, s[12:15], s52 offen sc1")
        if h < 3: A(f"s_add_u32 s52, s52, {18*1024}")
    A(f"""
    s_mov_b32 exec_hi, 0
    buffer_store_dwordx4 v[44:47], v2, s[12:15], s54 offen sc1
    s_mov_b32 exec_hi, -1
    """)

def gate(A):
    GW = 8; XD = 44; Z = 120
    A(f"""
    v_and_b32 v4, 7, v0
    v_lshlrev_b32 v4, 4, v4
    v_lshrrev_b32 v1, 3, v0
    v_mul_u32_u24 v2, 1152, v1
    v_add_u32 v2, v2, v4
    s_mul_i32 s52, s48, {32*1152}
    s_waitcnt lgkmcnt(0)
    """)
    srd(A, 4, P_U, 2048*1152)
    ws_setup(A); get_nonce(A)
    for j in range(9): A(f"global_load_dwordx4 {v(GW+4*j,4)}, v4, {s(P_GW,2)} offset:{128*j}")
    def ld(n):
        for j in range(9): A(f"buffer_load_dwordx4 {v(XD+36*(n&1)+4*j,4)}, v2, s[4:7], s52 offen offset:{128*j}")
        if n < 3: A(f"s_add_u32 s52, s52, {8*1152}")
    ld(0); ld(1)
    for n in range(4):
        A(f"s_waitcnt vmcnt({9 if n < 3 else 0})\nv_mov_b32 v{Z+n}, 0\nv_mov_b32 v{Z+4+n}, 0")
        for j in range(36): A(f"v_dot2c_f32_bf16 v{Z+n+4*(j&1)}, v{XD+36*(n&1)+j}, v{GW+j}")
        if n < 2: ld(n+2)
    A("s_nop 2")
    for n in range(4): A(f"v_add_f32 v{Z+n}, v{Z+n}, v{Z+4+n}")
    for pat in ("quad_perm:[1,0,3,2]", "quad_perm:[2,3,0,1]", "row_half_mirror"):
        A("s_nop 1")
        for n in range(4): A(f"v_add_f32_dpp v{Z+n}, v{Z+n}, v{Z+n} {pat} row_mask:0xf bank_mask:0xf")
    A(f"v_and_b32 v5, 3, v0")
    for n in (1, 2, 3): A(f"v_cmp_eq_u32 vcc, {n}, v5\ns_nop 1\nv_cndmask_b32 v{Z}, v{Z}, v{Z+n}, vcc")
    A(f"""
    v_cvt_pk_bf16_f32 v{Z}, v{Z}, v{Z}
    v_and_b32 v{Z}, 0xffff0000, v{Z}
    v_mul_f32 v{Z}, {f32(-LOG2E)}, v{Z}
    v_exp_f32 v{Z}, v{Z}
    v_lshl_add_u32 v5, v5, 3, v1
    v_add_f32 v{Z}, 1.0, v{Z}
    v_rcp_f32 v{Z}, v{Z}
    v_lshlrev_b32 v5, 3, v5
    v_cvt_pk_bf16_f32 v{Z}, v{Z}, v{Z}
    v_and_b32 v{Z}, 0xffff0000, v{Z}
    v_sub_f32 v{Z+1}, 1.0, v{Z}
    v_cvt_pk_bf16_f32 v{Z+1}, v{Z+1}, v{Z+1}
    v_and_b32 v{Z+1}, 0xffff0000, v{Z+1}
    s_lshl_b32 s52, s48, 8
    s_add_u32 s52, s52, {G_OFF}
    s_mov_b32 exec_lo, 0x0f0f0f0f
    s_mov_b32 exec_hi, 0x0f0f0f0f
    buffer_store_dwordx2 {v(Z,2)}, v5, s[12:15], s52 offen sc1
    s_mov_b64 exec, -1
    s_mul_i32 s54, s48, {FS}
    s_add_u32 s54, s54, {FG_OFF}
    """)
    A("s_waitcnt vmcnt(0)")
    gflag(A, "s54", 8)
```

```python
from f1 import *
NV = 168
GRP = 20480
HOFF = 10240
PRIO = int(os.environ.get("PRIO", "1"))
ATD = 112
NE = 2

def head_qb(A):
    A("""
    s_and_b32 s96, s2, 7
    s_lshl_b32 s96, s96, 2
    s_lshr_b32 s97, s2, 6
    s_add_u32 s96, s96, s97
    s_bfe_u32 s97, s2, 0x30003
    """)

CVU, CVK, CVF, CVF2, CVA, CPT = 126, 127, 128, 129, 130, 132
CAC = 136
def conv_pre(A):
    PT = CPT
    A(f"""
    s_and_b32 s50, s3, 1
    s_bfe_u32 s51, s3, 0x10001
    s_mul_i32 s52, s50, {UC_CH}
    s_add_u32 s52, s52, {L_UC}
    s_sub_u32 s52, s52, s98
    s_lshl_b32 s53, s51, 10
    s_add_u32 s52, s52, s53
    s_mul_i32 s53, s50, {KC_CH}
    s_add_u32 s53, s53, {L_KC + 512 - 32}
    s_sub_u32 s53, s53, s98
    s_lshl_b32 s54, s51, 8
    s_sub_u32 s53, s53, s54
    v_and_b32 v{PT}, 3, v0
    v_mul_u32_u24 v{PT}, {UC_COPY}, v{PT}
    v_bfe_u32 v{PT+1}, v0, 2, 3
    v_lshrrev_b32 v{PT+2}, 5, v0
    v_add_u32 v{PT+1}, v{PT+1}, v{PT+2}
    v_lshl_add_u32 v{CVU}, v{PT+1}, 4, v{PT}
    v_add_u32 v{CVU}, s52, v{CVU}
    v_mul_u32_u24 v{PT+1}, {KC_ROW}, v{PT+2}
    v_and_b32 v{PT}, 31, v0
    v_lshl_add_u32 v{CVK}, v{PT}, 4, v{PT+1}
    v_add_u32 v{CVK}, s53, v{CVK}
    s_cmp_lg_u32 s98, 0
    s_cselect_b32 s56, 8, 0
    s_lshl_b32 s57, s50, 2
    s_add_u32 s56, s56, s57
    s_add_u32 s57, s56, {L_FL}
    v_mov_b32 v{CVF}, s57
    s_add_u32 s57, s57, s56
    v_mov_b32 v{CVF2}, s57
    v_bfe_u32 v{PT}, v0, 1, 4
    v_lshlrev_b32 v{PT}, 7, v{PT}
    v_and_b32 v{PT+1}, 1, v0
    v_lshl_add_u32 v{PT}, v{PT+1}, 5, v{PT}
    v_lshl_add_u32 v{CVA}, v{PT+2}, 4, v{PT}
    s_lshl_b32 s52, s99, 13
    s_lshl_b32 s53, s51, 12
    s_add_u32 s52, s52, s53
    s_add_u32 s98, s52, {AT_OFF}
    """)
    for i in range(32): A(f"v_mov_b32 v{CAC+i}, 0")
    A.l.extend(attn_common())

def conv(A):
    VU, VK, PT, AC = CVU, CVK, CPT, CAC
    BUFS = [4, 46, 94, 110]
    lpoll(A, CVF, F_URDY, 1, 1, PT, sleep=0)
    stamp(A, 4)
    lpoll(A, CVF2, F_KRDY, 2, 1, PT, sleep=0)
    stamp(A, 5)
    def reads(q, part):
        b = BUFS[q % 4]
        ko = 2*KC_ROW*(q % 4) + 32*(1 - q//4)
        if part == 0: A(f"ds_read_b128 {v(b,4)}, v{VU} offset:{32*q}\nds_read_b128 {v(b+4,4)}, v{VK} offset:{ko}")
        else: A(f"ds_read_b128 {v(b+8,4)}, v{VK} offset:{ko+512}\nds_read_b128 {v(b+12,4)}, v{VU} offset:{32*q+2048}")
    for q in range(3): reads(q, 0); reads(q, 1)
    A("s_mov_b32 s68, 0")
    A.label("L_cv_loop")
    fill = [f"    v_mov_b32 v{O+i}, 0" for i in range(32)]; per = 3
    def F():
        A.l.extend(fill[:per]); del fill[:per]
    for q in range(4):
        b = BUFS[q]
        A("s_waitcnt lgkmcnt(8)")
        A(f"v_mfma_f32_32x32x16_bf16 {v(AC,16)}, {v(b,4)}, {v(b+4,4)}, {v(AC,16)}")
        reads(q+3, 0); F()
        A(f"v_mfma_f32_32x32x16_bf16 {v(AC+16,16)}, {v(b,4)}, {v(b+8,4)}, {v(AC+16,16)}")
        reads(q+3, 1); F()
        if q == 3: A(f"v_add_u32 v{VU}, 128, v{VU}\nv_subrev_u32 v{VK}, 32, v{VK}\ns_add_u32 s68, s68, 1\ns_cmp_lt_u32 s68, 8")
        A(f"v_mfma_f32_32x32x16_bf16 {v(AC+16,16)}, {v(b+12,4)}, {v(b+4,4)}, {v(AC+16,16)}")
        if q < 3: F()
    assert not fill
    A("s_cbranch_scc1 L_cv_loop")
    stamp(A, 6)
    A(f"""
    s_waitcnt lgkmcnt(0)
    s_cmp_lt_u32 s3, 4
    s_cbranch_scc1 L_cv_s1
    s_setprio 3
    s_barrier
    s_branch L_at_qb
    L_cv_s1:
    s_lshl_b32 s63, s3, 2
    s_add_u32 s63, s63, {L_FL+F_CVD}
    v_mov_b32 v{PT}, s63
    """)
    lset(A, PT, 0, 1, PT+1)
    A("s_branch L_attn2")

def ucopy(A):
    UD = 16
    A(f"""
    s_setprio 3
    s_lshr_b32 s50, s99, 6
    s_mul_i32 s50, s50, {32*FS}
    s_add_u32 s50, s50, {FU_OFF}
    v_and_b32 v1, 31, v0
    v_mul_u32_u24 v1, {FS}, v1
    v_lshlrev_b32 v2, 2, v0
    s_and_b32 s51, s3, 1
    s_add_u32 s52, s99, s51
    s_mul_i32 s52, s52, {UT_ROW}
    s_add_u32 s52, s52, {UT_OFF}
    s_mul_i32 s53, s51, {UC_CH}
    s_add_u32 s53, s53, {L_UC}
    s_lshl_b32 s54, s51, 2
    s_add_u32 s54, s54, {L_FL}
    v_mov_b32 v3, s54
    v_mov_b32 v9, 0
    s_cmp_ge_u32 s2, 224
    s_cbranch_scc1 L_uc_aux
    s_barrier
    s_barrier
    s_barrier
    buffer_load_dword v4, v1, s[12:15], s50 offen sc1
    s_mov_b32 s56, 1
    s_barrier
    s_waitcnt vmcnt(0)
    v_cmp_ne_u32 vcc, s{NONCE}, v4
    s_cbranch_vccz L_uc_set
    s_barrier
    s_branch L_uc_poll
    L_uc_aux:
    s_sub_u32 s53, s53, {SET1}
    s_add_u32 s52, s52, {2*UT_ROW}
    v_add_u32 v3, 8, v3
    L_uc_poll:
    s_mov_b32 s56, 0
    """)
    gpoll(A, [1], 4, "s50")
    A("L_uc_set:")
    stamp(A, 3)
    for n in range(16): A(f"buffer_load_dword v{UD+n}, v2, s[12:15], s52 offen offset:{256*n} sc1")
    A("v_add_u32 v10, s53, v2")
    for k in range(4): A(f"v_add_u32 v{11+k}, {k*UC_COPY + 124 - 4*k}, v10")
    A(f"""
    s_cmp_eq_u32 s56, 0
    s_cbranch_scc1 L_uc_nb
    s_cmp_eq_u32 s56, 2
    s_cbranch_scc1 L_uc_kw
    s_barrier
    s_branch L_uc_nb
    L_uc_kw:
    v_mov_b32 v8, {L_FL}
    """)
    lpoll(A, 8, F_KRDY+16, 4, 1, 4, sleep=1)
    A("L_uc_nb:\ns_mov_b64 exec, 0x7fffffff")
    for k in range(4): A(f"ds_write_b32 v10, v9 offset:{k*UC_COPY}")
    A("s_mov_b64 exec, -1")
    for n in range(0, 16, 2):
        A(f"s_waitcnt vmcnt({14-n})")
        for k in range(4): A(f"ds_write2st64_b32 v{11+k}, v{UD+n}, v{UD+n+1} offset0:{n} offset1:{n+1}")
    lset(A, 3, F_URDY, 1, 4)
    A(f"""
    s_cmp_ge_u32 s53, {L_UC}
    s_cbranch_scc1 L_uc_done
    s_add_u32 s53, s53, {SET1}
    s_sub_u32 s52, s52, {2*UT_ROW}
    v_subrev_u32 v3, 8, v3
    s_mov_b32 s56, 2
    s_waitcnt lgkmcnt(0)
    s_branch L_uc_set
    L_uc_done:
    """)

L_O = 40960
L_WE = 24576
L_RED = L_O + OF_TT
L_QR = 7*GRP + 5120 + 19*16
L_FR = L_QR + 320
L_XR = L_QR + 640
L_PG = L_QR + 960
IDX, AK, AV, OMG, TMP = 28, 29, 30, 31, 32
CST = [48, 102]
QM = 4; QE = 12; KF = 14; KE = 18; VF = 40; O = 62; S = 94; X = 136

def attn_common():
    B = Asm()
    head_qb(B)
    B(f"""
    s_and_b32 s50, s3, 3
    s_lshr_b32 s51, s3, 2
    s_lshl_b32 s52, s97, 3
    s_lshl_b32 s50, s50, 1
    s_add_u32 s52, s52, s50
    s_add_u32 s53, s52, s51
    s_lshr_b32 s55, s96, 1
    s_mul_i32 s55, s55, {9*256}
    s_and_b32 s56, s96, 1
    s_mul_i32 s57, s56, {5*256}
    s_add_u32 s57, s57, s55
    s_add_u32 s55, s55, {4*256}
    v_and_b32 v{TMP+4}, 15, v0
    v_lshlrev_b32 v{TMP+4}, 4, v{TMP+4}
    v_bfe_u32 v{TMP+5}, v0, 4, 1
    v_lshl_or_b32 v{TMP+4}, v{TMP+5}, 3, v{TMP+4}
    v_lshrrev_b32 v{TMP+1}, 5, v0
    v_lshl_or_b32 v{TMP+5}, v{TMP+1}, 8, v{TMP+4}
    v_and_b32 v{TMP+6}, 31, v0
    v_lshlrev_b32 v{TMP+7}, 3, v{TMP+6}
    s_lshl_b32 s62, s52, 8
    s_add_u32 s62, s62, {G_OFF}
    s_lshl_b32 s59, s50, 11
    s_add_u32 s59, s59, {L_QP}
    v_lshl_add_u32 v{TMP+3}, v0, 4, s59
    s_lshl_b32 s60, s51, 5
    v_xor_b32 v{TMP+2}, s60, v0
    v_lshl_add_u32 v{TMP+2}, v{TMP+2}, 3, s59
    v_and_b32 v{AK}, 0x13f, v{TMP+5}
    v_bfe_u32 v{TMP}, v0, 2, 1
    v_lshl_or_b32 v{AK}, v{TMP}, 7, v{AK}
    v_bfe_u32 v{TMP}, v0, 3, 1
    v_lshl_or_b32 v{AK}, v{TMP}, 6, v{AK}
    s_mul_i32 s59, s51, {HOFF}
    v_add_u32 v{AK}, s59, v{AK}
    v_mad_u32_u24 v{TMP}, v{TMP+1}, 20, v{TMP+6}
    s_add_u32 s59, s59, 5120
    v_lshl_add_u32 v{AV}, v{TMP}, 4, s59
    s_mul_i32 s59, s53, {OF_TT}
    s_add_u32 s59, s59, {OF_OFF}
    s_lshl_b32 s100, s96, 10
    s_add_u32 s100, s100, s59
    s_lshl_b32 s101, s96, 7
    s_add_u32 s101, s101, s59
    s_add_u32 s101, s101, {32*1024}
    s_mov_b32 vcc_lo, 0x7ffff
    s_mov_b32 vcc_hi, 0x7ffff
    v_mov_b32 v{IDX}, 0x80000
    v_cndmask_b32 v{AV}, v{IDX}, v{AV}, vcc
    v_mov_b32 v{IDX}, 0xdddddddd
    """)
    return B.l

def attn(A):
    A.l.extend(attn_common())
    for i in range(32): A(f"v_mov_b32 v{O+i}, 0")
    A.label("L_attn2")
    A(f"""
    s_cmp_ge_u32 s3, 4
    s_cbranch_scc1 L_at_qb
    s_mul_i32 s58, s53, {QKQ_TT}
    s_add_u32 s60, s58, s55
    s_add_u32 s58, s58, s57
    s_add_u32 s59, s58, {QKQ_TT}
    v_mul_u32_u24 v{TMP+1}, {QKQ_TT}, v{TMP+1}
    v_add_u32 v{TMP+4}, v{TMP+4}, v{TMP+1}
    s_min_u32 s63, s55, s57
    s_add_u32 s64, s63, {4*256}
    s_lshr_b32 s63, s63, 13
    s_lshr_b32 s64, s64, 13
    s_lshr_b32 s65, s52, 2
    s_lshl_b32 s63, s63, 4
    s_lshl_b32 s64, s64, 4
    s_add_u32 s63, s63, s65
    s_add_u32 s64, s64, s65
    s_mul_i32 s63, s63, {FS}
    s_mul_i32 s64, s64, {FS}
    s_mul_i32 s65, s53, {FS}
    s_add_u32 s65, s65, {FG_OFF-FQ_OFF}
    v_mov_b32 v{TMP}, s63
    v_writelane_b32 v{TMP}, s64, 1
    v_writelane_b32 v{TMP}, s65, 2
    s_add_u32 s65, s65, {FS}
    v_writelane_b32 v{TMP}, s65, 3
    s_mov_b32 s63, {FQ_OFF}
    """)
    gpoll(A, [TMP], TMP+1, "s63")
    stamp(A, 8)
    A(f"buffer_load_dwordx2 {v(QE,2)}, v{TMP+4}, s[12:15], s60 offen sc1")
    for j in range(2):
        A(f"""
        buffer_load_dwordx2 {v(QM+4*j,2)}, v{TMP+5}, s[12:15], s{58+j} offen sc1
        buffer_load_dwordx2 {v(QM+4*j+2,2)}, v{TMP+5}, s[12:15], s{58+j} offen offset:512 sc1
        """)
    A(f"v_mov_b32 v{TMP}, {L_FL}")
    lpoll(A, TMP, F_KRDY, 4, 1, KF, sleep=1)
    A(f"""
    s_cmp_eq_u32 s56, 0
    s_cselect_b32 s64, -1, 0
    s_not_b32 s65, s64
    s_waitcnt vmcnt(0)
    v_and_b32 v{QE}, s64, v{QE}
    v_and_b32 v{QE+1}, s65, v{QE+1}
    ds_write_b128 v{TMP+3}, {v(QM,4)}
    ds_write_b128 v{TMP+3}, {v(QM+4,4)} offset:1024
    ds_write_b64 v{TMP+2}, {v(QE,2)} offset:2048
    v_lshlrev_b32 v22, 4, v0
    v_lshlrev_b32 v23, 2, v0
    v_mov_b32 v24, -1
    v_mov_b32 v25, -1
    v_mov_b32 v26, -1
    v_mov_b32 v27, -1
    s_add_u32 s63, s100, {OF_TT}
    s_add_u32 s64, s101, {OF_TT}
    buffer_store_dwordx4 v[24:27], v22, s[12:15], s100 offen sc1
    buffer_store_dwordx4 v[24:27], v22, s[12:15], s63 offen sc1
    s_mov_b32 exec_hi, 0
    buffer_store_dword v24, v23, s[12:15], s101 offen sc1
    buffer_store_dword v24, v23, s[12:15], s64 offen sc1
    s_mov_b32 exec_hi, -1
    s_branch L_at_cm
    L_at_qb:
    buffer_load_dword v{OMG}, v{TMP+7}, s[12:15], s62 offen offset:260 sc1
    buffer_load_dword v25, v{TMP+7}, s[12:15], s62 offen offset:4 sc1
    v_lshlrev_b32 v22, 4, v0
    v_lshlrev_b32 v23, 2, v0
    ds_read_b128 {v(QM+4,4)}, v{TMP+3}
    ds_read_b128 {v(QM,4)}, v{TMP+3} offset:1024
    ds_read_b64 {v(QE,2)}, v{TMP+2} offset:2048
    L_at_cm:
    """)
    for i in range(8): A(f"v_mov_b32 v{S+16+8+i}, 0")
    for i in range(4): A(f"v_mov_b32 v{VF+4+i}, 0")
    A("s_mov_b32 s66, 0\ns_waitcnt lgkmcnt(0)\ns_barrier\nL_at_go:")
    stamp(A, 9)
    if os.environ.get('CLK'): stampc(A, 1)
    GU = GRP//512
    rdK = lambda t: f"ds_read2st64_b64 {v(KF,4)}, v{AK} offset0:{(t//4)*GU+2*(t%4)} offset1:{(t//4)*GU+2*(t%4)+1}"
    rdE = lambda g: f"ds_read2st64_b64 {v(KE,4)}, v{AK} offset0:{g*GU+8} offset1:{g*GU+9}"
    rdV = lambda t, m: f"ds_read_b128 {v(VF+4*m,4)}, v{AV} offset:{(t//4)*GRP+(4*(t%4)+2*m)*320}"
    M16 = lambda q: f"v_mfma_f32_32x32x16_bf16 {v(S+16*q,16)}, {v(KF,4)}, {v(QM+4*q,4)}, {v(X+16*q,16)}"
    M2 = lambda t: f"v_mfma_f32_32x32x4_2b_bf16 {v(X,32)}, {v(KE+2*((t%4)>>1),2)}, {v(QE,2)}, 0 cbsz:1 abid:{t&1}"
    PV = lambda q, m: f"v_smfmac_f32_32x32x32_bf16 {v(O+16*q,16)}, {v(VF+4*m,4)}, {v(S+16*q+8*m,8)}, v{IDX}"
    E = lambda q, i: f"v_exp_f32 v{S+16*q+i}, v{S+16*q+i}"
    A(rdE(0)); A(rdK(0)); A(rdV(0, 0))
    A("s_cmp_eq_u32 s98, 0\ns_cbranch_scc1 L_at_nost2")
    for cb in range(2):
        for j in range(8): A(f"v_cvt_pk_bf16_f32 v{CST[cb]+j}, v{CAC+16*cb+2*j}, v{CAC+16*cb+2*j+1}")
    for cb in range(2):
        for m in range(2): A(f"buffer_store_dwordx4 {v(CST[cb]+4*m,4)}, v{CVA}, s[12:15], s98 offen offset:{2048*cb+64*m} sc1")
    A(f"""
    L_at_nost2:
    s_waitcnt lgkmcnt(2)
    """)
    A(M2(0)); A("s_cmp_ge_u32 s3, 4\ns_cbranch_scc1 L_at_nb\ns_barrier\nL_at_nb:\ns_nop 13\ns_waitcnt lgkmcnt(1)\ns_setprio 2"); A(M16(0)); A("s_nop 11")
    A.raw(".p2align 6")
    A.label("L_at_loop")
    def ex(q, a, b):
        for i in range(a, b): A(E(q, i))
    for t in range(4):
        ex(0, 0, 2); A(PV(1, 1)); A(rdV(t, 1))
        ex(0, 2, 5); A(M16(1)); A("s_waitcnt lgkmcnt(1)"); A(rdK(t+1))
        ex(0, 5, 10); A(PV(0, 0)); A("s_waitcnt lgkmcnt(1)")
        if t == 2: A("s_cmp_lg_u32 s66, 1")
        ex(0, 10, 13); A(M2(t+1)); ex(0, 13, 16)
        ex(1, 0, 5); A(PV(0, 1)); A("s_waitcnt lgkmcnt(0)")
        if t == 2: A("s_cbranch_scc0 L_at_bar\nL_at_bar_ret:")
        ex(1, 5, 8); A(M16(0))
        if t == 2: A(rdE(1))
        elif t == 3: A("s_add_u32 s66, s66, 1")
        elif t == 0 and PRIO: A(f"s_bitcmp1_b32 {os.environ.get('PM', '0x82')}, s66")
        ex(1, 8, 12); A(PV(1, 0))
        if t == 3: A("s_cmp_lt_u32 s66, 8")
        elif t == 0 and PRIO: A("s_cbranch_scc1 L_at_lowprio\nL_at_lowprio_ret:")
        A(rdV(t+1, 0))
        ex(1, 12, 16)
    A(f"v_add_u32 v{AK}, {GRP}, v{AK}\nv_add_u32 v{AV}, {GRP}, v{AV}")
    A("s_cbranch_scc1 L_at_loop")
    A(PV(1, 1))
    stamp(A, 10)
    if os.environ.get('CLK'): stampc(A, 2)
    PP = S
    A(f"""
    s_mul_i32 s63, s50, 2560
    v_add_u32 v{AK}, s63, v22
    s_lshl_b32 s63, s50, 1
    s_add_u32 s63, s63, {L_XR}
    v_mov_b32 v{AV}, s63
    s_cmp_ge_u32 s3, 4
    s_cbranch_scc1 L_at_late
    ds_write_b128 v{AK}, {v(O,4)} offset:2560
    ds_write_b128 v{AK}, {v(O+4,4)} offset:3584
    s_mov_b32 exec_hi, 0
    ds_write_b128 v{AK}, {v(O+8,4)} offset:4608
    s_nop 1
    ds_write_b128 v{AK}, {v(O+24,4)} offset:2048
    s_mov_b32 exec_hi, -1
    ds_write_b128 v{AK}, {v(O+16,4)}
    ds_write_b128 v{AK}, {v(O+20,4)} offset:1024
    """)
    lset(A, AV, 0, 1, TMP)
    ofetch(A)
    A(f"""
    s_branch L_end
    L_at_late:
    s_mov_b32 s{CAP}, 0x100000
    s_mov_b32 s61, {f32(2.0**-60)}
    s_mov_b32 s62, {f32(2.0**40)}
    L_at_xw:
    ds_read_b32 v{TMP}, v{AV}
    """)
    for b in range(2): A(f"ds_read_b128 {v(PP+12*b+8,4)}, v{AK} offset:{2560*b+2048}")
    for b in range(2):
        for i in range(2): A(f"ds_read_b128 {v(PP+12*b+4*i,4)}, v{AK} offset:{2560*b+1024*i}")
    A(f"""
    s_lshl_b32 s58, s52, 5
    s_add_u32 s58, s58, s96
    s_mul_i32 s58, s58, {FS}
    s_add_u32 s58, s58, {FO_OFF}
    s_sub_u32 s59, s100, {OF_TT}
    s_sub_u32 s60, s101, {OF_TT}
    v_mov_b32 v24, s{NONCE}
    v_mul_u32_u24 v26, {32*FS}, v0
    {"s_mov_b64 exec, 3" + chr(10) + "buffer_store_dword v24, v26, s[12:15], s58 offen sc1" + chr(10) + "s_mov_b64 exec, -1" if os.environ.get("HE", "1") == "2" else ""}
    s_sub_u32 s{CAP}, s{CAP}, 1
    s_cbranch_scc1 L_at_xok
    s_waitcnt lgkmcnt(6)
    v_readfirstlane_b32 s63, v{TMP}
    s_cmp_eq_u32 s63, 0
    s_cbranch_scc1 L_at_xw
    L_at_xok:
    s_waitcnt lgkmcnt(4)
    v_add_f32 v{O+10}, v{O+10}, v{PP+10}
    v_add_f32 v{O+26}, v{O+26}, v{PP+22}
    v_add_f32 v{O+8}, v{O+8}, v{PP+8}
    v_add_f32 v{O+9}, v{O+9}, v{PP+9}
    v_add_f32 v{O+24}, v{O+24}, v{PP+20}
    v_add_f32 v{O+25}, v{O+25}, v{PP+21}
    v_cmp_le_f32 vcc, s61, v{O+10}
    v_cmp_ge_f32 s[64:65], s62, v{O+10}
    v_cmp_le_f32 s[66:67], s61, v{O+26}
    v_cmp_ge_f32 s[68:69], s62, v{O+26}
    s_waitcnt lgkmcnt(0)
    """)
    for b in range(2):
        for i in range(8): A(f"v_add_f32 v{O+16*b+i}, v{O+16*b+i}, v{PP+12*b+i}")
    A(f"""
    s_and_b32 s64, s64, vcc_lo
    s_and_b32 s66, s66, s68
    s_and_b32 s64, s64, s66
    s_cmp_eq_u32 s64, -1
    s_cbranch_scc0 L_at_fallback
    L_at_fin:
    {"s_mov_b64 exec, 3" + chr(10) + "buffer_store_dword v24, v26, s[12:15], s58 offen sc1" + chr(10) + "s_mov_b64 exec, -1" if os.environ.get("HE", "1") == "1" else ""}
    v_rcp_f32 v{TMP}, v{O+10}
    v_rcp_f32 v{TMP+2}, v{O+26}
    v_mul_f32 v{TMP}, v{TMP}, v{OMG}
    v_mul_f32 v{TMP+2}, v{TMP+2}, v25
    v_mov_b32 v{TMP+1}, v{TMP}
    v_mov_b32 v{TMP+3}, v{TMP+2}
    v_mul_f32 v{O+8}, v{TMP}, v{O+8}
    v_mul_f32 v{O+9}, v{TMP}, v{O+9}
    v_permlane32_swap_b32 v{TMP}, v{TMP+1}
    v_permlane32_swap_b32 v{TMP+2}, v{TMP+3}
    """)
    for b in range(2):
        o = O + 16*b
        for i in range(8): A(f"v_mul_f32 v{o+i}, v{TMP+2*b}, v{o+i}")
        for i in range(4): A(f"v_cvt_pk_bf16_f32 v{o+i}, v{o+2*i}, v{o+2*i+1}")
        A(f"buffer_store_dwordx4 {v(o,4)}, v22, s[12:15], s{(100, 59)[b]} offen sc1")
    A(f"""
    v_mul_f32 v{O+24}, v{TMP+2}, v{O+24}
    v_mul_f32 v{O+25}, v{TMP+2}, v{O+25}
    v_cvt_pk_bf16_f32 v{O+8}, v{O+8}, v{O+9}
    v_cvt_pk_bf16_f32 v{O+24}, v{O+24}, v{O+25}
    s_mov_b32 exec_hi, 0
    buffer_store_dword v{O+8}, v23, s[12:15], s101 offen sc1
    buffer_store_dword v{O+24}, v23, s[12:15], s60 offen sc1
    s_mov_b32 exec_lo, 3
    {"" if os.environ.get("HE", "1") else "buffer_store_dword v24, v26, s[12:15], s58 offen sc1"}
    """)
    stamp(A, 7)
    A(f"""
    s_branch L_end
    L_at_bar:
    s_waitcnt vmcnt(0)
    s_barrier
    s_setprio 2
    s_branch L_at_bar_ret
    L_at_lowprio:
    s_setprio 1
    s_cmp_lg_u32 s66, 7
    s_cbranch_scc1 L_at_lowprio_ret
    s_mul_i32 s63, s51, {320-16}
    s_lshl_b32 s64, s3, 2
    s_add_u32 s63, s63, s64
    s_add_u32 s63, s63, {L_PG}
    v_mov_b32 v{TMP}, s63
    """)
    lset(A, TMP, 0, 1, TMP+1)
    A("s_branch L_at_lowprio_ret")
    MX = TMP + 4; FS_ = S; FQ = S + 16; FO_ = X
    A.label("L_at_fallback")
    A(f"""
    v_and_b32 v{TMP+1}, 3, v0
    v_lshlrev_b32 v{TMP+1}, 4, v{TMP+1}
    v_bfe_u32 v{TMP}, v0, 2, 1
    v_lshl_or_b32 v{TMP+1}, v{TMP}, 7, v{TMP+1}
    v_bfe_u32 v{TMP}, v0, 3, 1
    v_lshl_or_b32 v{TMP+1}, v{TMP}, 6, v{TMP+1}
    v_bfe_u32 v{TMP}, v0, 4, 1
    v_lshl_or_b32 v{TMP+1}, v{TMP}, 3, v{TMP+1}
    v_lshrrev_b32 v{AV}, 5, v0
    v_lshl_or_b32 v{AK}, v{AV}, 8, v{TMP+1}
    v_and_b32 v{TMP}, 31, v0
    s_mul_i32 s63, s96, 18
    v_add_u32 v{TMP+2}, s63, v{TMP}
    v_mul_u32_u24 v{AV}, {VT_ROW}, v{AV}
    v_lshl_add_u32 v{AV}, v{TMP+2}, 4, v{AV}
    s_mov_b32 s69, 0
    v_mov_b32 v{FQ+4}, v{QE}
    v_mov_b32 v{FQ+5}, v{QE+1}
    s_mov_b32 exec_lo, 0
    v_mov_b32 v{FQ+4}, 0
    v_mov_b32 v{FQ+5}, 0
    s_mov_b32 exec_lo, -1
    """)
    for i in range(4): A(f"v_mov_b32 v{FQ+i}, v{QM+i}")
    for i in range(8): A(f"v_mov_b32 v{VF+i}, 0x3f803f80")
    A(f"L_fb_blk:\nv_mov_b32 v{MX}, 0xff800000\ns_mov_b32 s67, 0")
    for i in range(16): A(f"v_mov_b32 v{FO_+i}, 0")
    A(f"""
    L_fb_pass:
    s_add_u32 s63, s57, {144*256}
    s_add_u32 s64, s55, {144*256}
    s_mov_b32 s65, {VT_OFF}
    s_mov_b32 s66, 0
    L_fb_loop:
    s_add_u32 s68, s65, {2*VT_ROW}
    buffer_load_dwordx2 {v(KF,2)}, v{AK}, s[12:15], s63 offen sc1
    buffer_load_dwordx2 {v(KF+2,2)}, v{AK}, s[12:15], s63 offen offset:512 sc1
    buffer_load_dwordx2 {v(KE,2)}, v{TMP+1}, s[12:15], s64 offen sc1
    s_mov_b32 exec_lo, 0x3ffff
    s_mov_b32 exec_hi, 0x3ffff
    buffer_load_dwordx4 {v(VF,4)}, v{AV}, s[12:15], s65 offen sc1
    buffer_load_dwordx4 {v(VF+4,4)}, v{AV}, s[12:15], s68 offen sc1
    s_mov_b64 exec, -1
    s_waitcnt vmcnt(0)
    v_mfma_f32_32x32x16_bf16 {v(FS_,16)}, {v(KF,4)}, {v(FQ,4)}, 0
    s_nop 10
    v_mfma_f32_32x32x8_bf16 {v(FS_,16)}, {v(KE,2)}, {v(FQ+4,2)}, {v(FS_,16)}
    s_add_u32 s63, s63, {QKQ_TT}
    s_add_u32 s64, s64, {QKQ_TT}
    s_add_u32 s65, s65, {VT_TT}
    s_add_u32 s66, s66, 1
    s_nop 15
    s_cmp_lg_u32 s67, 0
    s_cbranch_scc1 L_fb_p2
    """)
    for i in range(8): A(f"v_max3_f32 v{MX}, v{MX}, v{FS_+2*i}, v{FS_+2*i+1}")
    A(f"""
    s_cmp_lt_u32 s66, 64
    s_cbranch_scc1 L_fb_loop
    v_mov_b32 v{MX+1}, v{MX}
    s_nop 1
    v_permlane32_swap_b32 v{MX}, v{MX+1}
    s_mov_b32 s67, 1
    v_max_f32 v{MX}, v{MX}, v{MX+1}
    s_branch L_fb_pass
    L_fb_p2:
    """)
    for i in range(16): A(f"v_sub_f32 v{FS_+i}, v{FS_+i}, v{MX}")
    for i in range(16): A(f"v_exp_f32 v{FS_+i}, v{FS_+i}")
    A(f"""
    s_nop 2
    v_smfmac_f32_32x32x32_bf16 {v(FO_,16)}, {v(VF,4)}, {v(FS_,8)}, v{IDX}
    v_smfmac_f32_32x32x32_bf16 {v(FO_,16)}, {v(VF+4,4)}, {v(FS_+8,8)}, v{IDX}
    s_cmp_lt_u32 s66, 64
    s_cbranch_scc1 L_fb_loop
    s_nop 15
    s_cmp_lg_u32 s69, 0
    s_cbranch_scc1 L_fb_done
    s_mov_b32 s69, 1
    v_mov_b32 v{FQ+4}, 0
    v_mov_b32 v{FQ+5}, 0
    """)
    for i in range(12): A(f"v_mov_b32 v{O+i}, v{FO_+i}")
    for i in range(4): A(f"v_mov_b32 v{FQ+i}, v{QM+4+i}")
    A(f"v_permlane32_swap_b32 v{QE}, v{FQ+4}\nv_permlane32_swap_b32 v{QE+1}, v{FQ+5}\ns_branch L_fb_blk\nL_fb_done:")
    for i in range(12): A(f"v_mov_b32 v{O+16+i}, v{FO_+i}")
    A("s_branch L_at_fin")

def kv_loader(A):
    VD = 4; VP = 9; PT = 12
    A("s_setprio 3")
    head_qb(A)
    A(f"""
    s_and_b32 s50, s3, 1
    s_bfe_u32 s51, s3, 0x10001
    s_mul_i32 s52, s51, {HOFF}
    s_cmp_eq_u32 s50, 0
    s_cbranch_scc0 L_kv_v
    s_lshr_b32 s55, s96, 1
    s_mul_i32 s55, s55, {9*256}
    s_and_b32 s56, s96, 1
    s_mul_i32 s57, s56, {5*256}
    v_lshl_add_u32 v{VD}, v0, 4, s57
    v_add_u32 v{VD+1}, {QKQ_TT-1024}, v{VD}
    v_add_u32 v{VD+2}, {2*(QKQ_TT-1024)}, v{VD}
    v_add_u32 v{VD+3}, {3*(QKQ_TT-1024)}, v{VD}
    v_lshrrev_b32 v1, 4, v0
    v_mul_u32_u24 v1, {QKQ_TT}, v1
    v_and_b32 v2, 15, v0
    v_lshl_add_u32 v1, v2, 4, v1
    v_add_u32 v{VD+4}, 1024, v1
    s_add_u32 s55, s55, {144*256}
    s_mul_i32 s53, s51, {32*QKQ_TT}
    s_add_u32 s53, s53, s55
    s_mov_b32 s54, {4*QKQ_TT}
    s_lshl_b32 s56, s56, 10
    s_add_u32 s58, s55, s56
    s_add_u32 s59, s58, {4*256}
    s_lshr_b32 s58, s58, 13
    s_lshr_b32 s59, s59, 13
    s_branch L_kv_go
    L_kv_v:
    s_mul_i32 s55, s96, 18
    s_and_b32 s56, s2, 15
    s_mul_i32 s56, s56, {VT_ROW}
    s_add_u32 s56, s56, {576*16}
    s_mul_i32 s53, s51, {32*VT_TT}
    s_add_u32 s53, s53, {VT_OFF}
    v_mul_u32_u24 v1, {4*VT_TT}, v0
    v_add_u32 v1, s56, v1
    v_mov_b32 v16, 0x3f803f80
    v_mov_b32 v17, v16
    v_mov_b32 v18, v16
    v_mov_b32 v19, v16
    s_mov_b64 exec, 0xff
    buffer_store_dwordx4 v[16:19], v1, s[12:15], s53 offen sc1
    s_mov_b64 exec, -1
    v_mov_b32 v10, s56
    """)
    for n in range(5):
        A(f"""
        v_add_u32 v1, {64*n}, v0
        v_mul_u32_u24 v2, 3277, v1
        v_lshrrev_b32 v2, 16, v2
        v_mul_u32_u24 v3, 20, v2
        v_sub_u32 v1, v1, v3
        v_cmp_gt_u32 vcc, 18, v1
        v_add_u32 v1, s55, v1
        v_mul_u32_u24 v2, {VT_ROW}, v2
        v_lshl_add_u32 v1, v1, 4, v2
        v_cndmask_b32 v{VD+n}, v10, v1, vcc
        """)
        if n % 4: A(f"v_subrev_u32 v{VD+n}, {1024*n}, v{VD+n}")
    A(f"""
    s_mov_b32 s54, {4*VT_TT}
    s_add_u32 s52, s52, 5120
    s_lshr_b32 s58, s55, 7
    s_add_u32 s59, s55, 17
    s_lshr_b32 s59, s59, 7
    s_add_u32 s58, s58, 9
    s_add_u32 s59, s59, 9
    L_kv_go:
    s_sub_u32 s59, s59, s58
    s_lshl_b32 s59, s59, 4
    v_bfe_u32 v1, v0, 3, 1
    v_mul_u32_u24 v1, s59, v1
    v_and_b32 v2, 7, v0
    v_add_u32 v1, v1, v2
    v_mul_u32_u24 v{VP}, {FS}, v1
    s_lshl_b32 s58, s58, 4
    s_lshl_b32 s59, s51, 3
    s_add_u32 s58, s58, s59
    s_mul_i32 s58, s58, {FS}
    s_add_u32 s58, s58, {FQ_OFF}
    v_mov_b32 v3, {L_FL}
    """)
    A(f"s_cmp_lt_u32 s2, 224\ns_cbranch_scc1 L_kv_g")
    lpoll(A, 3, F_CVD, 4, 1, PT, sleep=4)
    A("s_branch L_kv_g1\nL_kv_g:")
    lpoll(A, 3, F_STD, 1, 4, PT, sleep=2)
    A("L_kv_g1:")
    stamp(A, 4)
    gpoll(A, [VP], PT, "s58")
    stamp(A, 5)
    A("s_mov_b32 s66, 0")
    A.label("L_kv_loop")
    A("s_mov_b32 m0, s52\ns_add_u32 s66, s66, 1")
    for n in range(4): A(f"buffer_load_dwordx4 v{VD+n}, s[12:15], s53 offen offset:{1024*n} sc1 lds")
    A(f"""
    s_add_u32 m0, s52, 4096
    s_add_u32 s52, s52, {GRP}
    buffer_load_dwordx4 v{VD+4}, s[12:15], s53 offen sc1 lds
    s_add_u32 s53, s53, s54
    s_cmp_lg_u32 s66, {NE}
    s_cbranch_scc1 L_kv_nb
    s_waitcnt vmcnt({5*(NE-1)})
    """)
    stamp(A, 6)
    A(f"""
    s_barrier
    s_waitcnt vmcnt(0)
    s_barrier
    L_kv_nb:
    s_cmp_lt_u32 s66, 8
    s_cbranch_scc1 L_kv_loop
    s_waitcnt vmcnt(0)
    """)
    stamp(A, 7)
    A(f"""
    s_cmp_lg_u32 s3, 9
    s_cbranch_scc1 L_kv_nz
    v_mul_u32_u24 v1, 320, v0
    v_add_u32 v1, {L_QR}, v1
    v_mov_b32 v16, 0
    v_mov_b32 v17, 0
    v_mov_b32 v18, 0
    v_mov_b32 v19, 0
    s_mov_b64 exec, 31
    ds_write_b128 v1, v[16:19]
    s_mov_b64 exec, -1
    s_waitcnt lgkmcnt(0)
    L_kv_nz:
    s_barrier
    """)
    A(f"s_cmp_lg_u32 s3, 8\ns_cbranch_scc1 L_kv_nf\ns_mul_i32 s58, s2, {FS}\ns_add_u32 s58, s58, {FB_OFF}")
    gflag(A, "s58", PT)
    A("L_kv_nf:")

def op_ids(A, fifth):
    A(f"""
    s_and_b32 s48, s2, 7
    s_lshl_b32 s48, s48, 3
    s_bfe_u32 s49, s2, 0x30003
    s_add_u32 s48, s48, s49
    s_lshr_b32 s51, s2, 6
    s_mul_i32 s49, s51, 5
    s_cmp_eq_u32 s51, 3
    s_subb_u32 s49, s49, 0
    s_and_b32 s50, s3, 3
    s_add_u32 s49, s49, {4 if fifth else 's50'}
    """)
def op_poll(A, t, sleep):
    A(f"""
    s_lshl_b32 s52, s49, 4
    s_lshl_b32 s54, s49, 3
    s_add_u32 s51, s54, 112
    s_cmp_lt_u32 s49, 14
    s_cselect_b32 s52, s52, s51
    s_cselect_b32 s51, 15, 7
    v_and_b32 v{t}, s51, v0
    v_add_u32 v{t}, s52, v{t}
    v_and_or_b32 v{t+1}, v0, 7, s54
    s_mov_b32 vcc_lo, 0x00ff0000
    s_mov_b32 vcc_hi, 0
    v_cndmask_b32 v{t}, v{t}, v{t+1}, vcc
    s_lshr_b32 s52, s48, 3
    s_bfe_u32 s51, s48, 0x20001
    s_lshl_b32 s51, s51, 3
    s_add_u32 s52, s52, s51
    s_add_u32 s52, s52, 224
    v_writelane_b32 v{t}, s52, 24
    s_and_b32 s52, s48, 0x38
    s_mov_b32 exec_lo, 0
    v_and_or_b32 v{t}, v0, 7, s52
    v_bfe_u32 v{t+1}, v0, 3, 2
    v_lshl_or_b32 v{t}, v{t+1}, 6, v{t}
    s_mov_b32 exec_lo, -1
    v_mul_u32_u24 v{t}, {FS}, v{t}
    s_mov_b32 s54, {FB_OFF}
    """)
    gpoll(A, [t], t+1, "s54", sleep=sleep)
def op_aaddr(A, va, vg, t):
    A(f"""
    v_and_b32 v{va}, 3, v0
    v_bfe_u32 v{t}, v0, 2, 1
    v_lshl_or_b32 v{va}, v{t}, 4, v{va}
    v_bfe_u32 v{t}, v0, 3, 2
    v_lshl_or_b32 v{va}, v{t}, 2, v{va}
    v_lshlrev_b32 v{va}, 13, v{va}
    v_lshrrev_b32 v{t}, 5, v0
    v_lshl_or_b32 v{va}, v{t}, 4, v{va}
    v_and_b32 v{vg}, 31, v0
    v_lshlrev_b32 v{vg}, 3, v{vg}
    s_lshl_b32 s52, s48, 8
    s_add_u32 s52, s52, {G_OFF}
    s_lshl_b32 s51, s49, 18
    s_lshl_b32 s54, s48, 6
    s_add_u32 s51, s51, s54
    s_add_u32 s51, s51, {AT_OFF}
    """)

def pg_wait(A, va, t, sleep, lane=0):
    l = uid("pg"); e = uid("pe")
    A(f"""
    v_bfe_u32 v{va}, v{lane}, 2, 1
    v_mul_u32_u24 v{va}, 304, v{va}
    v_and_b32 v{t}, 7, v{lane}
    v_lshl_add_u32 v{va}, v{t}, 2, v{va}
    v_add_u32 v{va}, {L_PG}, v{va}
    s_mov_b32 s{CAP}, 0x100000
    {l}:
    ds_read_b32 v{t}, v{va}
    s_sub_u32 s{CAP}, s{CAP}, 1
    s_cbranch_scc1 {e}
    s_waitcnt lgkmcnt(0)
    v_cmp_eq_u32 vcc, 0, v{t}
    s_cbranch_vccz {e}
    s_sleep {sleep}
    s_branch {l}
    {e}:
    """)

def ofetch(A):
    D = 94; F_W = 48; F_AC = 136; F_A = 130; F_DG = 152; F_G = 156
    A("s_setprio 3")
    op_ids(A, True)
    A("s_min_u32 s49, s49, 17")
    op_poll(A, F_G, 1)
    A("s_cmp_ge_u32 s2, 128\ns_cbranch_scc1 L_of_n5")
    op_aaddr(A, F_G+1, F_G+2, F_G+3)
    A(f"""
    s_and_b32 s54, s50, 1
    s_lshl_b32 s54, s54, 5
    s_add_u32 s51, s51, s54
    s_lshr_b32 s54, s50, 1
    s_lshl_b32 s54, s54, 12
    s_add_u32 s51, s51, s54
    s_waitcnt lgkmcnt(0)
    buffer_load_dword v{F_G}, v{F_G+2}, s[12:15], s52 offen sc1
    buffer_load_dwordx4 {v(F_A,4)}, v{F_G+1}, s[12:15], s51 offen sc1
    s_lshl_b32 s52, s49, 10
    s_add_u32 s52, s52, {WOT_OFF}
    s_mul_i32 s54, s50, {18*1024}
    s_add_u32 s51, s54, s52
    s_add_u32 s51, s51, {32*18*1024}
    s_lshl_b32 s54, s54, 3
    s_add_u32 s52, s52, s54
    """)
    for k in range(8): A(f"buffer_load_dwordx4 {v(F_W+4*k,4)}, v22, s[12:15], s52 offen sc1\ns_add_u32 s52, s52, {18*1024}")
    A(f"buffer_load_dwordx4 {v(F_W+32,4)}, v22, s[12:15], s51 offen sc1")
    srd(A, 8, P_OUT, 2048*1152)
    A(f"""
    v_lshrrev_b32 v41, 5, v0
    v_and_b32 v42, 31, v0
    v_lshlrev_b32 v43, 9, v41
    v_lshl_add_u32 v43, v42, 2, v43
    s_lshl_b32 s52, s50, 10
    s_add_u32 s54, s52, {L_O + 32*1024}
    v_add_u32 v43, s54, v43
    v_mul_u32_u24 v42, 1152, v42
    v_lshl_add_u32 v42, v41, 5, v42
    s_add_u32 s54, s52, {L_RED}
    v_add_u32 v45, s54, v22
    s_lshl_b32 s52, s50, 12
    s_add_u32 s52, s52, {L_RED}
    v_add_u32 v44, s52, v22
    v_mov_b32 v47, {L_FR}
    s_mul_i32 s53, s48, {32*1152}
    s_lshl_b32 s55, s49, 6
    s_add_u32 s53, s53, s55
    s_lshl_b32 s55, s50, 3
    s_add_u32 s53, s53, s55
    v_bfe_u32 v{F_G+2}, v0, 1, 1
    v_lshlrev_b32 v{F_G+2}, 4, v{F_G+2}
    v_sub_u32 v{F_G+2}, 16, v{F_G+2}
    s_and_b32 s54, s50, 1
    s_waitcnt vmcnt(9)
    v_lshrrev_b32 v{F_G}, v{F_G+2}, v{F_G}
    """)
    for r in range(4):
        m = 0x5 << (16*(r >> 1) + 4*(r & 1))
        A(f"s_lshl_b32 vcc_lo, {hex(m)}, s54\ns_lshl_b32 vcc_hi, vcc_lo, 8\nv_cndmask_b32 v{F_DG+r}, 0, v{F_G}, vcc")
    A(f"s_nop 1\nv_mfma_f32_32x32x16_bf16 {v(F_AC,16)}, {v(F_A,4)}, {v(F_DG,4)}, 0")
    A(f"""
    L_of_n5:
    s_mul_i32 s57, s48, {OF_TT}
    s_add_u32 s57, s57, {OF_OFF}
    s_lshl_b32 s58, s50, 13
    s_lshl_b32 s59, s50, 10
    s_add_u32 s59, s59, {32*1024}
    s_add_u32 s60, s57, s58
    s_add_u32 s61, s60, 4096
    s_add_u32 s62, s57, s59
    s_add_u32 s58, s58, {L_O}
    s_add_u32 s59, s59, {L_O}
    v_add_u32 v4, s58, v22
    v_add_u32 v5, s59, v22
    s_lshl_b32 s52, s50, 2
    s_add_u32 s52, s52, {L_QR}
    v_mov_b32 v6, s52
    s_lshl_b32 s55, s48, 5
    s_lshl_b32 s56, s50, 3
    s_add_u32 s55, s55, s56
    s_mul_i32 s55, s55, {FS}
    s_add_u32 s55, s55, {FO_OFF}
    v_and_b32 v8, 7, v0
    v_mul_u32_u24 v8, {FS}, v8
    """)
    pg_wait(A, 9, 10, 1)
    EM = 16
    for n in range(9): A(f"s_mov_b64 s[{EM+2*n}:{EM+2*n+1}], -1")
    stamp(A, 5)
    if os.environ.get("HP"):
        A(f"""
        s_mov_b32 s{CAP}, 0x40000
        buffer_load_dword v9, v8, s[12:15], s55 offen sc1
        s_sleep {os.environ.get("HP")}
        L_hp:
        buffer_load_dword v10, v8, s[12:15], s55 offen sc1
        s_waitcnt vmcnt(1)
        v_cmp_ne_u32 vcc, s{NONCE}, v9
        s_cbranch_vccz L_hp_e
        buffer_load_dword v9, v8, s[12:15], s55 offen sc1
        s_waitcnt vmcnt(1)
        v_cmp_ne_u32 vcc, s{NONCE}, v10
        s_cbranch_vccz L_hp_e
        s_sub_u32 s{CAP}, s{CAP}, 1
        s_cbranch_scc0 L_hp
        L_hp_e:
        """)
    else: gpoll(A, [8], 9, "s55", sleep=int(os.environ.get("HS", "6")))
    A(f"s_mov_b32 s{CAP}, 0x40000")
    stamp(A, 6)
    A("L_of_loop:")
    for n in range(9):
        A(f"s_mov_b64 exec, s[{EM+2*n}:{EM+2*n+1}]")
        A(f"buffer_load_dwordx4 {v(D+4*n,4)}, v22, s[12:15], s{60+n//4} offen offset:{1024*(n%4)} sc1")
    A("s_mov_b64 exec, -1\ns_mov_b64 s[34:35], 0")
    for n in range(9):
        A(f"s_waitcnt vmcnt({8-n})")
        A(f"ds_write_b128 v4, {v(D+4*n,4)} offset:{1024*n}" if n < 8 else f"ds_write_b128 v5, {v(D+32,4)}")
        A(f"v_max3_u32 v7, v{D+4*n}, v{D+4*n+1}, v{D+4*n+2}\nv_max_u32 v7, v7, v{D+4*n+3}\nv_cmp_eq_u32 s[{EM+2*n}:{EM+2*n+1}], -1, v7")
        if n: A(f"s_or_b64 s[34:35], s[34:35], s[{EM+2*n-2}:{EM+2*n-1}]")
    A(f"""
    s_sub_u32 s{CAP}, s{CAP}, 1
    s_cbranch_scc1 L_of_ok
    s_or_b64 s[34:35], s[34:35], s[{EM+16}:{EM+17}]
    s_cbranch_scc0 L_of_ok
    s_waitcnt lgkmcnt(0)
    s_branch L_of_loop
    L_of_ok:
    """)
    lset(A, 6, 0, 1, 7)
    stamp(A, 7)
    if DIAG: A(f"s_sub_u32 s88, 0x40000, s{CAP}")
    A(f"""
    s_cmp_ge_u32 s2, 128
    s_cbranch_scc1 L_end
    s_setprio {os.environ.get('FP', '0')}
    ds_read2_b32 v[10:11], v43 offset0:0 offset1:32
    ds_read2_b32 v[12:13], v43 offset0:64 offset1:96
    """)
    for k in range(8): A(f"v_mfma_f32_32x32x16_bf16 {v(F_AC,16)}, {v(F_W+4*k,4)}, {v(D+4*k,4)}, {v(F_AC,16)}")
    A(f"s_waitcnt lgkmcnt(0)\nv_mfma_f32_32x32x16_bf16 {v(F_AC,16)}, {v(F_W+32,4)}, v[10:13], {v(F_AC,16)}\ns_setprio 3\ns_nop 10")
    for i in range(4): A(f"ds_write_b128 v44, {v(F_AC+4*i,4)} offset:{1024*i}")
    lset(A, 6, 320, 1, 7)
    lpoll(A, 47, 0, 4, 1, 10, sleep=1)
    OB = 94
    for i in range(4): A(f"ds_read_b128 {v(OB+4*i,4)}, v45 offset:{4096*i}")
    A("s_waitcnt lgkmcnt(2)")
    for i in range(4): A(f"v_add_f32 v{OB+i}, v{OB+i}, v{OB+4+i}")
    A("s_waitcnt lgkmcnt(0)")
    for i in range(4): A(f"v_add_f32 v{OB+8+i}, v{OB+8+i}, v{OB+12+i}")
    for i in range(4): A(f"v_add_f32 v{OB+i}, v{OB+i}, v{OB+8+i}")
    A(f"v_cvt_pk_bf16_f32 v{OB}, v{OB}, v{OB+1}\nv_cvt_pk_bf16_f32 v{OB+1}, v{OB+2}, v{OB+3}")
    A(f"buffer_store_dwordx2 {v(OB,2)}, v42, s[8:11], s53 offen")

def outproj(A):
    AC = 4; WF = 20; OB = 148
    FT = 164
    AF = WF; DG = WF + 16; G = WF + 24; ND = 7
    op_ids(A, False)
    op_poll(A, 4, 16)
    stamp(A, 8)
    op_aaddr(A, 1, G+1, 2)
    A(f"""
    buffer_load_dword v{G}, v{G+1}, s[12:15], s52 offen sc1
    buffer_load_dwordx4 {v(AF,4)}, v1, s[12:15], s51 offen sc1
    buffer_load_dwordx4 {v(AF+4,4)}, v1, s[12:15], s51 offen offset:32 sc1
    s_add_u32 s51, s51, 4096
    buffer_load_dwordx4 {v(AF+8,4)}, v1, s[12:15], s51 offen sc1
    buffer_load_dwordx4 {v(AF+12,4)}, v1, s[12:15], s51 offen offset:32 sc1
    v_lshlrev_b32 v1, 4, v0
    s_lshl_b32 s52, s49, 10
    s_add_u32 s52, s52, {WOT_OFF}
    s_lshl_b32 s54, s50, 12
    s_add_u32 s54, s54, {L_WE}
    s_add_u32 s63, s52, {ND*18*1024}
    """)
    for i in range(ND, 32): A(f"buffer_load_dwordx4 {v(WF+4*i,4)}, v1, s[12:15], s63 offen sc1\ns_add_u32 s63, s63, {18*1024}")
    A(f"""
    v_bfe_u32 v{G+2}, v0, 1, 1
    v_lshlrev_b32 v{G+2}, 4, v{G+2}
    v_sub_u32 v{G+2}, 16, v{G+2}
    s_waitcnt vmcnt({32-ND})
    v_lshrrev_b32 v{G}, v{G+2}, v{G}
    """)
    for c in range(2):
        for r in range(4):
            m = 0x5 << (16*(r >> 1) + 4*(r & 1) + c)
            A(f"s_mov_b32 vcc_lo, {hex(m)}\ns_mov_b32 vcc_hi, {hex(m << 8)}\nv_cndmask_b32 v{DG+4*c+r}, 0, v{G}, vcc")
    A("s_nop 1")
    for c in range(4): A(f"v_mfma_f32_32x32x16_bf16 {v(AC,16)}, {v(AF+4*c,4)}, {v(DG+4*(c&1),4)}, {'0' if c == 0 else v(AC,16)}")
    for i in range(ND): A(f"buffer_load_dwordx4 {v(WF+4*i,4)}, v1, s[12:15], s52 offen sc1\ns_add_u32 s52, s52, {18*1024}")
    srd(A, 8, P_OUT, 2048*1152)
    A(f"""
    s_lshl_b32 s55, s2, 4
    s_add_u32 s55, s55, s3
    s_cmp_lg_u32 s55, 11
    s_cbranch_scc1 L_op_noep
    v_mul_u32_u24 v{OB}, {FS}, v0
    v_add_u32 v{OB+1}, {64*FS}, v{OB}
    v_add_u32 v{OB+2}, {128*FS}, v{OB}
    v_add_u32 v{OB+3}, {192*FS}, v{OB}
    s_mov_b32 s55, {FB_OFF}
    """)
    gpoll(A, [OB, OB+1, OB+2, OB+3], OB+4, "s55", sleep=16)
    A(f"s_mov_b32 s55, {EP_OFF}")
    gflag(A, "s55", OB)
    A(f"""
    L_op_noep:
    v_mov_b32 v{OB+2}, v0
    v_lshrrev_b32 v3, 5, v0
    v_and_b32 v2, 31, v0
    v_and_b32 v{FT+1}, 3, v0
    v_lshlrev_b32 v{FT+1}, 2, v{FT+1}
    v_add_u32 v{FT+1}, {L_QR}, v{FT+1}
    v_lshlrev_b32 v0, 9, v3
    v_lshl_add_u32 v0, v2, 2, v0
    v_add_u32 v0, {L_O + 32*1024}, v0
    v_mul_u32_u24 v2, 1152, v2
    v_lshl_add_u32 v2, v3, 5, v2
    v_add_u32 v3, s54, v1
    s_mul_i32 s53, s48, {32*1152}
    s_lshl_b32 s56, s49, 6
    s_add_u32 s53, s53, s56
    s_mov_b32 m0, s54
    s_mov_b32 s56, 15
    """)
    pg_wait(A, OB, OB+1, int(os.environ.get("PGS", "12")), lane=OB+2)
    stamp(A, 9)
    for e in range(4): A(f"buffer_load_dwordx4 v1, s[12:15], s63 offen sc1 lds\ns_add_u32 m0, m0, 1024\ns_add_u32 s63, s63, {18*1024}")
    A(f"""
    v_add_u32 v1, {L_O}, v1
    s_mov_b32 s{CAP}, 0x400000
    s_setprio 0
    s_waitcnt vmcnt(0)
    L_op_poll:
    ds_read_b32 v{FT}, v{FT+1}
    s_sub_u32 s{CAP}, s{CAP}, 1
    s_cselect_b32 s57, 15, 0
    s_cselect_b32 s{CAP}, 0, s{CAP}
    s_waitcnt lgkmcnt(0)
    v_cmp_ne_u32 vcc, 0, v{FT}
    s_or_b32 s57, s57, vcc_lo
    s_and_b32 s57, s57, s56
    s_cbranch_scc0 L_op_poll
    s_ff1_i32_b32 s58, s57
    s_lshl_b32 s59, s58, 13
    v_add_u32 v{FT+3}, s59, v1
    """)
    for i in range(4): A(f"ds_read_b128 {v(OB+4*i,4)}, v{FT+3} offset:{i*1024}")
    A("""
    L_op_disp:
    s_cmp_eq_u32 s58, 0
    s_cbranch_scc1 L_op_q0
    s_cmp_eq_u32 s58, 1
    s_cbranch_scc1 L_op_q1
    s_cmp_eq_u32 s58, 2
    s_cbranch_scc1 L_op_q2
    """)
    for q in (3, 0, 1, 2):
        A(f"L_op_q{q}:")
        if DIAG: A("s_mov_b32 s74, s76\ns_mov_b32 s76, s78\ns_mov_b32 s78, s80"); stamp(A, 4)
        w = WF + 32*q
        mf = lambda a, b: A(f"v_mfma_f32_32x32x16_bf16 {v(AC,16)}, {v(a,4)}, {v(b,4)}, {v(AC,16)}")
        A(f"ds_read_b32 v{FT}, v{FT+1}\nv_add_u32 v{FT+2}, {1024*q}, v0\ns_bitset0_b32 s56, {q}")
        for i in range(4):
            A(f"s_waitcnt lgkmcnt({[4,4,4,7][i]})")
            mf(w+4*i, OB+4*i)
            A(f"ds_read_b128 {v(OB+4*i,4)}, v1 offset:{(8*q+4+i)*1024}")
            if i == 2:
                A(f"ds_read_b128 {v(w,4)}, v3 offset:{1024*q}")
                A(f"ds_read2_b32 {v(w+4,2)}, v{FT+2} offset0:0 offset1:32\nds_read2_b32 {v(w+6,2)}, v{FT+2} offset0:64 offset1:96")
        A(f"""
        s_waitcnt lgkmcnt(6)
        v_cmp_ne_u32 vcc, 0, v{FT}
        """)
        mf(w+16, OB)
        A(f"""
        s_and_b32 s57, vcc_lo, s56
        s_ff1_i32_b32 s58, s57
        s_lshl_b32 s59, s58, 13
        v_add_u32 v{FT+3}, s59, v1
        ds_read_b128 {v(OB,4)}, v{FT+3}
        s_waitcnt lgkmcnt(6)
        """)
        mf(w+20, OB+4)
        A(f"ds_read_b128 {v(OB+4,4)}, v{FT+3} offset:1024\ns_waitcnt lgkmcnt(6)")
        mf(w+24, OB+8)
        A(f"ds_read_b128 {v(OB+8,4)}, v{FT+3} offset:2048\ns_waitcnt lgkmcnt(3)")
        mf(w+28, OB+12)
        A(f"ds_read_b128 {v(OB+12,4)}, v{FT+3} offset:3072\ns_cmp_lg_u32 s57, 0")
        mf(w, w+4)
        A("s_cbranch_scc1 L_op_disp\ns_cmp_lg_u32 s56, 0\ns_cbranch_scc1 L_op_poll")
        if q != 2: A("s_branch L_op_fin")
    A("L_op_fin:")
    stamp(A, 10)
    A("s_nop 8")
    for j in range(8): A(f"v_cvt_pk_bf16_f32 v{AC+j}, v{AC+2*j}, v{AC+2*j+1}")
    for m in range(2): A(f"buffer_store_dwordx4 {v(AC+4*m,4)}, v2, s[8:11], s53 offen offset:{16*m}")

def fused(A, name):
    head(A, name)
    stamp_init(A)
    A(f"""
    s_load_dwordx16 s[16:31], s[0:1], 0
    s_load_dwordx16 s[32:47], s[0:1], 64
    v_lshrrev_b32 v1, 6, v0
    v_and_b32 v0, 63, v0
    v_readfirstlane_b32 s3, v1
    s_cmp_ge_u32 s2, 224
    s_cbranch_scc1 L_aux
    s_lshl_b32 s99, s2, 1
    s_mov_b32 s98, 0
    s_cmp_eq_u32 s3, 8
    s_cbranch_scc1 L_ldx
    s_cmp_eq_u32 s3, 9
    s_cbranch_scc1 L_ldw
    s_cmp_eq_u32 s3, 11
    s_cbranch_scc1 L_util
    s_cmp_lt_u32 s3, 4
    s_cbranch_scc1 L_gemm
    s_cmp_lt_u32 s3, 8
    s_cbranch_scc1 L_kgen
    s_lshr_b32 s48, s2, 3
    s_mov_b32 s49, {L_TR}
    s_and_b32 s52, s2, 1
    s_mul_i32 s52, s52, 28
    s_add_u32 s48, s48, s52
    s_mul_i32 s50, s48, 9363
    s_lshr_b32 s50, s50, 16
    s_mul_i32 s51, s50, 7
    s_sub_u32 s51, s48, s51
    s_and_b32 s52, s2, 6
    s_lshl_b32 s52, s52, 2
    s_add_u32 s50, s50, s52
    L_tru:
    s_setprio 3
    """)
    trans_u(A)
    A("s_branch L_ucopy")
    A.label("L_ldx"); gemm_loader(A, True); A("s_branch L_kv")
    A.label("L_ldw"); gemm_loader(A, False); A("s_branch L_kv")
    A.label("L_gemm")
    gemm_compute(A, "L_attn")
    A.label("L_gate")
    A("s_lshl_b32 s48, s50, 1\ns_add_u32 s48, s48, s3\ns_sub_u32 s48, s48, 8")
    gate(A)
    A("s_branch L_kv")
    A.label("L_aux")
    A(f"""
    s_cmp_ge_u32 s2, 256
    s_cbranch_scc1 L_exit
    s_cmp_lg_u32 s3, 9
    s_cbranch_scc1 L_aux1
    v_mov_b32 v2, 0
    v_lshlrev_b32 v3, 2, v0
    v_add_u32 v3, {L_FL}, v3
    ds_write_b32 v3, v2
    s_waitcnt lgkmcnt(0)
    L_aux1:
    s_barrier
    s_sub_u32 s50, s2, 224
    s_lshl_b32 s99, s50, 2
    s_add_u32 s99, s99, 448
    s_mov_b32 s98, 0
    s_and_b32 s52, s50, 7
    s_lshr_b32 s50, s50, 3
    s_lshl_b32 s52, s52, 2
    s_add_u32 s50, s50, s52
    s_sub_u32 s51, s3, 3
    s_and_b32 s49, s3, 1
    s_mul_i32 s49, s49, {UC_CH}
    s_cmp_ge_u32 s3, 10
    s_cbranch_scc1 L_tru
    s_cmp_ge_u32 s3, 8
    s_cbranch_scc1 L_gate
    s_cmp_ge_u32 s3, 4
    s_cbranch_scc1 L_kgen
    s_mov_b32 s98, {SET1}
    s_add_u32 s99, s99, 2
    L_kgen:
    s_and_b32 s50, s3, 1
    s_add_u32 s99, s99, s50
    s_mov_b32 s48, s99
    s_bfe_u32 s63, s3, 0x10001
    s_cmp_lg_u32 s98, 0
    s_cselect_b32 s51, 32768, 0
    s_cselect_b32 s53, 16, 0
    s_add_u32 s51, s51, {L_KG}
    s_add_u32 s53, s53, {L_FL}
    s_and_b32 s52, s3, 3
    s_mul_i32 s49, s52, {KG_SZ}
    s_add_u32 s49, s49, s51
    s_xor_b32 s52, s52, 2
    s_mul_i32 s64, s52, {KG_SZ}
    s_add_u32 s64, s64, s51
    s_mul_i32 s67, s50, {KC_CH}
    s_add_u32 s67, s67, {L_KC}
    s_sub_u32 s67, s67, s98
    s_lshl_b32 s50, s50, 3
    s_lshl_b32 s51, s63, 2
    s_add_u32 s50, s50, s51
    s_add_u32 s50, s50, s53
    v_mov_b32 v3, s50
    """)
    kgen(A, conv_pre)
    A.label("L_conv")
    if FINE: STAMP_ON[0] = False
    conv(A)
    A.label("L_attn")
    attn(A)
    A.label("L_util")
    A(f"""
    v_mov_b32 v2, 0
    v_lshlrev_b32 v3, 2, v0
    v_add_u32 v3, {L_FL}, v3
    ds_write_b32 v3, v2
    s_getpc_b64 s[50:51]
    L_pf_pc:
    s_sub_u32 s50, s50, L_pf_pc-{name}
    s_subb_u32 s51, s51, 0
    v_lshlrev_b32 v2, 7, v0
    s_bfe_u32 s52, s2, 0x20003
    s_mul_i32 s52, s52, 6144
    v_add_u32 v2, s52, v2
    global_load_dword v100, v2, s[50:51]
    """)
    A("s_cmp_ge_u32 s2, 144\ns_cbranch_scc1 L_util2")
    trans_wo_load(A)
    A("L_util2:\ns_waitcnt lgkmcnt(0)")
    ws_setup(A); get_nonce(A)
    A("L_utb:\n" + "s_barrier\n"*4)
    A.label("L_ucopy")
    ucopy(A)
    A("s_cmp_eq_u32 s3, 10\ns_cbranch_scc1 L_kv\ns_cmp_ge_u32 s2, 144\ns_cbranch_scc1 L_kv")
    trans_wo_store(A)
    A.label("L_kv")
    kv_loader(A)
    outproj(A)
    A.label("L_end")
    endpgm(A, 0)
    A("L_exit:\ns_endpgm")
    A.raw(".p2align 4\n.type kgen_tab,@object\nkgen_tab:")
    T = kgen_table()
    for i in range(0, len(T), 8): A.raw("    .long " + ", ".join(str(x) for x in T[i:i+8]))
    A.raw(f".size kgen_tab, {4*len(T)}")
    A.raw(f".type code_pad,@object\ncode_pad:\n.fill (26880 - (code_pad - {name})) / 4, 4, 0\n.size code_pad, . - code_pad")

if __name__ == "__main__":
    import sys
    NAME = "gated_mix__ssm_conv_s4__mha_block__prompt_kernel"
    HDR = open("gated_mix__ssm_conv_s4__mha_block__prompt.s.ref").read().split("; Override launch")[0]
    A = Asm(); fused(A, NAME)
    aslist = len(sys.argv) > 2
    out = HDR + (f"; @launch kernel={NAME} grid=(256,1,1) block=(768,1,1) lds=163840\n" if aslist else "; @launch grid=(256,1,1) block=(768,1,1) lds=163840\n")
    out += '.amdgcn_target "amdgcn-amd-amdhsa--gfx950"\n.text\n' + A.text() + '.section .rodata,"a"\n' + kd(NAME, NV)
    open(sys.argv[1], "w").write(out)
```

```python
import math
from asmlib import *
from lay2 import *
LOG2E = 1.4426950408889634
QSCALE = LOG2E / math.sqrt(18.0)
FINE = int(os.environ.get("FINE", "0"))
if FINE:
    _st = stamp
    import asmlib
PFF = os.environ.get("PFF", "")
LSL = int(os.environ.get("LSL", "0"))
NOKG = os.environ.get("NOKG")
NOTR = os.environ.get("NOTR")
NONCE = 70
CAP = 71
_uid = [0]
def uid(p):
    _uid[0] += 1
    return f"L_{p}{_uid[0]}"

def ws_setup(A):
    srd(A, 12, P_WS, WS_USED)
    A(f"s_add_u32 s100, s{P_WS}, {EP_OFF}\ns_addc_u32 s101, s{P_WS+1}, 0\ns_load_dword s{NONCE}, s[100:101], 0")
def get_nonce(A):
    A(f"s_waitcnt lgkmcnt(0)\ns_mul_i32 s{NONCE}, s{NONCE}, 0x9e3779b1\ns_add_u32 s{NONCE}, s{NONCE}, 0x7f4a7c15")
def gpoll(A, voffs, vt, soff="0", sleep=2):
    l = uid("gp"); e = uid("ge")
    A(f"s_mov_b32 s{CAP}, 0x40000\n{l}:")
    for i, vo in enumerate(voffs): A(f"buffer_load_dword v{vt+i}, v{vo}, s[12:15], {soff} offen sc1")
    A(f"s_sub_u32 s{CAP}, s{CAP}, 1\ns_cbranch_scc1 {e}\ns_waitcnt vmcnt(0)")
    for i in range(len(voffs)): A(f"v_xor_b32 v{vt+i}, s{NONCE}, v{vt+i}")
    for i in range(1, len(voffs)): A(f"v_or_b32 v{vt}, v{vt}, v{vt+i}")
    A(f"v_cmp_ne_u32 vcc, 0, v{vt}\ns_cbranch_vccz {e}\n{('s_sleep %d' % sleep) if sleep else ''}\ns_branch {l}\n{e}:")
def gflag(A, soff, vt):
    A(f"""
    v_mov_b32 v{vt}, s{NONCE}
    v_mov_b32 v{vt+1}, 0
    s_mov_b64 exec, 1
    buffer_store_dword v{vt}, v{vt+1}, s[12:15], {soff} offen sc1
    s_mov_b64 exec, -1
    """)
def lpoll(A, va, off, n, val, vt, st=69, sleep=1):
    l = uid("lp"); e = uid("le")
    if sleep and os.environ.get("BIGSL"): sleep = 40
    op = {1: "ds_read_b32", 2: "ds_read_b64", 4: "ds_read_b128"}[n]
    A(f"s_mov_b32 s{CAP}, 0x100000\n{l}:\n{op} {v(vt,n)}, v{va} offset:{off}\ns_sub_u32 s{CAP}, s{CAP}, 1\ns_cbranch_scc1 {e}\ns_waitcnt lgkmcnt(0)")
    if n == 2: A(f"v_min_u32 v{vt}, v{vt}, v{vt+1}\ns_nop 0")
    if n == 4: A(f"v_min3_u32 v{vt}, v{vt}, v{vt+1}, v{vt+2}\nv_min_u32 v{vt}, v{vt}, v{vt+3}\ns_nop 0")
    A(f"v_readfirstlane_b32 s{st}, v{vt}\ns_cmp_ge_u32 s{st}, {val}\ns_cbranch_scc1 {e}\n{('s_sleep %d' % sleep) if sleep else ''}\ns_branch {l}\n{e}:")
def lset(A, va, off, val, vt):
    A(f"v_mov_b32 v{vt}, {val}\ns_mov_b64 exec, 1\nds_write_b32 v{va}, v{vt} offset:{off}\ns_mov_b64 exec, -1")

def acc_t(A, slot):
    if FINE and DIAG:
        A(f"s_memtime s[58:59]\ns_waitcnt lgkmcnt(0)\ns_sub_u32 s61, s58, s60\ns_mov_b32 s60, s58")
        if slot is not None: A(f"s_add_u32 s{72+2*slot}, s{72+2*slot}, s61")
def gb(A, n=1):
    sk = uid("gb")
    A(f"s_cmp_ge_u32 s2, 224\ns_cbranch_scc1 {sk}\n" + "s_barrier\n"*n + f"{sk}:")
def rgcg(A):
    A(f"""
    s_and_b32 s53, s2, 7
    s_lshr_b32 s54, s2, 3
    s_lshr_b32 s55, s53, 1
    s_lshl_b32 s55, s55, 2
    s_and_b32 s56, s54, 3
    s_add_u32 s48, s55, s56
    s_and_b32 s53, s53, 1
    s_mul_i32 s53, s53, 7
    s_lshr_b32 s54, s54, 2
    s_add_u32 s49, s53, s54
    """)

LA = int(os.environ.get('LA', '2'))
ROT = int(os.environ.get("ROT", "2"))
def rot_code(cs):
    if ROT == 0: return "s_mov_b32 s50, 0"
    if ROT == 1:
        return f"""s_bfe_u32 s50, s2, 0x20003
    s_lshr_b32 s51, s2, 5
    s_add_u32 s50, s50, s51
    s_lshl_b32 s50, s50, 1
    s_cmp_ge_u32 s50, 9
    s_cselect_b32 s51, 9, 0
    s_sub_u32 s50, s50, s51
    s_cmp_ge_u32 s50, 9
    s_cselect_b32 s51, 9, 0
    s_sub_u32 s50, s50, s51
    s_mul_i32 s50, s50, {cs}"""
    if ROT == 2:
        return f"""s_and_b32 s50, s2, 7
    s_lshr_b32 s51, s50, 1
    s_lshl_b32 s51, s51, 1
    s_and_b32 s50, s50, 1
    s_mul_i32 s50, s50, 4
    s_add_u32 s50, s50, s51
    s_cmp_ge_u32 s50, 9
    s_cselect_b32 s51, 9, 0
    s_sub_u32 s50, s50, s51
    s_mul_i32 s50, s50, {cs}"""
    if ROT == 3:
        return f"""s_bfe_u32 s50, s2, 0x10003
    s_bfe_u32 s51, s2, 0x10005
    s_xor_b32 s50, s50, s51
    s_mul_i32 s50, s50, {4*cs}"""
def gemm_loader(A, isx):
    VD = 4; VF = 8; VT = 10
    rgcg(A)
    if isx:
        A(f"""
        s_lshl_b32 s53, s48, 7
        v_lshrrev_b32 v1, 3, v0
        v_add_u32 v1, s53, v1
        v_mul_u32_u24 v1, 1152, v1
        v_lshrrev_b32 v2, 4, v0
        v_and_b32 v3, 7, v0
        v_xor_b32 v3, v3, v2
        v_lshl_add_u32 v{VD}, v3, 4, v1
        v_xor_b32 v3, 4, v3
        v_lshl_add_u32 v{VD+1}, v3, 4, v1
        v_add_u32 v{VD+1}, 8192, v{VD+1}
        v_add_u32 v{VD+2}, 16384, v{VD}
        v_add_u32 v{VD+3}, 16384, v{VD+1}
        """)
    else:
        A(f"""
        v_lshrrev_b32 v2, 4, v0
        v_mul_u32_u24 v1, 3456, v2
        v_and_b32 v3, 15, v0
        v_lshlrev_b32 v2, 2, v2
        v_xor_b32 v3, v3, v2
        v_lshl_add_u32 v1, v3, 4, v1
        s_lshl_b32 s53, s49, 8
        v_add_u32 v{VD}, s53, v1
        v_add_u32 v{VD+1}, 12800, v{VD}
        v_add_u32 v{VD+2}, 25600, v{VD}
        v_add_u32 v{VD+3}, 38400, v{VD}
        """)
    cs, gs = (128, 32*1152) if isx else (64*3456, 16*3456)
    lp = uid("ld")
    A(f"""
    {rot_code(cs)}
    s_mov_b32 s51, {0 if isx else 16384}
    s_mov_b32 s52, 0x18000
    s_mov_b32 s53, 0
    s_waitcnt lgkmcnt(0)
    """)
    if isx: srd(A, 4, P_U, 2048*1152)
    else: srd(A, 4, P_WQKV, 576*3456)
    stamp(A, 1)
    acc_t(A, None)
    A(f"{lp}:\ns_mov_b32 m0, s51\ns_add_u32 s54, s50, {gs}")
    for g in range(4):
        so = (50, 54, 55, 56)[g]
        for n in range(4): A(f"buffer_load_dwordx4 v{VD+n}, s[4:7], s{so} offen offset:{1024*n} lds")
        if g < 3: A(f"s_add_u32 m0, s51, {4096*(g+1)}")
        if g < 2: A(f"s_add_u32 s{(55, 56)[g]}, s50, {gs*(g+2)}")
        elif g == 2: A(f"s_add_u32 s50, s50, {cs}" + (f"\ns_cmp_eq_u32 s50, {9*cs}\ns_cselect_b32 s50, 0, s50" if ROT else ""))
    acc_t(A, 4)
    A(f"""
    s_xor_b32 s51, s51, s52
    s_xor_b32 s52, s52, 0x10000
    s_add_u32 s53, s53, 1
    s_cmp_lt_u32 s53, {LA}
    s_cbranch_scc1 {lp}
    s_waitcnt vmcnt({16*(LA-1)})
    """)
    acc_t(A, 5)
    A("s_barrier")
    acc_t(A, 6)
    A(f"s_cmp_lt_u32 s53, 9\ns_cbranch_scc1 {lp}")
    ws_setup(A)
    if LA == 3: A("s_waitcnt vmcnt(16)\ns_barrier")
    A("s_waitcnt vmcnt(0)\ns_barrier")
    get_nonce(A)
    stamp(A, 3)

def gemm_compute(A, done_label):
    AX, AW = 4, 8
    VFL, VDN, PT = 10, 11, 12
    FR = 16
    ACC = 80
    rgcg(A)
    A(f"""
    s_and_b32 s53, s3, 1
    s_lshr_b32 s54, s3, 1
    s_lshl_b32 s55, s53, 13
    v_and_b32 v1, 31, v0
    v_lshlrev_b32 v1, 7, v1
    v_add_u32 v1, s55, v1
    v_lshrrev_b32 v2, 5, v0
    v_bfe_u32 v3, v0, 1, 3
    v_xor_b32 v3, v3, v2
    v_lshl_add_u32 v{AX}, v3, 4, v1
    v_xor_b32 v{AX+1}, 32, v{AX}
    v_xor_b32 v{AX+2}, 0x40040, v{AX}
    v_xor_b32 v{AX+3}, 0x40060, v{AX}
    v_bfe_u32 v1, v0, 2, 2
    v_lshl_add_u32 v3, v2, 3, v1
    v_lshlrev_b32 v3, 8, v3
    s_lshl_b32 s55, s54, 1
    v_xor_b32 v1, s55, v1
    v_lshl_add_u32 v3, v1, 6, v3
    v_bfe_u32 v1, v0, 4, 1
    v_lshl_add_u32 v3, v1, 5, v3
    v_and_b32 v1, 3, v0
    v_lshl_add_u32 v3, v1, 3, v3
    v_add_u32 v{AW}, 0x44000, v3
    v_xor_b32 v{AW+1}, 64, v{AW}
    v_mov_b32 v{VFL}, {L_FL}
    s_lshl_b32 s56, s48, 1
    s_add_u32 s56, s56, s53
    s_lshl_b32 s57, s49, 1
    s_add_u32 s57, s57, s54
    s_waitcnt lgkmcnt(0)
    """)
    ws_setup(A); get_nonce(A)
    for i in range(32): A(f"v_mov_b32 v{FR+i}, 0")
    for i in range(64): A(f"v_mov_b32 v{ACC+i}, 0")
    A("s_setprio 2\ns_mov_b32 s62, 0\ns_mov_b32 s63, 0x40000\ns_mov_b32 s64, 0x18000")
    def reads(ks, part):
        b = FR + 16*ks
        if part == 0:
            for t in range(2): A(f"ds_read_b128 {v(b+4*t,4)}, v{AX+ks} offset:{4096*t}")
        else:
            f = part - 1
            for t in range(2): A(f"ds_read_b64_tr_b16 {v(b+8+4*f+2*t,2)}, v{AW+f} offset:{ks*4096+t*1024}")
    def mf(ks, i, vtype):
        b = FR + 16*ks
        t, f = i >> 1, i & 1
        d = v(ACC+16*i, 16); x = v(b+4*t, 4); w = v(b+8+4*f, 4)
        if "m" in os.environ.get("GX", ""): A("s_nop 0"); return
        A(f"v_mfma_f32_32x32x16_bf16 {d}, {x if vtype else w}, {w if vtype else x}, {d}")
    def main(vtype):
        lp = uid("gm"); nb = uid("gnb")
        A.raw(".p2align 6")
        A.label(lp)
        for ks in range(4):
            A(f"s_waitcnt lgkmcnt(6)")
            mf(ks, 0, vtype)
            if ks == 2:
                A(f"s_cbranch_scc1 {nb}")
                if LA == 3: A("s_waitcnt lgkmcnt(0)")
                if FINE and DIAG: A("s_memtime s[58:59]")
                A("s_barrier")
                if FINE and DIAG: A("s_memtime s[60:61]\ns_waitcnt lgkmcnt(0)\ns_sub_u32 s60, s60, s58\ns_add_u32 s86, s86, s60")
                if DIAG and os.environ.get("CS"):
                    sk = uid("sk"); A(f"s_cmp_lg_u32 s62, 0\ns_cbranch_scc1 {sk}"); stamp(A, 1); A(f"{sk}:")
                A(f"{nb}:")
            kn = (ks+2) & 3
            reads(kn, 0)
            mf(ks, 1, vtype)
            reads(kn, 1)
            if ks == 3: A("s_add_u32 s62, s62, 1")
            mf(ks, 2, vtype)
            reads(kn, 2)
            if ks == 1: A("s_cmp_eq_u32 s62, 9")
            if ks == 3: A(f"v_xor_b32 v{AX+kn}, s64, v{AX+kn}\ns_mov_b32 s63, s64\ns_xor_b32 s64, s64, 0x10000\ns_cmp_lt_u32 s62, 10")
            mf(ks, 3, vtype)
            if ks < 3: A(f"v_xor_b32 v{AX+kn}, s{63 if ks < 2 else 64}, v{AX+kn}")
            if ks == 1: A(f"v_xor_b32 v{AW}, s63, v{AW}\nv_xor_b32 v{AW+1}, s63, v{AW+1}")
        A(f"s_cbranch_scc1 {lp}")
        A(f"s_setprio {os.environ.get('EP', '2')}")
        stamp(A, 4)
    A(f"s_cmp_eq_u32 s57, 27\ns_cbranch_scc1 L_g_gate\ns_cmp_ge_u32 s49, 9\ns_cbranch_scc1 L_g_vtype")
    main(False)
    A(f"""
    s_mul_i32 s58, s56, {2*QKQ_TT}
    s_lshl_b32 s59, s57, 12
    s_add_u32 s58, s58, s59
    s_add_u32 s59, s58, {QKQ_TT}
    s_mov_b32 s60, {f32(QSCALE)}
    s_cmp_lt_u32 s57, 9
    s_nop 0
    v_and_b32 v1, 15, v0
    v_lshlrev_b32 v1, 4, v1
    v_bfe_u32 v2, v0, 4, 1
    v_lshl_or_b32 v1, v2, 9, v1
    v_lshrrev_b32 v2, 5, v0
    v_lshl_or_b32 v1, v2, 8, v1
    """)
    for i in range(4):
        t, f = i >> 1, i & 1
        a = ACC + 16*i
        sk = uid("ns")
        A(f"s_cbranch_scc0 {sk}")
        for j in range(16): A(f"v_mul_f32 v{a+j}, s60, v{a+j}")
        A(f"{sk}:")
        for j in range(8): A(f"v_cvt_pk_bf16_f32 v{a+j}, v{a+2*j}, v{a+2*j+1}")
        A(f"v_permlane16_swap_b32 v{a}, v{a+2}\nv_permlane16_swap_b32 v{a+1}, v{a+3}")
        A(f"v_permlane16_swap_b32 v{a+4}, v{a+6}\nv_permlane16_swap_b32 v{a+5}, v{a+7}")
        for g in range(2):
            A(f"buffer_store_dwordx4 {v(a+4*g,4)}, v1, s[12:15], s{58+t} offen offset:{f*2048+g*1024} sc1")
    A(f"s_branch L_g_pub")
    A.label("L_g_gate")
    srd(A, 4, P_GW, 1152)
    A(f"""
    {rot_code(128)}
    s_lshl_b32 s51, s53, 11
    s_add_u32 s51, s51, {L_GW}
    s_mov_b32 m0, s51
    v_lshlrev_b32 v1, 4, v0
    buffer_load_dwordx4 v1, s[4:7], 0 offen lds
    buffer_load_dwordx4 v1, s[4:7], 0 offen offset:1024 lds
    v_lshl_add_u32 v{AW+1}, v2, 4, s51
    s_waitcnt vmcnt(0)
    L_gt_loop:
    """)
    for ks in range(4):
        kn = (ks+2) & 3; b = FR + 16*ks; bn = FR + 16*kn
        A(f"s_waitcnt lgkmcnt(3)\nv_mfma_f32_32x32x16_bf16 {v(ACC,16)}, {v(b+8,4)}, {v(b,4)}, {v(ACC,16)}")
        if ks == 2: A("s_cbranch_scc1 L_gt_nb\ns_barrier\nL_gt_nb:")
        reads(kn, 0)
        A(f"ds_read_b128 {v(bn+8,4)}, v{AW} offset:{32*kn}")
        A(f"v_mfma_f32_32x32x16_bf16 {v(ACC+16,16)}, {v(b+8,4)}, {v(b+4,4)}, {v(ACC+16,16)}")
        A(f"v_xor_b32 v{AX+kn}, s{63 if ks < 2 else 64}, v{AX+kn}")
        if ks == 1: A(f"v_add_u32 v{AW}, s50, v{AW+1}\ns_add_u32 s50, s50, 128\ns_cmp_eq_u32 s50, 1152\ns_cselect_b32 s50, 0, s50\ns_cmp_eq_u32 s62, 9")
        if ks == 3: A("s_mov_b32 s63, s64\ns_xor_b32 s64, s64, 0x10000\ns_add_u32 s62, s62, 1\ns_cmp_lt_u32 s62, 10")
    Z = ACC
    A(f"""
    s_cbranch_scc1 L_gt_loop
    s_lshl_b32 s52, s56, 9
    s_add_u32 s52, s52, {G_OFF}
    v_lshlrev_b32 v1, 3, v0
    s_nop 3
    s_mov_b32 exec_lo, 0
    v_mov_b32 v{Z}, v{Z+16}
    s_mov_b32 exec_lo, -1
    v_cvt_pk_bf16_f32 v{Z}, v{Z}, v{Z}
    v_and_b32 v{Z}, 0xffff0000, v{Z}
    v_mul_f32 v{Z}, {f32(-LOG2E)}, v{Z}
    v_exp_f32 v{Z}, v{Z}
    s_nop 0
    v_add_f32 v{Z}, 1.0, v{Z}
    v_rcp_f32 v{Z}, v{Z}
    s_nop 0
    v_cvt_pk_bf16_f32 v{Z}, v{Z}, v{Z}
    v_and_b32 v{Z}, 0xffff0000, v{Z}
    v_sub_f32 v{Z+1}, 1.0, v{Z}
    v_cvt_pk_bf16_f32 v{Z+1}, v{Z+1}, v{Z+1}
    v_and_b32 v{Z+1}, 0xffff0000, v{Z+1}
    buffer_store_dwordx2 {v(Z,2)}, v1, s[12:15], s52 offen sc1
    s_branch L_g_pub
    """)
    A.label("L_g_vtype")
    main(True)
    A(f"""
    s_mul_i32 s58, s56, {2*VT_TT}
    s_lshl_b32 s59, s57, 10
    s_add_u32 s58, s58, s59
    s_add_u32 s58, s58, {VT_OFF - 18*1024}
    s_add_u32 s59, s58, {2*VT_ROW}
    s_add_u32 s60, s58, {VT_TT}
    s_add_u32 s61, s59, {VT_TT}
    v_lshrrev_b32 v2, 5, v0
    v_mul_u32_u24 v2, {VT_ROW}, v2
    v_and_b32 v1, 31, v0
    v_lshl_add_u32 v1, v1, 4, v2
    s_nop 1
    """)
    for i in range(4):
        t, f = i >> 1, i & 1
        a = ACC + 16*i
        if i == 1: A("s_nop 1")
        for j in range(8): A(f"v_cvt_pk_bf16_f32 v{a+j}, v{a+2*j}, v{a+2*j+1}")
        for m in range(2):
            A(f"buffer_store_dwordx4 {v(a+4*m,4)}, v1, s[12:15], s{58+2*t+m} offen offset:{f*512} sc1")
    A.label("L_g_pub")
    A(f"""
    s_lshl_b32 s58, s57, 5
    s_add_u32 s58, s58, s56
    s_mul_i32 s58, s58, {FS}
    s_add_u32 s58, s58, {FQ_OFF}
    v_mov_b32 v{PT+2}, s{NONCE}
    v_mov_b32 v{PT+3}, 0
    """)
    if not FINE: stamp(A, 5)
    A("s_waitcnt vmcnt(0)")
    if not FINE: stamp(A, 6)
    A(f"""
    v_mov_b32 v{PT}, 1
    s_mov_b64 exec, 1
    buffer_store_dword v{PT+2}, v{PT+3}, s[12:15], s58 offen sc1
    ds_add_u32 v{VFL}, v{PT} offset:{F_STD}
    s_mov_b64 exec, -1
    s_waitcnt lgkmcnt(0)
    s_branch {done_label}
    """)

NROW = [[0,1,2,3,4,5,6,7, 14,15,16,16, 20,21,22,23], [9,9,10,11,11,11,12,13, 17,18,19,19, 24,25,26,27]]
def kg_rowaddr(side, n):
    a = side*128 + n*KG_ROW
    if side == 1 and n >= 30: a -= 2*KG_ROW + 128
    return a
def kgen_table():
    T = []
    for lane in range(64):
        i = lane & 31; hh = lane >> 5
        g, h2, ii = i >> 3, (i >> 2) & 1, i & 3
        n = NROW[h2][4*g + ii]
        ra = kg_rowaddr(0, n) + 16*hh
        b = 8*(i & 3) + (i >> 2)
        rb = kg_rowaddr(1, b) + 16*hh
        if b > 0: pb, ph = b-1, hh
        else: pb, ph = 31, 0
        pl = 32*ph + 4*(pb & 7) + (pb >> 3)
        so = (7 - (b & 7))*KC_ROW + (16 + (b >> 3))*32
        T += [ra, rb, pl*4, so]
    return T

KPTS = (0, 10, 21, 31)
KFIRST = int(os.environ.get('KFIRST', '31'))
KB7 = int(os.environ.get('KB7', '0'))
def kgen(A, pre):
    PR = 4
    VRL = 11; T = 12
    TB = 16; vDT, vDS = 20, 21
    C1R, C1I, C2R, C2I = 22, 23, 24, 25
    M = 40
    X = 50; U = 52
    AC = 46
    R = 62
    ptrs = [P_ARE, P_AIM, P_BRE, P_BIM, P_CRE, P_CIM]
    A(f"""
    s_getpc_b64 s[50:51]
    L_kg_pc:
    s_add_u32 s50, s50, kgen_tab-L_kg_pc
    s_addc_u32 s51, s51, 0
    v_and_b32 v1, 31, v0
    s_lshl_b32 s52, s48, 8
    s_lshl_b32 s53, s63, 7
    s_add_u32 s52, s52, s53
    v_lshl_add_u32 v2, v1, 2, s52
    s_lshl_b32 s52, s48, 1
    v_mov_b32 v10, s52
    v_lshlrev_b32 v{T}, 4, v0
    s_waitcnt lgkmcnt(0)
    global_load_ushort v{vDT}, v10, {s(P_LDT,2)}
    """)
    for i in range(6): A(f"global_load_dword v{PR+i}, v2, {s(ptrs[i],2)}")
    A(f"global_load_ushort v{vDS}, v10, {s(P_DSK,2)}\nglobal_load_dwordx4 {v(TB,4)}, v{T}, s[50:51]")
    A("s_cmp_lt_u32 s2, 224\ns_cbranch_scc1 L_kg_nb\ns_barrier\nL_kg_nb:")
    ws_setup(A)
    A(f"""
    v_mov_b32 v{C1R}, {f32(LOG2E)}
    v_mov_b32 v{C1I}, {f32(1/(2*math.pi))}
    v_mov_b32 v{C2R}, {f32(248*LOG2E)}
    v_mov_b32 v{C2I}, {f32(248/(2*math.pi))}
    s_mov_b32 exec_lo, 0
    v_mov_b32 v{C1R}, {f32(8*LOG2E)}
    v_mov_b32 v{C1I}, {f32(-8/(2*math.pi))}
    v_mov_b32 v{C2R}, v{C1R}
    v_mov_b32 v{C2I}, v{C1I}
    s_mov_b32 exec_lo, -1
    s_sub_u32 m0, s49, {KG_IB}
    v_lshrrev_b32 v27, 5, v0
    v_mul_u32_u24 v58, {KC_ROW}, v27
    v_lshl_add_u32 v1, v1, 4, v58
    v_add_u32 v1, s67, v1
    v_lshl_add_u32 v2, v0, 4, s49
    v_lshl_add_u32 v11, v0, 4, s64
    v_xor_b32 v26, 4, v3
    """)
    pre(A)
    get_nonce(A)
    A(f"""
    s_mov_b32 vcc_lo, 0xf0f0f0f0
    s_mov_b32 vcc_hi, 0xf0f0f0f0
    """)
    KP = [int(x) for x in os.environ.get("KP", "8,20,31,34,44,54").split(",")]
    if -1 in KP: gb(A)
    A(f"""
    s_waitcnt vmcnt(2)
    v_lshlrev_b32 v{vDT}, 16, v{vDT}
    v_mul_f32 v{vDT}, {f32(LOG2E)}, v{vDT}
    v_exp_f32 v{vDT}, v{vDT}
    s_nop 0
    v_cvt_pk_bf16_f32 v{vDT}, v{vDT}, v{vDT}
    v_and_b32 v{vDT}, 0xffff0000, v{vDT}
    """)
    stamp(A, 1)
    Mx = lambda j: M + 2*j
    mult = [0]*8 + [4] + [1]*4 + [4] + [2]*2 + [4] + [2]*2 + [4, 3, 4, 3, 4, 3, 4, 3] + [3]*4
    KP = [int(x) for x in os.environ.get("KP", "8,20,31,34,44,54").split(",")]
    for tr in range(2):
        for i in range(6): A(f"v_and_b32 v{U+i}, 0xffff0000, v{PR+i}" if tr else f"v_lshlrev_b32 v{U+i}, 16, v{PR+i}")
        A(f"""
        v_mul_f32 v{U}, v{vDT}, v{U}
        v_mul_f32 v{U+1}, v{vDT}, v{U+1}
        v_mul_f32 v{T}, v{C1R}, v{U}
        v_mul_f32 v{T+1}, v{C1I}, v{U+1}
        v_mul_f32 v{T+2}, v{C2R}, v{U}
        v_mul_f32 v{T+3}, v{C2I}, v{U+1}
        v_fract_f32 v{T+1}, v{T+1}
        v_fract_f32 v{T+3}, v{T+3}
        v_exp_f32 v{T}, v{T}
        v_cos_f32 v{Mx(0)}, v{T+1}
        v_sin_f32 v{Mx(0)+1}, v{T+1}
        v_exp_f32 v{T+2}, v{T+2}
        v_cos_f32 v{Mx(4)}, v{T+3}
        v_sin_f32 v{Mx(4)+1}, v{T+3}
        v_mul_f32 v{U+2}, v{vDT}, v{U+2}
        v_mul_f32 v{U+3}, v{vDT}, v{U+3}
        v_mul_f32 v{X}, v{U+3}, v{U+5}
        v_mul_f32 v{X+1}, v{U+3}, v{U+4}
        v_fmac_f32 v{X+1}, v{U+2}, v{U+5}
        v_fma_f32 v{X}, v{U+2}, v{U+4}, -v{X}
        v_mul_f32 v{Mx(0)}, v{T}, v{Mx(0)}
        v_mul_f32 v{Mx(0)+1}, v{T}, v{Mx(0)+1}
        v_mul_f32 v{Mx(4)}, v{T+2}, v{Mx(4)}
        v_mul_f32 v{Mx(4)+1}, v{T+2}, v{Mx(4)+1}
        """)
        for j in (1, 2, 3):
            d, x = Mx(j), Mx(j-1)
            A(f"v_mul_f32 v{d}, v{x+1}, v{x+1}\nv_add_f32 v{d+1}, v{x}, v{x}\nv_mul_f32 v{d+1}, v{d+1}, v{x+1}\nv_fma_f32 v{d}, v{x}, v{x}, -v{d}")
        A("s_mov_b32 exec_lo, 0")
        for j in (1, 2, 3): A(f"v_mov_b32 v{Mx(j)}, v{Mx(0)}\nv_mov_b32 v{Mx(j)+1}, v{Mx(0)+1}")
        A(f"v_mov_b32 v{X}, 1.0\nv_mov_b32 v{X+1}, 0\ns_mov_b32 exec_lo, -1")
        for n in range(32):
            A(f"v_cvt_pk_bf16_f32 v{R+32*tr+n}, v{X}, v{X+1}")
            if n < 31:
                m = Mx(mult[n])
                A(f"v_mul_f32 v{T}, v{X+1}, v{m+1}\nv_mul_f32 v{X+1}, v{X+1}, v{m}\nv_fmac_f32 v{X+1}, v{X}, v{m+1}\nv_fma_f32 v{X}, v{X}, v{m}, -v{T}")
            if 32*tr + n in KP: gb(A)
    A("s_waitcnt vmcnt(0)")
    stamp(A, 2)
    O = AC; PV = 12; P3 = 13; P4 = 14; D = R; Z = 4
    A(f"""
    v_add_u32 v{TB}, s49, v{TB}
    v_add_u32 v{TB+1}, s49, v{TB+1}
    v_lshlrev_b32 v{vDS}, 16, v{vDS}
    v_mov_b32 v{Z}, 0
    v_mov_b32 v{Z+1}, 0
    v_mov_b32 v{Z+2}, 0
    v_mov_b32 v{Z+3}, 0
    v_add_u32 v{TB+3}, s67, v{TB+3}
    v_lshl_add_u32 v9, v27, 7, v{TB+3}
    v_lshl_add_u32 v10, v27, 8, v{TB+3}
    """)
    gb(A, 9 - len(KP))
    if os.environ.get("KPRIO", "1") == "0": A("s_setprio 1")
    stamp(A, 3)
    for p in range(2):
        r = R + 32*p
        for n in range(32):
            if n == 28: A("s_mov_b32 exec_lo, 0")
            A(f"ds_write_addtid_b32 v{r+n} offset:{KG_IB + kg_rowaddr(1, n) - 128}")
        A("s_mov_b32 exec_lo, -1")
        if FINE: stamp(A, 1 if p == 0 else 2)
        if os.environ.get("KPRIO", "1") == str(p+1): A("s_setprio 1")
        for q in range(4): A(f"ds_read_b128 {v(r+8*q,4)}, v{TB} offset:{32*q}\nds_read_b128 {v(r+8*q+4,4)}, v{TB+1} offset:{32*q}")
    if FINE: stamp(A, 4)
    A("s_waitcnt lgkmcnt(15)")
    for q in range(4): A(f"v_mfma_f32_32x32x16_bf16 {v(AC,16)}, {v(R+8*q,4)}, {v(R+8*q+4,4)}, {'0' if q == 0 else v(AC,16)}")
    for q in range(4):
        A(f"s_waitcnt lgkmcnt({6-2*q})")
        A(f"v_mfma_f32_32x32x16_bf16 {v(AC,16)}, {v(R+32+8*q,4)}, {v(R+32+8*q+4,4)}, {v(AC,16)}")
    if FINE: stamp(A, 6)
    def pack(o, pv, areg, off, d):
        c0 = [o[6], o[5], o[4], o[3], o[2], o[1], o[0], pv]
        c1 = [o[7], o[6], o[5], o[4], o[3], o[2], o[1], o[0]]
        for j in range(4): A(f"v_cvt_pk_bf16_f32 v{d+4+j}, v{c1[2*j]}, v{c1[2*j+1]}")
        for j in range(4):
            if pv == PV and j == 3: A(f"s_waitcnt lgkmcnt(2)\ns_mov_b64 exec, 1\nv_mov_b32 v{PV}, 0\ns_mov_b64 exec, -1")
            A(f"v_cvt_pk_bf16_f32 v{d+j}, v{c0[2*j]}, v{c0[2*j+1]}")
        A(f"ds_write_b128 v{areg}, {v(d,4)} offset:{off}\nds_write_b128 v{areg}, {v(d+4,4)} offset:{off+16}")
    def xchg(send, ns, keep, nk):
        for i in range(ns): A(f"ds_write_b128 v2, {v(AC+send+4*i,4)} offset:{1024*i}")
        lset(A, 3, F_KP, 1, 12)
        if nk == 1:
            for i in range(4): A(f"ds_write_b128 v1, {v(Z,4)} offset:{2*KC_ROW*i}")
        l = uid("kx"); e = uid("ke")
        A(f"s_mov_b32 s{CAP}, 0x100000\n{l}:\nds_read_b32 v12, v26 offset:{F_KP}")
        for i in range(nk): A(f"ds_read_b128 {v(R+32+4*i,4)}, v11 offset:{1024*i}")
        A(f"s_sub_u32 s{CAP}, s{CAP}, 1\ns_cbranch_scc1 {e}\ns_waitcnt lgkmcnt({nk})\nv_readfirstlane_b32 s69, v12\ns_cmp_eq_u32 s69, 0\ns_cbranch_scc1 {l}\n{e}:\ns_waitcnt lgkmcnt(0)")
        if FINE: stamp(A, 7)
    add = lambda r, keep: A(f"v_add_f32 v{AC+r}, v{AC+r}, v{R+32+r-keep}")
    A("s_cmp_eq_u32 s63, 0\ns_cbranch_scc1 L_kg_h0\ns_nop 9")
    xchg(0, 3, 12, 1)
    for r in range(12, 16): add(r, 12)
    A(f"v_cndmask_b32 v{P3}, v{O+12}, v{O+13}, vcc\nv_cndmask_b32 v{P4}, v{O+14}, v{O+15}, vcc")
    pack([O+12]*4 + [P3] + [O+13]*3, O+12, 10, 16*32, D)
    pack([O+14]*4 + [P4] + [O+15]*3, O+14, 10, 20*32, D+8)
    A("s_branch L_kg_end\nL_kg_h0:\ns_nop 9")
    xchg(12, 1, 0, 3)
    add(7, 0)
    A(f"ds_bpermute_b32 v{PV}, v{TB+2}, v{O+7}")
    for r in (8, 9, 10): add(r, 0)
    pack([O+8]*3 + [O+9]*3 + [O+10]*2, O+8, 9, 8*32, D+8)
    for r in range(7): add(r, 0)
    A(f"s_mov_b64 exec, 1\nv_add_f32 v{O}, v{O}, v{vDS}\ns_mov_b64 exec, -1")
    pack([O+i for i in range(8)], PV, 9, 0, D)
    A("L_kg_end:")
    if FINE: stamp(A, 8)
    lset(A, 3, F_KRDY, 4, 15)

TRS = os.environ.get("TRS", "b")
def trans_u(A):
    A(f"""
    s_mul_i32 s52, s50, {64*1152}
    s_lshl_b32 s53, s51, 7
    s_add_u32 s53, s52, s53
    v_lshrrev_b32 v1, 3, v0
    v_mul_u32_u24 v2, 1152, v1
    v_bfe_u32 v3, v0, 4, 1
    v_lshlrev_b32 v3, 2, v3
    v_and_b32 v4, 7, v0
    v_xor_b32 v3, v3, v4
    v_lshl_add_u32 v2, v3, 4, v2
    s_mov_b32 m0, s49
    s_waitcnt lgkmcnt(0)
    """)
    srd(A, 4, P_U, 2048*1152)
    for n in range(8):
        if n: A("s_add_u32 m0, m0, 1024\ns_add_u32 s53, s53, 9216")
        A(f"buffer_load_dwordx4 v2, s[4:7], s53 offen lds")
    ws_setup(A)
    A(f"""
    v_bfe_u32 v3, v0, 2, 2
    v_and_b32 v5, 1, v0
    v_lshl_add_u32 v3, v5, 5, v3
    v_lshlrev_b32 v3, 7, v3
    v_and_b32 v5, 0x30, v0
    v_add_u32 v3, v3, v5
    v_bfe_u32 v5, v0, 1, 1
    v_lshl_add_u32 v3, v5, 3, v3
    v_bfe_u32 v5, v0, 3, 1
    v_lshl_add_u32 v3, v5, 6, v3
    v_add_u32 v5, s49, v3
    v_xor_b32 v6, 64, v5
    v_mul_u32_u24 v2, {4*UT_ROW}, v1
    v_lshl_add_u32 v2, v4, 4, v2
    s_mul_i32 s52, s51, {64*UT_ROW}
    s_add_u32 s52, s52, {UT_OFF}
    s_lshl_b32 s54, s51, 5
    s_add_u32 s54, s54, s50
    s_mul_i32 s54, s54, {FS}
    s_add_u32 s54, s54, {FU_OFF}
    s_lshl_b32 s53, s50, 7
    s_add_u32 s55, s52, s53
    s_mov_b32 s56, 0
    """)
    B0, B1 = 8, 40
    get_nonce(A)
    A("L_tu_loop:")
    for G in range(8):
        for t in range(2): A(f"ds_read_b64_tr_b16 {v(B0+4*G+2*t,2)}, v{5+(G>>2)} offset:{(8*(G&3)+4*t)*128}")
    def stage(src, dst, bit, qp, m0):
        for sel in range(2):
            m = m0 if sel == 0 else (~m0 & 0xffffffff)
            A(f"s_mov_b32 vcc_lo, {hex(m)}\ns_mov_b32 vcc_hi, {hex(m)}")
            for G in range(8):
                if ((G >> bit) & 1) != sel: continue
                for k in range(4):
                    A(f"v_cndmask_b32_dpp v{dst+4*G+k}, v{src+4*(G^(1<<bit))+k}, v{src+4*G+k}, vcc quad_perm:{qp} row_mask:0xf bank_mask:0xf")
    A("s_waitcnt lgkmcnt(0)")
    stage(B0, B1, 0, "[1,0,3,2]", 0x55555555)
    stage(B1, B0, 1, "[2,3,0,1]", 0x33333333)
    A("s_cmp_lg_u32 s56, 0\ns_cbranch_scc1 L_tu_st\ns_mov_b32 s56, 1")
    if TRS == "b": A("s_barrier")
    A("s_waitcnt vmcnt(0)")
    stamp(A, 1)
    A("s_branch L_tu_loop\nL_tu_st:")
    A("s_barrier")
    for G in range(8):
        if TRS == "c" and G == 4: A("s_barrier")
        A(f"s_add_u32 s53, s55, {(32*(G>>2)+(G&3))*UT_ROW}")
        A(f"buffer_store_dwordx4 {v(B0+4*G,4)}, v2, s[12:15], s53 offen sc1")
    A("s_barrier\n"*(3 if TRS == "a" else 2))
    A("s_waitcnt vmcnt(0)")
    gflag(A, "s54", 72)
    stamp(A, 2)

def trans_wo(A):
    L = 20
    srd(A, 4, P_WO, 576*1152)
    A(f"""
    s_and_b32 s50, s2, 7
    s_lshr_b32 s51, s2, 3
    s_mul_i32 s52, s50, {72*1152}
    s_lshl_b32 s53, s51, 6
    s_add_u32 s52, s52, s53
    v_and_b32 v1, 3, v0
    v_bfe_u32 v2, v0, 2, 1
    v_lshl_or_b32 v1, v2, 4, v1
    v_bfe_u32 v2, v0, 3, 2
    v_lshl_or_b32 v1, v2, 2, v1
    v_lshlrev_b32 v1, 1, v1
    v_lshrrev_b32 v2, 5, v0
    v_mul_u32_u24 v2, {4*1152}, v2
    v_add_u32 v2, v2, v1
    """)
    for h in range(4):
        for t in range(2):
            A(f"s_add_u32 s53, s52, {(18*h+8*t)*1152}")
            for r in range(4): A(f"buffer_load_ushort v{L+8*h+4*t+r}, v2, s[4:7], s53 offen offset:{r*1152}")
        A(f"s_add_u32 s53, s52, {(18*h+16)*1152}")
        for r in range(2): A(f"buffer_load_ushort v{L+32+2*h+r}, v1, s[4:7], s53 offen offset:{r*1152}")
    A(f"""
    v_lshlrev_b32 v2, 4, v0
    s_mul_i32 s52, s50, {4*18*1024}
    s_lshl_b32 s53, s51, 10
    s_add_u32 s53, s53, {WOT_OFF}
    s_add_u32 s52, s52, s53
    s_lshr_b32 s54, s50, 1
    s_add_u32 s54, s54, 32
    s_mul_i32 s54, s54, {18*1024}
    s_add_u32 s54, s54, s53
    s_and_b32 s55, s50, 1
    s_lshl_b32 s55, s55, 9
    s_add_u32 s54, s54, s55
    s_waitcnt vmcnt(0)
    """)
    for k in range(20): A(f"v_lshl_or_b32 v{L+k}, v{L+2*k+1}, 16, v{L+2*k}")
    for h in range(4):
        A(f"buffer_store_dwordx4 {v(L+4*h,4)}, v2, s[12:15], s52 offen sc1")
        if h < 3: A(f"s_add_u32 s52, s52, {18*1024}")
    A(f"""
    s_mov_b32 exec_hi, 0
    buffer_store_dwordx4 {v(L+16,4)}, v2, s[12:15], s54 offen sc1
    s_mov_b32 exec_hi, -1
    s_mul_i32 s54, s2, {FS}
    s_add_u32 s54, s54, {FW_OFF}
    s_waitcnt vmcnt(0)
    """)
    gflag(A, "s54", 4)
```

```python
QKQ_OFF = 0
QKQ_TT = 288*256
QKQ_SZ = 64*QKQ_TT
VT_OFF = QKQ_OFF + QKQ_SZ
VT_ROW = 584*16
VT_TT = 4*VT_ROW
VT_SZ = 64*VT_TT
UT_OFF = VT_OFF + VT_SZ
UT_ROW = 4096 + 128
UT_SZ = 576*UT_ROW
G_OFF = UT_OFF + UT_SZ
G_SZ = 2048*8
OF_OFF = G_OFF + G_SZ
OF_TT = 36*1024
OF_SZ = 64*OF_TT
AT_OFF = OF_OFF + OF_SZ
AT_CH = 8192
AT_SZ = 576*AT_CH
WOT_OFF = AT_OFF + AT_SZ
WOT_SZ = 36*18*1024
FS = 128
FU_OFF = WOT_OFF + WOT_SZ
FQ_OFF = FU_OFF + 288*FS
FG_OFF = FQ_OFF + 28*32*FS
FB_OFF = FG_OFF + 64*FS
FW_OFF = FB_OFF + 256*FS
FO_OFF = FW_OFF + 144*FS
EP_OFF = FO_OFF + 2048*FS
WS_USED = EP_OFF + FS
PH = [0, 98304, 65536, 32768]
L_KG = 65536
KG_ROW = 272
KG_SZ = 30*KG_ROW
KG_IB = 57344
L_UC = 98304
UC_COPY = 4288
UC_CH = 4*UC_COPY
L_KC = L_UC + 2*UC_CH
KC_ROW = 1552
KC_CH = 8*KC_ROW
L_FL = 157696
L_GW = 158208
L_TR = 131072
SET1 = 98304
F_STD = 0
F_TRD = 128
F_URDY = 16
F_KRDY = 32
F_KP = 64
F_CVD = 96
L_QP = 81920
assert L_KC + 2*KC_CH <= L_FL
```

```python
from f1 import *
NV = 168
GRP = 20480
HOFF = 10240
PRIO = int(os.environ.get("PRIO", "1"))
ATD = 112
QS = int(os.environ.get('QS', '2'))
B2X = int(os.environ.get('B2X', '1'))
NE = 2

def head_qb(A):
    A("""
    s_and_b32 s96, s2, 7
    s_lshl_b32 s96, s96, 2
    s_lshr_b32 s97, s2, 6
    s_add_u32 s96, s96, s97
    s_bfe_u32 s97, s2, 0x30003
    """)

CVU, CVK, CVF, CVF2, CVA, CPT = 126, 127, 128, 129, 130, 132
CAC = 136
def conv_pre(A):
    PT = CPT
    A(f"""
    s_and_b32 s50, s3, 1
    s_bfe_u32 s51, s3, 0x10001
    s_mul_i32 s52, s50, {UC_CH}
    s_add_u32 s52, s52, {L_UC}
    s_sub_u32 s52, s52, s98
    s_lshl_b32 s53, s51, 10
    s_add_u32 s52, s52, s53
    s_mul_i32 s53, s50, {KC_CH}
    s_add_u32 s53, s53, {L_KC + 512 - 64}
    s_sub_u32 s53, s53, s98
    s_lshl_b32 s54, s51, 8
    s_sub_u32 s53, s53, s54
    v_and_b32 v{PT}, 3, v0
    v_mul_u32_u24 v{PT}, {UC_COPY}, v{PT}
    v_bfe_u32 v{PT+1}, v0, 2, 3
    v_lshrrev_b32 v{PT+2}, 5, v0
    v_add_u32 v{PT+1}, v{PT+1}, v{PT+2}
    v_lshl_add_u32 v{CVU}, v{PT+1}, 4, v{PT}
    v_add_u32 v{CVU}, s52, v{CVU}
    v_mul_u32_u24 v{PT+1}, {KC_ROW}, v{PT+2}
    v_and_b32 v{PT}, 31, v0
    v_lshl_add_u32 v{CVK}, v{PT}, 4, v{PT+1}
    v_add_u32 v{CVK}, s53, v{CVK}
    s_cmp_lg_u32 s98, 0
    s_cselect_b32 s56, 8, 0
    s_lshl_b32 s57, s50, 2
    s_add_u32 s56, s56, s57
    s_add_u32 s57, s56, {L_FL}
    v_mov_b32 v{CVF}, s57
    s_add_u32 s57, s57, s56
    v_mov_b32 v{CVF2}, s57
    v_bfe_u32 v{PT}, v0, 1, 4
    v_lshlrev_b32 v{PT}, 7, v{PT}
    v_and_b32 v{PT+1}, 1, v0
    v_lshl_add_u32 v{PT}, v{PT+1}, 5, v{PT}
    v_lshl_add_u32 v{CVA}, v{PT+2}, 4, v{PT}
    s_lshl_b32 s52, s99, 13
    s_lshl_b32 s53, s51, 12
    s_add_u32 s52, s52, s53
    s_add_u32 s98, s52, {AT_OFF}
    """)
    for i in range(32): A(f"v_mov_b32 v{CAC+i}, 0")
    A.l.extend(attn_common())

def conv(A):
    VU, VK, PT, AC = CVU, CVK, CPT, CAC
    BUFS = [4, 46, 94, 110]
    def reads(q, part):
        b = BUFS[q % 4]
        ko = 2*KC_ROW*(q % 4) + 32*(2 - q//4)
        if part == 0: A(f"ds_read_b128 {v(b,4)}, v{VU} offset:{32*q}\nds_read_b128 {v(b+4,4)}, v{VK} offset:{ko}")
        else: A(f"ds_read_b128 {v(b+8,4)}, v{VK} offset:{ko+512}\nds_read_b128 {v(b+12,4)}, v{VU} offset:{32*q+2048}")
    A(f"""
    s_mov_b32 s{CAP}, 0x100000
    s_mov_b32 s68, 0
    L_cv_w:
    ds_read_b64 {v(PT,2)}, v{CVF2} offset:{F_KRDY}
    ds_read_b32 v{PT+2}, v{CVF} offset:{F_URDY}
    s_sub_u32 s{CAP}, s{CAP}, 1
    s_cbranch_scc1 L_cv_go
    s_waitcnt lgkmcnt(0)
    v_min3_u32 v{PT}, v{PT}, v{PT+1}, v{PT+2}
    v_cmp_gt_u32 vcc, 4, v{PT}
    s_cbranch_vccnz L_cv_w
    L_cv_go:
    s_setprio 0
    """)
    stamp(A, 5)
    if os.environ.get("CVC"): stampc(A, 1)
    for q in range(3): reads(q, 0); reads(q, 1)
    for i in range(32): A(f"v_mov_b32 v{O+i}, 0")
    A.label("L_cv_loop")
    for q in range(8):
        b = BUFS[q % 4]
        A("s_waitcnt lgkmcnt(8)")
        A(f"v_mfma_f32_32x32x16_bf16 {v(AC,16)}, {v(b,4)}, {v(b+4,4)}, {v(AC,16)}")
        reads(q+3, 0)
        if q == 7: A("s_add_u32 s68, s68, 1\ns_cmp_lt_u32 s68, 4")
        A(f"v_mfma_f32_32x32x16_bf16 {v(AC+16,16)}, {v(b,4)}, {v(b+8,4)}, {v(AC+16,16)}")
        reads(q+3, 1)
        if q == 7: A(f"v_add_u32 v{VU}, 256, v{VU}\nv_subrev_u32 v{VK}, 64, v{VK}")
        A(f"v_mfma_f32_32x32x16_bf16 {v(AC+16,16)}, {v(b+12,4)}, {v(b+4,4)}, {v(AC+16,16)}")
    A("s_cbranch_scc1 L_cv_loop")
    stamp(A, 6)
    if os.environ.get("CVC"): stampc(A, 2)
    A(f"""
    s_waitcnt lgkmcnt(0)
    s_cmp_lt_u32 s3, 4
    s_cbranch_scc1 L_cv_s1
    s_setprio 3
    s_barrier
    s_branch L_at_qb
    L_cv_s1:
    s_lshl_b32 s63, s3, 2
    s_add_u32 s63, s63, {L_FL+F_CVD}
    v_mov_b32 v{PT}, s63
    """)
    lset(A, PT, 0, 1, PT+1)
    A("s_branch L_attn2")

def ucopy(A):
    UD = 16
    A(f"""
    s_setprio 3
    s_lshr_b32 s50, s99, 6
    s_mul_i32 s50, s50, {32*FS}
    s_add_u32 s50, s50, {FU_OFF}
    v_and_b32 v1, 31, v0
    v_mul_u32_u24 v1, {FS}, v1
    v_lshlrev_b32 v2, 2, v0
    s_and_b32 s51, s3, 1
    s_add_u32 s52, s99, s51
    s_mul_i32 s52, s52, {UT_ROW}
    s_add_u32 s52, s52, {UT_OFF}
    s_mul_i32 s53, s51, {UC_CH}
    s_add_u32 s53, s53, {L_UC}
    s_lshl_b32 s54, s51, 2
    s_add_u32 s54, s54, {L_FL}
    v_mov_b32 v3, s54
    v_mov_b32 v9, 0
    v_add_u32 v10, s53, v2
    """)
    for k in range(4): A(f"v_add_u32 v{11+k}, {k*UC_COPY + 124 - 4*k}, v10")
    A(f"""
    s_barrier
    s_barrier
    s_barrier
    buffer_load_dword v4, v1, s[12:15], s50 offen sc1
    s_mov_b32 s56, 1
    s_barrier
    s_waitcnt vmcnt(0)
    v_cmp_ne_u32 vcc, s{NONCE}, v4
    s_cbranch_vccz L_uc_set
    s_barrier
    s_mov_b32 s56, 0
    """)
    gpoll(A, [1], 4, "s50")
    A("L_uc_set:")
    stamp(A, 3)
    for n in range(16): A(f"buffer_load_dword v{UD+n}, v2, s[12:15], s52 offen offset:{256*n} sc1")
    A("s_cmp_eq_u32 s56, 0\ns_cbranch_scc1 L_uc_nb\ns_barrier\nL_uc_nb:\ns_setprio 0\ns_mov_b64 exec, 0x7fffffff")
    for k in range(4): A(f"ds_write_b32 v10, v9 offset:{k*UC_COPY}")
    A("s_mov_b64 exec, -1")
    for n in range(0, 16, 2):
        A(f"s_waitcnt vmcnt({14-n})")
        for k in range(4): A(f"ds_write2st64_b32 v{11+k}, v{UD+n}, v{UD+n+1} offset0:{n} offset1:{n+1}")
    lset(A, 3, F_URDY, 4, 4)

def ugather(A):
    RW = 16; PK = 32
    A(f"""
    s_setprio 3
    s_and_b32 s51, s3, 3
    v_mul_u32_u24 v1, 2304, v0
    s_mul_i32 s52, s51, {512*1152}
    s_lshl_b32 s53, s99, 1
    s_add_u32 s52, s52, s53
    s_waitcnt lgkmcnt(0)
    """)
    srd(A, 4, P_U, 2048*1152)
    A("s_barrier")
    for j in range(4):
        for e in range(2): A(f"buffer_load_dwordx2 {v(RW+4*j+2*e,2)}, v1, s[4:7], s52 offen offset:{1152*e}")
        if j < 3: A(f"s_add_u32 s52, s52, {128*1152}")
    ws_setup(A)
    A(f"""
    v_lshlrev_b32 v10, 2, v0
    s_lshl_b32 s53, s51, 10
    v_add_u32 v2, s53, v10
    v_mov_b32 v9, 0
    v_mov_b32 v8, {L_FL}
    v_mov_b32 v3, 1
    s_mov_b32 s54, 0x05040100
    s_mov_b32 s55, 0x07060302
    """)
    get_nonce(A)
    for j in range(4):
        A(f"s_waitcnt vmcnt({6-2*j})")
        for c in (2, 3, 0, 1): A(f"v_perm_b32 v{PK+4*c+j}, v{RW+4*j+2+(c>>1)}, v{RW+4*j+(c>>1)}, s{54+(c&1)}")
    stamp(A, 1)
    for st in (1, 0):
        base = L_UC - SET1*st
        if st == 0: lpoll(A, 8, F_KRDY+16, 4, 1, 4, sleep=1)
        sk = uid("ug")
        A(f"s_cmp_lg_u32 s51, 0\ns_cbranch_scc1 {sk}\nv_add_u32 v11, {base}, v10\ns_mov_b64 exec, 0x7fffffff")
        for k in range(8): A(f"ds_write_b32 v11, v9 offset:{k*UC_COPY}")
        A(f"s_mov_b64 exec, -1\n{sk}:")
        for ch in range(2):
            for k in range(4):
                r = 11 + (k & 1)
                A(f"v_add_u32 v{r}, {base + ch*UC_CH + k*UC_COPY + 124 - 4*k}, v2")
                p = PK + 4*(2*st + ch)
                A(f"ds_write2st64_b32 v{r}, v{p}, v{p+1} offset0:0 offset1:1\nds_write2st64_b32 v{r}, v{p+2}, v{p+3} offset0:2 offset1:3")
        A(f"s_mov_b64 exec, 1\nds_add_u32 v8, v3 offset:{F_URDY+8*st}\nds_add_u32 v8, v3 offset:{F_URDY+8*st+4}\ns_mov_b64 exec, -1")
    stamp(A, 2)

L_O = 40960
L_WE = 98304
L_RED = L_O + OF_TT
L_QR = 7*GRP + 5120 + 19*16
L_FR = L_QR + 320
L_XR = L_QR + 640
L_PG = L_QR + 960
IDX, AK, AV, OMG, TMP = 28, 29, 30, 31, 32
CST = [48, 102]
QM = 4; QE = 12; KF = 14; KE = 18; VF = 40; O = 62; S = 94; X = 136

def attn_common():
    B = Asm()
    head_qb(B)
    B(f"""
    s_and_b32 s50, s3, 3
    s_lshr_b32 s51, s3, 2
    s_lshl_b32 s52, s97, 3
    s_lshl_b32 s50, s50, 1
    s_add_u32 s52, s52, s50
    s_add_u32 s53, s52, s51
    s_lshr_b32 s55, s96, 1
    s_mul_i32 s55, s55, {9*256}
    s_and_b32 s56, s96, 1
    s_mul_i32 s57, s56, {5*256}
    s_add_u32 s57, s57, s55
    s_add_u32 s55, s55, {4*256}
    v_and_b32 v{TMP+4}, 15, v0
    v_lshlrev_b32 v{TMP+4}, 4, v{TMP+4}
    v_bfe_u32 v{TMP+5}, v0, 4, 1
    v_lshl_or_b32 v{TMP+4}, v{TMP+5}, 3, v{TMP+4}
    v_lshrrev_b32 v{TMP+1}, 5, v0
    v_lshl_or_b32 v{TMP+5}, v{TMP+1}, 8, v{TMP+4}
    v_and_b32 v{TMP+6}, 31, v0
    v_lshlrev_b32 v{TMP+7}, 3, v{TMP+6}
    s_lshl_b32 s62, s52, 8
    s_add_u32 s62, s62, {G_OFF}
    s_lshl_b32 s59, s50, 11
    s_add_u32 s59, s59, {L_QP}
    v_lshl_add_u32 v{TMP+3}, v0, 4, s59
    s_lshl_b32 s60, s51, 5
    v_xor_b32 v{TMP+2}, s60, v0
    v_lshl_add_u32 v{TMP+2}, v{TMP+2}, 3, s59
    v_and_b32 v{AK}, 0x13f, v{TMP+5}
    v_bfe_u32 v{TMP}, v0, 2, 1
    v_lshl_or_b32 v{AK}, v{TMP}, 7, v{AK}
    v_bfe_u32 v{TMP}, v0, 3, 1
    v_lshl_or_b32 v{AK}, v{TMP}, 6, v{AK}
    s_mul_i32 s59, s51, {HOFF}
    v_add_u32 v{AK}, s59, v{AK}
    v_mad_u32_u24 v{TMP}, v{TMP+1}, 20, v{TMP+6}
    s_add_u32 s59, s59, 5120
    v_lshl_add_u32 v{AV}, v{TMP}, 4, s59
    s_mul_i32 s59, s53, {OF_TT}
    s_add_u32 s59, s59, {OF_OFF}
    s_lshl_b32 s100, s96, 10
    s_add_u32 s100, s100, s59
    s_lshl_b32 s101, s96, 7
    s_add_u32 s101, s101, s59
    s_add_u32 s101, s101, {32*1024}
    s_mov_b32 vcc_lo, 0x7ffff
    s_mov_b32 vcc_hi, 0x7ffff
    v_mov_b32 v{IDX}, 0x80000
    v_cndmask_b32 v{AV}, v{IDX}, v{AV}, vcc
    v_mov_b32 v{IDX}, 0xdddddddd
    """)
    return B.l

def attn(A):
    A.l.extend(attn_common())
    for i in range(32): A(f"v_mov_b32 v{O+i}, 0")
    A.label("L_attn2")
    A(f"""
    s_cmp_ge_u32 s3, 4
    s_cbranch_scc1 L_at_qb
    s_mul_i32 s58, s53, {QKQ_TT}
    s_add_u32 s60, s58, s55
    s_add_u32 s58, s58, s57
    s_add_u32 s59, s58, {QKQ_TT}
    v_mul_u32_u24 v{TMP+1}, {QKQ_TT}, v{TMP+1}
    v_add_u32 v{TMP+4}, v{TMP+4}, v{TMP+1}
    s_min_u32 s63, s55, s57
    s_add_u32 s64, s63, {4*256}
    s_lshr_b32 s63, s63, 12
    s_lshr_b32 s64, s64, 12
    s_lshr_b32 s65, s52, 1
    s_lshl_b32 s63, s63, 5
    s_lshl_b32 s64, s64, 5
    s_add_u32 s63, s63, s65
    s_add_u32 s64, s64, s65
    s_mul_i32 s63, s63, {FS}
    s_mul_i32 s64, s64, {FS}
    s_mul_i32 s65, s65, {FS}
    s_add_u32 s65, s65, {27*32*FS}
    v_mov_b32 v{TMP}, s63
    v_writelane_b32 v{TMP}, s64, 1
    v_writelane_b32 v{TMP}, s65, 2
    s_mov_b32 s63, {FQ_OFF}
    """)
    gpoll(A, [TMP], TMP+1, "s63", sleep=QS)
    stamp(A, 3)
    A(f"buffer_load_dwordx2 {v(QE,2)}, v{TMP+4}, s[12:15], s60 offen sc1")
    for j in range(2):
        A(f"""
        buffer_load_dwordx2 {v(QM+4*j,2)}, v{TMP+5}, s[12:15], s{58+j} offen sc1
        buffer_load_dwordx2 {v(QM+4*j+2,2)}, v{TMP+5}, s[12:15], s{58+j} offen offset:512 sc1
        """)
    A(f"v_mov_b32 v{TMP}, {L_FL}")
    lpoll(A, TMP, F_KRDY, 4, 1, KF, sleep=1)
    A(f"""
    s_cmp_eq_u32 s56, 0
    s_cselect_b32 s64, -1, 0
    s_not_b32 s65, s64
    s_waitcnt vmcnt(0)
    v_and_b32 v{QE}, s64, v{QE}
    v_and_b32 v{QE+1}, s65, v{QE+1}
    ds_write_b128 v{TMP+3}, {v(QM,4)}
    ds_write_b128 v{TMP+3}, {v(QM+4,4)} offset:1024
    ds_write_b64 v{TMP+2}, {v(QE,2)} offset:2048
    v_lshlrev_b32 v22, 4, v0
    v_lshlrev_b32 v23, 2, v0
    v_mov_b32 v24, -1
    v_mov_b32 v25, -1
    v_mov_b32 v26, -1
    v_mov_b32 v27, -1
    s_add_u32 s63, s100, {OF_TT}
    s_add_u32 s64, s101, {OF_TT}
    buffer_store_dwordx4 v[24:27], v22, s[12:15], s100 offen sc1
    buffer_store_dwordx4 v[24:27], v22, s[12:15], s63 offen sc1
    s_mov_b32 exec_hi, 0
    buffer_store_dword v24, v23, s[12:15], s101 offen sc1
    buffer_store_dword v24, v23, s[12:15], s64 offen sc1
    s_mov_b32 exec_hi, -1
    s_branch L_at_cm
    L_at_qb:
    buffer_load_dword v{OMG}, v{TMP+7}, s[12:15], s62 offen offset:260 sc1
    buffer_load_dword v25, v{TMP+7}, s[12:15], s62 offen offset:4 sc1
    v_lshlrev_b32 v22, 4, v0
    v_lshlrev_b32 v23, 2, v0
    ds_read_b128 {v(QM+4,4)}, v{TMP+3}
    ds_read_b128 {v(QM,4)}, v{TMP+3} offset:1024
    ds_read_b64 {v(QE,2)}, v{TMP+2} offset:2048
    L_at_cm:
    """)
    for i in range(8): A(f"v_mov_b32 v{S+16+8+i}, 0")
    for i in range(4): A(f"v_mov_b32 v{VF+4+i}, 0")
    A("s_mov_b32 s66, 0\ns_waitcnt lgkmcnt(0)\ns_barrier\nL_at_go:")
    stamp(A, 9)
    if os.environ.get('CLK'): stampc(A, 1)
    GU = GRP//512
    rdK = lambda t: f"ds_read2st64_b64 {v(KF,4)}, v{AK} offset0:{(t//4)*GU+2*(t%4)} offset1:{(t//4)*GU+2*(t%4)+1}"
    rdE = lambda g: f"ds_read2st64_b64 {v(KE,4)}, v{AK} offset0:{g*GU+8} offset1:{g*GU+9}"
    rdV = lambda t, m: f"ds_read_b128 {v(VF+4*m,4)}, v{AV} offset:{(t//4)*GRP+(4*(t%4)+2*m)*320}"
    M16 = lambda q: f"v_mfma_f32_32x32x16_bf16 {v(S+16*q,16)}, {v(KF,4)}, {v(QM+4*q,4)}, {v(X+16*q,16)}"
    M2 = lambda t: f"v_mfma_f32_32x32x4_2b_bf16 {v(X,32)}, {v(KE+2*((t%4)>>1),2)}, {v(QE,2)}, 0 cbsz:1 abid:{t&1}"
    PV = lambda q, m: f"v_smfmac_f32_32x32x32_bf16 {v(O+16*q,16)}, {v(VF+4*m,4)}, {v(S+16*q+8*m,8)}, v{IDX}"
    E = lambda q, i: f"v_exp_f32 v{S+16*q+i}, v{S+16*q+i}"
    A(rdE(0)); A(rdK(0)); A(rdV(0, 0))
    A("s_cmp_eq_u32 s98, 0\ns_cbranch_scc1 L_at_nost2")
    for cb in range(2):
        for j in range(8): A(f"v_cvt_pk_bf16_f32 v{CST[cb]+j}, v{CAC+16*cb+2*j}, v{CAC+16*cb+2*j+1}")
    for cb in range(2):
        for m in range(2): A(f"buffer_store_dwordx4 {v(CST[cb]+4*m,4)}, v{CVA}, s[12:15], s98 offen offset:{2048*cb+64*m} sc1")
    A(f"""
    L_at_nost2:
    s_waitcnt lgkmcnt(2)
    """)
    A(M2(0)); A("s_cmp_ge_u32 s3, 4\ns_cbranch_scc1 L_at_nb\ns_barrier\nL_at_nb:\ns_nop 13\ns_waitcnt lgkmcnt(1)\ns_setprio 2"); A(M16(0)); A("s_nop 11")
    A.raw(".p2align 6")
    A.label("L_at_loop")
    def ex(q, a, b):
        for i in range(a, b): A(E(q, i))
    for t in range(4):
        ex(0, 0, 2); A(PV(1, 1)); A(rdV(t, 1))
        ex(0, 2, 5); A(M16(1)); A("s_waitcnt lgkmcnt(1)"); A(rdK(t+1))
        ex(0, 5, 10); A(PV(0, 0)); A("s_waitcnt lgkmcnt(1)")
        if t == 2: A(f"s_bitcmp0_b32 {10 if B2X else 2}, s66")
        ex(0, 10, 13); A(M2(t+1)); ex(0, 13, 16)
        ex(1, 0, 5); A(PV(0, 1)); A("s_waitcnt lgkmcnt(0)")
        if t == 2: A("s_cbranch_scc0 L_at_bar\nL_at_bar_ret:")
        ex(1, 5, 8); A(M16(0))
        if t == 2: A(rdE(1))
        elif t == 3: A("s_add_u32 s66, s66, 1")
        elif t == 0 and PRIO: A(f"s_bitcmp1_b32 {os.environ.get('PM', '0x8a' if B2X else '0x82')}, s66")
        ex(1, 8, 12); A(PV(1, 0))
        if t == 3: A("s_cmp_lt_u32 s66, 8")
        elif t == 0 and PRIO: A("s_cbranch_scc1 L_at_lowprio\nL_at_lowprio_ret:")
        A(rdV(t+1, 0))
        ex(1, 12, 16)
    A(f"v_add_u32 v{AK}, {GRP}, v{AK}\nv_add_u32 v{AV}, {GRP}, v{AV}")
    A("s_cbranch_scc1 L_at_loop")
    A(PV(1, 1))
    stamp(A, 10)
    if os.environ.get('CLK'): stampc(A, 2)
    PP = S
    A(f"""
    s_mul_i32 s63, s50, 2560
    v_add_u32 v{AK}, s63, v22
    s_lshl_b32 s63, s50, 1
    s_add_u32 s63, s63, {L_XR}
    v_mov_b32 v{AV}, s63
    s_cmp_ge_u32 s3, 4
    s_cbranch_scc1 L_at_late
    ds_write_b128 v{AK}, {v(O,4)} offset:2560
    ds_write_b128 v{AK}, {v(O+4,4)} offset:3584
    s_mov_b32 exec_hi, 0
    ds_write_b128 v{AK}, {v(O+8,4)} offset:4608
    s_nop 1
    ds_write_b128 v{AK}, {v(O+24,4)} offset:2048
    s_mov_b32 exec_hi, -1
    ds_write_b128 v{AK}, {v(O+16,4)}
    ds_write_b128 v{AK}, {v(O+20,4)} offset:1024
    """)
    lset(A, AV, 0, 1, TMP)
    ofetch(A)
    A(f"""
    s_branch L_end
    L_at_late:
    s_mov_b32 s{CAP}, 0x100000
    s_mov_b32 s61, {f32(2.0**-60)}
    s_mov_b32 s62, {f32(2.0**40)}
    L_at_xw:
    ds_read_b32 v{TMP}, v{AV}
    """)
    for b in range(2): A(f"ds_read_b128 {v(PP+12*b+8,4)}, v{AK} offset:{2560*b+2048}")
    for b in range(2):
        for i in range(2): A(f"ds_read_b128 {v(PP+12*b+4*i,4)}, v{AK} offset:{2560*b+1024*i}")
    A(f"""
    s_lshl_b32 s58, s52, 5
    s_add_u32 s58, s58, s96
    s_mul_i32 s58, s58, {FS}
    s_add_u32 s58, s58, {FO_OFF}
    s_sub_u32 s59, s100, {OF_TT}
    s_sub_u32 s60, s101, {OF_TT}
    v_mov_b32 v24, s{NONCE}
    v_mul_u32_u24 v26, {32*FS}, v0
    {"s_mov_b64 exec, 3" + chr(10) + "buffer_store_dword v24, v26, s[12:15], s58 offen sc1" + chr(10) + "s_mov_b64 exec, -1" if os.environ.get("HE", "1") == "2" else ""}
    s_sub_u32 s{CAP}, s{CAP}, 1
    s_cbranch_scc1 L_at_xok
    s_waitcnt lgkmcnt(6)
    v_readfirstlane_b32 s63, v{TMP}
    s_cmp_eq_u32 s63, 0
    s_cbranch_scc1 L_at_xw
    L_at_xok:
    s_waitcnt lgkmcnt(4)
    v_add_f32 v{O+10}, v{O+10}, v{PP+10}
    v_add_f32 v{O+26}, v{O+26}, v{PP+22}
    v_add_f32 v{O+8}, v{O+8}, v{PP+8}
    v_add_f32 v{O+9}, v{O+9}, v{PP+9}
    v_add_f32 v{O+24}, v{O+24}, v{PP+20}
    v_add_f32 v{O+25}, v{O+25}, v{PP+21}
    v_cmp_le_f32 vcc, s61, v{O+10}
    v_cmp_ge_f32 s[64:65], s62, v{O+10}
    v_cmp_le_f32 s[66:67], s61, v{O+26}
    v_cmp_ge_f32 s[68:69], s62, v{O+26}
    s_waitcnt lgkmcnt(0)
    """)
    for b in range(2):
        for i in range(8): A(f"v_add_f32 v{O+16*b+i}, v{O+16*b+i}, v{PP+12*b+i}")
    A(f"""
    s_and_b32 s64, s64, vcc_lo
    s_and_b32 s66, s66, s68
    s_and_b32 s64, s64, s66
    s_cmp_eq_u32 s64, -1
    s_cbranch_scc0 L_at_fallback
    L_at_fin:
    {"s_mov_b64 exec, 3" + chr(10) + "buffer_store_dword v24, v26, s[12:15], s58 offen sc1" + chr(10) + "s_mov_b64 exec, -1" if os.environ.get("HE", "1") == "1" else ""}
    v_rcp_f32 v{TMP}, v{O+10}
    v_rcp_f32 v{TMP+2}, v{O+26}
    v_mul_f32 v{TMP}, v{TMP}, v{OMG}
    v_mul_f32 v{TMP+2}, v{TMP+2}, v25
    v_mov_b32 v{TMP+1}, v{TMP}
    v_mov_b32 v{TMP+3}, v{TMP+2}
    v_mul_f32 v{O+8}, v{TMP}, v{O+8}
    v_mul_f32 v{O+9}, v{TMP}, v{O+9}
    v_permlane32_swap_b32 v{TMP}, v{TMP+1}
    v_permlane32_swap_b32 v{TMP+2}, v{TMP+3}
    """)
    for b in range(2):
        o = O + 16*b
        for i in range(8): A(f"v_mul_f32 v{o+i}, v{TMP+2*b}, v{o+i}")
        for i in range(4): A(f"v_cvt_pk_bf16_f32 v{o+i}, v{o+2*i}, v{o+2*i+1}")
        A(f"buffer_store_dwordx4 {v(o,4)}, v22, s[12:15], s{(100, 59)[b]} offen sc1")
    A(f"""
    v_mul_f32 v{O+24}, v{TMP+2}, v{O+24}
    v_mul_f32 v{O+25}, v{TMP+2}, v{O+25}
    v_cvt_pk_bf16_f32 v{O+8}, v{O+8}, v{O+9}
    v_cvt_pk_bf16_f32 v{O+24}, v{O+24}, v{O+25}
    s_mov_b32 exec_hi, 0
    buffer_store_dword v{O+8}, v23, s[12:15], s101 offen sc1
    buffer_store_dword v{O+24}, v23, s[12:15], s60 offen sc1
    s_mov_b32 exec_lo, 3
    {"" if os.environ.get("HE", "1") else "buffer_store_dword v24, v26, s[12:15], s58 offen sc1"}
    """)
    stamp(A, 7)
    A(f"""
    s_branch L_end
    L_at_bar:
    s_waitcnt vmcnt(0)
    s_barrier
    s_setprio 2
    s_branch L_at_bar_ret
    L_at_lowprio:
    s_setprio 1
    s_cmp_lg_u32 s66, 7
    s_cbranch_scc1 L_at_lowprio_ret
    s_mul_i32 s63, s51, {320-16}
    s_lshl_b32 s64, s3, 2
    s_add_u32 s63, s63, s64
    s_add_u32 s63, s63, {L_PG}
    v_mov_b32 v{TMP}, s63
    """)
    lset(A, TMP, 0, 1, TMP+1)
    A("s_branch L_at_lowprio_ret")
    MX = TMP + 4; FS_ = S; FQ = S + 16; FO_ = X
    A.label("L_at_fallback")
    A(f"""
    v_and_b32 v{TMP+1}, 3, v0
    v_lshlrev_b32 v{TMP+1}, 4, v{TMP+1}
    v_bfe_u32 v{TMP}, v0, 2, 1
    v_lshl_or_b32 v{TMP+1}, v{TMP}, 7, v{TMP+1}
    v_bfe_u32 v{TMP}, v0, 3, 1
    v_lshl_or_b32 v{TMP+1}, v{TMP}, 6, v{TMP+1}
    v_bfe_u32 v{TMP}, v0, 4, 1
    v_lshl_or_b32 v{TMP+1}, v{TMP}, 3, v{TMP+1}
    v_lshrrev_b32 v{AV}, 5, v0
    v_lshl_or_b32 v{AK}, v{AV}, 8, v{TMP+1}
    v_and_b32 v{TMP}, 31, v0
    s_mul_i32 s63, s96, 18
    v_add_u32 v{TMP+2}, s63, v{TMP}
    v_mul_u32_u24 v{AV}, {VT_ROW}, v{AV}
    v_lshl_add_u32 v{AV}, v{TMP+2}, 4, v{AV}
    s_mov_b32 s69, 0
    v_mov_b32 v{FQ+4}, v{QE}
    v_mov_b32 v{FQ+5}, v{QE+1}
    s_mov_b32 exec_lo, 0
    v_mov_b32 v{FQ+4}, 0
    v_mov_b32 v{FQ+5}, 0
    s_mov_b32 exec_lo, -1
    """)
    for i in range(4): A(f"v_mov_b32 v{FQ+i}, v{QM+i}")
    for i in range(8): A(f"v_mov_b32 v{VF+i}, 0x3f803f80")
    A(f"L_fb_blk:\nv_mov_b32 v{MX}, 0xff800000\ns_mov_b32 s67, 0")
    for i in range(16): A(f"v_mov_b32 v{FO_+i}, 0")
    A(f"""
    L_fb_pass:
    s_add_u32 s63, s57, {144*256}
    s_add_u32 s64, s55, {144*256}
    s_mov_b32 s65, {VT_OFF}
    s_mov_b32 s66, 0
    L_fb_loop:
    s_add_u32 s68, s65, {2*VT_ROW}
    buffer_load_dwordx2 {v(KF,2)}, v{AK}, s[12:15], s63 offen sc1
    buffer_load_dwordx2 {v(KF+2,2)}, v{AK}, s[12:15], s63 offen offset:512 sc1
    buffer_load_dwordx2 {v(KE,2)}, v{TMP+1}, s[12:15], s64 offen sc1
    s_mov_b32 exec_lo, 0x3ffff
    s_mov_b32 exec_hi, 0x3ffff
    buffer_load_dwordx4 {v(VF,4)}, v{AV}, s[12:15], s65 offen sc1
    buffer_load_dwordx4 {v(VF+4,4)}, v{AV}, s[12:15], s68 offen sc1
    s_mov_b64 exec, -1
    s_waitcnt vmcnt(0)
    v_mfma_f32_32x32x16_bf16 {v(FS_,16)}, {v(KF,4)}, {v(FQ,4)}, 0
    s_nop 10
    v_mfma_f32_32x32x8_bf16 {v(FS_,16)}, {v(KE,2)}, {v(FQ+4,2)}, {v(FS_,16)}
    s_add_u32 s63, s63, {QKQ_TT}
    s_add_u32 s64, s64, {QKQ_TT}
    s_add_u32 s65, s65, {VT_TT}
    s_add_u32 s66, s66, 1
    s_nop 15
    s_cmp_lg_u32 s67, 0
    s_cbranch_scc1 L_fb_p2
    """)
    for i in range(8): A(f"v_max3_f32 v{MX}, v{MX}, v{FS_+2*i}, v{FS_+2*i+1}")
    A(f"""
    s_cmp_lt_u32 s66, 64
    s_cbranch_scc1 L_fb_loop
    v_mov_b32 v{MX+1}, v{MX}
    s_nop 1
    v_permlane32_swap_b32 v{MX}, v{MX+1}
    s_mov_b32 s67, 1
    v_max_f32 v{MX}, v{MX}, v{MX+1}
    s_branch L_fb_pass
    L_fb_p2:
    """)
    for i in range(16): A(f"v_sub_f32 v{FS_+i}, v{FS_+i}, v{MX}")
    for i in range(16): A(f"v_exp_f32 v{FS_+i}, v{FS_+i}")
    A(f"""
    s_nop 2
    v_smfmac_f32_32x32x32_bf16 {v(FO_,16)}, {v(VF,4)}, {v(FS_,8)}, v{IDX}
    v_smfmac_f32_32x32x32_bf16 {v(FO_,16)}, {v(VF+4,4)}, {v(FS_+8,8)}, v{IDX}
    s_cmp_lt_u32 s66, 64
    s_cbranch_scc1 L_fb_loop
    s_nop 15
    s_cmp_lg_u32 s69, 0
    s_cbranch_scc1 L_fb_done
    s_mov_b32 s69, 1
    v_mov_b32 v{FQ+4}, 0
    v_mov_b32 v{FQ+5}, 0
    """)
    for i in range(12): A(f"v_mov_b32 v{O+i}, v{FO_+i}")
    for i in range(4): A(f"v_mov_b32 v{FQ+i}, v{QM+4+i}")
    A(f"v_permlane32_swap_b32 v{QE}, v{FQ+4}\nv_permlane32_swap_b32 v{QE+1}, v{FQ+5}\ns_branch L_fb_blk\nL_fb_done:")
    for i in range(12): A(f"v_mov_b32 v{O+16+i}, v{FO_+i}")
    A("s_branch L_at_fin")

def kv_loader(A):
    VD = 4; VP = 9; PT = 12
    A("s_setprio 3")
    head_qb(A)
    A(f"""
    s_and_b32 s50, s3, 1
    s_bfe_u32 s51, s3, 0x10001
    s_mul_i32 s52, s51, {HOFF}
    s_cmp_eq_u32 s50, 0
    s_cbranch_scc0 L_kv_v
    s_lshr_b32 s55, s96, 1
    s_mul_i32 s55, s55, {9*256}
    s_and_b32 s56, s96, 1
    s_mul_i32 s57, s56, {5*256}
    v_lshl_add_u32 v{VD}, v0, 4, s57
    v_add_u32 v{VD+1}, {QKQ_TT-1024}, v{VD}
    v_add_u32 v{VD+2}, {2*(QKQ_TT-1024)}, v{VD}
    v_add_u32 v{VD+3}, {3*(QKQ_TT-1024)}, v{VD}
    v_lshrrev_b32 v1, 4, v0
    v_mul_u32_u24 v1, {QKQ_TT}, v1
    v_and_b32 v2, 15, v0
    v_lshl_add_u32 v1, v2, 4, v1
    v_add_u32 v{VD+4}, 1024, v1
    s_add_u32 s55, s55, {144*256}
    s_mul_i32 s53, s51, {32*QKQ_TT}
    s_add_u32 s53, s53, s55
    s_mov_b32 s54, {4*QKQ_TT}
    s_lshl_b32 s56, s56, 10
    s_add_u32 s58, s55, s56
    s_add_u32 s59, s58, {4*256}
    s_lshr_b32 s58, s58, 12
    s_lshr_b32 s59, s59, 12
    s_branch L_kv_go
    L_kv_v:
    s_mul_i32 s55, s96, 18
    s_and_b32 s56, s2, 15
    s_mul_i32 s56, s56, {VT_ROW}
    s_add_u32 s56, s56, {576*16}
    s_mul_i32 s53, s51, {32*VT_TT}
    s_add_u32 s53, s53, {VT_OFF}
    v_mul_u32_u24 v1, {4*VT_TT}, v0
    v_add_u32 v1, s56, v1
    v_mov_b32 v16, 0x3f803f80
    v_mov_b32 v17, v16
    v_mov_b32 v18, v16
    v_mov_b32 v19, v16
    s_mov_b64 exec, 0xff
    buffer_store_dwordx4 v[16:19], v1, s[12:15], s53 offen sc1
    s_mov_b64 exec, -1
    v_mov_b32 v10, s56
    """)
    for n in range(5):
        A(f"""
        v_add_u32 v1, {64*n}, v0
        v_mul_u32_u24 v2, 3277, v1
        v_lshrrev_b32 v2, 16, v2
        v_mul_u32_u24 v3, 20, v2
        v_sub_u32 v1, v1, v3
        v_cmp_gt_u32 vcc, 18, v1
        v_add_u32 v1, s55, v1
        v_mul_u32_u24 v2, {VT_ROW}, v2
        v_lshl_add_u32 v1, v1, 4, v2
        v_cndmask_b32 v{VD+n}, v10, v1, vcc
        """)
        if n % 4: A(f"v_subrev_u32 v{VD+n}, {1024*n}, v{VD+n}")
    A(f"""
    s_mov_b32 s54, {4*VT_TT}
    s_add_u32 s52, s52, 5120
    s_lshr_b32 s58, s55, 6
    s_add_u32 s59, s55, 17
    s_lshr_b32 s59, s59, 6
    s_add_u32 s58, s58, 18
    s_add_u32 s59, s59, 18
    L_kv_go:
    s_sub_u32 s59, s59, s58
    s_lshl_b32 s59, s59, 5
    v_bfe_u32 v1, v0, 4, 1
    v_mul_u32_u24 v1, s59, v1
    v_and_b32 v2, 15, v0
    v_add_u32 v1, v1, v2
    v_mul_u32_u24 v{VP}, {FS}, v1
    s_lshl_b32 s58, s58, 5
    s_lshl_b32 s59, s51, 4
    s_add_u32 s58, s58, s59
    s_mul_i32 s58, s58, {FS}
    s_add_u32 s58, s58, {FQ_OFF}
    v_mov_b32 v3, {L_FL}
    """)
    A(f"s_cmp_lt_u32 s2, 224\ns_cbranch_scc1 L_kv_g")
    lpoll(A, 3, F_CVD, 4, 1, PT, sleep=4)
    A("s_branch L_kv_g1\nL_kv_g:")
    lpoll(A, 3, F_STD, 1, 4, PT, sleep=2)
    A("L_kv_g1:")
    stamp(A, 4)
    if not os.environ.get('RG'): A(f"s_mov_b32 s59, 0\ns_mov_b32 exec_lo, {hex(((1 << 2*NE)-1)*0x10001 if not os.environ.get('ALLF') else 0xffffffff)}\ns_mov_b32 exec_hi, 0")
    else: A(f"s_lshl_b32 s59, s54, 2\ns_add_u32 s53, s53, s59\ns_lshl_b32 s59, s54, 3\ns_mov_b32 exec_lo, {hex(((1 << 2*NE)-1)*0x10001 << 8)}\ns_mov_b32 exec_hi, 0")
    gpoll(A, [VP], PT, "s58", sleep=QS)
    A("s_mov_b64 exec, -1")
    stamp(A, 5)
    A("s_mov_b32 s66, 0")
    A.label("L_kv_loop")
    A("s_mov_b32 m0, s52\ns_add_u32 s66, s66, 1")
    for n in range(4): A(f"buffer_load_dwordx4 v{VD+n}, s[12:15], s53 offen offset:{1024*n} sc1 lds")
    A(f"""
    s_add_u32 m0, s52, 4096
    s_add_u32 s52, s52, {GRP}
    buffer_load_dwordx4 v{VD+4}, s[12:15], s53 offen sc1 lds
    s_add_u32 s53, s53, s54
    s_cmp_eq_u32 s66, 4
    s_cselect_b32 s60, s59, 0
    s_sub_u32 s53, s53, s60
    s_cmp_lg_u32 s66, {NE}
    s_cbranch_scc1 L_kv_nb
    s_waitcnt vmcnt({5*(NE-1)})
    """)
    stamp(A, 6)
    A(f"""
    s_barrier
    s_waitcnt vmcnt(0)
    s_barrier
    """)
    gpoll(A, [VP], PT, "s58", sleep=4)
    A(f"""
    L_kv_nb:
    s_cmp_lt_u32 s66, 8
    s_cbranch_scc1 L_kv_loop
    {"s_waitcnt vmcnt(20)" + chr(10) + "s_barrier" if B2X else ""}
    s_waitcnt vmcnt(0)
    """)
    stamp(A, 7)
    A(f"""
    s_cmp_lg_u32 s3, 9
    s_cbranch_scc1 L_kv_nz
    v_mul_u32_u24 v1, 320, v0
    v_add_u32 v1, {L_QR}, v1
    v_mov_b32 v16, 0
    v_mov_b32 v17, 0
    v_mov_b32 v18, 0
    v_mov_b32 v19, 0
    s_mov_b64 exec, 31
    ds_write_b128 v1, v[16:19]
    s_mov_b64 exec, -1
    s_waitcnt lgkmcnt(0)
    L_kv_nz:
    s_barrier
    """)
    A(f"s_cmp_lg_u32 s3, 8\ns_cbranch_scc1 L_kv_nf\ns_mul_i32 s58, s2, {FS}\ns_add_u32 s58, s58, {FB_OFF}")
    gflag(A, "s58", PT)
    A("L_kv_nf:\ns_cmp_lg_u32 s3, 11\ns_cbranch_scc1 L_kv_nw\ns_cmp_ge_u32 s2, 144\ns_cbranch_scc1 L_kv_nw")
    trans_wo(A)
    A("L_kv_nw:")

def op_ids(A, fifth):
    A(f"""
    s_and_b32 s48, s2, 7
    s_lshl_b32 s48, s48, 3
    s_bfe_u32 s49, s2, 0x30003
    s_add_u32 s48, s48, s49
    s_lshr_b32 s51, s2, 6
    s_mul_i32 s49, s51, 5
    s_cmp_eq_u32 s51, 3
    s_subb_u32 s49, s49, 0
    s_and_b32 s50, s3, 3
    s_add_u32 s49, s49, {4 if fifth else 's50'}
    """)
def op_poll(A, t, sleep):
    A(f"""
    s_lshl_b32 s52, s49, 4
    s_lshl_b32 s54, s49, 3
    s_add_u32 s51, s54, 112
    s_cmp_lt_u32 s49, 14
    s_cselect_b32 s52, s52, s51
    s_cselect_b32 s51, 15, 7
    v_and_b32 v{t}, s51, v0
    v_add_u32 v{t}, s52, v{t}
    s_add_u32 s54, s54, 256
    v_and_or_b32 v{t+1}, v0, 7, s54
    s_mov_b32 vcc_lo, 0x00ff0000
    s_mov_b32 vcc_hi, 0
    v_cndmask_b32 v{t}, v{t}, v{t+1}, vcc
    s_lshr_b32 s52, s48, 4
    s_lshl_b32 s52, s52, 1
    s_bfe_u32 s51, s48, 0x20002
    s_lshl_b32 s51, s51, 3
    s_add_u32 s52, s52, s51
    s_add_u32 s52, s52, 193
    v_writelane_b32 v{t}, s52, 24
    s_and_b32 s52, s48, 0x38
    s_mov_b32 exec_lo, 0
    v_and_or_b32 v{t}, v0, 7, s52
    v_bfe_u32 v{t+1}, v0, 3, 2
    v_lshl_or_b32 v{t}, v{t+1}, 6, v{t}
    s_mov_b32 exec_lo, -1
    v_mul_u32_u24 v{t}, {FS}, v{t}
    s_mov_b32 s54, {FB_OFF}
    """)
    gpoll(A, [t], t+1, "s54", sleep=sleep)
def op_aaddr(A, va, vg, t):
    A(f"""
    v_and_b32 v{va}, 3, v0
    v_bfe_u32 v{t}, v0, 2, 1
    v_lshl_or_b32 v{va}, v{t}, 4, v{va}
    v_bfe_u32 v{t}, v0, 3, 2
    v_lshl_or_b32 v{va}, v{t}, 2, v{va}
    v_lshlrev_b32 v{va}, 13, v{va}
    v_lshrrev_b32 v{t}, 5, v0
    v_lshl_or_b32 v{va}, v{t}, 4, v{va}
    v_and_b32 v{vg}, 31, v0
    v_lshlrev_b32 v{vg}, 3, v{vg}
    s_lshl_b32 s52, s48, 8
    s_add_u32 s52, s52, {G_OFF}
    s_lshl_b32 s51, s49, 18
    s_lshl_b32 s54, s48, 6
    s_add_u32 s51, s51, s54
    s_add_u32 s51, s51, {AT_OFF}
    """)

def pg_wait(A, va, t, sleep, lane=0):
    l = uid("pg"); e = uid("pe")
    A(f"""
    v_bfe_u32 v{va}, v{lane}, 2, 1
    v_mul_u32_u24 v{va}, 304, v{va}
    v_and_b32 v{t}, 7, v{lane}
    v_lshl_add_u32 v{va}, v{t}, 2, v{va}
    v_add_u32 v{va}, {L_PG}, v{va}
    s_mov_b32 s{CAP}, 0x100000
    {l}:
    ds_read_b32 v{t}, v{va}
    s_sub_u32 s{CAP}, s{CAP}, 1
    s_cbranch_scc1 {e}
    s_waitcnt lgkmcnt(0)
    v_cmp_eq_u32 vcc, 0, v{t}
    s_cbranch_vccz {e}
    s_sleep {sleep}
    s_branch {l}
    {e}:
    """)

def ofetch(A):
    D = 94; F_W = 48; F_AC = 136; F_A = 130; F_DG = 152; F_G = 156
    A("s_setprio 3")
    op_ids(A, True)
    A("s_min_u32 s49, s49, 17")
    op_poll(A, F_G, 1)
    A("s_cmp_ge_u32 s2, 128\ns_cbranch_scc1 L_of_n5")
    op_aaddr(A, F_G+1, F_G+2, F_G+3)
    A(f"""
    s_and_b32 s54, s50, 1
    s_lshl_b32 s54, s54, 5
    s_add_u32 s51, s51, s54
    s_lshr_b32 s54, s50, 1
    s_lshl_b32 s54, s54, 12
    s_add_u32 s51, s51, s54
    s_waitcnt lgkmcnt(0)
    buffer_load_dword v{F_G}, v{F_G+2}, s[12:15], s52 offen sc1
    buffer_load_dwordx4 {v(F_A,4)}, v{F_G+1}, s[12:15], s51 offen sc1
    s_lshl_b32 s52, s49, 10
    s_add_u32 s52, s52, {WOT_OFF}
    s_mul_i32 s54, s50, {18*1024}
    s_add_u32 s51, s54, s52
    s_add_u32 s51, s51, {32*18*1024}
    s_lshl_b32 s54, s54, 3
    s_add_u32 s52, s52, s54
    """)
    for k in range(8): A(f"buffer_load_dwordx4 {v(F_W+4*k,4)}, v22, s[12:15], s52 offen sc1\ns_add_u32 s52, s52, {18*1024}")
    A(f"buffer_load_dwordx4 {v(F_W+32,4)}, v22, s[12:15], s51 offen sc1")
    srd(A, 8, P_OUT, 2048*1152)
    A(f"""
    v_lshrrev_b32 v41, 5, v0
    v_and_b32 v42, 31, v0
    v_lshlrev_b32 v43, 9, v41
    v_lshl_add_u32 v43, v42, 2, v43
    s_lshl_b32 s52, s50, 10
    s_add_u32 s54, s52, {L_O + 32*1024}
    v_add_u32 v43, s54, v43
    v_mul_u32_u24 v42, 1152, v42
    v_lshl_add_u32 v42, v41, 5, v42
    s_add_u32 s54, s52, {L_RED}
    v_add_u32 v45, s54, v22
    s_lshl_b32 s52, s50, 12
    s_add_u32 s52, s52, {L_RED}
    v_add_u32 v44, s52, v22
    v_mov_b32 v47, {L_FR}
    s_mul_i32 s53, s48, {32*1152}
    s_lshl_b32 s55, s49, 6
    s_add_u32 s53, s53, s55
    s_lshl_b32 s55, s50, 3
    s_add_u32 s53, s53, s55
    v_bfe_u32 v{F_G+2}, v0, 1, 1
    v_lshlrev_b32 v{F_G+2}, 4, v{F_G+2}
    v_sub_u32 v{F_G+2}, 16, v{F_G+2}
    s_and_b32 s54, s50, 1
    s_waitcnt vmcnt(9)
    v_lshrrev_b32 v{F_G}, v{F_G+2}, v{F_G}
    """)
    for r in range(4):
        m = 0x5 << (16*(r >> 1) + 4*(r & 1))
        A(f"s_lshl_b32 vcc_lo, {hex(m)}, s54\ns_lshl_b32 vcc_hi, vcc_lo, 8\nv_cndmask_b32 v{F_DG+r}, 0, v{F_G}, vcc")
    A(f"s_nop 1\nv_mfma_f32_32x32x16_bf16 {v(F_AC,16)}, {v(F_A,4)}, {v(F_DG,4)}, 0")
    A(f"""
    L_of_n5:
    s_mul_i32 s57, s48, {OF_TT}
    s_add_u32 s57, s57, {OF_OFF}
    s_lshl_b32 s58, s50, 13
    s_lshl_b32 s59, s50, 10
    s_add_u32 s59, s59, {32*1024}
    s_add_u32 s60, s57, s58
    s_add_u32 s61, s60, 4096
    s_add_u32 s62, s57, s59
    s_add_u32 s58, s58, {L_O}
    s_add_u32 s59, s59, {L_O}
    v_add_u32 v4, s58, v22
    v_add_u32 v5, s59, v22
    s_lshl_b32 s52, s50, 2
    s_add_u32 s52, s52, {L_QR}
    v_mov_b32 v6, s52
    s_lshl_b32 s55, s48, 5
    s_lshl_b32 s56, s50, 3
    s_add_u32 s55, s55, s56
    s_mul_i32 s55, s55, {FS}
    s_add_u32 s55, s55, {FO_OFF}
    v_and_b32 v8, 7, v0
    v_mul_u32_u24 v8, {FS}, v8
    """)
    pg_wait(A, 9, 10, 1)
    EM = 16
    for n in range(9): A(f"s_mov_b64 s[{EM+2*n}:{EM+2*n+1}], -1")
    stamp(A, 5)
    if os.environ.get("HP"):
        A(f"""
        s_mov_b32 s{CAP}, 0x40000
        buffer_load_dword v9, v8, s[12:15], s55 offen sc1
        s_sleep {os.environ.get("HP")}
        L_hp:
        buffer_load_dword v10, v8, s[12:15], s55 offen sc1
        s_waitcnt vmcnt(1)
        v_cmp_ne_u32 vcc, s{NONCE}, v9
        s_cbranch_vccz L_hp_e
        buffer_load_dword v9, v8, s[12:15], s55 offen sc1
        s_waitcnt vmcnt(1)
        v_cmp_ne_u32 vcc, s{NONCE}, v10
        s_cbranch_vccz L_hp_e
        s_sub_u32 s{CAP}, s{CAP}, 1
        s_cbranch_scc0 L_hp
        L_hp_e:
        """)
    else: gpoll(A, [8], 9, "s55", sleep=int(os.environ.get("HS", "6")))
    A(f"s_mov_b32 s{CAP}, 0x40000")
    stamp(A, 6)
    A("L_of_loop:")
    for n in range(9):
        A(f"s_mov_b64 exec, s[{EM+2*n}:{EM+2*n+1}]")
        A(f"buffer_load_dwordx4 {v(D+4*n,4)}, v22, s[12:15], s{60+n//4} offen offset:{1024*(n%4)} sc1")
    A("s_mov_b64 exec, -1\ns_mov_b64 s[34:35], 0")
    for n in range(9):
        A(f"s_waitcnt vmcnt({8-n})")
        A(f"ds_write_b128 v4, {v(D+4*n,4)} offset:{1024*n}" if n < 8 else f"ds_write_b128 v5, {v(D+32,4)}")
        A(f"v_max3_u32 v7, v{D+4*n}, v{D+4*n+1}, v{D+4*n+2}\nv_max_u32 v7, v7, v{D+4*n+3}\nv_cmp_eq_u32 s[{EM+2*n}:{EM+2*n+1}], -1, v7")
        if n: A(f"s_or_b64 s[34:35], s[34:35], s[{EM+2*n-2}:{EM+2*n-1}]")
    A(f"""
    s_sub_u32 s{CAP}, s{CAP}, 1
    s_cbranch_scc1 L_of_ok
    s_or_b64 s[34:35], s[34:35], s[{EM+16}:{EM+17}]
    s_cbranch_scc0 L_of_ok
    s_waitcnt lgkmcnt(0)
    s_branch L_of_loop
    L_of_ok:
    """)
    lset(A, 6, 0, 1, 7)
    stamp(A, 7)
    if DIAG: A(f"s_sub_u32 s88, 0x40000, s{CAP}")
    A(f"""
    s_cmp_ge_u32 s2, 128
    s_cbranch_scc1 L_end
    s_setprio {os.environ.get('FP', '0')}
    ds_read2_b32 v[10:11], v43 offset0:0 offset1:32
    ds_read2_b32 v[12:13], v43 offset0:64 offset1:96
    """)
    for k in range(8): A(f"v_mfma_f32_32x32x16_bf16 {v(F_AC,16)}, {v(F_W+4*k,4)}, {v(D+4*k,4)}, {v(F_AC,16)}")
    A(f"s_waitcnt lgkmcnt(0)\nv_mfma_f32_32x32x16_bf16 {v(F_AC,16)}, {v(F_W+32,4)}, v[10:13], {v(F_AC,16)}\ns_setprio 3\ns_nop 10")
    for i in range(4): A(f"ds_write_b128 v44, {v(F_AC+4*i,4)} offset:{1024*i}")
    lset(A, 6, 320, 1, 7)
    lpoll(A, 47, 0, 4, 1, 10, sleep=1)
    OB = 94
    for i in range(4): A(f"ds_read_b128 {v(OB+4*i,4)}, v45 offset:{4096*i}")
    A("s_waitcnt lgkmcnt(2)")
    for i in range(4): A(f"v_add_f32 v{OB+i}, v{OB+i}, v{OB+4+i}")
    A("s_waitcnt lgkmcnt(0)")
    for i in range(4): A(f"v_add_f32 v{OB+8+i}, v{OB+8+i}, v{OB+12+i}")
    for i in range(4): A(f"v_add_f32 v{OB+i}, v{OB+i}, v{OB+8+i}")
    A(f"v_cvt_pk_bf16_f32 v{OB}, v{OB}, v{OB+1}\nv_cvt_pk_bf16_f32 v{OB+1}, v{OB+2}, v{OB+3}")
    A(f"buffer_store_dwordx2 {v(OB,2)}, v42, s[8:11], s53 offen")

def outproj(A):
    AC = 4; AP = 20; WF = 36; OB = 148
    FT = 164
    AF = WF; DG = WF + 16; G = WF + 24; ND = 7
    op_ids(A, False)
    op_poll(A, 4, 16)
    stamp(A, 8)
    op_aaddr(A, 1, G+1, 2)
    A(f"""
    buffer_load_dword v{G}, v{G+1}, s[12:15], s52 offen sc1
    buffer_load_dwordx4 {v(AF,4)}, v1, s[12:15], s51 offen sc1
    buffer_load_dwordx4 {v(AF+4,4)}, v1, s[12:15], s51 offen offset:32 sc1
    s_add_u32 s51, s51, 4096
    buffer_load_dwordx4 {v(AF+8,4)}, v1, s[12:15], s51 offen sc1
    buffer_load_dwordx4 {v(AF+12,4)}, v1, s[12:15], s51 offen offset:32 sc1
    v_lshlrev_b32 v1, 4, v0
    s_lshl_b32 s52, s49, 10
    s_add_u32 s52, s52, {WOT_OFF}
    s_lshl_b32 s54, s50, 13
    s_add_u32 s54, s54, {L_WE}
    """)
    wld = lambda i: A(f"s_add_u32 s63, s52, {(8*(i//7) + i%7)*18*1024}\nbuffer_load_dwordx4 {v(WF+4*i,4)}, v1, s[12:15], s63 offen sc1")
    for i in range(ND, 28): wld(i)
    A(f"""
    v_bfe_u32 v{G+2}, v0, 1, 1
    v_lshlrev_b32 v{G+2}, 4, v{G+2}
    v_sub_u32 v{G+2}, 16, v{G+2}
    s_waitcnt vmcnt({28-ND})
    v_lshrrev_b32 v{G}, v{G+2}, v{G}
    """)
    for c in range(2):
        for r in range(4):
            m = 0x5 << (16*(r >> 1) + 4*(r & 1) + c)
            A(f"s_mov_b32 vcc_lo, {hex(m)}\ns_mov_b32 vcc_hi, {hex(m << 8)}\nv_cndmask_b32 v{DG+4*c+r}, 0, v{G}, vcc")
    A("s_nop 1")
    for c in range(4): A(f"v_mfma_f32_32x32x16_bf16 {v(AP,16)}, {v(AF+4*c,4)}, {v(DG+4*(c&1),4)}, {'0' if c == 0 else v(AP,16)}")
    for i in range(ND): wld(i)
    srd(A, 8, P_OUT, 2048*1152)
    A(f"""
    s_lshl_b32 s55, s2, 4
    s_add_u32 s55, s55, s3
    s_cmp_lg_u32 s55, 11
    s_cbranch_scc1 L_op_noep
    v_mul_u32_u24 v{OB}, {FS}, v0
    v_add_u32 v{OB+1}, {64*FS}, v{OB}
    v_add_u32 v{OB+2}, {128*FS}, v{OB}
    v_add_u32 v{OB+3}, {192*FS}, v{OB}
    s_mov_b32 s55, {FB_OFF}
    """)
    gpoll(A, [OB, OB+1, OB+2, OB+3], OB+4, "s55", sleep=16)
    A(f"s_mov_b32 s55, {EP_OFF}")
    gflag(A, "s55", OB)
    A(f"""
    L_op_noep:
    v_mov_b32 v{OB+2}, v0
    v_lshrrev_b32 v3, 5, v0
    v_and_b32 v2, 31, v0
    v_and_b32 v{FT+1}, 3, v0
    v_lshlrev_b32 v{FT+1}, 2, v{FT+1}
    v_add_u32 v{FT+1}, {L_QR}, v{FT+1}
    v_lshlrev_b32 v0, 9, v3
    v_lshl_add_u32 v0, v2, 2, v0
    v_add_u32 v0, {L_O + 32*1024}, v0
    v_mul_u32_u24 v2, 1152, v2
    v_lshl_add_u32 v2, v3, 5, v2
    v_add_u32 v3, s54, v1
    s_mul_i32 s53, s48, {32*1152}
    s_lshl_b32 s56, s49, 6
    s_add_u32 s53, s53, s56
    s_mov_b32 m0, s54
    s_mov_b32 s56, 15
    """)
    pg_wait(A, OB, OB+1, int(os.environ.get("PGS", "12")), lane=OB+2)
    stamp(A, 9)
    for e in range(8):
        ks = 32 + e//2 if e % 2 == 0 else 8*(e//2) + 7
        A(f"s_add_u32 s63, s52, {ks*18*1024}\nbuffer_load_dwordx4 v1, s[12:15], s63 offen sc1 lds\ns_add_u32 m0, m0, 1024")
    A(f"""
    v_add_u32 v1, {L_O}, v1
    s_mov_b32 s{CAP}, 0x400000
    s_setprio 0
    s_waitcnt vmcnt(0)
    L_op_poll:
    ds_read_b32 v{FT}, v{FT+1}
    s_sub_u32 s{CAP}, s{CAP}, 1
    s_cselect_b32 s57, 15, 0
    s_cselect_b32 s{CAP}, 0, s{CAP}
    s_waitcnt lgkmcnt(0)
    v_cmp_ne_u32 vcc, 0, v{FT}
    s_or_b32 s57, s57, vcc_lo
    s_and_b32 s57, s57, s56
    s_cbranch_scc0 L_op_poll
    s_ff1_i32_b32 s58, s57
    s_lshl_b32 s59, s58, 13
    v_add_u32 v{FT+3}, s59, v1
    """)
    for i in range(4): A(f"ds_read_b128 {v(OB+4*i,4)}, v{FT+3} offset:{i*1024}")
    A("""
    L_op_disp:
    s_cmp_eq_u32 s58, 0
    s_cbranch_scc1 L_op_q0
    s_cmp_eq_u32 s58, 1
    s_cbranch_scc1 L_op_q1
    s_cmp_eq_u32 s58, 2
    s_cbranch_scc1 L_op_q2
    """)
    for q in (3, 0, 1, 2):
        A(f"L_op_q{q}:")
        if DIAG and os.environ.get("BLK"): A("s_mov_b32 s74, s76\ns_mov_b32 s76, s78\ns_mov_b32 s78, s80"); stamp(A, 4)
        w = WF + 28*q
        def mf(a, b_, c=None, d=AC): A(f"v_mfma_f32_32x32x16_bf16 {v(d,16)}, {v(a,4)}, {v(b_,4)}, {c or v(AC,16)}")
        A(f"ds_read_b32 v{FT}, v{FT+1}\nv_add_u32 v{FT+2}, {1024*q}, v0\ns_bitset0_b32 s56, {q}")
        for i in range(4):
            A(f"s_waitcnt lgkmcnt({[4,4,4,8][i]})")
            mf(w+4*i, OB+4*i, None if i else (v(AP,16) if q == 0 else "0"))
            A(f"ds_read_b128 {v(OB+4*i,4)}, v1 offset:{(8*q+4+i)*1024}")
            if i == 2:
                A(f"ds_read_b128 {v(w,4)}, v3 offset:{2048*q}\nds_read_b128 {v(w+8,4)}, v3 offset:{2048*q+1024}")
                A(f"ds_read2_b32 {v(w+4,2)}, v{FT+2} offset0:0 offset1:32\nds_read2_b32 {v(w+6,2)}, v{FT+2} offset0:64 offset1:96")
        A(f"""
        s_waitcnt lgkmcnt(7)
        v_cmp_ne_u32 vcc, 0, v{FT}
        """)
        mf(w+16, OB)
        A(f"""
        s_and_b32 s57, vcc_lo, s56
        s_ff1_i32_b32 s58, s57
        s_lshl_b32 s59, s58, 13
        v_add_u32 v{FT+3}, s59, v1
        ds_read_b128 {v(OB,4)}, v{FT+3}
        s_waitcnt lgkmcnt(7)
        """)
        mf(w+20, OB+4)
        A(f"ds_read_b128 {v(OB+4,4)}, v{FT+3} offset:1024\ns_waitcnt lgkmcnt(7)")
        mf(w+24, OB+8)
        A(f"ds_read_b128 {v(OB+8,4)}, v{FT+3} offset:2048\ns_waitcnt lgkmcnt(3)")
        mf(w+8, OB+12)
        A(f"ds_read_b128 {v(OB+12,4)}, v{FT+3} offset:3072\ns_cmp_lg_u32 s57, 0")
        mf(w, w+4, None, w+12)
        A("s_cbranch_scc1 L_op_disp\ns_cmp_lg_u32 s56, 0\ns_cbranch_scc1 L_op_poll")
        if q != 2: A("s_branch L_op_fin")
    A("L_op_fin:")
    stamp(A, 10)
    A("s_nop 8")
    R_ = [WF + 28*q + 12 for q in range(4)]
    for m in range(2):
        for j in range(4*m, 4*m+4):
            A(f"v_pk_add_f32 {v(R_[0]+2*j,2)}, {v(R_[0]+2*j,2)}, {v(R_[1]+2*j,2)}\nv_pk_add_f32 {v(R_[2]+2*j,2)}, {v(R_[2]+2*j,2)}, {v(R_[3]+2*j,2)}")
        for j in range(4*m, 4*m+4): A(f"v_pk_add_f32 {v(R_[0]+2*j,2)}, {v(R_[0]+2*j,2)}, {v(R_[2]+2*j,2)}")
        for j in range(4*m, 4*m+4): A(f"v_cvt_pk_bf16_f32 v{AP+j}, v{R_[0]+2*j}, v{R_[0]+2*j+1}")
        A(f"buffer_store_dwordx4 {v(AP+4*m,4)}, v2, s[8:11], s53 offen offset:{16*m}")

def fused(A, name):
    head(A, name)
    stamp_init(A)
    A(f"""
    s_load_dwordx16 s[16:31], s[0:1], 0
    s_load_dwordx16 s[32:47], s[0:1], 64
    v_lshrrev_b32 v1, 6, v0
    v_and_b32 v0, 63, v0
    v_readfirstlane_b32 s3, v1
    s_cmp_ge_u32 s2, 224
    s_cbranch_scc1 L_aux
    s_lshl_b32 s99, s2, 1
    s_mov_b32 s98, 0
    s_cmp_eq_u32 s3, 8
    s_cbranch_scc1 L_ldx
    s_cmp_eq_u32 s3, 9
    s_cbranch_scc1 L_ldw
    s_cmp_eq_u32 s3, 11
    s_cbranch_scc1 L_util
    s_cmp_lt_u32 s3, 4
    s_cbranch_scc1 L_gemm
    s_cmp_lt_u32 s3, 8
    s_cbranch_scc1 L_kgen
    s_lshr_b32 s48, s2, 3
    s_mov_b32 s49, {L_TR}
    s_and_b32 s52, s2, 1
    s_mul_i32 s52, s52, 28
    s_add_u32 s48, s48, s52
    s_mul_i32 s50, s48, 9363
    s_lshr_b32 s50, s50, 16
    s_mul_i32 s51, s50, 7
    s_sub_u32 s51, s48, s51
    s_and_b32 s52, s2, 6
    s_lshl_b32 s52, s52, 2
    s_add_u32 s50, s50, s52
    L_tru:
    s_setprio 3
    """)
    trans_u(A)
    A("s_branch L_ucopy")
    A.label("L_ldx"); gemm_loader(A, True); A("s_branch L_kv")
    A.label("L_ldw"); gemm_loader(A, False); A("s_branch L_kv")
    A.label("L_gemm")
    gemm_compute(A, "L_attn")
    A.label("L_gate")
    ugather(A)
    A("s_branch L_kv")
    A.label("L_aux")
    A(f"""
    s_cmp_ge_u32 s2, 256
    s_cbranch_scc1 L_exit
    s_cmp_lg_u32 s3, 9
    s_cbranch_scc1 L_aux1
    v_mov_b32 v2, 0
    v_lshlrev_b32 v3, 2, v0
    v_add_u32 v3, {L_FL}, v3
    ds_write_b32 v3, v2
    L_aux1:
    s_sub_u32 s50, s2, 224
    s_lshl_b32 s99, s50, 2
    s_add_u32 s99, s99, 448
    s_mov_b32 s98, 0
    s_cmp_ge_u32 s3, 8
    s_cbranch_scc1 L_gate
    s_cmp_ge_u32 s3, 4
    s_cbranch_scc1 L_kgen
    s_mov_b32 s98, {SET1}
    s_add_u32 s99, s99, 2
    L_kgen:
    s_and_b32 s50, s3, 1
    s_add_u32 s99, s99, s50
    s_mov_b32 s48, s99
    s_bfe_u32 s63, s3, 0x10001
    s_cmp_lg_u32 s98, 0
    s_cselect_b32 s51, 32768, 0
    s_cselect_b32 s53, 16, 0
    s_add_u32 s51, s51, {L_KG}
    s_add_u32 s53, s53, {L_FL}
    s_and_b32 s52, s3, 3
    s_mul_i32 s49, s52, {KG_SZ}
    s_add_u32 s49, s49, s51
    s_xor_b32 s52, s52, 2
    s_mul_i32 s64, s52, {KG_SZ}
    s_add_u32 s64, s64, s51
    s_mul_i32 s67, s50, {KC_CH}
    s_add_u32 s67, s67, {L_KC}
    s_sub_u32 s67, s67, s98
    s_lshl_b32 s50, s50, 3
    s_lshl_b32 s51, s63, 2
    s_add_u32 s50, s50, s51
    s_add_u32 s50, s50, s53
    v_mov_b32 v3, s50
    """)
    kgen(A, conv_pre)
    A.label("L_conv")
    if FINE: STAMP_ON[0] = False
    conv(A)
    A.label("L_attn")
    attn(A)
    A.label("L_util")
    A(f"""
    v_mov_b32 v2, 0
    v_lshlrev_b32 v3, 2, v0
    v_add_u32 v3, {L_FL}, v3
    ds_write_b32 v3, v2
    s_getpc_b64 s[50:51]
    L_pf_pc:
    s_sub_u32 s50, s50, L_pf_pc-{name}
    s_subb_u32 s51, s51, 0
    v_lshlrev_b32 v2, 7, v0
    s_bfe_u32 s52, s2, 0x20003
    s_mul_i32 s52, s52, 6912
    v_add_u32 v2, s52, v2
    global_load_dword v100, v2, s[50:51]
    """)
    A("s_waitcnt lgkmcnt(0)")
    ws_setup(A); get_nonce(A)
    A("s_barrier\n"*4)
    A.label("L_ucopy")
    ucopy(A)
    A.label("L_kv")
    kv_loader(A)
    outproj(A)
    A.label("L_end")
    endpgm(A, 0)
    A("L_exit:\ns_endpgm")
    A.raw(".p2align 4\n.type kgen_tab,@object\nkgen_tab:")
    T = kgen_table()
    for i in range(0, len(T), 8): A.raw("    .long " + ", ".join(str(x) for x in T[i:i+8]))
    A.raw(f".size kgen_tab, {4*len(T)}")
    A.raw(f".type code_pad,@object\ncode_pad:\n.fill (28928 - (code_pad - {name})) / 4, 4, 0\n.size code_pad, . - code_pad")

if __name__ == "__main__":
    import sys
    NAME = "gated_mix__ssm_conv_s4__mha_block__prompt_kernel"
    HDR = open("gated_mix__ssm_conv_s4__mha_block__prompt.s.ref").read().split("; Override launch")[0]
    A = Asm(); fused(A, NAME)
    aslist = len(sys.argv) > 2
    out = HDR + (f"; @launch kernel={NAME} grid=(256,1,1) block=(768,1,1) lds=163840\n" if aslist else "; @launch grid=(256,1,1) block=(768,1,1) lds=163840\n")
    out += '.amdgcn_target "amdgcn-amd-amdhsa--gfx950"\n.text\n' + A.text() + '.section .rodata,"a"\n' + kd(NAME, NV)
    open(sys.argv[1], "w").write(out)
```

```python
from f1 import *
NV = 168
GRP = 20480
HOFF = 10240
PRIO = int(os.environ.get("PRIO", "1"))
ATD = 112
NE = 2

def head_qb(A):
    A("""
    s_and_b32 s96, s2, 7
    s_lshl_b32 s96, s96, 2
    s_lshr_b32 s97, s2, 6
    s_add_u32 s96, s96, s97
    s_bfe_u32 s97, s2, 0x30003
    """)

CVU, CVK, CVF, CVF2, CVA, CPT = 126, 127, 128, 129, 130, 132
CAC = 136
def conv_pre(A):
    PT = CPT
    A(f"""
    s_and_b32 s50, s3, 1
    s_bfe_u32 s51, s3, 0x10001
    s_mul_i32 s52, s50, {UC_CH}
    s_add_u32 s52, s52, {L_UC}
    s_sub_u32 s52, s52, s98
    s_lshl_b32 s53, s51, 10
    s_add_u32 s52, s52, s53
    s_mul_i32 s53, s50, {KC_CH}
    s_add_u32 s53, s53, {L_KC + 512 - 32}
    s_sub_u32 s53, s53, s98
    s_lshl_b32 s54, s51, 8
    s_sub_u32 s53, s53, s54
    v_and_b32 v{PT}, 3, v0
    v_mul_u32_u24 v{PT}, {UC_COPY}, v{PT}
    v_bfe_u32 v{PT+1}, v0, 2, 3
    v_lshrrev_b32 v{PT+2}, 5, v0
    v_add_u32 v{PT+1}, v{PT+1}, v{PT+2}
    v_lshl_add_u32 v{CVU}, v{PT+1}, 4, v{PT}
    v_add_u32 v{CVU}, s52, v{CVU}
    v_mul_u32_u24 v{PT+1}, {KC_ROW}, v{PT+2}
    v_and_b32 v{PT}, 31, v0
    v_lshl_add_u32 v{CVK}, v{PT}, 4, v{PT+1}
    v_add_u32 v{CVK}, s53, v{CVK}
    s_cmp_lg_u32 s98, 0
    s_cselect_b32 s56, 8, 0
    s_lshl_b32 s57, s50, 2
    s_add_u32 s56, s56, s57
    s_add_u32 s57, s56, {L_FL}
    v_mov_b32 v{CVF}, s57
    s_add_u32 s57, s57, s56
    v_mov_b32 v{CVF2}, s57
    v_bfe_u32 v{PT}, v0, 1, 4
    v_lshlrev_b32 v{PT}, 7, v{PT}
    v_and_b32 v{PT+1}, 1, v0
    v_lshl_add_u32 v{PT}, v{PT+1}, 5, v{PT}
    v_lshl_add_u32 v{CVA}, v{PT+2}, 4, v{PT}
    s_lshl_b32 s52, s99, 13
    s_lshl_b32 s53, s51, 12
    s_add_u32 s52, s52, s53
    s_add_u32 s98, s52, {AT_OFF}
    """)
    for i in range(32): A(f"v_mov_b32 v{CAC+i}, 0")
    A.l.extend(attn_common())

def conv(A):
    VU, VK, PT, AC = CVU, CVK, CPT, CAC
    BUFS = [4, 46, 94, 110]
    lpoll(A, CVF, F_URDY, 1, 1, PT, sleep=0)
    stamp(A, 4)
    lpoll(A, CVF2, F_KRDY, 2, 1, PT, sleep=0)
    stamp(A, 5)
    def reads(q, part):
        b = BUFS[q % 4]
        ko = 2*KC_ROW*(q % 4) + 32*(1 - q//4)
        if part == 0: A(f"ds_read_b128 {v(b,4)}, v{VU} offset:{32*q}\nds_read_b128 {v(b+4,4)}, v{VK} offset:{ko}")
        else: A(f"ds_read_b128 {v(b+8,4)}, v{VK} offset:{ko+512}\nds_read_b128 {v(b+12,4)}, v{VU} offset:{32*q+2048}")
    for q in range(3): reads(q, 0); reads(q, 1)
    A("s_mov_b32 s68, 0")
    A.label("L_cv_loop")
    fill = [f"    v_mov_b32 v{O+i}, 0" for i in range(32)]; per = 3
    def F():
        A.l.extend(fill[:per]); del fill[:per]
    for q in range(4):
        b = BUFS[q]
        A("s_waitcnt lgkmcnt(8)")
        A(f"v_mfma_f32_32x32x16_bf16 {v(AC,16)}, {v(b,4)}, {v(b+4,4)}, {v(AC,16)}")
        reads(q+3, 0); F()
        A(f"v_mfma_f32_32x32x16_bf16 {v(AC+16,16)}, {v(b,4)}, {v(b+8,4)}, {v(AC+16,16)}")
        reads(q+3, 1); F()
        if q == 3: A(f"v_add_u32 v{VU}, 128, v{VU}\nv_subrev_u32 v{VK}, 32, v{VK}\ns_add_u32 s68, s68, 1\ns_cmp_lt_u32 s68, 8")
        A(f"v_mfma_f32_32x32x16_bf16 {v(AC+16,16)}, {v(b+12,4)}, {v(b+4,4)}, {v(AC+16,16)}")
        if q < 3: F()
    assert not fill
    A("s_cbranch_scc1 L_cv_loop")
    stamp(A, 6)
    A(f"""
    s_waitcnt lgkmcnt(0)
    s_cmp_lt_u32 s3, 4
    s_cbranch_scc1 L_cv_s1
    s_setprio 3
    s_barrier
    s_branch L_at_qb
    L_cv_s1:
    s_lshl_b32 s63, s3, 2
    s_add_u32 s63, s63, {L_FL+F_CVD}
    v_mov_b32 v{PT}, s63
    """)
    lset(A, PT, 0, 1, PT+1)
    A("s_branch L_attn2")

def ucopy(A):
    UD = 16
    A(f"""
    s_setprio 3
    s_lshr_b32 s50, s99, 6
    s_mul_i32 s50, s50, {32*FS}
    s_add_u32 s50, s50, {FU_OFF}
    v_and_b32 v1, 31, v0
    v_mul_u32_u24 v1, {FS}, v1
    v_lshlrev_b32 v2, 2, v0
    s_and_b32 s51, s3, 1
    s_add_u32 s52, s99, s51
    s_mul_i32 s52, s52, {UT_ROW}
    s_add_u32 s52, s52, {UT_OFF}
    s_mul_i32 s53, s51, {UC_CH}
    s_add_u32 s53, s53, {L_UC}
    s_lshl_b32 s54, s51, 2
    s_add_u32 s54, s54, {L_FL}
    v_mov_b32 v3, s54
    v_mov_b32 v9, 0
    s_cmp_ge_u32 s2, 224
    s_cbranch_scc1 L_uc_aux
    s_barrier
    s_barrier
    s_barrier
    buffer_load_dword v4, v1, s[12:15], s50 offen sc1
    s_mov_b32 s56, 1
    s_barrier
    s_waitcnt vmcnt(0)
    v_cmp_ne_u32 vcc, s{NONCE}, v4
    s_cbranch_vccz L_uc_set
    s_barrier
    s_branch L_uc_poll
    L_uc_aux:
    s_sub_u32 s53, s53, {SET1}
    s_add_u32 s52, s52, {2*UT_ROW}
    v_add_u32 v3, 8, v3
    L_uc_poll:
    s_mov_b32 s56, 0
    """)
    gpoll(A, [1], 4, "s50")
    A("L_uc_set:")
    stamp(A, 3)
    for n in range(16): A(f"buffer_load_dword v{UD+n}, v2, s[12:15], s52 offen offset:{256*n} sc1")
    A("v_add_u32 v10, s53, v2")
    for k in range(4): A(f"v_add_u32 v{11+k}, {k*UC_COPY + 124 - 4*k}, v10")
    A(f"""
    s_cmp_eq_u32 s56, 0
    s_cbranch_scc1 L_uc_nb
    s_cmp_eq_u32 s56, 2
    s_cbranch_scc1 L_uc_kw
    s_barrier
    s_branch L_uc_nb
    L_uc_kw:
    v_mov_b32 v8, {L_FL}
    """)
    lpoll(A, 8, F_KRDY+16, 4, 1, 4, sleep=1)
    A("L_uc_nb:\ns_mov_b64 exec, 0x7fffffff")
    for k in range(4): A(f"ds_write_b32 v10, v9 offset:{k*UC_COPY}")
    A("s_mov_b64 exec, -1")
    for n in range(0, 16, 2):
        A(f"s_waitcnt vmcnt({14-n})")
        for k in range(4): A(f"ds_write2st64_b32 v{11+k}, v{UD+n}, v{UD+n+1} offset0:{n} offset1:{n+1}")
    lset(A, 3, F_URDY, 1, 4)
    A(f"""
    s_cmp_ge_u32 s53, {L_UC}
    s_cbranch_scc1 L_uc_done
    s_add_u32 s53, s53, {SET1}
    s_sub_u32 s52, s52, {2*UT_ROW}
    v_subrev_u32 v3, 8, v3
    s_mov_b32 s56, 2
    s_waitcnt lgkmcnt(0)
    s_branch L_uc_set
    L_uc_done:
    """)

L_O = 40960
L_WE = 98304
L_RED = L_O + OF_TT
L_QR = 7*GRP + 5120 + 19*16
L_FR = L_QR + 320
L_XR = L_QR + 640
L_PG = L_QR + 960
IDX, AK, AV, OMG, TMP = 28, 29, 30, 31, 32
CST = [48, 102]
QM = 4; QE = 12; KF = 14; KE = 18; VF = 40; O = 62; S = 94; X = 136

def attn_common():
    B = Asm()
    head_qb(B)
    B(f"""
    s_and_b32 s50, s3, 3
    s_lshr_b32 s51, s3, 2
    s_lshl_b32 s52, s97, 3
    s_lshl_b32 s50, s50, 1
    s_add_u32 s52, s52, s50
    s_add_u32 s53, s52, s51
    s_lshr_b32 s55, s96, 1
    s_mul_i32 s55, s55, {9*256}
    s_and_b32 s56, s96, 1
    s_mul_i32 s57, s56, {5*256}
    s_add_u32 s57, s57, s55
    s_add_u32 s55, s55, {4*256}
    v_and_b32 v{TMP+4}, 15, v0
    v_lshlrev_b32 v{TMP+4}, 4, v{TMP+4}
    v_bfe_u32 v{TMP+5}, v0, 4, 1
    v_lshl_or_b32 v{TMP+4}, v{TMP+5}, 3, v{TMP+4}
    v_lshrrev_b32 v{TMP+1}, 5, v0
    v_lshl_or_b32 v{TMP+5}, v{TMP+1}, 8, v{TMP+4}
    v_and_b32 v{TMP+6}, 31, v0
    v_lshlrev_b32 v{TMP+7}, 3, v{TMP+6}
    s_lshl_b32 s62, s52, 8
    s_add_u32 s62, s62, {G_OFF}
    s_lshl_b32 s59, s50, 11
    s_add_u32 s59, s59, {L_QP}
    v_lshl_add_u32 v{TMP+3}, v0, 4, s59
    s_lshl_b32 s60, s51, 5
    v_xor_b32 v{TMP+2}, s60, v0
    v_lshl_add_u32 v{TMP+2}, v{TMP+2}, 3, s59
    v_and_b32 v{AK}, 0x13f, v{TMP+5}
    v_bfe_u32 v{TMP}, v0, 2, 1
    v_lshl_or_b32 v{AK}, v{TMP}, 7, v{AK}
    v_bfe_u32 v{TMP}, v0, 3, 1
    v_lshl_or_b32 v{AK}, v{TMP}, 6, v{AK}
    s_mul_i32 s59, s51, {HOFF}
    v_add_u32 v{AK}, s59, v{AK}
    v_mad_u32_u24 v{TMP}, v{TMP+1}, 20, v{TMP+6}
    s_add_u32 s59, s59, 5120
    v_lshl_add_u32 v{AV}, v{TMP}, 4, s59
    s_mul_i32 s59, s53, {OF_TT}
    s_add_u32 s59, s59, {OF_OFF}
    s_lshl_b32 s100, s96, 10
    s_add_u32 s100, s100, s59
    s_lshl_b32 s101, s96, 7
    s_add_u32 s101, s101, s59
    s_add_u32 s101, s101, {32*1024}
    s_mov_b32 vcc_lo, 0x7ffff
    s_mov_b32 vcc_hi, 0x7ffff
    v_mov_b32 v{IDX}, 0x80000
    v_cndmask_b32 v{AV}, v{IDX}, v{AV}, vcc
    v_mov_b32 v{IDX}, 0xdddddddd
    """)
    return B.l

def attn(A):
    A.l.extend(attn_common())
    for i in range(32): A(f"v_mov_b32 v{O+i}, 0")
    A.label("L_attn2")
    A(f"""
    s_cmp_ge_u32 s3, 4
    s_cbranch_scc1 L_at_qb
    s_mul_i32 s58, s53, {QKQ_TT}
    s_add_u32 s60, s58, s55
    s_add_u32 s58, s58, s57
    s_add_u32 s59, s58, {QKQ_TT}
    v_mul_u32_u24 v{TMP+1}, {QKQ_TT}, v{TMP+1}
    v_add_u32 v{TMP+4}, v{TMP+4}, v{TMP+1}
    s_min_u32 s63, s55, s57
    s_add_u32 s64, s63, {4*256}
    s_lshr_b32 s63, s63, 13
    s_lshr_b32 s64, s64, 13
    s_lshr_b32 s65, s52, 2
    s_lshl_b32 s63, s63, 4
    s_lshl_b32 s64, s64, 4
    s_add_u32 s63, s63, s65
    s_add_u32 s64, s64, s65
    s_mul_i32 s63, s63, {FS}
    s_mul_i32 s64, s64, {FS}
    s_mul_i32 s65, s53, {FS}
    s_add_u32 s65, s65, {FG_OFF-FQ_OFF}
    v_mov_b32 v{TMP}, s63
    v_writelane_b32 v{TMP}, s64, 1
    v_writelane_b32 v{TMP}, s65, 2
    s_add_u32 s65, s65, {FS}
    v_writelane_b32 v{TMP}, s65, 3
    s_mov_b32 s63, {FQ_OFF}
    """)
    gpoll(A, [TMP], TMP+1, "s63")
    stamp(A, 8)
    A(f"buffer_load_dwordx2 {v(QE,2)}, v{TMP+4}, s[12:15], s60 offen sc1")
    for j in range(2):
        A(f"""
        buffer_load_dwordx2 {v(QM+4*j,2)}, v{TMP+5}, s[12:15], s{58+j} offen sc1
        buffer_load_dwordx2 {v(QM+4*j+2,2)}, v{TMP+5}, s[12:15], s{58+j} offen offset:512 sc1
        """)
    A(f"v_mov_b32 v{TMP}, {L_FL}")
    lpoll(A, TMP, F_KRDY, 4, 1, KF, sleep=1)
    A(f"""
    s_cmp_eq_u32 s56, 0
    s_cselect_b32 s64, -1, 0
    s_not_b32 s65, s64
    s_waitcnt vmcnt(0)
    v_and_b32 v{QE}, s64, v{QE}
    v_and_b32 v{QE+1}, s65, v{QE+1}
    ds_write_b128 v{TMP+3}, {v(QM,4)}
    ds_write_b128 v{TMP+3}, {v(QM+4,4)} offset:1024
    ds_write_b64 v{TMP+2}, {v(QE,2)} offset:2048
    v_lshlrev_b32 v22, 4, v0
    v_lshlrev_b32 v23, 2, v0
    v_mov_b32 v24, -1
    v_mov_b32 v25, -1
    v_mov_b32 v26, -1
    v_mov_b32 v27, -1
    s_add_u32 s63, s100, {OF_TT}
    s_add_u32 s64, s101, {OF_TT}
    buffer_store_dwordx4 v[24:27], v22, s[12:15], s100 offen sc1
    buffer_store_dwordx4 v[24:27], v22, s[12:15], s63 offen sc1
    s_mov_b32 exec_hi, 0
    buffer_store_dword v24, v23, s[12:15], s101 offen sc1
    buffer_store_dword v24, v23, s[12:15], s64 offen sc1
    s_mov_b32 exec_hi, -1
    s_branch L_at_cm
    L_at_qb:
    buffer_load_dword v{OMG}, v{TMP+7}, s[12:15], s62 offen offset:260 sc1
    buffer_load_dword v25, v{TMP+7}, s[12:15], s62 offen offset:4 sc1
    v_lshlrev_b32 v22, 4, v0
    v_lshlrev_b32 v23, 2, v0
    ds_read_b128 {v(QM+4,4)}, v{TMP+3}
    ds_read_b128 {v(QM,4)}, v{TMP+3} offset:1024
    ds_read_b64 {v(QE,2)}, v{TMP+2} offset:2048
    L_at_cm:
    """)
    for i in range(8): A(f"v_mov_b32 v{S+16+8+i}, 0")
    for i in range(4): A(f"v_mov_b32 v{VF+4+i}, 0")
    A("s_mov_b32 s66, 0\ns_waitcnt lgkmcnt(0)\ns_barrier\nL_at_go:")
    stamp(A, 9)
    if os.environ.get('CLK'): stampc(A, 1)
    GU = GRP//512
    rdK = lambda t: f"ds_read2st64_b64 {v(KF,4)}, v{AK} offset0:{(t//4)*GU+2*(t%4)} offset1:{(t//4)*GU+2*(t%4)+1}"
    rdE = lambda g: f"ds_read2st64_b64 {v(KE,4)}, v{AK} offset0:{g*GU+8} offset1:{g*GU+9}"
    rdV = lambda t, m: f"ds_read_b128 {v(VF+4*m,4)}, v{AV} offset:{(t//4)*GRP+(4*(t%4)+2*m)*320}"
    M16 = lambda q: f"v_mfma_f32_32x32x16_bf16 {v(S+16*q,16)}, {v(KF,4)}, {v(QM+4*q,4)}, {v(X+16*q,16)}"
    M2 = lambda t: f"v_mfma_f32_32x32x4_2b_bf16 {v(X,32)}, {v(KE+2*((t%4)>>1),2)}, {v(QE,2)}, 0 cbsz:1 abid:{t&1}"
    PV = lambda q, m: f"v_smfmac_f32_32x32x32_bf16 {v(O+16*q,16)}, {v(VF+4*m,4)}, {v(S+16*q+8*m,8)}, v{IDX}"
    E = lambda q, i: f"v_exp_f32 v{S+16*q+i}, v{S+16*q+i}"
    A(rdE(0)); A(rdK(0)); A(rdV(0, 0))
    A("s_cmp_eq_u32 s98, 0\ns_cbranch_scc1 L_at_nost2")
    for cb in range(2):
        for j in range(8): A(f"v_cvt_pk_bf16_f32 v{CST[cb]+j}, v{CAC+16*cb+2*j}, v{CAC+16*cb+2*j+1}")
    for cb in range(2):
        for m in range(2): A(f"buffer_store_dwordx4 {v(CST[cb]+4*m,4)}, v{CVA}, s[12:15], s98 offen offset:{2048*cb+64*m} sc1")
    A(f"""
    L_at_nost2:
    s_waitcnt lgkmcnt(2)
    """)
    A(M2(0)); A("s_cmp_ge_u32 s3, 4\ns_cbranch_scc1 L_at_nb\ns_barrier\nL_at_nb:\ns_nop 13\ns_waitcnt lgkmcnt(1)\ns_setprio 2"); A(M16(0)); A("s_nop 11")
    A.raw(".p2align 6")
    A.label("L_at_loop")
    def ex(q, a, b):
        for i in range(a, b): A(E(q, i))
    for t in range(4):
        ex(0, 0, 2); A(PV(1, 1)); A(rdV(t, 1))
        ex(0, 2, 5); A(M16(1)); A("s_waitcnt lgkmcnt(1)"); A(rdK(t+1))
        ex(0, 5, 10); A(PV(0, 0)); A("s_waitcnt lgkmcnt(1)")
        if t == 2: A("s_cmp_lg_u32 s66, 1")
        ex(0, 10, 13); A(M2(t+1)); ex(0, 13, 16)
        ex(1, 0, 5); A(PV(0, 1)); A("s_waitcnt lgkmcnt(0)")
        if t == 2: A("s_cbranch_scc0 L_at_bar\nL_at_bar_ret:")
        ex(1, 5, 8); A(M16(0))
        if t == 2: A(rdE(1))
        elif t == 3: A("s_add_u32 s66, s66, 1")
        elif t == 0 and PRIO: A(f"s_bitcmp1_b32 {os.environ.get('PM', '0x82')}, s66")
        ex(1, 8, 12); A(PV(1, 0))
        if t == 3: A("s_cmp_lt_u32 s66, 8")
        elif t == 0 and PRIO: A("s_cbranch_scc1 L_at_lowprio\nL_at_lowprio_ret:")
        A(rdV(t+1, 0))
        ex(1, 12, 16)
    A(f"v_add_u32 v{AK}, {GRP}, v{AK}\nv_add_u32 v{AV}, {GRP}, v{AV}")
    A("s_cbranch_scc1 L_at_loop")
    A(PV(1, 1))
    stamp(A, 10)
    if os.environ.get('CLK'): stampc(A, 2)
    PP = S
    A(f"""
    s_mul_i32 s63, s50, 2560
    v_add_u32 v{AK}, s63, v22
    s_lshl_b32 s63, s50, 1
    s_add_u32 s63, s63, {L_XR}
    v_mov_b32 v{AV}, s63
    s_cmp_ge_u32 s3, 4
    s_cbranch_scc1 L_at_late
    ds_write_b128 v{AK}, {v(O,4)} offset:2560
    ds_write_b128 v{AK}, {v(O+4,4)} offset:3584
    s_mov_b32 exec_hi, 0
    ds_write_b128 v{AK}, {v(O+8,4)} offset:4608
    s_nop 1
    ds_write_b128 v{AK}, {v(O+24,4)} offset:2048
    s_mov_b32 exec_hi, -1
    ds_write_b128 v{AK}, {v(O+16,4)}
    ds_write_b128 v{AK}, {v(O+20,4)} offset:1024
    """)
    lset(A, AV, 0, 1, TMP)
    ofetch(A)
    A(f"""
    s_branch L_end
    L_at_late:
    s_mov_b32 s{CAP}, 0x100000
    s_mov_b32 s61, {f32(2.0**-60)}
    s_mov_b32 s62, {f32(2.0**40)}
    L_at_xw:
    ds_read_b32 v{TMP}, v{AV}
    """)
    for b in range(2): A(f"ds_read_b128 {v(PP+12*b+8,4)}, v{AK} offset:{2560*b+2048}")
    for b in range(2):
        for i in range(2): A(f"ds_read_b128 {v(PP+12*b+4*i,4)}, v{AK} offset:{2560*b+1024*i}")
    A(f"""
    s_lshl_b32 s58, s52, 5
    s_add_u32 s58, s58, s96
    s_mul_i32 s58, s58, {FS}
    s_add_u32 s58, s58, {FO_OFF}
    s_sub_u32 s59, s100, {OF_TT}
    s_sub_u32 s60, s101, {OF_TT}
    v_mov_b32 v24, s{NONCE}
    v_mul_u32_u24 v26, {32*FS}, v0
    {"s_mov_b64 exec, 3" + chr(10) + "buffer_store_dword v24, v26, s[12:15], s58 offen sc1" + chr(10) + "s_mov_b64 exec, -1" if os.environ.get("HE", "1") == "2" else ""}
    s_sub_u32 s{CAP}, s{CAP}, 1
    s_cbranch_scc1 L_at_xok
    s_waitcnt lgkmcnt(6)
    v_readfirstlane_b32 s63, v{TMP}
    s_cmp_eq_u32 s63, 0
    s_cbranch_scc1 L_at_xw
    L_at_xok:
    s_waitcnt lgkmcnt(4)
    v_add_f32 v{O+10}, v{O+10}, v{PP+10}
    v_add_f32 v{O+26}, v{O+26}, v{PP+22}
    v_add_f32 v{O+8}, v{O+8}, v{PP+8}
    v_add_f32 v{O+9}, v{O+9}, v{PP+9}
    v_add_f32 v{O+24}, v{O+24}, v{PP+20}
    v_add_f32 v{O+25}, v{O+25}, v{PP+21}
    v_cmp_le_f32 vcc, s61, v{O+10}
    v_cmp_ge_f32 s[64:65], s62, v{O+10}
    v_cmp_le_f32 s[66:67], s61, v{O+26}
    v_cmp_ge_f32 s[68:69], s62, v{O+26}
    s_waitcnt lgkmcnt(0)
    """)
    for b in range(2):
        for i in range(8): A(f"v_add_f32 v{O+16*b+i}, v{O+16*b+i}, v{PP+12*b+i}")
    A(f"""
    s_and_b32 s64, s64, vcc_lo
    s_and_b32 s66, s66, s68
    s_and_b32 s64, s64, s66
    s_cmp_eq_u32 s64, -1
    s_cbranch_scc0 L_at_fallback
    L_at_fin:
    {"s_mov_b64 exec, 3" + chr(10) + "buffer_store_dword v24, v26, s[12:15], s58 offen sc1" + chr(10) + "s_mov_b64 exec, -1" if os.environ.get("HE", "1") == "1" else ""}
    v_rcp_f32 v{TMP}, v{O+10}
    v_rcp_f32 v{TMP+2}, v{O+26}
    v_mul_f32 v{TMP}, v{TMP}, v{OMG}
    v_mul_f32 v{TMP+2}, v{TMP+2}, v25
    v_mov_b32 v{TMP+1}, v{TMP}
    v_mov_b32 v{TMP+3}, v{TMP+2}
    v_mul_f32 v{O+8}, v{TMP}, v{O+8}
    v_mul_f32 v{O+9}, v{TMP}, v{O+9}
    v_permlane32_swap_b32 v{TMP}, v{TMP+1}
    v_permlane32_swap_b32 v{TMP+2}, v{TMP+3}
    """)
    for b in range(2):
        o = O + 16*b
        for i in range(8): A(f"v_mul_f32 v{o+i}, v{TMP+2*b}, v{o+i}")
        for i in range(4): A(f"v_cvt_pk_bf16_f32 v{o+i}, v{o+2*i}, v{o+2*i+1}")
        A(f"buffer_store_dwordx4 {v(o,4)}, v22, s[12:15], s{(100, 59)[b]} offen sc1")
    A(f"""
    v_mul_f32 v{O+24}, v{TMP+2}, v{O+24}
    v_mul_f32 v{O+25}, v{TMP+2}, v{O+25}
    v_cvt_pk_bf16_f32 v{O+8}, v{O+8}, v{O+9}
    v_cvt_pk_bf16_f32 v{O+24}, v{O+24}, v{O+25}
    s_mov_b32 exec_hi, 0
    buffer_store_dword v{O+8}, v23, s[12:15], s101 offen sc1
    buffer_store_dword v{O+24}, v23, s[12:15], s60 offen sc1
    s_mov_b32 exec_lo, 3
    {"" if os.environ.get("HE", "1") else "buffer_store_dword v24, v26, s[12:15], s58 offen sc1"}
    """)
    stamp(A, 7)
    A(f"""
    s_branch L_end
    L_at_bar:
    s_waitcnt vmcnt(0)
    s_barrier
    s_setprio 2
    s_branch L_at_bar_ret
    L_at_lowprio:
    s_setprio 1
    s_cmp_lg_u32 s66, 7
    s_cbranch_scc1 L_at_lowprio_ret
    s_mul_i32 s63, s51, {320-16}
    s_lshl_b32 s64, s3, 2
    s_add_u32 s63, s63, s64
    s_add_u32 s63, s63, {L_PG}
    v_mov_b32 v{TMP}, s63
    """)
    lset(A, TMP, 0, 1, TMP+1)
    A("s_branch L_at_lowprio_ret")
    MX = TMP + 4; FS_ = S; FQ = S + 16; FO_ = X
    A.label("L_at_fallback")
    A(f"""
    v_and_b32 v{TMP+1}, 3, v0
    v_lshlrev_b32 v{TMP+1}, 4, v{TMP+1}
    v_bfe_u32 v{TMP}, v0, 2, 1
    v_lshl_or_b32 v{TMP+1}, v{TMP}, 7, v{TMP+1}
    v_bfe_u32 v{TMP}, v0, 3, 1
    v_lshl_or_b32 v{TMP+1}, v{TMP}, 6, v{TMP+1}
    v_bfe_u32 v{TMP}, v0, 4, 1
    v_lshl_or_b32 v{TMP+1}, v{TMP}, 3, v{TMP+1}
    v_lshrrev_b32 v{AV}, 5, v0
    v_lshl_or_b32 v{AK}, v{AV}, 8, v{TMP+1}
    v_and_b32 v{TMP}, 31, v0
    s_mul_i32 s63, s96, 18
    v_add_u32 v{TMP+2}, s63, v{TMP}
    v_mul_u32_u24 v{AV}, {VT_ROW}, v{AV}
    v_lshl_add_u32 v{AV}, v{TMP+2}, 4, v{AV}
    s_mov_b32 s69, 0
    v_mov_b32 v{FQ+4}, v{QE}
    v_mov_b32 v{FQ+5}, v{QE+1}
    s_mov_b32 exec_lo, 0
    v_mov_b32 v{FQ+4}, 0
    v_mov_b32 v{FQ+5}, 0
    s_mov_b32 exec_lo, -1
    """)
    for i in range(4): A(f"v_mov_b32 v{FQ+i}, v{QM+i}")
    for i in range(8): A(f"v_mov_b32 v{VF+i}, 0x3f803f80")
    A(f"L_fb_blk:\nv_mov_b32 v{MX}, 0xff800000\ns_mov_b32 s67, 0")
    for i in range(16): A(f"v_mov_b32 v{FO_+i}, 0")
    A(f"""
    L_fb_pass:
    s_add_u32 s63, s57, {144*256}
    s_add_u32 s64, s55, {144*256}
    s_mov_b32 s65, {VT_OFF}
    s_mov_b32 s66, 0
    L_fb_loop:
    s_add_u32 s68, s65, {2*VT_ROW}
    buffer_load_dwordx2 {v(KF,2)}, v{AK}, s[12:15], s63 offen sc1
    buffer_load_dwordx2 {v(KF+2,2)}, v{AK}, s[12:15], s63 offen offset:512 sc1
    buffer_load_dwordx2 {v(KE,2)}, v{TMP+1}, s[12:15], s64 offen sc1
    s_mov_b32 exec_lo, 0x3ffff
    s_mov_b32 exec_hi, 0x3ffff
    buffer_load_dwordx4 {v(VF,4)}, v{AV}, s[12:15], s65 offen sc1
    buffer_load_dwordx4 {v(VF+4,4)}, v{AV}, s[12:15], s68 offen sc1
    s_mov_b64 exec, -1
    s_waitcnt vmcnt(0)
    v_mfma_f32_32x32x16_bf16 {v(FS_,16)}, {v(KF,4)}, {v(FQ,4)}, 0
    s_nop 10
    v_mfma_f32_32x32x8_bf16 {v(FS_,16)}, {v(KE,2)}, {v(FQ+4,2)}, {v(FS_,16)}
    s_add_u32 s63, s63, {QKQ_TT}
    s_add_u32 s64, s64, {QKQ_TT}
    s_add_u32 s65, s65, {VT_TT}
    s_add_u32 s66, s66, 1
    s_nop 15
    s_cmp_lg_u32 s67, 0
    s_cbranch_scc1 L_fb_p2
    """)
    for i in range(8): A(f"v_max3_f32 v{MX}, v{MX}, v{FS_+2*i}, v{FS_+2*i+1}")
    A(f"""
    s_cmp_lt_u32 s66, 64
    s_cbranch_scc1 L_fb_loop
    v_mov_b32 v{MX+1}, v{MX}
    s_nop 1
    v_permlane32_swap_b32 v{MX}, v{MX+1}
    s_mov_b32 s67, 1
    v_max_f32 v{MX}, v{MX}, v{MX+1}
    s_branch L_fb_pass
    L_fb_p2:
    """)
    for i in range(16): A(f"v_sub_f32 v{FS_+i}, v{FS_+i}, v{MX}")
    for i in range(16): A(f"v_exp_f32 v{FS_+i}, v{FS_+i}")
    A(f"""
    s_nop 2
    v_smfmac_f32_32x32x32_bf16 {v(FO_,16)}, {v(VF,4)}, {v(FS_,8)}, v{IDX}
    v_smfmac_f32_32x32x32_bf16 {v(FO_,16)}, {v(VF+4,4)}, {v(FS_+8,8)}, v{IDX}
    s_cmp_lt_u32 s66, 64
    s_cbranch_scc1 L_fb_loop
    s_nop 15
    s_cmp_lg_u32 s69, 0
    s_cbranch_scc1 L_fb_done
    s_mov_b32 s69, 1
    v_mov_b32 v{FQ+4}, 0
    v_mov_b32 v{FQ+5}, 0
    """)
    for i in range(12): A(f"v_mov_b32 v{O+i}, v{FO_+i}")
    for i in range(4): A(f"v_mov_b32 v{FQ+i}, v{QM+4+i}")
    A(f"v_permlane32_swap_b32 v{QE}, v{FQ+4}\nv_permlane32_swap_b32 v{QE+1}, v{FQ+5}\ns_branch L_fb_blk\nL_fb_done:")
    for i in range(12): A(f"v_mov_b32 v{O+16+i}, v{FO_+i}")
    A("s_branch L_at_fin")

def kv_loader(A):
    VD = 4; VP = 9; PT = 12
    A("s_setprio 3")
    head_qb(A)
    A(f"""
    s_and_b32 s50, s3, 1
    s_bfe_u32 s51, s3, 0x10001
    s_mul_i32 s52, s51, {HOFF}
    s_cmp_eq_u32 s50, 0
    s_cbranch_scc0 L_kv_v
    s_lshr_b32 s55, s96, 1
    s_mul_i32 s55, s55, {9*256}
    s_and_b32 s56, s96, 1
    s_mul_i32 s57, s56, {5*256}
    v_lshl_add_u32 v{VD}, v0, 4, s57
    v_add_u32 v{VD+1}, {QKQ_TT-1024}, v{VD}
    v_add_u32 v{VD+2}, {2*(QKQ_TT-1024)}, v{VD}
    v_add_u32 v{VD+3}, {3*(QKQ_TT-1024)}, v{VD}
    v_lshrrev_b32 v1, 4, v0
    v_mul_u32_u24 v1, {QKQ_TT}, v1
    v_and_b32 v2, 15, v0
    v_lshl_add_u32 v1, v2, 4, v1
    v_add_u32 v{VD+4}, 1024, v1
    s_add_u32 s55, s55, {144*256}
    s_mul_i32 s53, s51, {32*QKQ_TT}
    s_add_u32 s53, s53, s55
    s_mov_b32 s54, {4*QKQ_TT}
    s_lshl_b32 s56, s56, 10
    s_add_u32 s58, s55, s56
    s_add_u32 s59, s58, {4*256}
    s_lshr_b32 s58, s58, 13
    s_lshr_b32 s59, s59, 13
    s_branch L_kv_go
    L_kv_v:
    s_mul_i32 s55, s96, 18
    s_and_b32 s56, s2, 15
    s_mul_i32 s56, s56, {VT_ROW}
    s_add_u32 s56, s56, {576*16}
    s_mul_i32 s53, s51, {32*VT_TT}
    s_add_u32 s53, s53, {VT_OFF}
    v_mul_u32_u24 v1, {4*VT_TT}, v0
    v_add_u32 v1, s56, v1
    v_mov_b32 v16, 0x3f803f80
    v_mov_b32 v17, v16
    v_mov_b32 v18, v16
    v_mov_b32 v19, v16
    s_mov_b64 exec, 0xff
    buffer_store_dwordx4 v[16:19], v1, s[12:15], s53 offen sc1
    s_mov_b64 exec, -1
    v_mov_b32 v10, s56
    """)
    for n in range(5):
        A(f"""
        v_add_u32 v1, {64*n}, v0
        v_mul_u32_u24 v2, 3277, v1
        v_lshrrev_b32 v2, 16, v2
        v_mul_u32_u24 v3, 20, v2
        v_sub_u32 v1, v1, v3
        v_cmp_gt_u32 vcc, 18, v1
        v_add_u32 v1, s55, v1
        v_mul_u32_u24 v2, {VT_ROW}, v2
        v_lshl_add_u32 v1, v1, 4, v2
        v_cndmask_b32 v{VD+n}, v10, v1, vcc
        """)
        if n % 4: A(f"v_subrev_u32 v{VD+n}, {1024*n}, v{VD+n}")
    A(f"""
    s_mov_b32 s54, {4*VT_TT}
    s_add_u32 s52, s52, 5120
    s_lshr_b32 s58, s55, 7
    s_add_u32 s59, s55, 17
    s_lshr_b32 s59, s59, 7
    s_add_u32 s58, s58, 9
    s_add_u32 s59, s59, 9
    L_kv_go:
    s_sub_u32 s59, s59, s58
    s_lshl_b32 s59, s59, 4
    v_bfe_u32 v1, v0, 3, 1
    v_mul_u32_u24 v1, s59, v1
    v_and_b32 v2, 7, v0
    v_add_u32 v1, v1, v2
    v_mul_u32_u24 v{VP}, {FS}, v1
    s_lshl_b32 s58, s58, 4
    s_lshl_b32 s59, s51, 3
    s_add_u32 s58, s58, s59
    s_mul_i32 s58, s58, {FS}
    s_add_u32 s58, s58, {FQ_OFF}
    v_mov_b32 v3, {L_FL}
    """)
    A(f"s_cmp_lt_u32 s2, 224\ns_cbranch_scc1 L_kv_g")
    lpoll(A, 3, F_CVD, 4, 1, PT, sleep=4)
    A("s_branch L_kv_g1\nL_kv_g:")
    lpoll(A, 3, F_STD, 1, 4, PT, sleep=2)
    A("L_kv_g1:")
    stamp(A, 4)
    gpoll(A, [VP], PT, "s58")
    stamp(A, 5)
    A("s_mov_b32 s66, 0")
    A.label("L_kv_loop")
    A("s_mov_b32 m0, s52\ns_add_u32 s66, s66, 1")
    for n in range(4): A(f"buffer_load_dwordx4 v{VD+n}, s[12:15], s53 offen offset:{1024*n} sc1 lds")
    A(f"""
    s_add_u32 m0, s52, 4096
    s_add_u32 s52, s52, {GRP}
    buffer_load_dwordx4 v{VD+4}, s[12:15], s53 offen sc1 lds
    s_add_u32 s53, s53, s54
    s_cmp_lg_u32 s66, {NE}
    s_cbranch_scc1 L_kv_nb
    s_waitcnt vmcnt({5*(NE-1)})
    """)
    stamp(A, 6)
    A(f"""
    s_barrier
    s_waitcnt vmcnt(0)
    s_barrier
    L_kv_nb:
    s_cmp_lt_u32 s66, 8
    s_cbranch_scc1 L_kv_loop
    s_waitcnt vmcnt(0)
    """)
    stamp(A, 7)
    A(f"""
    s_cmp_lg_u32 s3, 9
    s_cbranch_scc1 L_kv_nz
    v_mul_u32_u24 v1, 320, v0
    v_add_u32 v1, {L_QR}, v1
    v_mov_b32 v16, 0
    v_mov_b32 v17, 0
    v_mov_b32 v18, 0
    v_mov_b32 v19, 0
    s_mov_b64 exec, 31
    ds_write_b128 v1, v[16:19]
    s_mov_b64 exec, -1
    s_waitcnt lgkmcnt(0)
    L_kv_nz:
    s_barrier
    """)
    A(f"s_cmp_lg_u32 s3, 8\ns_cbranch_scc1 L_kv_nf\ns_mul_i32 s58, s2, {FS}\ns_add_u32 s58, s58, {FB_OFF}")
    gflag(A, "s58", PT)
    A("L_kv_nf:")

def op_ids(A, fifth):
    A(f"""
    s_and_b32 s48, s2, 7
    s_lshl_b32 s48, s48, 3
    s_bfe_u32 s49, s2, 0x30003
    s_add_u32 s48, s48, s49
    s_lshr_b32 s51, s2, 6
    s_mul_i32 s49, s51, 5
    s_cmp_eq_u32 s51, 3
    s_subb_u32 s49, s49, 0
    s_and_b32 s50, s3, 3
    s_add_u32 s49, s49, {4 if fifth else 's50'}
    """)
def op_poll(A, t, sleep):
    A(f"""
    s_lshl_b32 s52, s49, 4
    s_lshl_b32 s54, s49, 3
    s_add_u32 s51, s54, 112
    s_cmp_lt_u32 s49, 14
    s_cselect_b32 s52, s52, s51
    s_cselect_b32 s51, 15, 7
    v_and_b32 v{t}, s51, v0
    v_add_u32 v{t}, s52, v{t}
    v_and_or_b32 v{t+1}, v0, 7, s54
    s_mov_b32 vcc_lo, 0x00ff0000
    s_mov_b32 vcc_hi, 0
    v_cndmask_b32 v{t}, v{t}, v{t+1}, vcc
    s_lshr_b32 s52, s48, 3
    s_bfe_u32 s51, s48, 0x20001
    s_lshl_b32 s51, s51, 3
    s_add_u32 s52, s52, s51
    s_add_u32 s52, s52, 224
    v_writelane_b32 v{t}, s52, 24
    s_and_b32 s52, s48, 0x38
    s_mov_b32 exec_lo, 0
    v_and_or_b32 v{t}, v0, 7, s52
    v_bfe_u32 v{t+1}, v0, 3, 2
    v_lshl_or_b32 v{t}, v{t+1}, 6, v{t}
    s_mov_b32 exec_lo, -1
    v_mul_u32_u24 v{t}, {FS}, v{t}
    s_mov_b32 s54, {FB_OFF}
    """)
    gpoll(A, [t], t+1, "s54", sleep=sleep)
def op_aaddr(A, va, vg, t):
    A(f"""
    v_and_b32 v{va}, 3, v0
    v_bfe_u32 v{t}, v0, 2, 1
    v_lshl_or_b32 v{va}, v{t}, 4, v{va}
    v_bfe_u32 v{t}, v0, 3, 2
    v_lshl_or_b32 v{va}, v{t}, 2, v{va}
    v_lshlrev_b32 v{va}, 13, v{va}
    v_lshrrev_b32 v{t}, 5, v0
    v_lshl_or_b32 v{va}, v{t}, 4, v{va}
    v_and_b32 v{vg}, 31, v0
    v_lshlrev_b32 v{vg}, 3, v{vg}
    s_lshl_b32 s52, s48, 8
    s_add_u32 s52, s52, {G_OFF}
    s_lshl_b32 s51, s49, 18
    s_lshl_b32 s54, s48, 6
    s_add_u32 s51, s51, s54
    s_add_u32 s51, s51, {AT_OFF}
    """)

def pg_wait(A, va, t, sleep, lane=0):
    l = uid("pg"); e = uid("pe")
    A(f"""
    v_bfe_u32 v{va}, v{lane}, 2, 1
    v_mul_u32_u24 v{va}, 304, v{va}
    v_and_b32 v{t}, 7, v{lane}
    v_lshl_add_u32 v{va}, v{t}, 2, v{va}
    v_add_u32 v{va}, {L_PG}, v{va}
    s_mov_b32 s{CAP}, 0x100000
    {l}:
    ds_read_b32 v{t}, v{va}
    s_sub_u32 s{CAP}, s{CAP}, 1
    s_cbranch_scc1 {e}
    s_waitcnt lgkmcnt(0)
    v_cmp_eq_u32 vcc, 0, v{t}
    s_cbranch_vccz {e}
    s_sleep {sleep}
    s_branch {l}
    {e}:
    """)

def ofetch(A):
    D = 94; F_W = 48; F_AC = 136; F_A = 130; F_DG = 152; F_G = 156
    A("s_setprio 3")
    op_ids(A, True)
    A("s_min_u32 s49, s49, 17")
    op_poll(A, F_G, 1)
    A("s_cmp_ge_u32 s2, 128\ns_cbranch_scc1 L_of_n5")
    op_aaddr(A, F_G+1, F_G+2, F_G+3)
    A(f"""
    s_and_b32 s54, s50, 1
    s_lshl_b32 s54, s54, 5
    s_add_u32 s51, s51, s54
    s_lshr_b32 s54, s50, 1
    s_lshl_b32 s54, s54, 12
    s_add_u32 s51, s51, s54
    s_waitcnt lgkmcnt(0)
    buffer_load_dword v{F_G}, v{F_G+2}, s[12:15], s52 offen sc1
    buffer_load_dwordx4 {v(F_A,4)}, v{F_G+1}, s[12:15], s51 offen sc1
    s_lshl_b32 s52, s49, 10
    s_add_u32 s52, s52, {WOT_OFF}
    s_mul_i32 s54, s50, {18*1024}
    s_add_u32 s51, s54, s52
    s_add_u32 s51, s51, {32*18*1024}
    s_lshl_b32 s54, s54, 3
    s_add_u32 s52, s52, s54
    """)
    for k in range(8): A(f"buffer_load_dwordx4 {v(F_W+4*k,4)}, v22, s[12:15], s52 offen sc1\ns_add_u32 s52, s52, {18*1024}")
    A(f"buffer_load_dwordx4 {v(F_W+32,4)}, v22, s[12:15], s51 offen sc1")
    srd(A, 8, P_OUT, 2048*1152)
    A(f"""
    v_lshrrev_b32 v41, 5, v0
    v_and_b32 v42, 31, v0
    v_lshlrev_b32 v43, 9, v41
    v_lshl_add_u32 v43, v42, 2, v43
    s_lshl_b32 s52, s50, 10
    s_add_u32 s54, s52, {L_O + 32*1024}
    v_add_u32 v43, s54, v43
    v_mul_u32_u24 v42, 1152, v42
    v_lshl_add_u32 v42, v41, 5, v42
    s_add_u32 s54, s52, {L_RED}
    v_add_u32 v45, s54, v22
    s_lshl_b32 s52, s50, 12
    s_add_u32 s52, s52, {L_RED}
    v_add_u32 v44, s52, v22
    v_mov_b32 v47, {L_FR}
    s_mul_i32 s53, s48, {32*1152}
    s_lshl_b32 s55, s49, 6
    s_add_u32 s53, s53, s55
    s_lshl_b32 s55, s50, 3
    s_add_u32 s53, s53, s55
    v_bfe_u32 v{F_G+2}, v0, 1, 1
    v_lshlrev_b32 v{F_G+2}, 4, v{F_G+2}
    v_sub_u32 v{F_G+2}, 16, v{F_G+2}
    s_and_b32 s54, s50, 1
    s_waitcnt vmcnt(9)
    v_lshrrev_b32 v{F_G}, v{F_G+2}, v{F_G}
    """)
    for r in range(4):
        m = 0x5 << (16*(r >> 1) + 4*(r & 1))
        A(f"s_lshl_b32 vcc_lo, {hex(m)}, s54\ns_lshl_b32 vcc_hi, vcc_lo, 8\nv_cndmask_b32 v{F_DG+r}, 0, v{F_G}, vcc")
    A(f"s_nop 1\nv_mfma_f32_32x32x16_bf16 {v(F_AC,16)}, {v(F_A,4)}, {v(F_DG,4)}, 0")
    A(f"""
    L_of_n5:
    s_mul_i32 s57, s48, {OF_TT}
    s_add_u32 s57, s57, {OF_OFF}
    s_lshl_b32 s58, s50, 13
    s_lshl_b32 s59, s50, 10
    s_add_u32 s59, s59, {32*1024}
    s_add_u32 s60, s57, s58
    s_add_u32 s61, s60, 4096
    s_add_u32 s62, s57, s59
    s_add_u32 s58, s58, {L_O}
    s_add_u32 s59, s59, {L_O}
    v_add_u32 v4, s58, v22
    v_add_u32 v5, s59, v22
    s_lshl_b32 s52, s50, 2
    s_add_u32 s52, s52, {L_QR}
    v_mov_b32 v6, s52
    s_lshl_b32 s55, s48, 5
    s_lshl_b32 s56, s50, 3
    s_add_u32 s55, s55, s56
    s_mul_i32 s55, s55, {FS}
    s_add_u32 s55, s55, {FO_OFF}
    v_and_b32 v8, 7, v0
    v_mul_u32_u24 v8, {FS}, v8
    """)
    pg_wait(A, 9, 10, 1)
    EM = 16
    for n in range(9): A(f"s_mov_b64 s[{EM+2*n}:{EM+2*n+1}], -1")
    stamp(A, 5)
    if os.environ.get("HP"):
        A(f"""
        s_mov_b32 s{CAP}, 0x40000
        buffer_load_dword v9, v8, s[12:15], s55 offen sc1
        s_sleep {os.environ.get("HP")}
        L_hp:
        buffer_load_dword v10, v8, s[12:15], s55 offen sc1
        s_waitcnt vmcnt(1)
        v_cmp_ne_u32 vcc, s{NONCE}, v9
        s_cbranch_vccz L_hp_e
        buffer_load_dword v9, v8, s[12:15], s55 offen sc1
        s_waitcnt vmcnt(1)
        v_cmp_ne_u32 vcc, s{NONCE}, v10
        s_cbranch_vccz L_hp_e
        s_sub_u32 s{CAP}, s{CAP}, 1
        s_cbranch_scc0 L_hp
        L_hp_e:
        """)
    else: gpoll(A, [8], 9, "s55", sleep=int(os.environ.get("HS", "6")))
    A(f"s_mov_b32 s{CAP}, 0x40000")
    stamp(A, 6)
    A("L_of_loop:")
    for n in range(9):
        A(f"s_mov_b64 exec, s[{EM+2*n}:{EM+2*n+1}]")
        A(f"buffer_load_dwordx4 {v(D+4*n,4)}, v22, s[12:15], s{60+n//4} offen offset:{1024*(n%4)} sc1")
    A("s_mov_b64 exec, -1\ns_mov_b64 s[34:35], 0")
    for n in range(9):
        A(f"s_waitcnt vmcnt({8-n})")
        A(f"ds_write_b128 v4, {v(D+4*n,4)} offset:{1024*n}" if n < 8 else f"ds_write_b128 v5, {v(D+32,4)}")
        A(f"v_max3_u32 v7, v{D+4*n}, v{D+4*n+1}, v{D+4*n+2}\nv_max_u32 v7, v7, v{D+4*n+3}\nv_cmp_eq_u32 s[{EM+2*n}:{EM+2*n+1}], -1, v7")
        if n: A(f"s_or_b64 s[34:35], s[34:35], s[{EM+2*n-2}:{EM+2*n-1}]")
    A(f"""
    s_sub_u32 s{CAP}, s{CAP}, 1
    s_cbranch_scc1 L_of_ok
    s_or_b64 s[34:35], s[34:35], s[{EM+16}:{EM+17}]
    s_cbranch_scc0 L_of_ok
    s_waitcnt lgkmcnt(0)
    s_branch L_of_loop
    L_of_ok:
    """)
    lset(A, 6, 0, 1, 7)
    stamp(A, 7)
    if DIAG: A(f"s_sub_u32 s88, 0x40000, s{CAP}")
    A(f"""
    s_cmp_ge_u32 s2, 128
    s_cbranch_scc1 L_end
    s_setprio {os.environ.get('FP', '0')}
    ds_read2_b32 v[10:11], v43 offset0:0 offset1:32
    ds_read2_b32 v[12:13], v43 offset0:64 offset1:96
    """)
    for k in range(8): A(f"v_mfma_f32_32x32x16_bf16 {v(F_AC,16)}, {v(F_W+4*k,4)}, {v(D+4*k,4)}, {v(F_AC,16)}")
    A(f"s_waitcnt lgkmcnt(0)\nv_mfma_f32_32x32x16_bf16 {v(F_AC,16)}, {v(F_W+32,4)}, v[10:13], {v(F_AC,16)}\ns_setprio 3\ns_nop 10")
    for i in range(4): A(f"ds_write_b128 v44, {v(F_AC+4*i,4)} offset:{1024*i}")
    lset(A, 6, 320, 1, 7)
    lpoll(A, 47, 0, 4, 1, 10, sleep=1)
    OB = 94
    for i in range(4): A(f"ds_read_b128 {v(OB+4*i,4)}, v45 offset:{4096*i}")
    A("s_waitcnt lgkmcnt(2)")
    for i in range(4): A(f"v_add_f32 v{OB+i}, v{OB+i}, v{OB+4+i}")
    A("s_waitcnt lgkmcnt(0)")
    for i in range(4): A(f"v_add_f32 v{OB+8+i}, v{OB+8+i}, v{OB+12+i}")
    for i in range(4): A(f"v_add_f32 v{OB+i}, v{OB+i}, v{OB+8+i}")
    A(f"v_cvt_pk_bf16_f32 v{OB}, v{OB}, v{OB+1}\nv_cvt_pk_bf16_f32 v{OB+1}, v{OB+2}, v{OB+3}")
    A(f"buffer_store_dwordx2 {v(OB,2)}, v42, s[8:11], s53 offen")

def outproj(A):
    AC = 4; AP = 20; WF = 36; OB = 148
    FT = 164
    AF = WF; DG = WF + 16; G = WF + 24; ND = 7
    op_ids(A, False)
    op_poll(A, 4, 16)
    stamp(A, 8)
    op_aaddr(A, 1, G+1, 2)
    A(f"""
    buffer_load_dword v{G}, v{G+1}, s[12:15], s52 offen sc1
    buffer_load_dwordx4 {v(AF,4)}, v1, s[12:15], s51 offen sc1
    buffer_load_dwordx4 {v(AF+4,4)}, v1, s[12:15], s51 offen offset:32 sc1
    s_add_u32 s51, s51, 4096
    buffer_load_dwordx4 {v(AF+8,4)}, v1, s[12:15], s51 offen sc1
    buffer_load_dwordx4 {v(AF+12,4)}, v1, s[12:15], s51 offen offset:32 sc1
    v_lshlrev_b32 v1, 4, v0
    s_lshl_b32 s52, s49, 10
    s_add_u32 s52, s52, {WOT_OFF}
    s_lshl_b32 s54, s50, 13
    s_add_u32 s54, s54, {L_WE}
    """)
    wld = lambda i: A(f"s_add_u32 s63, s52, {(8*(i//7) + i%7)*18*1024}\nbuffer_load_dwordx4 {v(WF+4*i,4)}, v1, s[12:15], s63 offen sc1")
    for i in range(ND, 28): wld(i)
    A(f"""
    v_bfe_u32 v{G+2}, v0, 1, 1
    v_lshlrev_b32 v{G+2}, 4, v{G+2}
    v_sub_u32 v{G+2}, 16, v{G+2}
    s_waitcnt vmcnt({28-ND})
    v_lshrrev_b32 v{G}, v{G+2}, v{G}
    """)
    for c in range(2):
        for r in range(4):
            m = 0x5 << (16*(r >> 1) + 4*(r & 1) + c)
            A(f"s_mov_b32 vcc_lo, {hex(m)}\ns_mov_b32 vcc_hi, {hex(m << 8)}\nv_cndmask_b32 v{DG+4*c+r}, 0, v{G}, vcc")
    A("s_nop 1")
    for c in range(4): A(f"v_mfma_f32_32x32x16_bf16 {v(AP,16)}, {v(AF+4*c,4)}, {v(DG+4*(c&1),4)}, {'0' if c == 0 else v(AP,16)}")
    for i in range(ND): wld(i)
    srd(A, 8, P_OUT, 2048*1152)
    A(f"""
    s_lshl_b32 s55, s2, 4
    s_add_u32 s55, s55, s3
    s_cmp_lg_u32 s55, 11
    s_cbranch_scc1 L_op_noep
    v_mul_u32_u24 v{OB}, {FS}, v0
    v_add_u32 v{OB+1}, {64*FS}, v{OB}
    v_add_u32 v{OB+2}, {128*FS}, v{OB}
    v_add_u32 v{OB+3}, {192*FS}, v{OB}
    s_mov_b32 s55, {FB_OFF}
    """)
    gpoll(A, [OB, OB+1, OB+2, OB+3], OB+4, "s55", sleep=16)
    A(f"s_mov_b32 s55, {EP_OFF}")
    gflag(A, "s55", OB)
    A(f"""
    L_op_noep:
    v_mov_b32 v{OB+2}, v0
    v_lshrrev_b32 v3, 5, v0
    v_and_b32 v2, 31, v0
    v_and_b32 v{FT+1}, 3, v0
    v_lshlrev_b32 v{FT+1}, 2, v{FT+1}
    v_add_u32 v{FT+1}, {L_QR}, v{FT+1}
    v_lshlrev_b32 v0, 9, v3
    v_lshl_add_u32 v0, v2, 2, v0
    v_add_u32 v0, {L_O + 32*1024}, v0
    v_mul_u32_u24 v2, 1152, v2
    v_lshl_add_u32 v2, v3, 5, v2
    v_add_u32 v3, s54, v1
    s_mul_i32 s53, s48, {32*1152}
    s_lshl_b32 s56, s49, 6
    s_add_u32 s53, s53, s56
    s_mov_b32 m0, s54
    s_mov_b32 s56, 15
    """)
    pg_wait(A, OB, OB+1, int(os.environ.get("PGS", "12")), lane=OB+2)
    stamp(A, 9)
    for e in range(8):
        ks = 32 + e//2 if e % 2 == 0 else 8*(e//2) + 7
        A(f"s_add_u32 s63, s52, {ks*18*1024}\nbuffer_load_dwordx4 v1, s[12:15], s63 offen sc1 lds\ns_add_u32 m0, m0, 1024")
    A(f"""
    v_add_u32 v1, {L_O}, v1
    s_mov_b32 s{CAP}, 0x400000
    s_setprio 0
    s_waitcnt vmcnt(0)
    L_op_poll:
    ds_read_b32 v{FT}, v{FT+1}
    s_sub_u32 s{CAP}, s{CAP}, 1
    s_cselect_b32 s57, 15, 0
    s_cselect_b32 s{CAP}, 0, s{CAP}
    s_waitcnt lgkmcnt(0)
    v_cmp_ne_u32 vcc, 0, v{FT}
    s_or_b32 s57, s57, vcc_lo
    s_and_b32 s57, s57, s56
    s_cbranch_scc0 L_op_poll
    s_ff1_i32_b32 s58, s57
    s_lshl_b32 s59, s58, 13
    v_add_u32 v{FT+3}, s59, v1
    """)
    for i in range(4): A(f"ds_read_b128 {v(OB+4*i,4)}, v{FT+3} offset:{i*1024}")
    A("""
    L_op_disp:
    s_cmp_eq_u32 s58, 0
    s_cbranch_scc1 L_op_q0
    s_cmp_eq_u32 s58, 1
    s_cbranch_scc1 L_op_q1
    s_cmp_eq_u32 s58, 2
    s_cbranch_scc1 L_op_q2
    """)
    for q in (3, 0, 1, 2):
        A(f"L_op_q{q}:")
        if DIAG: A("s_mov_b32 s74, s76\ns_mov_b32 s76, s78\ns_mov_b32 s78, s80"); stamp(A, 4)
        w = WF + 28*q
        def mf(a, b_, c=None, d=AC): A(f"v_mfma_f32_32x32x16_bf16 {v(d,16)}, {v(a,4)}, {v(b_,4)}, {c or v(AC,16)}")
        A(f"ds_read_b32 v{FT}, v{FT+1}\nv_add_u32 v{FT+2}, {1024*q}, v0\ns_bitset0_b32 s56, {q}")
        for i in range(4):
            A(f"s_waitcnt lgkmcnt({[4,4,4,8][i]})")
            mf(w+4*i, OB+4*i, None if i else (v(AP,16) if q == 0 else "0"))
            A(f"ds_read_b128 {v(OB+4*i,4)}, v1 offset:{(8*q+4+i)*1024}")
            if i == 2:
                A(f"ds_read_b128 {v(w,4)}, v3 offset:{2048*q}\nds_read_b128 {v(w+8,4)}, v3 offset:{2048*q+1024}")
                A(f"ds_read2_b32 {v(w+4,2)}, v{FT+2} offset0:0 offset1:32\nds_read2_b32 {v(w+6,2)}, v{FT+2} offset0:64 offset1:96")
        A(f"""
        s_waitcnt lgkmcnt(7)
        v_cmp_ne_u32 vcc, 0, v{FT}
        """)
        mf(w+16, OB)
        A(f"""
        s_and_b32 s57, vcc_lo, s56
        s_ff1_i32_b32 s58, s57
        s_lshl_b32 s59, s58, 13
        v_add_u32 v{FT+3}, s59, v1
        ds_read_b128 {v(OB,4)}, v{FT+3}
        s_waitcnt lgkmcnt(7)
        """)
        mf(w+20, OB+4)
        A(f"ds_read_b128 {v(OB+4,4)}, v{FT+3} offset:1024\ns_waitcnt lgkmcnt(7)")
        mf(w+24, OB+8)
        A(f"ds_read_b128 {v(OB+8,4)}, v{FT+3} offset:2048\ns_waitcnt lgkmcnt(3)")
        mf(w+8, OB+12)
        A(f"ds_read_b128 {v(OB+12,4)}, v{FT+3} offset:3072\ns_cmp_lg_u32 s57, 0")
        mf(w, w+4, None, w+12)
        A("s_cbranch_scc1 L_op_disp\ns_cmp_lg_u32 s56, 0\ns_cbranch_scc1 L_op_poll")
        if q != 2: A("s_branch L_op_fin")
    A("L_op_fin:")
    stamp(A, 10)
    A("s_nop 8")
    R_ = [WF + 28*q + 12 for q in range(4)]
    for m in range(2):
        for j in range(4*m, 4*m+4):
            A(f"v_pk_add_f32 {v(R_[0]+2*j,2)}, {v(R_[0]+2*j,2)}, {v(R_[1]+2*j,2)}\nv_pk_add_f32 {v(R_[2]+2*j,2)}, {v(R_[2]+2*j,2)}, {v(R_[3]+2*j,2)}")
        for j in range(4*m, 4*m+4): A(f"v_pk_add_f32 {v(R_[0]+2*j,2)}, {v(R_[0]+2*j,2)}, {v(R_[2]+2*j,2)}")
        for j in range(4*m, 4*m+4): A(f"v_cvt_pk_bf16_f32 v{AP+j}, v{R_[0]+2*j}, v{R_[0]+2*j+1}")
        A(f"buffer_store_dwordx4 {v(AP+4*m,4)}, v2, s[8:11], s53 offen offset:{16*m}")

def fused(A, name):
    head(A, name)
    stamp_init(A)
    A(f"""
    s_load_dwordx16 s[16:31], s[0:1], 0
    s_load_dwordx16 s[32:47], s[0:1], 64
    v_lshrrev_b32 v1, 6, v0
    v_and_b32 v0, 63, v0
    v_readfirstlane_b32 s3, v1
    s_cmp_ge_u32 s2, 224
    s_cbranch_scc1 L_aux
    s_lshl_b32 s99, s2, 1
    s_mov_b32 s98, 0
    s_cmp_eq_u32 s3, 8
    s_cbranch_scc1 L_ldx
    s_cmp_eq_u32 s3, 9
    s_cbranch_scc1 L_ldw
    s_cmp_eq_u32 s3, 11
    s_cbranch_scc1 L_util
    s_cmp_lt_u32 s3, 4
    s_cbranch_scc1 L_gemm
    s_cmp_lt_u32 s3, 8
    s_cbranch_scc1 L_kgen
    s_lshr_b32 s48, s2, 3
    s_mov_b32 s49, {L_TR}
    s_and_b32 s52, s2, 1
    s_mul_i32 s52, s52, 28
    s_add_u32 s48, s48, s52
    s_mul_i32 s50, s48, 9363
    s_lshr_b32 s50, s50, 16
    s_mul_i32 s51, s50, 7
    s_sub_u32 s51, s48, s51
    s_and_b32 s52, s2, 6
    s_lshl_b32 s52, s52, 2
    s_add_u32 s50, s50, s52
    L_tru:
    s_setprio 3
    """)
    trans_u(A)
    A("s_branch L_ucopy")
    A.label("L_ldx"); gemm_loader(A, True); A("s_branch L_kv")
    A.label("L_ldw"); gemm_loader(A, False); A("s_branch L_kv")
    A.label("L_gemm")
    gemm_compute(A, "L_attn")
    A.label("L_gate")
    A("s_lshl_b32 s48, s50, 1\ns_add_u32 s48, s48, s3\ns_sub_u32 s48, s48, 8")
    gate(A)
    A("s_branch L_kv")
    A.label("L_aux")
    A(f"""
    s_cmp_ge_u32 s2, 256
    s_cbranch_scc1 L_exit
    s_cmp_lg_u32 s3, 9
    s_cbranch_scc1 L_aux1
    v_mov_b32 v2, 0
    v_lshlrev_b32 v3, 2, v0
    v_add_u32 v3, {L_FL}, v3
    ds_write_b32 v3, v2
    s_waitcnt lgkmcnt(0)
    L_aux1:
    s_barrier
    s_sub_u32 s50, s2, 224
    s_lshl_b32 s99, s50, 2
    s_add_u32 s99, s99, 448
    s_mov_b32 s98, 0
    s_and_b32 s52, s50, 7
    s_lshr_b32 s50, s50, 3
    s_lshl_b32 s52, s52, 2
    s_add_u32 s50, s50, s52
    s_sub_u32 s51, s3, 3
    s_and_b32 s49, s3, 1
    s_mul_i32 s49, s49, {UC_CH}
    s_cmp_ge_u32 s3, 10
    s_cbranch_scc1 L_tru
    s_cmp_ge_u32 s3, 8
    s_cbranch_scc1 L_gate
    s_cmp_ge_u32 s3, 4
    s_cbranch_scc1 L_kgen
    s_mov_b32 s98, {SET1}
    s_add_u32 s99, s99, 2
    L_kgen:
    s_and_b32 s50, s3, 1
    s_add_u32 s99, s99, s50
    s_mov_b32 s48, s99
    s_bfe_u32 s63, s3, 0x10001
    s_cmp_lg_u32 s98, 0
    s_cselect_b32 s51, 32768, 0
    s_cselect_b32 s53, 16, 0
    s_add_u32 s51, s51, {L_KG}
    s_add_u32 s53, s53, {L_FL}
    s_and_b32 s52, s3, 3
    s_mul_i32 s49, s52, {KG_SZ}
    s_add_u32 s49, s49, s51
    s_xor_b32 s52, s52, 2
    s_mul_i32 s64, s52, {KG_SZ}
    s_add_u32 s64, s64, s51
    s_mul_i32 s67, s50, {KC_CH}
    s_add_u32 s67, s67, {L_KC}
    s_sub_u32 s67, s67, s98
    s_lshl_b32 s50, s50, 3
    s_lshl_b32 s51, s63, 2
    s_add_u32 s50, s50, s51
    s_add_u32 s50, s50, s53
    v_mov_b32 v3, s50
    """)
    kgen(A, conv_pre)
    A.label("L_conv")
    if FINE: STAMP_ON[0] = False
    conv(A)
    A.label("L_attn")
    attn(A)
    A.label("L_util")
    A(f"""
    v_mov_b32 v2, 0
    v_lshlrev_b32 v3, 2, v0
    v_add_u32 v3, {L_FL}, v3
    ds_write_b32 v3, v2
    s_getpc_b64 s[50:51]
    L_pf_pc:
    s_sub_u32 s50, s50, L_pf_pc-{name}
    s_subb_u32 s51, s51, 0
    v_lshlrev_b32 v2, 7, v0
    s_bfe_u32 s52, s2, 0x20003
    s_mul_i32 s52, s52, 6144
    v_add_u32 v2, s52, v2
    global_load_dword v100, v2, s[50:51]
    """)
    A("s_cmp_ge_u32 s2, 144\ns_cbranch_scc1 L_util2")
    trans_wo_load(A)
    A("L_util2:\ns_waitcnt lgkmcnt(0)")
    ws_setup(A); get_nonce(A)
    A("L_utb:\n" + "s_barrier\n"*4)
    A.label("L_ucopy")
    ucopy(A)
    A("s_cmp_eq_u32 s3, 10\ns_cbranch_scc1 L_kv\ns_cmp_ge_u32 s2, 144\ns_cbranch_scc1 L_kv")
    trans_wo_store(A)
    A.label("L_kv")
    kv_loader(A)
    outproj(A)
    A.label("L_end")
    endpgm(A, 0)
    A("L_exit:\ns_endpgm")
    A.raw(".p2align 4\n.type kgen_tab,@object\nkgen_tab:")
    T = kgen_table()
    for i in range(0, len(T), 8): A.raw("    .long " + ", ".join(str(x) for x in T[i:i+8]))
    A.raw(f".size kgen_tab, {4*len(T)}")
    A.raw(f".type code_pad,@object\ncode_pad:\n.fill (26880 - (code_pad - {name})) / 4, 4, 0\n.size code_pad, . - code_pad")

if __name__ == "__main__":
    import sys
    NAME = "gated_mix__ssm_conv_s4__mha_block__prompt_kernel"
    HDR = open("gated_mix__ssm_conv_s4__mha_block__prompt.s.ref").read().split("; Override launch")[0]
    A = Asm(); fused(A, NAME)
    aslist = len(sys.argv) > 2
    out = HDR + (f"; @launch kernel={NAME} grid=(256,1,1) block=(768,1,1) lds=163840\n" if aslist else "; @launch grid=(256,1,1) block=(768,1,1) lds=163840\n")
    out += '.amdgcn_target "amdgcn-amd-amdhsa--gfx950"\n.text\n' + A.text() + '.section .rodata,"a"\n' + kd(NAME, NV)
    open(sys.argv[1], "w").write(out)
```

```python
import math
from asmlib import *
from lay2 import *
LOG2E = 1.4426950408889634
QSCALE = LOG2E / math.sqrt(18.0)
FINE = int(os.environ.get("FINE", "0"))
if FINE:
    _st = stamp
    import asmlib
PFF = os.environ.get("PFF", "")
LSL = int(os.environ.get("LSL", "0"))
NOKG = os.environ.get("NOKG")
NOTR = os.environ.get("NOTR")
NONCE = 70
CAP = 71
_uid = [0]
def uid(p):
    _uid[0] += 1
    return f"L_{p}{_uid[0]}"

def ws_setup(A):
    srd(A, 12, P_WS, WS_USED)
    A(f"s_add_u32 s100, s{P_WS}, {EP_OFF}\ns_addc_u32 s101, s{P_WS+1}, 0\ns_load_dword s{NONCE}, s[100:101], 0")
def get_nonce(A):
    A(f"s_waitcnt lgkmcnt(0)\ns_mul_i32 s{NONCE}, s{NONCE}, 0x9e3779b1\ns_add_u32 s{NONCE}, s{NONCE}, 0x7f4a7c15")
def gpoll(A, voffs, vt, soff="0", sleep=2):
    l = uid("gp"); e = uid("ge")
    A(f"s_mov_b32 s{CAP}, 0x40000\n{l}:")
    for i, vo in enumerate(voffs): A(f"buffer_load_dword v{vt+i}, v{vo}, s[12:15], {soff} offen sc1")
    A(f"s_sub_u32 s{CAP}, s{CAP}, 1\ns_cbranch_scc1 {e}\ns_waitcnt vmcnt(0)")
    for i in range(len(voffs)): A(f"v_xor_b32 v{vt+i}, s{NONCE}, v{vt+i}")
    for i in range(1, len(voffs)): A(f"v_or_b32 v{vt}, v{vt}, v{vt+i}")
    A(f"v_cmp_ne_u32 vcc, 0, v{vt}\ns_cbranch_vccz {e}\n{('s_sleep %d' % sleep) if sleep else ''}\ns_branch {l}\n{e}:")
def gflag(A, soff, vt):
    A(f"""
    v_mov_b32 v{vt}, s{NONCE}
    v_mov_b32 v{vt+1}, 0
    s_mov_b64 exec, 1
    buffer_store_dword v{vt}, v{vt+1}, s[12:15], {soff} offen sc1
    s_mov_b64 exec, -1
    """)
def lpoll(A, va, off, n, val, vt, st=69, sleep=1):
    l = uid("lp"); e = uid("le")
    if sleep and os.environ.get("BIGSL"): sleep = 40
    op = {1: "ds_read_b32", 2: "ds_read_b64", 4: "ds_read_b128"}[n]
    A(f"s_mov_b32 s{CAP}, 0x100000\n{l}:\n{op} {v(vt,n)}, v{va} offset:{off}\ns_sub_u32 s{CAP}, s{CAP}, 1\ns_cbranch_scc1 {e}\ns_waitcnt lgkmcnt(0)")
    if n == 2: A(f"v_min_u32 v{vt}, v{vt}, v{vt+1}\ns_nop 0")
    if n == 4: A(f"v_min3_u32 v{vt}, v{vt}, v{vt+1}, v{vt+2}\nv_min_u32 v{vt}, v{vt}, v{vt+3}\ns_nop 0")
    A(f"v_readfirstlane_b32 s{st}, v{vt}\ns_cmp_ge_u32 s{st}, {val}\ns_cbranch_scc1 {e}\n{('s_sleep %d' % sleep) if sleep else ''}\ns_branch {l}\n{e}:")
def lset(A, va, off, val, vt):
    A(f"v_mov_b32 v{vt}, {val}\ns_mov_b64 exec, 1\nds_write_b32 v{va}, v{vt} offset:{off}\ns_mov_b64 exec, -1")

def acc_t(A, slot):
    if FINE and DIAG:
        A(f"s_memtime s[58:59]\ns_waitcnt lgkmcnt(0)\ns_sub_u32 s61, s58, s60\ns_mov_b32 s60, s58")
        if slot is not None: A(f"s_add_u32 s{72+2*slot}, s{72+2*slot}, s61")
def gb(A, n=1):
    sk = uid("gb")
    A(f"s_cmp_ge_u32 s2, 224\ns_cbranch_scc1 {sk}\n" + "s_barrier\n"*n + f"{sk}:")
def rgcg(A):
    A(f"""
    s_and_b32 s53, s2, 7
    s_lshr_b32 s54, s2, 3
    s_lshr_b32 s55, s53, 1
    s_lshl_b32 s55, s55, 2
    s_and_b32 s56, s54, 3
    s_add_u32 s48, s55, s56
    s_and_b32 s53, s53, 1
    s_mul_i32 s53, s53, 7
    s_lshr_b32 s54, s54, 2
    s_add_u32 s49, s53, s54
    """)

LA = int(os.environ.get('LA', '2'))
ROT = int(os.environ.get("ROT", "2"))
def rot_code(cs):
    if ROT == 0: return "s_mov_b32 s50, 0"
    if ROT == 1:
        return f"""s_bfe_u32 s50, s2, 0x20003
    s_lshr_b32 s51, s2, 5
    s_add_u32 s50, s50, s51
    s_lshl_b32 s50, s50, 1
    s_cmp_ge_u32 s50, 9
    s_cselect_b32 s51, 9, 0
    s_sub_u32 s50, s50, s51
    s_cmp_ge_u32 s50, 9
    s_cselect_b32 s51, 9, 0
    s_sub_u32 s50, s50, s51
    s_mul_i32 s50, s50, {cs}"""
    if ROT == 2:
        return f"""s_and_b32 s50, s2, 7
    s_lshr_b32 s51, s50, 1
    s_lshl_b32 s51, s51, 1
    s_and_b32 s50, s50, 1
    s_mul_i32 s50, s50, 4
    s_add_u32 s50, s50, s51
    s_cmp_ge_u32 s50, 9
    s_cselect_b32 s51, 9, 0
    s_sub_u32 s50, s50, s51
    s_mul_i32 s50, s50, {cs}"""
    if ROT == 3:
        return f"""s_bfe_u32 s50, s2, 0x10003
    s_bfe_u32 s51, s2, 0x10005
    s_xor_b32 s50, s50, s51
    s_mul_i32 s50, s50, {4*cs}"""
def gemm_loader(A, isx):
    VD = 4; VF = 8; VT = 10
    rgcg(A)
    if isx:
        A(f"""
        s_lshl_b32 s53, s48, 7
        v_lshrrev_b32 v1, 3, v0
        v_add_u32 v1, s53, v1
        v_mul_u32_u24 v1, 1152, v1
        v_lshrrev_b32 v2, 4, v0
        v_and_b32 v3, 7, v0
        v_xor_b32 v3, v3, v2
        v_lshl_add_u32 v{VD}, v3, 4, v1
        v_xor_b32 v3, 4, v3
        v_lshl_add_u32 v{VD+1}, v3, 4, v1
        v_add_u32 v{VD+1}, 8192, v{VD+1}
        v_add_u32 v{VD+2}, 16384, v{VD}
        v_add_u32 v{VD+3}, 16384, v{VD+1}
        """)
    else:
        A(f"""
        v_lshrrev_b32 v2, 4, v0
        v_mul_u32_u24 v1, 3456, v2
        v_and_b32 v3, 15, v0
        v_lshlrev_b32 v2, 2, v2
        v_xor_b32 v3, v3, v2
        v_lshl_add_u32 v1, v3, 4, v1
        s_lshl_b32 s53, s49, 8
        v_add_u32 v{VD}, s53, v1
        v_add_u32 v{VD+1}, 12800, v{VD}
        v_add_u32 v{VD+2}, 25600, v{VD}
        v_add_u32 v{VD+3}, 38400, v{VD}
        """)
    cs, gs = (128, 32*1152) if isx else (64*3456, 16*3456)
    lp = uid("ld")
    A(f"""
    {rot_code(cs)}
    s_mov_b32 s51, {0 if isx else 16384}
    s_mov_b32 s52, 0x18000
    s_mov_b32 s53, 0
    s_waitcnt lgkmcnt(0)
    """)
    if isx: srd(A, 4, P_U, 2048*1152)
    else: srd(A, 4, P_WQKV, 576*3456)
    stamp(A, 1)
    acc_t(A, None)
    A(f"{lp}:\ns_mov_b32 m0, s51\ns_add_u32 s54, s50, {gs}")
    for g in range(4):
        so = (50, 54, 55, 56)[g]
        for n in range(4): A(f"buffer_load_dwordx4 v{VD+n}, s[4:7], s{so} offen offset:{1024*n} lds")
        if g < 3: A(f"s_add_u32 m0, s51, {4096*(g+1)}")
        if g < 2: A(f"s_add_u32 s{(55, 56)[g]}, s50, {gs*(g+2)}")
        elif g == 2: A(f"s_add_u32 s50, s50, {cs}" + (f"\ns_cmp_eq_u32 s50, {9*cs}\ns_cselect_b32 s50, 0, s50" if ROT else ""))
    acc_t(A, 4)
    A(f"""
    s_xor_b32 s51, s51, s52
    s_xor_b32 s52, s52, 0x10000
    s_add_u32 s53, s53, 1
    s_cmp_lt_u32 s53, {LA}
    s_cbranch_scc1 {lp}
    s_waitcnt vmcnt({16*(LA-1)})
    """)
    acc_t(A, 5)
    A("s_barrier")
    acc_t(A, 6)
    A(f"s_cmp_lt_u32 s53, 9\ns_cbranch_scc1 {lp}")
    ws_setup(A)
    if LA == 3: A("s_waitcnt vmcnt(16)\ns_barrier")
    A("s_waitcnt vmcnt(0)\ns_barrier")
    get_nonce(A)
    stamp(A, 3)

def gemm_compute(A, done_label):
    AX, AW = 4, 8
    VFL, VDN, PT = 10, 11, 12
    FR = 16
    ACC = 80
    rgcg(A)
    A(f"""
    s_and_b32 s53, s3, 1
    s_lshr_b32 s54, s3, 1
    s_lshl_b32 s55, s53, 13
    v_and_b32 v1, 31, v0
    v_lshlrev_b32 v1, 7, v1
    v_add_u32 v1, s55, v1
    v_lshrrev_b32 v2, 5, v0
    v_bfe_u32 v3, v0, 1, 3
    v_xor_b32 v3, v3, v2
    v_lshl_add_u32 v{AX}, v3, 4, v1
    v_xor_b32 v{AX+1}, 32, v{AX}
    v_xor_b32 v{AX+2}, 0x40040, v{AX}
    v_xor_b32 v{AX+3}, 0x40060, v{AX}
    v_bfe_u32 v1, v0, 2, 2
    v_lshl_add_u32 v3, v2, 3, v1
    v_lshlrev_b32 v3, 8, v3
    s_lshl_b32 s55, s54, 1
    v_xor_b32 v1, s55, v1
    v_lshl_add_u32 v3, v1, 6, v3
    v_bfe_u32 v1, v0, 4, 1
    v_lshl_add_u32 v3, v1, 5, v3
    v_and_b32 v1, 3, v0
    v_lshl_add_u32 v3, v1, 3, v3
    v_add_u32 v{AW}, 0x44000, v3
    v_xor_b32 v{AW+1}, 64, v{AW}
    v_mov_b32 v{VFL}, {L_FL}
    s_lshl_b32 s56, s48, 1
    s_add_u32 s56, s56, s53
    s_lshl_b32 s57, s49, 1
    s_add_u32 s57, s57, s54
    s_waitcnt lgkmcnt(0)
    """)
    ws_setup(A); get_nonce(A)
    for i in range(32): A(f"v_mov_b32 v{FR+i}, 0")
    for i in range(64): A(f"v_mov_b32 v{ACC+i}, 0")
    A("s_setprio 2\ns_mov_b32 s62, 0\ns_mov_b32 s63, 0x40000\ns_mov_b32 s64, 0x18000")
    def reads(ks, part):
        b = FR + 16*ks
        if part == 0:
            for t in range(2): A(f"ds_read_b128 {v(b+4*t,4)}, v{AX+ks} offset:{4096*t}")
        else:
            f = part - 1
            for t in range(2): A(f"ds_read_b64_tr_b16 {v(b+8+4*f+2*t,2)}, v{AW+f} offset:{ks*4096+t*1024}")
    def mf(ks, i, vtype):
        b = FR + 16*ks
        t, f = i >> 1, i & 1
        d = v(ACC+16*i, 16); x = v(b+4*t, 4); w = v(b+8+4*f, 4)
        if "m" in os.environ.get("GX", ""): A("s_nop 0"); return
        A(f"v_mfma_f32_32x32x16_bf16 {d}, {x if vtype else w}, {w if vtype else x}, {d}")
    def main(vtype):
        lp = uid("gm"); nb = uid("gnb")
        A.raw(".p2align 6")
        A.label(lp)
        for ks in range(4):
            A(f"s_waitcnt lgkmcnt(6)")
            mf(ks, 0, vtype)
            if ks == 2:
                A(f"s_cbranch_scc1 {nb}")
                if LA == 3: A("s_waitcnt lgkmcnt(0)")
                if FINE and DIAG: A("s_memtime s[58:59]")
                A("s_barrier")
                if FINE and DIAG: A("s_memtime s[60:61]\ns_waitcnt lgkmcnt(0)\ns_sub_u32 s60, s60, s58\ns_add_u32 s86, s86, s60")
                if DIAG and os.environ.get("CS"):
                    sk = uid("sk"); A(f"s_cmp_lg_u32 s62, 0\ns_cbranch_scc1 {sk}"); stamp(A, 1); A(f"{sk}:")
                A(f"{nb}:")
            kn = (ks+2) & 3
            reads(kn, 0)
            mf(ks, 1, vtype)
            reads(kn, 1)
            if ks == 3: A("s_add_u32 s62, s62, 1")
            mf(ks, 2, vtype)
            reads(kn, 2)
            if ks == 1: A("s_cmp_eq_u32 s62, 9")
            if ks == 3: A(f"v_xor_b32 v{AX+kn}, s64, v{AX+kn}\ns_mov_b32 s63, s64\ns_xor_b32 s64, s64, 0x10000\ns_cmp_lt_u32 s62, 10")
            mf(ks, 3, vtype)
            if ks < 3: A(f"v_xor_b32 v{AX+kn}, s{63 if ks < 2 else 64}, v{AX+kn}")
            if ks == 1: A(f"v_xor_b32 v{AW}, s63, v{AW}\nv_xor_b32 v{AW+1}, s63, v{AW+1}")
        A(f"s_cbranch_scc1 {lp}")
        A(f"s_setprio {os.environ.get('EP', '2')}")
        stamp(A, 4)
        if os.environ.get("LD"):
            sk = uid("ld")
            A(f"s_and_b32 s58, s48, 6\ns_cbranch_scc0 {sk}\ns_cmp_lt_u32 s57, 9\ns_cbranch_scc1 {sk}\ns_setprio 0")
            lpoll(A, VFL, F_KP if os.environ.get("LD") == "1" else F_KRDY, 4, 1, PT, sleep=1)
            A(f"s_setprio 2\n{sk}:")
    A(f"s_cmp_eq_u32 s57, 27\ns_cbranch_scc1 L_g_gate\ns_cmp_ge_u32 s49, 9\ns_cbranch_scc1 L_g_vtype")
    main(False)
    A(f"""
    s_mul_i32 s58, s56, {2*QKQ_TT}
    s_lshl_b32 s59, s57, 12
    s_add_u32 s58, s58, s59
    s_add_u32 s59, s58, {QKQ_TT}
    s_mov_b32 s60, {f32(QSCALE)}
    s_cmp_lt_u32 s57, 9
    s_nop 0
    v_and_b32 v1, 15, v0
    v_lshlrev_b32 v1, 4, v1
    v_bfe_u32 v2, v0, 4, 1
    v_lshl_or_b32 v1, v2, 9, v1
    v_lshrrev_b32 v2, 5, v0
    v_lshl_or_b32 v1, v2, 8, v1
    """)
    for i in range(4):
        t, f = i >> 1, i & 1
        a = ACC + 16*i
        sk = uid("ns")
        A(f"s_cbranch_scc0 {sk}")
        for j in range(16): A(f"v_mul_f32 v{a+j}, s60, v{a+j}")
        A(f"{sk}:")
        for j in range(8): A(f"v_cvt_pk_bf16_f32 v{a+j}, v{a+2*j}, v{a+2*j+1}")
        A(f"v_permlane16_swap_b32 v{a}, v{a+2}\nv_permlane16_swap_b32 v{a+1}, v{a+3}")
        A(f"v_permlane16_swap_b32 v{a+4}, v{a+6}\nv_permlane16_swap_b32 v{a+5}, v{a+7}")
        for g in range(2):
            A(f"buffer_store_dwordx4 {v(a+4*g,4)}, v1, s[12:15], s{58+t} offen offset:{f*2048+g*1024} sc1")
    A(f"s_branch L_g_pub")
    A.label("L_g_gate")
    srd(A, 4, P_GW, 1152)
    A(f"""
    {rot_code(128)}
    s_lshl_b32 s51, s53, 11
    s_add_u32 s51, s51, {L_GW}
    s_mov_b32 m0, s51
    v_lshlrev_b32 v1, 4, v0
    buffer_load_dwordx4 v1, s[4:7], 0 offen lds
    buffer_load_dwordx4 v1, s[4:7], 0 offen offset:1024 lds
    v_lshl_add_u32 v{AW+1}, v2, 4, s51
    s_waitcnt vmcnt(0)
    L_gt_loop:
    """)
    for ks in range(4):
        kn = (ks+2) & 3; b = FR + 16*ks; bn = FR + 16*kn
        A(f"s_waitcnt lgkmcnt(3)\nv_mfma_f32_32x32x16_bf16 {v(ACC,16)}, {v(b+8,4)}, {v(b,4)}, {v(ACC,16)}")
        if ks == 2: A("s_cbranch_scc1 L_gt_nb\ns_barrier\nL_gt_nb:")
        reads(kn, 0)
        A(f"ds_read_b128 {v(bn+8,4)}, v{AW} offset:{32*kn}")
        A(f"v_mfma_f32_32x32x16_bf16 {v(ACC+16,16)}, {v(b+8,4)}, {v(b+4,4)}, {v(ACC+16,16)}")
        A(f"v_xor_b32 v{AX+kn}, s{63 if ks < 2 else 64}, v{AX+kn}")
        if ks == 1: A(f"v_add_u32 v{AW}, s50, v{AW+1}\ns_add_u32 s50, s50, 128\ns_cmp_eq_u32 s50, 1152\ns_cselect_b32 s50, 0, s50\ns_cmp_eq_u32 s62, 9")
        if ks == 3: A("s_mov_b32 s63, s64\ns_xor_b32 s64, s64, 0x10000\ns_add_u32 s62, s62, 1\ns_cmp_lt_u32 s62, 10")
    Z = ACC
    A(f"""
    s_cbranch_scc1 L_gt_loop
    s_lshl_b32 s52, s56, 9
    s_add_u32 s52, s52, {G_OFF}
    v_lshlrev_b32 v1, 3, v0
    s_nop 3
    s_mov_b32 exec_lo, 0
    v_mov_b32 v{Z}, v{Z+16}
    s_mov_b32 exec_lo, -1
    v_cvt_pk_bf16_f32 v{Z}, v{Z}, v{Z}
    v_and_b32 v{Z}, 0xffff0000, v{Z}
    v_mul_f32 v{Z}, {f32(-LOG2E)}, v{Z}
    v_exp_f32 v{Z}, v{Z}
    s_nop 0
    v_add_f32 v{Z}, 1.0, v{Z}
    v_rcp_f32 v{Z}, v{Z}
    s_nop 0
    v_cvt_pk_bf16_f32 v{Z}, v{Z}, v{Z}
    v_and_b32 v{Z}, 0xffff0000, v{Z}
    v_sub_f32 v{Z+1}, 1.0, v{Z}
    v_cvt_pk_bf16_f32 v{Z+1}, v{Z+1}, v{Z+1}
    v_and_b32 v{Z+1}, 0xffff0000, v{Z+1}
    buffer_store_dwordx2 {v(Z,2)}, v1, s[12:15], s52 offen sc1
    s_branch L_g_pub
    """)
    A.label("L_g_vtype")
    main(True)
    A(f"""
    s_mul_i32 s58, s56, {2*VT_TT}
    s_lshl_b32 s59, s57, 10
    s_add_u32 s58, s58, s59
    s_add_u32 s58, s58, {VT_OFF - 18*1024}
    s_add_u32 s59, s58, {2*VT_ROW}
    s_add_u32 s60, s58, {VT_TT}
    s_add_u32 s61, s59, {VT_TT}
    v_lshrrev_b32 v2, 5, v0
    v_mul_u32_u24 v2, {VT_ROW}, v2
    v_and_b32 v1, 31, v0
    v_lshl_add_u32 v1, v1, 4, v2
    s_nop 1
    """)
    for i in range(4):
        t, f = i >> 1, i & 1
        a = ACC + 16*i
        if i == 1: A("s_nop 1")
        for j in range(8): A(f"v_cvt_pk_bf16_f32 v{a+j}, v{a+2*j}, v{a+2*j+1}")
        for m in range(2):
            A(f"buffer_store_dwordx4 {v(a+4*m,4)}, v1, s[12:15], s{58+2*t+m} offen offset:{f*512} sc1")
    A.label("L_g_pub")
    A(f"""
    s_lshl_b32 s58, s57, 5
    s_add_u32 s58, s58, s56
    s_mul_i32 s58, s58, {FS}
    s_add_u32 s58, s58, {FQ_OFF}
    v_mov_b32 v{PT+2}, s{NONCE}
    v_mov_b32 v{PT+3}, 0
    """)
    stamp(A, 1)
    A("s_waitcnt vmcnt(0)")
    stamp(A, 2)
    A(f"""
    v_mov_b32 v{PT}, 1
    s_mov_b64 exec, 1
    buffer_store_dword v{PT+2}, v{PT+3}, s[12:15], s58 offen sc1
    ds_add_u32 v{VFL}, v{PT} offset:{F_STD}
    s_mov_b64 exec, -1
    s_waitcnt lgkmcnt(0)
    s_branch {done_label}
    """)

NROW = [[0,1,2,3,4,5,6,7, 14,15,16,16, 20,21,22,23], [9,9,10,11,11,11,12,13, 17,18,19,19, 24,25,26,27]]
def kg_rowaddr(side, n):
    a = side*128 + n*KG_ROW
    if side == 1 and n >= 30: a -= 2*KG_ROW + 128
    return a
def kgen_table():
    T = []
    for lane in range(64):
        i = lane & 31; hh = lane >> 5
        g, h2, ii = i >> 3, (i >> 2) & 1, i & 3
        n = NROW[h2][4*g + ii]
        ra = kg_rowaddr(0, n) + 16*hh
        b = 8*(i & 3) + (i >> 2)
        rb = kg_rowaddr(1, b) + 16*hh
        if b > 0: pb, ph = b-1, hh
        else: pb, ph = 31, 0
        pl = 32*ph + 4*(pb & 7) + (pb >> 3)
        so = (7 - (b & 7))*KC_ROW + (16 + (b >> 3))*32
        T += [ra, rb, pl*4, so]
    return T

KPTS = (0, 10, 21, 31)
KFIRST = int(os.environ.get('KFIRST', '31'))
KB7 = int(os.environ.get('KB7', '0'))
def kgen(A, pre):
    PR = 4
    VRL = 11; T = 12
    TB = 16; vDT, vDS = 20, 21
    C1R, C1I, C2R, C2I = 22, 23, 24, 25
    M = 40
    X = 50; U = 52
    AC = 46
    R = 62
    ptrs = [P_ARE, P_AIM, P_BRE, P_BIM, P_CRE, P_CIM]
    A(f"""
    s_getpc_b64 s[50:51]
    L_kg_pc:
    s_add_u32 s50, s50, kgen_tab-L_kg_pc
    s_addc_u32 s51, s51, 0
    v_and_b32 v1, 31, v0
    s_lshl_b32 s52, s48, 8
    s_lshl_b32 s53, s63, 7
    s_add_u32 s52, s52, s53
    v_lshl_add_u32 v2, v1, 2, s52
    s_lshl_b32 s52, s48, 1
    v_mov_b32 v10, s52
    v_lshlrev_b32 v{T}, 4, v0
    s_waitcnt lgkmcnt(0)
    global_load_ushort v{vDT}, v10, {s(P_LDT,2)}
    """)
    for i in range(6): A(f"global_load_dword v{PR+i}, v2, {s(ptrs[i],2)}")
    A(f"global_load_ushort v{vDS}, v10, {s(P_DSK,2)}\nglobal_load_dwordx4 {v(TB,4)}, v{T}, s[50:51]")
    A("s_cmp_lt_u32 s2, 224\ns_cbranch_scc1 L_kg_nb\ns_barrier\nL_kg_nb:")
    ws_setup(A)
    A(f"""
    v_mov_b32 v{C1R}, {f32(LOG2E)}
    v_mov_b32 v{C1I}, {f32(1/(2*math.pi))}
    v_mov_b32 v{C2R}, {f32(248*LOG2E)}
    v_mov_b32 v{C2I}, {f32(248/(2*math.pi))}
    s_mov_b32 exec_lo, 0
    v_mov_b32 v{C1R}, {f32(8*LOG2E)}
    v_mov_b32 v{C1I}, {f32(-8/(2*math.pi))}
    v_mov_b32 v{C2R}, v{C1R}
    v_mov_b32 v{C2I}, v{C1I}
    s_mov_b32 exec_lo, -1
    s_sub_u32 m0, s49, {KG_IB}
    v_lshrrev_b32 v27, 5, v0
    v_mul_u32_u24 v58, {KC_ROW}, v27
    v_lshl_add_u32 v1, v1, 4, v58
    v_add_u32 v1, s67, v1
    v_lshl_add_u32 v2, v0, 4, s49
    v_lshl_add_u32 v11, v0, 4, s64
    v_xor_b32 v26, 4, v3
    """)
    pre(A)
    get_nonce(A)
    A(f"""
    s_mov_b32 vcc_lo, 0xf0f0f0f0
    s_mov_b32 vcc_hi, 0xf0f0f0f0
    """)
    KP = [int(x) for x in os.environ.get("KP", "-1,5,17,29,32,43,54").split(",")]
    if -1 in KP: gb(A)
    A(f"""
    s_waitcnt vmcnt(2)
    v_lshlrev_b32 v{vDT}, 16, v{vDT}
    v_mul_f32 v{vDT}, {f32(LOG2E)}, v{vDT}
    v_exp_f32 v{vDT}, v{vDT}
    s_nop 0
    v_cvt_pk_bf16_f32 v{vDT}, v{vDT}, v{vDT}
    v_and_b32 v{vDT}, 0xffff0000, v{vDT}
    """)
    stamp(A, 1)
    Mx = lambda j: M + 2*j
    mult = [0]*8 + [4] + [1]*4 + [4] + [2]*2 + [4] + [2]*2 + [4, 3, 4, 3, 4, 3, 4, 3] + [3]*4
    KP = [int(x) for x in os.environ.get("KP", "-1,5,17,29,32,43,54").split(",")]
    for tr in range(2):
        for i in range(6): A(f"v_and_b32 v{U+i}, 0xffff0000, v{PR+i}" if tr else f"v_lshlrev_b32 v{U+i}, 16, v{PR+i}")
        A(f"""
        v_mul_f32 v{U}, v{vDT}, v{U}
        v_mul_f32 v{U+1}, v{vDT}, v{U+1}
        v_mul_f32 v{T}, v{C1R}, v{U}
        v_mul_f32 v{T+1}, v{C1I}, v{U+1}
        v_mul_f32 v{T+2}, v{C2R}, v{U}
        v_mul_f32 v{T+3}, v{C2I}, v{U+1}
        v_fract_f32 v{T+1}, v{T+1}
        v_fract_f32 v{T+3}, v{T+3}
        v_exp_f32 v{T}, v{T}
        v_cos_f32 v{Mx(0)}, v{T+1}
        v_sin_f32 v{Mx(0)+1}, v{T+1}
        v_exp_f32 v{T+2}, v{T+2}
        v_cos_f32 v{Mx(4)}, v{T+3}
        v_sin_f32 v{Mx(4)+1}, v{T+3}
        v_mul_f32 v{U+2}, v{vDT}, v{U+2}
        v_mul_f32 v{U+3}, v{vDT}, v{U+3}
        v_mul_f32 v{X}, v{U+3}, v{U+5}
        v_mul_f32 v{X+1}, v{U+3}, v{U+4}
        v_fmac_f32 v{X+1}, v{U+2}, v{U+5}
        v_fma_f32 v{X}, v{U+2}, v{U+4}, -v{X}
        v_mul_f32 v{Mx(0)}, v{T}, v{Mx(0)}
        v_mul_f32 v{Mx(0)+1}, v{T}, v{Mx(0)+1}
        v_mul_f32 v{Mx(4)}, v{T+2}, v{Mx(4)}
        v_mul_f32 v{Mx(4)+1}, v{T+2}, v{Mx(4)+1}
        """)
        for j in (1, 2, 3):
            d, x = Mx(j), Mx(j-1)
            A(f"v_mul_f32 v{d}, v{x+1}, v{x+1}\nv_add_f32 v{d+1}, v{x}, v{x}\nv_mul_f32 v{d+1}, v{d+1}, v{x+1}\nv_fma_f32 v{d}, v{x}, v{x}, -v{d}")
        A("s_mov_b32 exec_lo, 0")
        for j in (1, 2, 3): A(f"v_mov_b32 v{Mx(j)}, v{Mx(0)}\nv_mov_b32 v{Mx(j)+1}, v{Mx(0)+1}")
        A(f"v_mov_b32 v{X}, 1.0\nv_mov_b32 v{X+1}, 0\ns_mov_b32 exec_lo, -1")
        for n in range(32):
            A(f"v_cvt_pk_bf16_f32 v{R+32*tr+n}, v{X}, v{X+1}")
            if n < 31:
                m = Mx(mult[n])
                A(f"v_mul_f32 v{T}, v{X+1}, v{m+1}\nv_mul_f32 v{X+1}, v{X+1}, v{m}\nv_fmac_f32 v{X+1}, v{X}, v{m+1}\nv_fma_f32 v{X}, v{X}, v{m}, -v{T}")
            if 32*tr + n in KP: gb(A)
    A("s_waitcnt vmcnt(0)")
    stamp(A, 2)
    O = AC; PV = 12; P3 = 13; P4 = 14; D = R; Z = 4
    A(f"""
    v_add_u32 v{TB}, s49, v{TB}
    v_add_u32 v{TB+1}, s49, v{TB+1}
    v_lshlrev_b32 v{vDS}, 16, v{vDS}
    v_mov_b32 v{Z}, 0
    v_mov_b32 v{Z+1}, 0
    v_mov_b32 v{Z+2}, 0
    v_mov_b32 v{Z+3}, 0
    v_add_u32 v{TB+3}, s67, v{TB+3}
    v_lshl_add_u32 v9, v27, 7, v{TB+3}
    v_lshl_add_u32 v10, v27, 8, v{TB+3}
    """)
    gb(A, 9 - len(KP))
    if os.environ.get("KPRIO", "1") == "0": A("s_setprio 1")
    stamp(A, 3)
    for p in range(2):
        r = R + 32*p
        for n in range(32):
            if n == 28: A("s_mov_b32 exec_lo, 0")
            A(f"ds_write_addtid_b32 v{r+n} offset:{KG_IB + kg_rowaddr(1, n) - 128}")
        A("s_mov_b32 exec_lo, -1")
        if FINE: stamp(A, 1 if p == 0 else 2)
        if os.environ.get("KPRIO", "1") == str(p+1): A("s_setprio 1")
        for q in range(4): A(f"ds_read_b128 {v(r+8*q,4)}, v{TB} offset:{32*q}\nds_read_b128 {v(r+8*q+4,4)}, v{TB+1} offset:{32*q}")
    if FINE: stamp(A, 4)
    A("s_waitcnt lgkmcnt(15)")
    for q in range(4): A(f"v_mfma_f32_32x32x16_bf16 {v(AC,16)}, {v(R+8*q,4)}, {v(R+8*q+4,4)}, {'0' if q == 0 else v(AC,16)}")
    for q in range(4):
        A(f"s_waitcnt lgkmcnt({6-2*q})")
        A(f"v_mfma_f32_32x32x16_bf16 {v(AC,16)}, {v(R+32+8*q,4)}, {v(R+32+8*q+4,4)}, {v(AC,16)}")
    if FINE: stamp(A, 6)
    def pack(o, pv, areg, off, d):
        c0 = [o[6], o[5], o[4], o[3], o[2], o[1], o[0], pv]
        c1 = [o[7], o[6], o[5], o[4], o[3], o[2], o[1], o[0]]
        for j in range(4): A(f"v_cvt_pk_bf16_f32 v{d+4+j}, v{c1[2*j]}, v{c1[2*j+1]}")
        for j in range(4):
            if pv == PV and j == 3: A(f"s_waitcnt lgkmcnt(2)\ns_mov_b64 exec, 1\nv_mov_b32 v{PV}, 0\ns_mov_b64 exec, -1")
            A(f"v_cvt_pk_bf16_f32 v{d+j}, v{c0[2*j]}, v{c0[2*j+1]}")
        A(f"ds_write_b128 v{areg}, {v(d,4)} offset:{off}\nds_write_b128 v{areg}, {v(d+4,4)} offset:{off+16}")
    def xchg(send, ns, keep, nk):
        for i in range(ns): A(f"ds_write_b128 v2, {v(AC+send+4*i,4)} offset:{1024*i}")
        lset(A, 3, F_KP, 1, 12)
        if nk == 1:
            for i in range(4): A(f"ds_write_b128 v1, {v(Z,4)} offset:{2*KC_ROW*i}")
        l = uid("kx"); e = uid("ke")
        A(f"s_mov_b32 s{CAP}, 0x100000\n{l}:\nds_read_b32 v12, v26 offset:{F_KP}")
        for i in range(nk): A(f"ds_read_b128 {v(R+32+4*i,4)}, v11 offset:{1024*i}")
        A(f"s_sub_u32 s{CAP}, s{CAP}, 1\ns_cbranch_scc1 {e}\ns_waitcnt lgkmcnt({nk})\nv_readfirstlane_b32 s69, v12\ns_cmp_eq_u32 s69, 0\ns_cbranch_scc1 {l}\n{e}:\ns_waitcnt lgkmcnt(0)")
        if FINE: stamp(A, 7)
    add = lambda r, keep: A(f"v_add_f32 v{AC+r}, v{AC+r}, v{R+32+r-keep}")
    A("s_cmp_eq_u32 s63, 0\ns_cbranch_scc1 L_kg_h0\ns_nop 9")
    xchg(0, 3, 12, 1)
    for r in range(12, 16): add(r, 12)
    A(f"v_cndmask_b32 v{P3}, v{O+12}, v{O+13}, vcc\nv_cndmask_b32 v{P4}, v{O+14}, v{O+15}, vcc")
    pack([O+12]*4 + [P3] + [O+13]*3, O+12, 10, 16*32, D)
    pack([O+14]*4 + [P4] + [O+15]*3, O+14, 10, 20*32, D+8)
    A("s_branch L_kg_end\nL_kg_h0:\ns_nop 9")
    xchg(12, 1, 0, 3)
    add(7, 0)
    A(f"ds_bpermute_b32 v{PV}, v{TB+2}, v{O+7}")
    for r in (8, 9, 10): add(r, 0)
    pack([O+8]*3 + [O+9]*3 + [O+10]*2, O+8, 9, 8*32, D+8)
    for r in range(7): add(r, 0)
    A(f"s_mov_b64 exec, 1\nv_add_f32 v{O}, v{O}, v{vDS}\ns_mov_b64 exec, -1")
    pack([O+i for i in range(8)], PV, 9, 0, D)
    A("L_kg_end:")
    if FINE: stamp(A, 8)
    lset(A, 3, F_KRDY, 4, 15)

TRS = os.environ.get("TRS", "b")
def trans_u(A):
    A(f"""
    s_mul_i32 s52, s50, {64*1152}
    s_lshl_b32 s53, s51, 7
    s_add_u32 s53, s52, s53
    v_lshrrev_b32 v1, 3, v0
    v_mul_u32_u24 v2, 1152, v1
    v_bfe_u32 v3, v0, 4, 1
    v_lshlrev_b32 v3, 2, v3
    v_and_b32 v4, 7, v0
    v_xor_b32 v3, v3, v4
    v_lshl_add_u32 v2, v3, 4, v2
    s_mov_b32 m0, s49
    s_waitcnt lgkmcnt(0)
    """)
    srd(A, 4, P_U, 2048*1152)
    for n in range(8):
        if n: A("s_add_u32 m0, m0, 1024\ns_add_u32 s53, s53, 9216")
        A(f"buffer_load_dwordx4 v2, s[4:7], s53 offen lds")
    ws_setup(A)
    A(f"""
    v_bfe_u32 v3, v0, 2, 2
    v_and_b32 v5, 1, v0
    v_lshl_add_u32 v3, v5, 5, v3
    v_lshlrev_b32 v3, 7, v3
    v_and_b32 v5, 0x30, v0
    v_add_u32 v3, v3, v5
    v_bfe_u32 v5, v0, 1, 1
    v_lshl_add_u32 v3, v5, 3, v3
    v_bfe_u32 v5, v0, 3, 1
    v_lshl_add_u32 v3, v5, 6, v3
    v_add_u32 v5, s49, v3
    v_xor_b32 v6, 64, v5
    v_mul_u32_u24 v2, {4*UT_ROW}, v1
    v_lshl_add_u32 v2, v4, 4, v2
    s_mul_i32 s52, s51, {64*UT_ROW}
    s_add_u32 s52, s52, {UT_OFF}
    s_lshl_b32 s54, s51, 5
    s_add_u32 s54, s54, s50
    s_mul_i32 s54, s54, {FS}
    s_add_u32 s54, s54, {FU_OFF}
    s_lshl_b32 s53, s50, 7
    s_add_u32 s55, s52, s53
    s_mov_b32 s56, 0
    """)
    B0, B1 = 8, 40
    get_nonce(A)
    A("L_tu_loop:")
    for G in range(8):
        for t in range(2): A(f"ds_read_b64_tr_b16 {v(B0+4*G+2*t,2)}, v{5+(G>>2)} offset:{(8*(G&3)+4*t)*128}")
    def stage(src, dst, bit, qp, m0):
        for sel in range(2):
            m = m0 if sel == 0 else (~m0 & 0xffffffff)
            A(f"s_mov_b32 vcc_lo, {hex(m)}\ns_mov_b32 vcc_hi, {hex(m)}")
            for G in range(8):
                if ((G >> bit) & 1) != sel: continue
                for k in range(4):
                    A(f"v_cndmask_b32_dpp v{dst+4*G+k}, v{src+4*(G^(1<<bit))+k}, v{src+4*G+k}, vcc quad_perm:{qp} row_mask:0xf bank_mask:0xf")
    A("s_waitcnt lgkmcnt(0)")
    stage(B0, B1, 0, "[1,0,3,2]", 0x55555555)
    stage(B1, B0, 1, "[2,3,0,1]", 0x33333333)
    A("s_cmp_lg_u32 s56, 0\ns_cbranch_scc1 L_tu_st\ns_mov_b32 s56, 1")
    if TRS == "b": A("s_barrier")
    A("s_waitcnt vmcnt(0)")
    stamp(A, 1)
    A("s_branch L_tu_loop\nL_tu_st:")
    A("s_barrier")
    for G in range(8):
        if TRS == "c" and G == 4: A("s_barrier")
        A(f"s_add_u32 s53, s55, {(32*(G>>2)+(G&3))*UT_ROW}")
        A(f"buffer_store_dwordx4 {v(B0+4*G,4)}, v2, s[12:15], s53 offen sc1")
    A("s_barrier\n"*(3 if TRS == "a" else 2))
    A("s_waitcnt vmcnt(0)")
    gflag(A, "s54", 72)
    stamp(A, 2)

def trans_wo(A):
    L = 20
    srd(A, 4, P_WO, 576*1152)
    A(f"""
    s_and_b32 s50, s2, 7
    s_lshr_b32 s51, s2, 3
    s_mul_i32 s52, s50, {72*1152}
    s_lshl_b32 s53, s51, 6
    s_add_u32 s52, s52, s53
    v_and_b32 v1, 3, v0
    v_bfe_u32 v2, v0, 2, 1
    v_lshl_or_b32 v1, v2, 4, v1
    v_bfe_u32 v2, v0, 3, 2
    v_lshl_or_b32 v1, v2, 2, v1
    v_lshlrev_b32 v1, 1, v1
    v_lshrrev_b32 v2, 5, v0
    v_mul_u32_u24 v2, {4*1152}, v2
    v_add_u32 v2, v2, v1
    """)
    for h in range(4):
        for t in range(2):
            A(f"s_add_u32 s53, s52, {(18*h+8*t)*1152}")
            for r in range(4): A(f"buffer_load_ushort v{L+8*h+4*t+r}, v2, s[4:7], s53 offen offset:{r*1152}")
        A(f"s_add_u32 s53, s52, {(18*h+16)*1152}")
        for r in range(2): A(f"buffer_load_ushort v{L+32+2*h+r}, v1, s[4:7], s53 offen offset:{r*1152}")
    A(f"""
    v_lshlrev_b32 v2, 4, v0
    s_mul_i32 s52, s50, {4*18*1024}
    s_lshl_b32 s53, s51, 10
    s_add_u32 s53, s53, {WOT_OFF}
    s_add_u32 s52, s52, s53
    s_lshr_b32 s54, s50, 1
    s_add_u32 s54, s54, 32
    s_mul_i32 s54, s54, {18*1024}
    s_add_u32 s54, s54, s53
    s_and_b32 s55, s50, 1
    s_lshl_b32 s55, s55, 9
    s_add_u32 s54, s54, s55
    s_waitcnt vmcnt(0)
    """)
    for k in range(20): A(f"v_lshl_or_b32 v{L+k}, v{L+2*k+1}, 16, v{L+2*k}")
    for h in range(4):
        A(f"buffer_store_dwordx4 {v(L+4*h,4)}, v2, s[12:15], s52 offen sc1")
        if h < 3: A(f"s_add_u32 s52, s52, {18*1024}")
    A(f"""
    s_mov_b32 exec_hi, 0
    buffer_store_dwordx4 {v(L+16,4)}, v2, s[12:15], s54 offen sc1
    s_mov_b32 exec_hi, -1
    s_mul_i32 s54, s2, {FS}
    s_add_u32 s54, s54, {FW_OFF}
    s_waitcnt vmcnt(0)
    """)
    gflag(A, "s54", 4)
```

```python
from f1 import *
NV = 168
GRP = 20480
HOFF = 10240
PRIO = int(os.environ.get("PRIO", "1"))
ATD = 112
QS = int(os.environ.get('QS', '2'))
B2X = int(os.environ.get('B2X', '1'))
NE = 2

def head_qb(A):
    A("""
    s_and_b32 s96, s2, 7
    s_lshl_b32 s96, s96, 2
    s_lshr_b32 s97, s2, 6
    s_add_u32 s96, s96, s97
    s_bfe_u32 s97, s2, 0x30003
    """)

CVU, CVK, CVF, CVF2, CVA, CPT = 126, 127, 128, 129, 130, 132
CAC = 136
def conv_pre(A):
    PT = CPT
    A(f"""
    s_and_b32 s50, s3, 1
    s_bfe_u32 s51, s3, 0x10001
    s_mul_i32 s52, s50, {UC_CH}
    s_add_u32 s52, s52, {L_UC}
    s_sub_u32 s52, s52, s98
    s_lshl_b32 s53, s51, 10
    s_add_u32 s52, s52, s53
    s_mul_i32 s53, s50, {KC_CH}
    s_add_u32 s53, s53, {L_KC + 512 - 64}
    s_sub_u32 s53, s53, s98
    s_lshl_b32 s54, s51, 8
    s_sub_u32 s53, s53, s54
    v_and_b32 v{PT}, 3, v0
    v_mul_u32_u24 v{PT}, {UC_COPY}, v{PT}
    v_bfe_u32 v{PT+1}, v0, 2, 3
    v_lshrrev_b32 v{PT+2}, 5, v0
    v_add_u32 v{PT+1}, v{PT+1}, v{PT+2}
    v_lshl_add_u32 v{CVU}, v{PT+1}, 4, v{PT}
    v_add_u32 v{CVU}, s52, v{CVU}
    v_mul_u32_u24 v{PT+1}, {KC_ROW}, v{PT+2}
    v_and_b32 v{PT}, 31, v0
    v_lshl_add_u32 v{CVK}, v{PT}, 4, v{PT+1}
    v_add_u32 v{CVK}, s53, v{CVK}
    s_cmp_lg_u32 s98, 0
    s_cselect_b32 s56, 8, 0
    s_lshl_b32 s57, s50, 2
    s_add_u32 s56, s56, s57
    s_add_u32 s57, s56, {L_FL}
    v_mov_b32 v{CVF}, s57
    s_add_u32 s57, s57, s56
    v_mov_b32 v{CVF2}, s57
    v_bfe_u32 v{PT}, v0, 1, 4
    v_lshlrev_b32 v{PT}, 7, v{PT}
    v_and_b32 v{PT+1}, 1, v0
    v_lshl_add_u32 v{PT}, v{PT+1}, 5, v{PT}
    v_lshl_add_u32 v{CVA}, v{PT+2}, 4, v{PT}
    s_lshl_b32 s52, s99, 13
    s_lshl_b32 s53, s51, 12
    s_add_u32 s52, s52, s53
    s_add_u32 s98, s52, {AT_OFF}
    """)
    for i in range(32): A(f"v_mov_b32 v{CAC+i}, 0")
    A.l.extend(attn_common())

def conv(A):
    VU, VK, PT, AC = CVU, CVK, CPT, CAC
    BUFS = [4, 46, 94, 110]
    def reads(q, part):
        b = BUFS[q % 4]
        ko = 2*KC_ROW*(q % 4) + 32*(2 - q//4)
        if part == 0: A(f"ds_read_b128 {v(b,4)}, v{VU} offset:{32*q}\nds_read_b128 {v(b+4,4)}, v{VK} offset:{ko}")
        else: A(f"ds_read_b128 {v(b+8,4)}, v{VK} offset:{ko+512}\nds_read_b128 {v(b+12,4)}, v{VU} offset:{32*q+2048}")
    A(f"""
    s_mov_b32 s{CAP}, 0x100000
    s_mov_b32 s68, 0
    L_cv_w:
    ds_read_b64 {v(PT,2)}, v{CVF2} offset:{F_KRDY}
    ds_read_b32 v{PT+2}, v{CVF} offset:{F_URDY}
    s_sub_u32 s{CAP}, s{CAP}, 1
    s_cbranch_scc1 L_cv_go
    s_waitcnt lgkmcnt(0)
    v_min3_u32 v{PT}, v{PT}, v{PT+1}, v{PT+2}
    v_cmp_gt_u32 vcc, 4, v{PT}
    s_cbranch_vccnz L_cv_w
    L_cv_go:
    s_setprio 0
    """)
    stamp(A, 5)
    if os.environ.get("CVC"): stampc(A, 1)
    for q in range(3): reads(q, 0); reads(q, 1)
    for i in range(32): A(f"v_mov_b32 v{O+i}, 0")
    A.label("L_cv_loop")
    for q in range(8):
        b = BUFS[q % 4]
        A("s_waitcnt lgkmcnt(8)")
        A(f"v_mfma_f32_32x32x16_bf16 {v(AC,16)}, {v(b,4)}, {v(b+4,4)}, {v(AC,16)}")
        reads(q+3, 0)
        if q == 7: A("s_add_u32 s68, s68, 1\ns_cmp_lt_u32 s68, 4")
        A(f"v_mfma_f32_32x32x16_bf16 {v(AC+16,16)}, {v(b,4)}, {v(b+8,4)}, {v(AC+16,16)}")
        reads(q+3, 1)
        if q == 7: A(f"v_add_u32 v{VU}, 256, v{VU}\nv_subrev_u32 v{VK}, 64, v{VK}")
        A(f"v_mfma_f32_32x32x16_bf16 {v(AC+16,16)}, {v(b+12,4)}, {v(b+4,4)}, {v(AC+16,16)}")
    A("s_cbranch_scc1 L_cv_loop")
    stamp(A, 6)
    if os.environ.get("CVC"): stampc(A, 2)
    A(f"""
    s_waitcnt lgkmcnt(0)
    s_cmp_lt_u32 s3, 4
    s_cbranch_scc1 L_cv_s1
    s_setprio 3
    s_barrier
    s_branch L_at_qb
    L_cv_s1:
    s_lshl_b32 s63, s3, 2
    s_add_u32 s63, s63, {L_FL+F_CVD}
    v_mov_b32 v{PT}, s63
    """)
    lset(A, PT, 0, 1, PT+1)
    A("s_branch L_attn2")

def ucopy(A):
    UD = 16
    A(f"""
    s_setprio 3
    s_lshr_b32 s50, s99, 6
    s_mul_i32 s50, s50, {32*FS}
    s_add_u32 s50, s50, {FU_OFF}
    v_and_b32 v1, 31, v0
    v_mul_u32_u24 v1, {FS}, v1
    v_lshlrev_b32 v2, 2, v0
    s_and_b32 s51, s3, 1
    s_add_u32 s52, s99, s51
    s_mul_i32 s52, s52, {UT_ROW}
    s_add_u32 s52, s52, {UT_OFF}
    s_mul_i32 s53, s51, {UC_CH}
    s_add_u32 s53, s53, {L_UC}
    s_lshl_b32 s54, s51, 2
    s_add_u32 s54, s54, {L_FL}
    v_mov_b32 v3, s54
    v_mov_b32 v9, 0
    v_add_u32 v10, s53, v2
    """)
    for k in range(4): A(f"v_add_u32 v{11+k}, {k*UC_COPY + 124 - 4*k}, v10")
    A(f"""
    s_barrier
    s_barrier
    s_barrier
    buffer_load_dword v4, v1, s[12:15], s50 offen sc1
    s_mov_b32 s56, 1
    s_barrier
    s_waitcnt vmcnt(0)
    v_cmp_ne_u32 vcc, s{NONCE}, v4
    s_cbranch_vccz L_uc_set
    s_barrier
    s_mov_b32 s56, 0
    """)
    gpoll(A, [1], 4, "s50")
    A("L_uc_set:")
    stamp(A, 3)
    for n in range(16): A(f"buffer_load_dword v{UD+n}, v2, s[12:15], s52 offen offset:{256*n} sc1")
    A("s_cmp_eq_u32 s56, 0\ns_cbranch_scc1 L_uc_nb\ns_barrier\nL_uc_nb:\ns_setprio 0\ns_mov_b64 exec, 0x7fffffff")
    for k in range(4): A(f"ds_write_b32 v10, v9 offset:{k*UC_COPY}")
    A("s_mov_b64 exec, -1")
    for n in range(0, 16, 2):
        A(f"s_waitcnt vmcnt({14-n})")
        for k in range(4): A(f"ds_write2st64_b32 v{11+k}, v{UD+n}, v{UD+n+1} offset0:{n} offset1:{n+1}")
    lset(A, 3, F_URDY, 4, 4)

def ugather(A):
    RW = 16; PK = 32
    A(f"""
    s_setprio 3
    s_and_b32 s51, s3, 3
    v_mul_u32_u24 v1, 2304, v0
    s_mul_i32 s52, s51, {512*1152}
    s_lshl_b32 s53, s99, 1
    s_add_u32 s52, s52, s53
    s_waitcnt lgkmcnt(0)
    """)
    srd(A, 4, P_U, 2048*1152)
    A("s_barrier")
    for j in range(4):
        for e in range(2): A(f"buffer_load_dwordx2 {v(RW+4*j+2*e,2)}, v1, s[4:7], s52 offen offset:{1152*e}")
        if j < 3: A(f"s_add_u32 s52, s52, {128*1152}")
    ws_setup(A)
    A(f"""
    v_lshlrev_b32 v10, 2, v0
    s_lshl_b32 s53, s51, 10
    v_add_u32 v2, s53, v10
    v_mov_b32 v9, 0
    v_mov_b32 v8, {L_FL}
    v_mov_b32 v3, 1
    s_mov_b32 s54, 0x05040100
    s_mov_b32 s55, 0x07060302
    """)
    get_nonce(A)
    for j in range(4):
        A(f"s_waitcnt vmcnt({6-2*j})")
        for c in (2, 3, 0, 1): A(f"v_perm_b32 v{PK+4*c+j}, v{RW+4*j+2+(c>>1)}, v{RW+4*j+(c>>1)}, s{54+(c&1)}")
    stamp(A, 1)
    for st in (1, 0):
        base = L_UC - SET1*st
        if st == 0: lpoll(A, 8, F_KRDY+16, 4, 1, 4, sleep=1)
        sk = uid("ug")
        A(f"s_cmp_lg_u32 s51, 0\ns_cbranch_scc1 {sk}\nv_add_u32 v11, {base}, v10\ns_mov_b64 exec, 0x7fffffff")
        for k in range(8): A(f"ds_write_b32 v11, v9 offset:{k*UC_COPY}")
        A(f"s_mov_b64 exec, -1\n{sk}:")
        for ch in range(2):
            for k in range(4):
                r = 11 + (k & 1)
                A(f"v_add_u32 v{r}, {base + ch*UC_CH + k*UC_COPY + 124 - 4*k}, v2")
                p = PK + 4*(2*st + ch)
                A(f"ds_write2st64_b32 v{r}, v{p}, v{p+1} offset0:0 offset1:1\nds_write2st64_b32 v{r}, v{p+2}, v{p+3} offset0:2 offset1:3")
        A(f"s_mov_b64 exec, 1\nds_add_u32 v8, v3 offset:{F_URDY+8*st}\nds_add_u32 v8, v3 offset:{F_URDY+8*st+4}\ns_mov_b64 exec, -1")
    stamp(A, 2)

L_O = 40960
L_WE = 98304
L_RED = L_O + OF_TT
L_QR = 7*GRP + 5120 + 19*16
L_FR = L_QR + 320
L_XR = L_QR + 640
L_PG = L_QR + 960
IDX, AK, AV, OMG, TMP = 28, 29, 30, 31, 32
CST = [48, 102]
QM = 4; QE = 12; KF = 14; KE = 18; VF = 40; O = 62; S = 94; X = 136

def attn_common():
    B = Asm()
    head_qb(B)
    B(f"""
    s_and_b32 s50, s3, 3
    s_lshr_b32 s51, s3, 2
    s_lshl_b32 s52, s97, 3
    s_lshl_b32 s50, s50, 1
    s_add_u32 s52, s52, s50
    s_add_u32 s53, s52, s51
    s_lshr_b32 s55, s96, 1
    s_mul_i32 s55, s55, {9*256}
    s_and_b32 s56, s96, 1
    s_mul_i32 s57, s56, {5*256}
    s_add_u32 s57, s57, s55
    s_add_u32 s55, s55, {4*256}
    v_and_b32 v{TMP+4}, 15, v0
    v_lshlrev_b32 v{TMP+4}, 4, v{TMP+4}
    v_bfe_u32 v{TMP+5}, v0, 4, 1
    v_lshl_or_b32 v{TMP+4}, v{TMP+5}, 3, v{TMP+4}
    v_lshrrev_b32 v{TMP+1}, 5, v0
    v_lshl_or_b32 v{TMP+5}, v{TMP+1}, 8, v{TMP+4}
    v_and_b32 v{TMP+6}, 31, v0
    v_lshlrev_b32 v{TMP+7}, 3, v{TMP+6}
    s_lshl_b32 s62, s52, 8
    s_add_u32 s62, s62, {G_OFF}
    s_lshl_b32 s59, s50, 11
    s_add_u32 s59, s59, {L_QP}
    v_lshl_add_u32 v{TMP+3}, v0, 4, s59
    s_lshl_b32 s60, s51, 5
    v_xor_b32 v{TMP+2}, s60, v0
    v_lshl_add_u32 v{TMP+2}, v{TMP+2}, 3, s59
    v_and_b32 v{AK}, 0x13f, v{TMP+5}
    v_bfe_u32 v{TMP}, v0, 2, 1
    v_lshl_or_b32 v{AK}, v{TMP}, 7, v{AK}
    v_bfe_u32 v{TMP}, v0, 3, 1
    v_lshl_or_b32 v{AK}, v{TMP}, 6, v{AK}
    s_mul_i32 s59, s51, {HOFF}
    v_add_u32 v{AK}, s59, v{AK}
    v_mad_u32_u24 v{TMP}, v{TMP+1}, 20, v{TMP+6}
    s_add_u32 s59, s59, 5120
    v_lshl_add_u32 v{AV}, v{TMP}, 4, s59
    s_mul_i32 s59, s53, {OF_TT}
    s_add_u32 s59, s59, {OF_OFF}
    s_lshl_b32 s100, s96, 10
    s_add_u32 s100, s100, s59
    s_lshl_b32 s101, s96, 7
    s_add_u32 s101, s101, s59
    s_add_u32 s101, s101, {32*1024}
    s_mov_b32 vcc_lo, 0x7ffff
    s_mov_b32 vcc_hi, 0x7ffff
    v_mov_b32 v{IDX}, 0x80000
    v_cndmask_b32 v{AV}, v{IDX}, v{AV}, vcc
    v_mov_b32 v{IDX}, 0xdddddddd
    """)
    return B.l

def attn(A):
    A.l.extend(attn_common())
    for i in range(32): A(f"v_mov_b32 v{O+i}, 0")
    A.label("L_attn2")
    A(f"""
    s_cmp_ge_u32 s3, 4
    s_cbranch_scc1 L_at_qb
    s_mul_i32 s58, s53, {QKQ_TT}
    s_add_u32 s60, s58, s55
    s_add_u32 s58, s58, s57
    s_add_u32 s59, s58, {QKQ_TT}
    v_mul_u32_u24 v{TMP+1}, {QKQ_TT}, v{TMP+1}
    v_add_u32 v{TMP+4}, v{TMP+4}, v{TMP+1}
    s_min_u32 s63, s55, s57
    s_add_u32 s64, s63, {4*256}
    s_lshr_b32 s63, s63, 12
    s_lshr_b32 s64, s64, 12
    s_lshr_b32 s65, s52, 1
    s_lshl_b32 s63, s63, 5
    s_lshl_b32 s64, s64, 5
    s_add_u32 s63, s63, s65
    s_add_u32 s64, s64, s65
    s_mul_i32 s63, s63, {FS}
    s_mul_i32 s64, s64, {FS}
    s_mul_i32 s65, s65, {FS}
    s_add_u32 s65, s65, {27*32*FS}
    v_mov_b32 v{TMP}, s63
    v_writelane_b32 v{TMP}, s64, 1
    v_writelane_b32 v{TMP}, s65, 2
    s_mov_b32 s63, {FQ_OFF}
    """)
    gpoll(A, [TMP], TMP+1, "s63", sleep=QS)
    stamp(A, 3)
    A(f"buffer_load_dwordx2 {v(QE,2)}, v{TMP+4}, s[12:15], s60 offen sc1")
    for j in range(2):
        A(f"""
        buffer_load_dwordx2 {v(QM+4*j,2)}, v{TMP+5}, s[12:15], s{58+j} offen sc1
        buffer_load_dwordx2 {v(QM+4*j+2,2)}, v{TMP+5}, s[12:15], s{58+j} offen offset:512 sc1
        """)
    A(f"v_mov_b32 v{TMP}, {L_FL}")
    lpoll(A, TMP, F_KRDY, 4, 1, KF, sleep=1)
    A(f"""
    s_cmp_eq_u32 s56, 0
    s_cselect_b32 s64, -1, 0
    s_not_b32 s65, s64
    s_waitcnt vmcnt(0)
    v_and_b32 v{QE}, s64, v{QE}
    v_and_b32 v{QE+1}, s65, v{QE+1}
    ds_write_b128 v{TMP+3}, {v(QM,4)}
    ds_write_b128 v{TMP+3}, {v(QM+4,4)} offset:1024
    ds_write_b64 v{TMP+2}, {v(QE,2)} offset:2048
    v_lshlrev_b32 v22, 4, v0
    v_lshlrev_b32 v23, 2, v0
    s_branch L_at_cm
    L_at_qb:
    buffer_load_dword v{OMG}, v{TMP+7}, s[12:15], s62 offen offset:260 sc1
    buffer_load_dword v25, v{TMP+7}, s[12:15], s62 offen offset:4 sc1
    v_lshlrev_b32 v22, 4, v0
    v_lshlrev_b32 v23, 2, v0
    ds_read_b128 {v(QM+4,4)}, v{TMP+3}
    ds_read_b128 {v(QM,4)}, v{TMP+3} offset:1024
    ds_read_b64 {v(QE,2)}, v{TMP+2} offset:2048
    L_at_cm:
    """)
    for i in range(8): A(f"v_mov_b32 v{S+16+8+i}, 0")
    for i in range(4): A(f"v_mov_b32 v{VF+4+i}, 0")
    A("s_mov_b32 s66, 0\ns_waitcnt lgkmcnt(0)\ns_barrier\nL_at_go:")
    stamp(A, 9)
    if os.environ.get('CLK'): stampc(A, 1)
    GU = GRP//512
    rdK = lambda t: f"ds_read2st64_b64 {v(KF,4)}, v{AK} offset0:{(t//4)*GU+2*(t%4)} offset1:{(t//4)*GU+2*(t%4)+1}"
    rdE = lambda g: f"ds_read2st64_b64 {v(KE,4)}, v{AK} offset0:{g*GU+8} offset1:{g*GU+9}"
    rdV = lambda t, m: f"ds_read_b128 {v(VF+4*m,4)}, v{AV} offset:{(t//4)*GRP+(4*(t%4)+2*m)*320}"
    M16 = lambda q: f"v_mfma_f32_32x32x16_bf16 {v(S+16*q,16)}, {v(KF,4)}, {v(QM+4*q,4)}, {v(X+16*q,16)}"
    M2 = lambda t: f"v_mfma_f32_32x32x4_2b_bf16 {v(X,32)}, {v(KE+2*((t%4)>>1),2)}, {v(QE,2)}, 0 cbsz:1 abid:{t&1}"
    PV = lambda q, m: f"v_smfmac_f32_32x32x32_bf16 {v(O+16*q,16)}, {v(VF+4*m,4)}, {v(S+16*q+8*m,8)}, v{IDX}"
    E = lambda q, i: f"v_exp_f32 v{S+16*q+i}, v{S+16*q+i}"
    A(rdE(0)); A(rdK(0)); A(rdV(0, 0))
    A("s_cmp_eq_u32 s98, 0\ns_cbranch_scc1 L_at_nost2")
    for cb in range(2):
        for j in range(8): A(f"v_cvt_pk_bf16_f32 v{CST[cb]+j}, v{CAC+16*cb+2*j}, v{CAC+16*cb+2*j+1}")
    for cb in range(2):
        for m in range(2): A(f"buffer_store_dwordx4 {v(CST[cb]+4*m,4)}, v{CVA}, s[12:15], s98 offen offset:{2048*cb+64*m} sc1")
    A(f"""
    L_at_nost2:
    s_waitcnt lgkmcnt(2)
    """)
    A(M2(0)); A("s_cmp_ge_u32 s3, 4\ns_cbranch_scc1 L_at_nb\ns_barrier\nL_at_nb:\ns_nop 13\ns_waitcnt lgkmcnt(1)\ns_setprio 2"); A(M16(0)); A("s_nop 11")
    A.raw(".p2align 6")
    A.label("L_at_loop")
    def ex(q, a, b):
        for i in range(a, b): A(E(q, i))
    for t in range(4):
        ex(0, 0, 2); A(PV(1, 1)); A(rdV(t, 1))
        ex(0, 2, 5); A(M16(1)); A("s_waitcnt lgkmcnt(1)"); A(rdK(t+1))
        ex(0, 5, 10); A(PV(0, 0)); A("s_waitcnt lgkmcnt(1)")
        if t == 2: A(f"s_bitcmp0_b32 {10 if B2X else 2}, s66")
        ex(0, 10, 13); A(M2(t+1)); ex(0, 13, 16)
        ex(1, 0, 5); A(PV(0, 1)); A("s_waitcnt lgkmcnt(0)")
        if t == 2: A("s_cbranch_scc0 L_at_bar\nL_at_bar_ret:")
        ex(1, 5, 8); A(M16(0))
        if t == 2: A(rdE(1))
        elif t == 3: A("s_add_u32 s66, s66, 1")
        elif t == 0 and PRIO: A(f"s_bitcmp1_b32 {os.environ.get('PM', '0x8a' if B2X else '0x82')}, s66")
        ex(1, 8, 12); A(PV(1, 0))
        if t == 3: A("s_cmp_lt_u32 s66, 8")
        elif t == 0 and PRIO: A("s_cbranch_scc1 L_at_lowprio\nL_at_lowprio_ret:")
        A(rdV(t+1, 0))
        ex(1, 12, 16)
    A(f"v_add_u32 v{AK}, {GRP}, v{AK}\nv_add_u32 v{AV}, {GRP}, v{AV}")
    A("s_cbranch_scc1 L_at_loop")
    A(PV(1, 1))
    stamp(A, 10)
    if os.environ.get('CLK'): stampc(A, 2)
    PP = S
    A(f"""
    s_mul_i32 s63, s50, 2560
    v_add_u32 v{AK}, s63, v22
    s_lshl_b32 s63, s50, 1
    s_add_u32 s63, s63, {L_XR}
    v_mov_b32 v{AV}, s63
    s_cmp_ge_u32 s3, 4
    s_cbranch_scc1 L_at_late
    ds_write_b128 v{AK}, {v(O,4)} offset:2560
    ds_write_b128 v{AK}, {v(O+4,4)} offset:3584
    s_mov_b32 exec_hi, 0
    ds_write_b128 v{AK}, {v(O+8,4)} offset:4608
    s_nop 1
    ds_write_b128 v{AK}, {v(O+24,4)} offset:2048
    s_mov_b32 exec_hi, -1
    ds_write_b128 v{AK}, {v(O+16,4)}
    ds_write_b128 v{AK}, {v(O+20,4)} offset:1024
    """)
    lset(A, AV, 0, 1, TMP)
    ofetch(A)
    A(f"""
    s_branch L_end
    L_at_late:
    s_mov_b32 s{CAP}, 0x100000
    s_mov_b32 s61, {f32(2.0**-60)}
    s_mov_b32 s62, {f32(2.0**40)}
    L_at_xw:
    ds_read_b32 v{TMP}, v{AV}
    """)
    for b in range(2): A(f"ds_read_b128 {v(PP+12*b+8,4)}, v{AK} offset:{2560*b+2048}")
    for b in range(2):
        for i in range(2): A(f"ds_read_b128 {v(PP+12*b+4*i,4)}, v{AK} offset:{2560*b+1024*i}")
    A(f"""
    s_lshl_b32 s58, s52, 5
    s_add_u32 s58, s58, s96
    s_mul_i32 s58, s58, {FS}
    s_add_u32 s58, s58, {FO_OFF}
    s_sub_u32 s59, s100, {OF_TT}
    s_sub_u32 s60, s101, {OF_TT}
    v_mov_b32 v24, s{NONCE}
    v_mul_u32_u24 v26, {32*FS}, v0
    {"s_mov_b64 exec, 3" + chr(10) + "buffer_store_dword v24, v26, s[12:15], s58 offen sc1" + chr(10) + "s_mov_b64 exec, -1" if os.environ.get("HE", "1") == "2" else ""}
    s_sub_u32 s{CAP}, s{CAP}, 1
    s_cbranch_scc1 L_at_xok
    s_waitcnt lgkmcnt(6)
    v_readfirstlane_b32 s63, v{TMP}
    s_cmp_eq_u32 s63, 0
    s_cbranch_scc1 L_at_xw
    L_at_xok:
    s_waitcnt lgkmcnt(4)
    v_add_f32 v{O+10}, v{O+10}, v{PP+10}
    v_add_f32 v{O+26}, v{O+26}, v{PP+22}
    v_add_f32 v{O+8}, v{O+8}, v{PP+8}
    v_add_f32 v{O+9}, v{O+9}, v{PP+9}
    v_add_f32 v{O+24}, v{O+24}, v{PP+20}
    v_add_f32 v{O+25}, v{O+25}, v{PP+21}
    v_cmp_le_f32 vcc, s61, v{O+10}
    v_cmp_ge_f32 s[64:65], s62, v{O+10}
    v_cmp_le_f32 s[66:67], s61, v{O+26}
    v_cmp_ge_f32 s[68:69], s62, v{O+26}
    s_waitcnt lgkmcnt(0)
    """)
    for b in range(2):
        for i in range(8): A(f"v_add_f32 v{O+16*b+i}, v{O+16*b+i}, v{PP+12*b+i}")
    A(f"""
    s_and_b32 s64, s64, vcc_lo
    s_and_b32 s66, s66, s68
    s_and_b32 s64, s64, s66
    s_cmp_eq_u32 s64, -1
    s_cbranch_scc0 L_at_fallback
    L_at_fin:
    {"s_mov_b64 exec, 3" + chr(10) + "buffer_store_dword v24, v26, s[12:15], s58 offen sc1" + chr(10) + "s_mov_b64 exec, -1" if os.environ.get("HE", "1") == "1" else ""}
    v_rcp_f32 v{TMP}, v{O+10}
    v_rcp_f32 v{TMP+2}, v{O+26}
    v_mul_f32 v{TMP}, v{TMP}, v{OMG}
    v_mul_f32 v{TMP+2}, v{TMP+2}, v25
    v_mov_b32 v{TMP+1}, v{TMP}
    v_mov_b32 v{TMP+3}, v{TMP+2}
    v_mul_f32 v{O+8}, v{TMP}, v{O+8}
    v_mul_f32 v{O+9}, v{TMP}, v{O+9}
    v_permlane32_swap_b32 v{TMP}, v{TMP+1}
    v_permlane32_swap_b32 v{TMP+2}, v{TMP+3}
    """)
    for b in range(2):
        o = O + 16*b
        for i in range(8): A(f"v_mul_f32 v{o+i}, v{TMP+2*b}, v{o+i}")
        for i in range(4): A(f"v_cvt_pk_bf16_f32 v{o+i}, v{o+2*i}, v{o+2*i+1}")
        A(f"buffer_store_dwordx4 {v(o,4)}, v22, s[12:15], s{(100, 59)[b]} offen sc1")
    A(f"""
    v_mul_f32 v{O+24}, v{TMP+2}, v{O+24}
    v_mul_f32 v{O+25}, v{TMP+2}, v{O+25}
    v_cvt_pk_bf16_f32 v{O+8}, v{O+8}, v{O+9}
    v_cvt_pk_bf16_f32 v{O+24}, v{O+24}, v{O+25}
    s_mov_b32 exec_hi, 0
    buffer_store_dword v{O+8}, v23, s[12:15], s101 offen sc1
    buffer_store_dword v{O+24}, v23, s[12:15], s60 offen sc1
    s_mov_b32 exec_lo, 3
    {"" if os.environ.get("HE", "1") else "buffer_store_dword v24, v26, s[12:15], s58 offen sc1"}
    """)
    stamp(A, 7)
    A(f"""
    s_branch L_end
    L_at_bar:
    s_waitcnt vmcnt(0)
    s_barrier
    s_setprio 2
    s_branch L_at_bar_ret
    L_at_lowprio:
    s_setprio 1
    s_cmp_lg_u32 s66, 7
    s_cbranch_scc1 L_at_lowprio_ret
    s_mul_i32 s63, s51, {320-16}
    s_lshl_b32 s64, s3, 2
    s_add_u32 s63, s63, s64
    s_add_u32 s63, s63, {L_PG}
    v_mov_b32 v{TMP}, s63
    """)
    lset(A, TMP, 0, 1, TMP+1)
    A("s_branch L_at_lowprio_ret")
    MX = TMP + 4; FS_ = S; FQ = S + 16; FO_ = X
    A.label("L_at_fallback")
    A(f"""
    v_and_b32 v{TMP+1}, 3, v0
    v_lshlrev_b32 v{TMP+1}, 4, v{TMP+1}
    v_bfe_u32 v{TMP}, v0, 2, 1
    v_lshl_or_b32 v{TMP+1}, v{TMP}, 7, v{TMP+1}
    v_bfe_u32 v{TMP}, v0, 3, 1
    v_lshl_or_b32 v{TMP+1}, v{TMP}, 6, v{TMP+1}
    v_bfe_u32 v{TMP}, v0, 4, 1
    v_lshl_or_b32 v{TMP+1}, v{TMP}, 3, v{TMP+1}
    v_lshrrev_b32 v{AV}, 5, v0
    v_lshl_or_b32 v{AK}, v{AV}, 8, v{TMP+1}
    v_and_b32 v{TMP}, 31, v0
    s_mul_i32 s63, s96, 18
    v_add_u32 v{TMP+2}, s63, v{TMP}
    v_mul_u32_u24 v{AV}, {VT_ROW}, v{AV}
    v_lshl_add_u32 v{AV}, v{TMP+2}, 4, v{AV}
    s_mov_b32 s69, 0
    v_mov_b32 v{FQ+4}, v{QE}
    v_mov_b32 v{FQ+5}, v{QE+1}
    s_mov_b32 exec_lo, 0
    v_mov_b32 v{FQ+4}, 0
    v_mov_b32 v{FQ+5}, 0
    s_mov_b32 exec_lo, -1
    """)
    for i in range(4): A(f"v_mov_b32 v{FQ+i}, v{QM+i}")
    for i in range(8): A(f"v_mov_b32 v{VF+i}, 0x3f803f80")
    A(f"L_fb_blk:\nv_mov_b32 v{MX}, 0xff800000\ns_mov_b32 s67, 0")
    for i in range(16): A(f"v_mov_b32 v{FO_+i}, 0")
    A(f"""
    L_fb_pass:
    s_add_u32 s63, s57, {144*256}
    s_add_u32 s64, s55, {144*256}
    s_mov_b32 s65, {VT_OFF}
    s_mov_b32 s66, 0
    L_fb_loop:
    s_add_u32 s68, s65, {2*VT_ROW}
    buffer_load_dwordx2 {v(KF,2)}, v{AK}, s[12:15], s63 offen sc1
    buffer_load_dwordx2 {v(KF+2,2)}, v{AK}, s[12:15], s63 offen offset:512 sc1
    buffer_load_dwordx2 {v(KE,2)}, v{TMP+1}, s[12:15], s64 offen sc1
    s_mov_b32 exec_lo, 0x3ffff
    s_mov_b32 exec_hi, 0x3ffff
    buffer_load_dwordx4 {v(VF,4)}, v{AV}, s[12:15], s65 offen sc1
    buffer_load_dwordx4 {v(VF+4,4)}, v{AV}, s[12:15], s68 offen sc1
    s_mov_b64 exec, -1
    s_waitcnt vmcnt(0)
    v_mfma_f32_32x32x16_bf16 {v(FS_,16)}, {v(KF,4)}, {v(FQ,4)}, 0
    s_nop 10
    v_mfma_f32_32x32x8_bf16 {v(FS_,16)}, {v(KE,2)}, {v(FQ+4,2)}, {v(FS_,16)}
    s_add_u32 s63, s63, {QKQ_TT}
    s_add_u32 s64, s64, {QKQ_TT}
    s_add_u32 s65, s65, {VT_TT}
    s_add_u32 s66, s66, 1
    s_nop 15
    s_cmp_lg_u32 s67, 0
    s_cbranch_scc1 L_fb_p2
    """)
    for i in range(8): A(f"v_max3_f32 v{MX}, v{MX}, v{FS_+2*i}, v{FS_+2*i+1}")
    A(f"""
    s_cmp_lt_u32 s66, 64
    s_cbranch_scc1 L_fb_loop
    v_mov_b32 v{MX+1}, v{MX}
    s_nop 1
    v_permlane32_swap_b32 v{MX}, v{MX+1}
    s_mov_b32 s67, 1
    v_max_f32 v{MX}, v{MX}, v{MX+1}
    s_branch L_fb_pass
    L_fb_p2:
    """)
    for i in range(16): A(f"v_sub_f32 v{FS_+i}, v{FS_+i}, v{MX}")
    for i in range(16): A(f"v_exp_f32 v{FS_+i}, v{FS_+i}")
    A(f"""
    s_nop 2
    v_smfmac_f32_32x32x32_bf16 {v(FO_,16)}, {v(VF,4)}, {v(FS_,8)}, v{IDX}
    v_smfmac_f32_32x32x32_bf16 {v(FO_,16)}, {v(VF+4,4)}, {v(FS_+8,8)}, v{IDX}
    s_cmp_lt_u32 s66, 64
    s_cbranch_scc1 L_fb_loop
    s_nop 15
    s_cmp_lg_u32 s69, 0
    s_cbranch_scc1 L_fb_done
    s_mov_b32 s69, 1
    v_mov_b32 v{FQ+4}, 0
    v_mov_b32 v{FQ+5}, 0
    """)
    for i in range(12): A(f"v_mov_b32 v{O+i}, v{FO_+i}")
    for i in range(4): A(f"v_mov_b32 v{FQ+i}, v{QM+4+i}")
    A(f"v_permlane32_swap_b32 v{QE}, v{FQ+4}\nv_permlane32_swap_b32 v{QE+1}, v{FQ+5}\ns_branch L_fb_blk\nL_fb_done:")
    for i in range(12): A(f"v_mov_b32 v{O+16+i}, v{FO_+i}")
    A("s_branch L_at_fin")

def kv_loader(A):
    VD = 4; VP = 9; PT = 12
    A("s_setprio 3")
    head_qb(A)
    A(f"""
    s_and_b32 s50, s3, 1
    s_bfe_u32 s51, s3, 0x10001
    s_mul_i32 s52, s51, {HOFF}
    s_cmp_eq_u32 s50, 0
    s_cbranch_scc0 L_kv_v
    s_lshr_b32 s55, s96, 1
    s_mul_i32 s55, s55, {9*256}
    s_and_b32 s56, s96, 1
    s_mul_i32 s57, s56, {5*256}
    v_lshl_add_u32 v{VD}, v0, 4, s57
    v_add_u32 v{VD+1}, {QKQ_TT-1024}, v{VD}
    v_add_u32 v{VD+2}, {2*(QKQ_TT-1024)}, v{VD}
    v_add_u32 v{VD+3}, {3*(QKQ_TT-1024)}, v{VD}
    v_lshrrev_b32 v1, 4, v0
    v_mul_u32_u24 v1, {QKQ_TT}, v1
    v_and_b32 v2, 15, v0
    v_lshl_add_u32 v1, v2, 4, v1
    v_add_u32 v{VD+4}, 1024, v1
    s_add_u32 s55, s55, {144*256}
    s_mul_i32 s53, s51, {32*QKQ_TT}
    s_add_u32 s53, s53, s55
    s_mov_b32 s54, {4*QKQ_TT}
    s_lshl_b32 s56, s56, 10
    s_add_u32 s58, s55, s56
    s_add_u32 s59, s58, {4*256}
    s_lshr_b32 s58, s58, 12
    s_lshr_b32 s59, s59, 12
    s_branch L_kv_go
    L_kv_v:
    s_mul_i32 s55, s96, 18
    s_and_b32 s56, s2, 15
    s_mul_i32 s56, s56, {VT_ROW}
    s_add_u32 s56, s56, {576*16}
    s_mul_i32 s53, s51, {32*VT_TT}
    s_add_u32 s53, s53, {VT_OFF}
    v_mul_u32_u24 v1, {4*VT_TT}, v0
    v_add_u32 v1, s56, v1
    v_mov_b32 v16, 0x3f803f80
    v_mov_b32 v17, v16
    v_mov_b32 v18, v16
    v_mov_b32 v19, v16
    s_mov_b64 exec, 0xff
    buffer_store_dwordx4 v[16:19], v1, s[12:15], s53 offen sc1
    s_mov_b64 exec, -1
    v_mov_b32 v10, s56
    """)
    for n in range(5):
        A(f"""
        v_add_u32 v1, {64*n}, v0
        v_mul_u32_u24 v2, 3277, v1
        v_lshrrev_b32 v2, 16, v2
        v_mul_u32_u24 v3, 20, v2
        v_sub_u32 v1, v1, v3
        v_cmp_gt_u32 vcc, 18, v1
        v_add_u32 v1, s55, v1
        v_mul_u32_u24 v2, {VT_ROW}, v2
        v_lshl_add_u32 v1, v1, 4, v2
        v_cndmask_b32 v{VD+n}, v10, v1, vcc
        """)
        if n % 4: A(f"v_subrev_u32 v{VD+n}, {1024*n}, v{VD+n}")
    A(f"""
    s_mov_b32 s54, {4*VT_TT}
    s_add_u32 s52, s52, 5120
    s_lshr_b32 s58, s55, 6
    s_add_u32 s59, s55, 17
    s_lshr_b32 s59, s59, 6
    s_add_u32 s58, s58, 18
    s_add_u32 s59, s59, 18
    L_kv_go:
    s_sub_u32 s59, s59, s58
    s_lshl_b32 s59, s59, 5
    v_bfe_u32 v1, v0, 4, 1
    v_mul_u32_u24 v1, s59, v1
    v_and_b32 v2, 15, v0
    v_add_u32 v1, v1, v2
    v_mul_u32_u24 v{VP}, {FS}, v1
    s_lshl_b32 s58, s58, 5
    s_lshl_b32 s59, s51, 4
    s_add_u32 s58, s58, s59
    s_mul_i32 s58, s58, {FS}
    s_add_u32 s58, s58, {FQ_OFF}
    v_mov_b32 v3, {L_FL}
    """)
    A(f"s_cmp_lt_u32 s2, 224\ns_cbranch_scc1 L_kv_g")
    lpoll(A, 3, F_CVD, 4, 1, PT, sleep=4)
    A("s_branch L_kv_g1\nL_kv_g:")
    lpoll(A, 3, F_STD, 1, 4, PT, sleep=2)
    A("L_kv_g1:")
    stamp(A, 4)
    if not os.environ.get('RG'): A(f"s_mov_b32 s59, 0\ns_mov_b32 exec_lo, {hex(((1 << 2*NE)-1)*0x10001 if not os.environ.get('ALLF') else 0xffffffff)}\ns_mov_b32 exec_hi, 0")
    else: A(f"s_lshl_b32 s59, s54, 2\ns_add_u32 s53, s53, s59\ns_lshl_b32 s59, s54, 3\ns_mov_b32 exec_lo, {hex(((1 << 2*NE)-1)*0x10001 << 8)}\ns_mov_b32 exec_hi, 0")
    gpoll(A, [VP], PT, "s58", sleep=QS)
    A("s_mov_b64 exec, -1")
    stamp(A, 5)
    A("s_mov_b32 s66, 0")
    A.label("L_kv_loop")
    A("s_mov_b32 m0, s52\ns_add_u32 s66, s66, 1")
    for n in range(4): A(f"buffer_load_dwordx4 v{VD+n}, s[12:15], s53 offen offset:{1024*n} sc1 lds")
    A(f"""
    s_add_u32 m0, s52, 4096
    s_add_u32 s52, s52, {GRP}
    buffer_load_dwordx4 v{VD+4}, s[12:15], s53 offen sc1 lds
    s_add_u32 s53, s53, s54
    s_cmp_eq_u32 s66, 4
    s_cselect_b32 s60, s59, 0
    s_sub_u32 s53, s53, s60
    s_cmp_lg_u32 s66, {NE}
    s_cbranch_scc1 L_kv_nb
    s_waitcnt vmcnt({5*(NE-1)})
    """)
    stamp(A, 6)
    A(f"""
    s_barrier
    s_waitcnt vmcnt(0)
    s_barrier
    """)
    gpoll(A, [VP], PT, "s58", sleep=4)
    A(f"""
    L_kv_nb:
    s_cmp_lt_u32 s66, 8
    s_cbranch_scc1 L_kv_loop
    s_waitcnt vmcnt(20)
    s_barrier
    s_cmp_lg_u32 s3, 10
    s_cbranch_scc1 L_kv_ns
    s_mul_i32 s58, s97, {8*OF_TT}
    s_add_u32 s58, s58, {OF_OFF}
    s_lshl_b32 s59, s96, 7
    s_add_u32 s59, s59, s58
    s_add_u32 s59, s59, {32*1024}
    s_lshl_b32 s60, s96, 10
    s_add_u32 s58, s58, s60
    v_lshlrev_b32 v1, 4, v0
    v_lshrrev_b32 v2, 3, v0
    v_mul_u32_u24 v2, {OF_TT-128}, v2
    v_add_u32 v2, v2, v1
    v_mov_b32 v16, -1
    v_mov_b32 v17, -1
    v_mov_b32 v18, -1
    v_mov_b32 v19, -1
    buffer_store_dwordx4 v[16:19], v2, s[12:15], s59 offen sc1
    """)
    for k in range(8): A(f"buffer_store_dwordx4 v[16:19], v1, s[12:15], s58 offen sc1\ns_add_u32 s58, s58, {OF_TT}")
    A("L_kv_ns:\ns_waitcnt vmcnt(0)")
    stamp(A, 7)
    A(f"""
    s_cmp_lg_u32 s3, 9
    s_cbranch_scc1 L_kv_nz
    v_mul_u32_u24 v1, 320, v0
    v_add_u32 v1, {L_QR}, v1
    v_mov_b32 v16, 0
    v_mov_b32 v17, 0
    v_mov_b32 v18, 0
    v_mov_b32 v19, 0
    s_mov_b64 exec, 31
    ds_write_b128 v1, v[16:19]
    s_mov_b64 exec, -1
    s_waitcnt lgkmcnt(0)
    L_kv_nz:
    s_barrier
    """)
    A(f"s_cmp_lg_u32 s3, 8\ns_cbranch_scc1 L_kv_nf\ns_mul_i32 s58, s2, {FS}\ns_add_u32 s58, s58, {FB_OFF}")
    gflag(A, "s58", PT)
    A("L_kv_nf:\ns_cmp_lg_u32 s3, 11\ns_cbranch_scc1 L_kv_nw\ns_cmp_ge_u32 s2, 144\ns_cbranch_scc1 L_kv_nw")
    trans_wo(A)
    A("L_kv_nw:")

def op_ids(A, fifth):
    A(f"""
    s_and_b32 s48, s2, 7
    s_lshl_b32 s48, s48, 3
    s_bfe_u32 s49, s2, 0x30003
    s_add_u32 s48, s48, s49
    s_lshr_b32 s51, s2, 6
    s_mul_i32 s49, s51, 5
    s_cmp_eq_u32 s51, 3
    s_subb_u32 s49, s49, 0
    s_and_b32 s50, s3, 3
    s_add_u32 s49, s49, {4 if fifth else 's50'}
    """)
def op_poll(A, t, sleep):
    A(f"""
    s_lshl_b32 s52, s49, 4
    s_lshl_b32 s54, s49, 3
    s_add_u32 s51, s54, 112
    s_cmp_lt_u32 s49, 14
    s_cselect_b32 s52, s52, s51
    s_cselect_b32 s51, 15, 7
    v_and_b32 v{t}, s51, v0
    v_add_u32 v{t}, s52, v{t}
    s_add_u32 s54, s54, 256
    v_and_or_b32 v{t+1}, v0, 7, s54
    s_mov_b32 vcc_lo, 0x00ff0000
    s_mov_b32 vcc_hi, 0
    v_cndmask_b32 v{t}, v{t}, v{t+1}, vcc
    s_lshr_b32 s52, s48, 4
    s_lshl_b32 s52, s52, 1
    s_bfe_u32 s51, s48, 0x20002
    s_lshl_b32 s51, s51, 3
    s_add_u32 s52, s52, s51
    s_add_u32 s52, s52, 193
    v_writelane_b32 v{t}, s52, 24
    s_and_b32 s52, s48, 0x38
    s_mov_b32 exec_lo, 0
    v_and_or_b32 v{t}, v0, 7, s52
    v_bfe_u32 v{t+1}, v0, 3, 2
    v_lshl_or_b32 v{t}, v{t+1}, 6, v{t}
    s_mov_b32 exec_lo, -1
    v_mul_u32_u24 v{t}, {FS}, v{t}
    s_mov_b32 s54, {FB_OFF}
    """)
    gpoll(A, [t], t+1, "s54", sleep=sleep)
def op_aaddr(A, va, vg, t):
    A(f"""
    v_and_b32 v{va}, 3, v0
    v_bfe_u32 v{t}, v0, 2, 1
    v_lshl_or_b32 v{va}, v{t}, 4, v{va}
    v_bfe_u32 v{t}, v0, 3, 2
    v_lshl_or_b32 v{va}, v{t}, 2, v{va}
    v_lshlrev_b32 v{va}, 13, v{va}
    v_lshrrev_b32 v{t}, 5, v0
    v_lshl_or_b32 v{va}, v{t}, 4, v{va}
    v_and_b32 v{vg}, 31, v0
    v_lshlrev_b32 v{vg}, 3, v{vg}
    s_lshl_b32 s52, s48, 8
    s_add_u32 s52, s52, {G_OFF}
    s_lshl_b32 s51, s49, 18
    s_lshl_b32 s54, s48, 6
    s_add_u32 s51, s51, s54
    s_add_u32 s51, s51, {AT_OFF}
    """)

def pg_wait(A, va, t, sleep, lane=0):
    l = uid("pg"); e = uid("pe")
    A(f"""
    v_bfe_u32 v{va}, v{lane}, 2, 1
    v_mul_u32_u24 v{va}, 304, v{va}
    v_and_b32 v{t}, 7, v{lane}
    v_lshl_add_u32 v{va}, v{t}, 2, v{va}
    v_add_u32 v{va}, {L_PG}, v{va}
    s_mov_b32 s{CAP}, 0x100000
    {l}:
    ds_read_b32 v{t}, v{va}
    s_sub_u32 s{CAP}, s{CAP}, 1
    s_cbranch_scc1 {e}
    s_waitcnt lgkmcnt(0)
    v_cmp_eq_u32 vcc, 0, v{t}
    s_cbranch_vccz {e}
    s_sleep {sleep}
    s_branch {l}
    {e}:
    """)

def ofetch(A):
    D = 94; F_W = 48; F_AC = 136; F_A = 130; F_DG = 152; F_G = 156
    A("s_setprio 3")
    op_ids(A, True)
    A("s_min_u32 s49, s49, 17")
    op_poll(A, F_G, 1)
    A("s_cmp_ge_u32 s2, 128\ns_cbranch_scc1 L_of_n5")
    op_aaddr(A, F_G+1, F_G+2, F_G+3)
    A(f"""
    s_and_b32 s54, s50, 1
    s_lshl_b32 s54, s54, 5
    s_add_u32 s51, s51, s54
    s_lshr_b32 s54, s50, 1
    s_lshl_b32 s54, s54, 12
    s_add_u32 s51, s51, s54
    s_waitcnt lgkmcnt(0)
    buffer_load_dword v{F_G}, v{F_G+2}, s[12:15], s52 offen sc1
    buffer_load_dwordx4 {v(F_A,4)}, v{F_G+1}, s[12:15], s51 offen sc1
    s_lshl_b32 s52, s49, 10
    s_add_u32 s52, s52, {WOT_OFF}
    s_mul_i32 s54, s50, {18*1024}
    s_add_u32 s51, s54, s52
    s_add_u32 s51, s51, {32*18*1024}
    s_lshl_b32 s54, s54, 3
    s_add_u32 s52, s52, s54
    """)
    for k in range(8): A(f"buffer_load_dwordx4 {v(F_W+4*k,4)}, v22, s[12:15], s52 offen sc1\ns_add_u32 s52, s52, {18*1024}")
    A(f"buffer_load_dwordx4 {v(F_W+32,4)}, v22, s[12:15], s51 offen sc1")
    srd(A, 8, P_OUT, 2048*1152)
    A(f"""
    v_lshrrev_b32 v41, 5, v0
    v_and_b32 v42, 31, v0
    v_lshlrev_b32 v43, 9, v41
    v_lshl_add_u32 v43, v42, 2, v43
    s_lshl_b32 s52, s50, 10
    s_add_u32 s54, s52, {L_O + 32*1024}
    v_add_u32 v43, s54, v43
    v_mul_u32_u24 v42, 1152, v42
    v_lshl_add_u32 v42, v41, 5, v42
    s_add_u32 s54, s52, {L_RED}
    v_add_u32 v45, s54, v22
    s_lshl_b32 s52, s50, 12
    s_add_u32 s52, s52, {L_RED}
    v_add_u32 v44, s52, v22
    v_mov_b32 v47, {L_FR}
    s_mul_i32 s53, s48, {32*1152}
    s_lshl_b32 s55, s49, 6
    s_add_u32 s53, s53, s55
    s_lshl_b32 s55, s50, 3
    s_add_u32 s53, s53, s55
    v_bfe_u32 v{F_G+2}, v0, 1, 1
    v_lshlrev_b32 v{F_G+2}, 4, v{F_G+2}
    v_sub_u32 v{F_G+2}, 16, v{F_G+2}
    s_and_b32 s54, s50, 1
    s_waitcnt vmcnt(9)
    v_lshrrev_b32 v{F_G}, v{F_G+2}, v{F_G}
    """)
    for r in range(4):
        m = 0x5 << (16*(r >> 1) + 4*(r & 1))
        A(f"s_lshl_b32 vcc_lo, {hex(m)}, s54\ns_lshl_b32 vcc_hi, vcc_lo, 8\nv_cndmask_b32 v{F_DG+r}, 0, v{F_G}, vcc")
    A(f"s_nop 1\nv_mfma_f32_32x32x16_bf16 {v(F_AC,16)}, {v(F_A,4)}, {v(F_DG,4)}, 0")
    A(f"""
    L_of_n5:
    s_mul_i32 s57, s48, {OF_TT}
    s_add_u32 s57, s57, {OF_OFF}
    s_lshl_b32 s58, s50, 13
    s_lshl_b32 s59, s50, 10
    s_add_u32 s59, s59, {32*1024}
    s_add_u32 s60, s57, s58
    s_add_u32 s61, s60, 4096
    s_add_u32 s62, s57, s59
    s_add_u32 s58, s58, {L_O}
    s_add_u32 s59, s59, {L_O}
    v_add_u32 v4, s58, v22
    v_add_u32 v5, s59, v22
    s_lshl_b32 s52, s50, 2
    s_add_u32 s52, s52, {L_QR}
    v_mov_b32 v6, s52
    s_lshl_b32 s55, s48, 5
    s_lshl_b32 s56, s50, 3
    s_add_u32 s55, s55, s56
    s_mul_i32 s55, s55, {FS}
    s_add_u32 s55, s55, {FO_OFF}
    v_and_b32 v8, 7, v0
    v_mul_u32_u24 v8, {FS}, v8
    """)
    pg_wait(A, 9, 10, 1)
    EM = 16
    for n in range(9): A(f"s_mov_b64 s[{EM+2*n}:{EM+2*n+1}], -1")
    stamp(A, 5)
    if os.environ.get("HP"):
        A(f"""
        s_mov_b32 s{CAP}, 0x40000
        buffer_load_dword v9, v8, s[12:15], s55 offen sc1
        s_sleep {os.environ.get("HP")}
        L_hp:
        buffer_load_dword v10, v8, s[12:15], s55 offen sc1
        s_waitcnt vmcnt(1)
        v_cmp_ne_u32 vcc, s{NONCE}, v9
        s_cbranch_vccz L_hp_e
        buffer_load_dword v9, v8, s[12:15], s55 offen sc1
        s_waitcnt vmcnt(1)
        v_cmp_ne_u32 vcc, s{NONCE}, v10
        s_cbranch_vccz L_hp_e
        s_sub_u32 s{CAP}, s{CAP}, 1
        s_cbranch_scc0 L_hp
        L_hp_e:
        """)
    else: gpoll(A, [8], 9, "s55", sleep=int(os.environ.get("HS", "6")))
    A(f"s_mov_b32 s{CAP}, 0x40000")
    stamp(A, 6)
    A("L_of_loop:")
    for n in range(9):
        A(f"s_mov_b64 exec, s[{EM+2*n}:{EM+2*n+1}]")
        A(f"buffer_load_dwordx4 {v(D+4*n,4)}, v22, s[12:15], s{60+n//4} offen offset:{1024*(n%4)} sc1")
    A("s_mov_b64 exec, -1\ns_mov_b64 s[34:35], 0")
    for n in range(9):
        A(f"s_waitcnt vmcnt({8-n})")
        A(f"ds_write_b128 v4, {v(D+4*n,4)} offset:{1024*n}" if n < 8 else f"ds_write_b128 v5, {v(D+32,4)}")
        A(f"v_max3_u32 v7, v{D+4*n}, v{D+4*n+1}, v{D+4*n+2}\nv_max_u32 v7, v7, v{D+4*n+3}\nv_cmp_eq_u32 s[{EM+2*n}:{EM+2*n+1}], -1, v7")
        if n: A(f"s_or_b64 s[34:35], s[34:35], s[{EM+2*n-2}:{EM+2*n-1}]")
    A(f"""
    s_sub_u32 s{CAP}, s{CAP}, 1
    s_cbranch_scc1 L_of_ok
    s_or_b64 s[34:35], s[34:35], s[{EM+16}:{EM+17}]
    s_cbranch_scc0 L_of_ok
    s_waitcnt lgkmcnt(0)
    s_branch L_of_loop
    L_of_ok:
    """)
    lset(A, 6, 0, 1, 7)
    stamp(A, 7)
    if DIAG: A(f"s_sub_u32 s88, 0x40000, s{CAP}")
    A(f"""
    s_cmp_ge_u32 s2, 128
    s_cbranch_scc1 L_end
    s_setprio {os.environ.get('FP', '0')}
    ds_read2_b32 v[10:11], v43 offset0:0 offset1:32
    ds_read2_b32 v[12:13], v43 offset0:64 offset1:96
    """)
    for k in range(8): A(f"v_mfma_f32_32x32x16_bf16 {v(F_AC,16)}, {v(F_W+4*k,4)}, {v(D+4*k,4)}, {v(F_AC,16)}")
    A(f"s_waitcnt lgkmcnt(0)\nv_mfma_f32_32x32x16_bf16 {v(F_AC,16)}, {v(F_W+32,4)}, v[10:13], {v(F_AC,16)}\ns_setprio 3\ns_nop 10")
    for i in range(4): A(f"ds_write_b128 v44, {v(F_AC+4*i,4)} offset:{1024*i}")
    lset(A, 6, 320, 1, 7)
    lpoll(A, 47, 0, 4, 1, 10, sleep=1)
    OB = 94
    for i in range(4): A(f"ds_read_b128 {v(OB+4*i,4)}, v45 offset:{4096*i}")
    A("s_waitcnt lgkmcnt(2)")
    for i in range(4): A(f"v_add_f32 v{OB+i}, v{OB+i}, v{OB+4+i}")
    A("s_waitcnt lgkmcnt(0)")
    for i in range(4): A(f"v_add_f32 v{OB+8+i}, v{OB+8+i}, v{OB+12+i}")
    for i in range(4): A(f"v_add_f32 v{OB+i}, v{OB+i}, v{OB+8+i}")
    A(f"v_cvt_pk_bf16_f32 v{OB}, v{OB}, v{OB+1}\nv_cvt_pk_bf16_f32 v{OB+1}, v{OB+2}, v{OB+3}")
    A(f"buffer_store_dwordx2 {v(OB,2)}, v42, s[8:11], s53 offen")

def outproj(A):
    AC = 4; AP = 20; WF = 36; OB = 148
    FT = 164
    AF = WF; DG = WF + 16; G = WF + 24; ND = 7
    op_ids(A, False)
    op_poll(A, 4, 16)
    stamp(A, 8)
    op_aaddr(A, 1, G+1, 2)
    A(f"""
    buffer_load_dword v{G}, v{G+1}, s[12:15], s52 offen sc1
    buffer_load_dwordx4 {v(AF,4)}, v1, s[12:15], s51 offen sc1
    buffer_load_dwordx4 {v(AF+4,4)}, v1, s[12:15], s51 offen offset:32 sc1
    s_add_u32 s51, s51, 4096
    buffer_load_dwordx4 {v(AF+8,4)}, v1, s[12:15], s51 offen sc1
    buffer_load_dwordx4 {v(AF+12,4)}, v1, s[12:15], s51 offen offset:32 sc1
    v_lshlrev_b32 v1, 4, v0
    s_lshl_b32 s52, s49, 10
    s_add_u32 s52, s52, {WOT_OFF}
    s_lshl_b32 s54, s50, 13
    s_add_u32 s54, s54, {L_WE}
    """)
    wld = lambda i: A(f"s_add_u32 s63, s52, {(8*(i//7) + i%7)*18*1024}\nbuffer_load_dwordx4 {v(WF+4*i,4)}, v1, s[12:15], s63 offen sc1")
    for i in range(ND, 28): wld(i)
    A(f"""
    v_bfe_u32 v{G+2}, v0, 1, 1
    v_lshlrev_b32 v{G+2}, 4, v{G+2}
    v_sub_u32 v{G+2}, 16, v{G+2}
    s_waitcnt vmcnt({28-ND})
    v_lshrrev_b32 v{G}, v{G+2}, v{G}
    """)
    for c in range(2):
        for r in range(4):
            m = 0x5 << (16*(r >> 1) + 4*(r & 1) + c)
            A(f"s_mov_b32 vcc_lo, {hex(m)}\ns_mov_b32 vcc_hi, {hex(m << 8)}\nv_cndmask_b32 v{DG+4*c+r}, 0, v{G}, vcc")
    A("s_nop 1")
    for c in range(4): A(f"v_mfma_f32_32x32x16_bf16 {v(AP,16)}, {v(AF+4*c,4)}, {v(DG+4*(c&1),4)}, {'0' if c == 0 else v(AP,16)}")
    for i in range(ND): wld(i)
    srd(A, 8, P_OUT, 2048*1152)
    A(f"""
    s_lshl_b32 s55, s2, 4
    s_add_u32 s55, s55, s3
    s_cmp_lg_u32 s55, 11
    s_cbranch_scc1 L_op_noep
    v_mul_u32_u24 v{OB}, {FS}, v0
    v_add_u32 v{OB+1}, {64*FS}, v{OB}
    v_add_u32 v{OB+2}, {128*FS}, v{OB}
    v_add_u32 v{OB+3}, {192*FS}, v{OB}
    s_mov_b32 s55, {FB_OFF}
    """)
    gpoll(A, [OB, OB+1, OB+2, OB+3], OB+4, "s55", sleep=16)
    A(f"s_mov_b32 s55, {EP_OFF}")
    gflag(A, "s55", OB)
    A(f"""
    L_op_noep:
    v_mov_b32 v{OB+2}, v0
    v_lshrrev_b32 v3, 5, v0
    v_and_b32 v2, 31, v0
    v_and_b32 v{FT+1}, 3, v0
    v_lshlrev_b32 v{FT+1}, 2, v{FT+1}
    v_add_u32 v{FT+1}, {L_QR}, v{FT+1}
    v_lshlrev_b32 v0, 9, v3
    v_lshl_add_u32 v0, v2, 2, v0
    v_add_u32 v0, {L_O + 32*1024}, v0
    v_mul_u32_u24 v2, 1152, v2
    v_lshl_add_u32 v2, v3, 5, v2
    v_add_u32 v3, s54, v1
    s_mul_i32 s53, s48, {32*1152}
    s_lshl_b32 s56, s49, 6
    s_add_u32 s53, s53, s56
    s_mov_b32 m0, s54
    {"buffer_load_dword v%d, v2, s[8:11], s53 offen" % (OB+4) if os.environ.get("PT", "0") != "0" else ""}
    s_mov_b32 s56, 15
    """)
    pg_wait(A, OB, OB+1, int(os.environ.get("PGS", "12")), lane=OB+2)
    stamp(A, 9)
    for e in range(8):
        ks = 32 + e//2 if e % 2 == 0 else 8*(e//2) + 7
        A(f"s_add_u32 s63, s52, {ks*18*1024}\nbuffer_load_dwordx4 v1, s[12:15], s63 offen sc1 lds\ns_add_u32 m0, m0, 1024")
    A(f"""
    v_add_u32 v1, {L_O}, v1
    s_mov_b32 s{CAP}, 0x400000
    s_setprio 0
    s_waitcnt vmcnt(0)
    L_op_poll:
    ds_read_b32 v{FT}, v{FT+1}
    s_sub_u32 s{CAP}, s{CAP}, 1
    s_cselect_b32 s57, 15, 0
    s_cselect_b32 s{CAP}, 0, s{CAP}
    s_waitcnt lgkmcnt(0)
    v_cmp_ne_u32 vcc, 0, v{FT}
    s_or_b32 s57, s57, vcc_lo
    s_and_b32 s57, s57, s56
    s_cbranch_scc0 L_op_poll
    s_ff1_i32_b32 s58, s57
    s_lshl_b32 s59, s58, 13
    v_add_u32 v{FT+3}, s59, v1
    """)
    for i in range(4): A(f"ds_read_b128 {v(OB+4*i,4)}, v{FT+3} offset:{i*1024}")
    A("""
    L_op_disp:
    s_cmp_eq_u32 s58, 0
    s_cbranch_scc1 L_op_q0
    s_cmp_eq_u32 s58, 1
    s_cbranch_scc1 L_op_q1
    s_cmp_eq_u32 s58, 2
    s_cbranch_scc1 L_op_q2
    """)
    for q in (3, 0, 1, 2):
        A(f"L_op_q{q}:")
        if DIAG and os.environ.get("BLK"): A("s_mov_b32 s74, s76\ns_mov_b32 s76, s78\ns_mov_b32 s78, s80"); stamp(A, 4)
        w = WF + 28*q
        def mf(a, b_, c=None, d=AC): A(f"v_mfma_f32_32x32x16_bf16 {v(d,16)}, {v(a,4)}, {v(b_,4)}, {c or v(AC,16)}")
        A(f"ds_read_b32 v{FT}, v{FT+1}\nv_add_u32 v{FT+2}, {1024*q}, v0\ns_bitset0_b32 s56, {q}")
        for i in range(4):
            A(f"s_waitcnt lgkmcnt({[4,4,4,8][i]})")
            mf(w+4*i, OB+4*i, None if i else (v(AP,16) if q == 0 else "0"))
            A(f"ds_read_b128 {v(OB+4*i,4)}, v1 offset:{(8*q+4+i)*1024}")
            if i == 2:
                A(f"ds_read_b128 {v(w,4)}, v3 offset:{2048*q}\nds_read_b128 {v(w+8,4)}, v3 offset:{2048*q+1024}")
                A(f"ds_read2_b32 {v(w+4,2)}, v{FT+2} offset0:0 offset1:32\nds_read2_b32 {v(w+6,2)}, v{FT+2} offset0:64 offset1:96")
        A(f"""
        s_waitcnt lgkmcnt(7)
        v_cmp_ne_u32 vcc, 0, v{FT}
        """)
        mf(w+16, OB)
        A(f"""
        s_and_b32 s57, vcc_lo, s56
        s_ff1_i32_b32 s58, s57
        s_lshl_b32 s59, s58, 13
        v_add_u32 v{FT+3}, s59, v1
        ds_read_b128 {v(OB,4)}, v{FT+3}
        s_waitcnt lgkmcnt(7)
        """)
        mf(w+20, OB+4)
        A(f"ds_read_b128 {v(OB+4,4)}, v{FT+3} offset:1024\ns_waitcnt lgkmcnt(7)")
        mf(w+24, OB+8)
        A(f"ds_read_b128 {v(OB+8,4)}, v{FT+3} offset:2048\ns_waitcnt lgkmcnt(3)")
        mf(w+8, OB+12)
        A(f"ds_read_b128 {v(OB+12,4)}, v{FT+3} offset:3072\ns_cmp_lg_u32 s57, 0")
        mf(w, w+4, None, w+12)
        A("s_cbranch_scc1 L_op_disp\ns_cmp_lg_u32 s56, 0\ns_cbranch_scc1 L_op_poll")
        if q != 2: A("s_branch L_op_fin")
    A("L_op_fin:")
    stamp(A, 10)
    A("s_nop 8")
    R_ = [WF + 28*q + 12 for q in range(4)]
    for m in range(2):
        for j in range(4*m, 4*m+4):
            A(f"v_pk_add_f32 {v(R_[0]+2*j,2)}, {v(R_[0]+2*j,2)}, {v(R_[1]+2*j,2)}\nv_pk_add_f32 {v(R_[2]+2*j,2)}, {v(R_[2]+2*j,2)}, {v(R_[3]+2*j,2)}")
        for j in range(4*m, 4*m+4): A(f"v_pk_add_f32 {v(R_[0]+2*j,2)}, {v(R_[0]+2*j,2)}, {v(R_[2]+2*j,2)}")
        for j in range(4*m, 4*m+4): A(f"v_cvt_pk_bf16_f32 v{AP+j}, v{R_[0]+2*j}, v{R_[0]+2*j+1}")
        A(f"buffer_store_dwordx4 {v(AP+4*m,4)}, v2, s[8:11], s53 offen offset:{16*m}")

def fused(A, name):
    head(A, name)
    stamp_init(A)
    A(f"""
    s_load_dwordx16 s[16:31], s[0:1], 0
    s_load_dwordx16 s[32:47], s[0:1], 64
    v_lshrrev_b32 v1, 6, v0
    v_and_b32 v0, 63, v0
    v_readfirstlane_b32 s3, v1
    s_cmp_ge_u32 s2, 224
    s_cbranch_scc1 L_aux
    s_lshl_b32 s99, s2, 1
    s_mov_b32 s98, 0
    s_cmp_eq_u32 s3, 8
    s_cbranch_scc1 L_ldx
    s_cmp_eq_u32 s3, 9
    s_cbranch_scc1 L_ldw
    s_cmp_eq_u32 s3, 11
    s_cbranch_scc1 L_util
    s_cmp_lt_u32 s3, 4
    s_cbranch_scc1 L_gemm
    s_cmp_lt_u32 s3, 8
    s_cbranch_scc1 L_kgen
    s_lshr_b32 s48, s2, 3
    s_mov_b32 s49, {L_TR}
    s_and_b32 s52, s2, 1
    s_mul_i32 s52, s52, 28
    s_add_u32 s48, s48, s52
    s_mul_i32 s50, s48, 9363
    s_lshr_b32 s50, s50, 16
    s_mul_i32 s51, s50, 7
    s_sub_u32 s51, s48, s51
    s_and_b32 s52, s2, 6
    s_lshl_b32 s52, s52, 2
    s_add_u32 s50, s50, s52
    L_tru:
    s_setprio 3
    """)
    trans_u(A)
    A("s_branch L_ucopy")
    A.label("L_ldx"); gemm_loader(A, True); A("s_branch L_kv")
    A.label("L_ldw"); gemm_loader(A, False); A("s_branch L_kv")
    A.label("L_gemm")
    gemm_compute(A, "L_attn")
    A.label("L_gate")
    ugather(A)
    A("s_branch L_kv")
    A.label("L_aux")
    A(f"""
    s_cmp_ge_u32 s2, 256
    s_cbranch_scc1 L_exit
    s_cmp_lg_u32 s3, 9
    s_cbranch_scc1 L_aux1
    v_mov_b32 v2, 0
    v_lshlrev_b32 v3, 2, v0
    v_add_u32 v3, {L_FL}, v3
    ds_write_b32 v3, v2
    L_aux1:
    s_sub_u32 s50, s2, 224
    s_lshl_b32 s99, s50, 2
    s_add_u32 s99, s99, 448
    s_mov_b32 s98, 0
    s_cmp_ge_u32 s3, 8
    s_cbranch_scc1 L_gate
    s_cmp_ge_u32 s3, 4
    s_cbranch_scc1 L_kgen
    s_mov_b32 s98, {SET1}
    s_add_u32 s99, s99, 2
    L_kgen:
    s_and_b32 s50, s3, 1
    s_add_u32 s99, s99, s50
    s_mov_b32 s48, s99
    s_bfe_u32 s63, s3, 0x10001
    s_cmp_lg_u32 s98, 0
    s_cselect_b32 s51, 32768, 0
    s_cselect_b32 s53, 16, 0
    s_add_u32 s51, s51, {L_KG}
    s_add_u32 s53, s53, {L_FL}
    s_and_b32 s52, s3, 3
    s_mul_i32 s49, s52, {KG_SZ}
    s_add_u32 s49, s49, s51
    s_xor_b32 s52, s52, 2
    s_mul_i32 s64, s52, {KG_SZ}
    s_add_u32 s64, s64, s51
    s_mul_i32 s67, s50, {KC_CH}
    s_add_u32 s67, s67, {L_KC}
    s_sub_u32 s67, s67, s98
    s_lshl_b32 s50, s50, 3
    s_lshl_b32 s51, s63, 2
    s_add_u32 s50, s50, s51
    s_add_u32 s50, s50, s53
    v_mov_b32 v3, s50
    """)
    kgen(A, conv_pre)
    A.label("L_conv")
    if FINE: STAMP_ON[0] = False
    conv(A)
    A.label("L_attn")
    attn(A)
    A.label("L_util")
    A(f"""
    v_mov_b32 v2, 0
    v_lshlrev_b32 v3, 2, v0
    v_add_u32 v3, {L_FL}, v3
    ds_write_b32 v3, v2
    s_getpc_b64 s[50:51]
    L_pf_pc:
    s_sub_u32 s50, s50, L_pf_pc-{name}
    s_subb_u32 s51, s51, 0
    v_lshlrev_b32 v2, 7, v0
    s_bfe_u32 s52, s2, 0x20003
    s_mul_i32 s52, s52, 6912
    v_add_u32 v2, s52, v2
    global_load_dword v100, v2, s[50:51]
    """)
    A("s_waitcnt lgkmcnt(0)")
    ws_setup(A); get_nonce(A)
    if os.environ.get("PT", "0") == "2":
        A(f"s_mov_b32 s100, s{P_WS}\ns_mov_b32 s101, s{P_WS+1}")
        for k in range(0, WS_USED, 1 << 20):
            A(f"s_load_dword s{50+(k >> 20)}, s[100:101], 0\ns_add_u32 s100, s100, {1 << 20}\ns_addc_u32 s101, s101, 0")
    A("s_barrier\n"*4)
    A("s_waitcnt lgkmcnt(0)")
    A.label("L_ucopy")
    ucopy(A)
    A.label("L_kv")
    kv_loader(A)
    outproj(A)
    A.label("L_end")
    endpgm(A, 0)
    A("L_exit:\ns_endpgm")
    A.raw(".p2align 4\n.type kgen_tab,@object\nkgen_tab:")
    T = kgen_table()
    for i in range(0, len(T), 8): A.raw("    .long " + ", ".join(str(x) for x in T[i:i+8]))
    A.raw(f".size kgen_tab, {4*len(T)}")
    A.raw(f".type code_pad,@object\ncode_pad:\n.fill (28928 - (code_pad - {name})) / 4, 4, 0\n.size code_pad, . - code_pad")

if __name__ == "__main__":
    import sys
    NAME = "gated_mix__ssm_conv_s4__mha_block__prompt_kernel"
    HDR = open("gated_mix__ssm_conv_s4__mha_block__prompt.s.ref").read().split("; Override launch")[0]
    A = Asm(); fused(A, NAME)
    aslist = len(sys.argv) > 2
    out = HDR + (f"; @launch kernel={NAME} grid=(256,1,1) block=(768,1,1) lds=163840\n" if aslist else "; @launch grid=(256,1,1) block=(768,1,1) lds=163840\n")
    out += '.amdgcn_target "amdgcn-amd-amdhsa--gfx950"\n.text\n' + A.text() + '.section .rodata,"a"\n' + kd(NAME, NV)
    open(sys.argv[1], "w").write(out)
```

```python
import math
from asmlib import *
from lay2 import *
LOG2E = 1.4426950408889634
QSCALE = LOG2E / math.sqrt(18.0)
FINE = int(os.environ.get("FINE", "0"))
if FINE:
    _st = stamp
    import asmlib
PFF = os.environ.get("PFF", "")
LSL = int(os.environ.get("LSL", "0"))
NOKG = os.environ.get("NOKG")
NOTR = os.environ.get("NOTR")
NONCE = 70
CAP = 71
_uid = [0]
def uid(p):
    _uid[0] += 1
    return f"L_{p}{_uid[0]}"

def ws_setup(A):
    srd(A, 12, P_WS, WS_USED)
    A(f"s_add_u32 s100, s{P_WS}, {EP_OFF}\ns_addc_u32 s101, s{P_WS+1}, 0\ns_load_dword s{NONCE}, s[100:101], 0")
def get_nonce(A):
    A(f"s_waitcnt lgkmcnt(0)\ns_mul_i32 s{NONCE}, s{NONCE}, 0x9e3779b1\ns_add_u32 s{NONCE}, s{NONCE}, 0x7f4a7c15")
def gpoll(A, voffs, vt, soff="0", sleep=2):
    l = uid("gp"); e = uid("ge")
    A(f"s_mov_b32 s{CAP}, 0x40000\n{l}:")
    for i, vo in enumerate(voffs): A(f"buffer_load_dword v{vt+i}, v{vo}, s[12:15], {soff} offen sc1")
    A(f"s_sub_u32 s{CAP}, s{CAP}, 1\ns_cbranch_scc1 {e}\ns_waitcnt vmcnt(0)")
    for i in range(len(voffs)): A(f"v_xor_b32 v{vt+i}, s{NONCE}, v{vt+i}")
    for i in range(1, len(voffs)): A(f"v_or_b32 v{vt}, v{vt}, v{vt+i}")
    A(f"v_cmp_ne_u32 vcc, 0, v{vt}\ns_cbranch_vccz {e}\n{('s_sleep %d' % sleep) if sleep else ''}\ns_branch {l}\n{e}:")
def gflag(A, soff, vt):
    A(f"""
    v_mov_b32 v{vt}, s{NONCE}
    v_mov_b32 v{vt+1}, 0
    s_mov_b64 exec, 1
    buffer_store_dword v{vt}, v{vt+1}, s[12:15], {soff} offen sc1
    s_mov_b64 exec, -1
    """)
def lpoll(A, va, off, n, val, vt, st=69, sleep=1):
    l = uid("lp"); e = uid("le")
    if sleep and os.environ.get("BIGSL"): sleep = 40
    op = {1: "ds_read_b32", 2: "ds_read_b64", 4: "ds_read_b128"}[n]
    A(f"s_mov_b32 s{CAP}, 0x100000\n{l}:\n{op} {v(vt,n)}, v{va} offset:{off}\ns_sub_u32 s{CAP}, s{CAP}, 1\ns_cbranch_scc1 {e}\ns_waitcnt lgkmcnt(0)")
    if n == 2: A(f"v_min_u32 v{vt}, v{vt}, v{vt+1}\ns_nop 0")
    if n == 4: A(f"v_min3_u32 v{vt}, v{vt}, v{vt+1}, v{vt+2}\nv_min_u32 v{vt}, v{vt}, v{vt+3}\ns_nop 0")
    A(f"v_readfirstlane_b32 s{st}, v{vt}\ns_cmp_ge_u32 s{st}, {val}\ns_cbranch_scc1 {e}\n{('s_sleep %d' % sleep) if sleep else ''}\ns_branch {l}\n{e}:")
def lset(A, va, off, val, vt):
    A(f"v_mov_b32 v{vt}, {val}\ns_mov_b64 exec, 1\nds_write_b32 v{va}, v{vt} offset:{off}\ns_mov_b64 exec, -1")

def acc_t(A, slot):
    if FINE and DIAG:
        A(f"s_memtime s[58:59]\ns_waitcnt lgkmcnt(0)\ns_sub_u32 s61, s58, s60\ns_mov_b32 s60, s58")
        if slot is not None: A(f"s_add_u32 s{72+2*slot}, s{72+2*slot}, s61")
def gb(A, n=1):
    sk = uid("gb")
    A(f"s_cmp_ge_u32 s2, 224\ns_cbranch_scc1 {sk}\n" + "s_barrier\n"*n + f"{sk}:")
def rgcg(A):
    A(f"""
    s_and_b32 s53, s2, 7
    s_lshr_b32 s54, s2, 3
    s_lshr_b32 s55, s53, 1
    s_lshl_b32 s55, s55, 2
    s_and_b32 s56, s54, 3
    s_add_u32 s48, s55, s56
    s_and_b32 s53, s53, 1
    s_mul_i32 s53, s53, 7
    s_lshr_b32 s54, s54, 2
    s_add_u32 s49, s53, s54
    """)

LA = int(os.environ.get('LA', '2'))
ROT = int(os.environ.get("ROT", "2"))
def rot_code(cs):
    if ROT == 0: return "s_mov_b32 s50, 0"
    if ROT == 1:
        return f"""s_bfe_u32 s50, s2, 0x20003
    s_lshr_b32 s51, s2, 5
    s_add_u32 s50, s50, s51
    s_lshl_b32 s50, s50, 1
    s_cmp_ge_u32 s50, 9
    s_cselect_b32 s51, 9, 0
    s_sub_u32 s50, s50, s51
    s_cmp_ge_u32 s50, 9
    s_cselect_b32 s51, 9, 0
    s_sub_u32 s50, s50, s51
    s_mul_i32 s50, s50, {cs}"""
    if ROT == 2:
        return f"""s_and_b32 s50, s2, 7
    s_lshr_b32 s51, s50, 1
    s_lshl_b32 s51, s51, 1
    s_and_b32 s50, s50, 1
    s_mul_i32 s50, s50, 4
    s_add_u32 s50, s50, s51
    s_cmp_ge_u32 s50, 9
    s_cselect_b32 s51, 9, 0
    s_sub_u32 s50, s50, s51
    s_mul_i32 s50, s50, {cs}"""
    if ROT == 4:
        return f"""s_bfe_u32 s50, s2, 0x10003
    s_bfe_u32 s51, s2, 0x10005
    s_xor_b32 s50, s50, s51
    s_lshl_b32 s50, s50, 1
    s_bfe_u32 s51, s2, 0x10001
    s_xor_b32 s51, s51, s2
    s_and_b32 s51, s51, 1
    s_add_u32 s50, s50, s51
    s_mul_i32 s50, s50, {2*cs}"""
    if ROT == 5:
        return f"""s_bfe_u32 s50, s2, 0x20003
    s_lshr_b32 s51, s2, 5
    s_add_u32 s50, s50, s51
    s_mul_i32 s51, s50, 86
    s_lshr_b32 s51, s51, 8
    s_mul_i32 s51, s51, 3
    s_sub_u32 s50, s50, s51
    s_mul_i32 s50, s50, {3*cs}"""
    if ROT == 6:
        return f"""s_bfe_u32 s50, s2, 0x10003
    s_bfe_u32 s51, s2, 0x10005
    s_xor_b32 s50, s50, s51
    s_mul_i32 s50, s50, {2*cs}"""
    if ROT == 3:
        return f"""s_bfe_u32 s50, s2, 0x10003
    s_bfe_u32 s51, s2, 0x10005
    s_xor_b32 s50, s50, s51
    s_mul_i32 s50, s50, {4*cs}"""
def gemm_loader(A, isx):
    VD = 4; VF = 8; VT = 10
    rgcg(A)
    if isx:
        A(f"""
        s_lshl_b32 s53, s48, 7
        v_lshrrev_b32 v1, 3, v0
        v_add_u32 v1, s53, v1
        v_mul_u32_u24 v1, 1152, v1
        v_lshrrev_b32 v2, 4, v0
        v_and_b32 v3, 7, v0
        v_xor_b32 v3, v3, v2
        v_lshl_add_u32 v{VD}, v3, 4, v1
        v_xor_b32 v3, 4, v3
        v_lshl_add_u32 v{VD+1}, v3, 4, v1
        v_add_u32 v{VD+1}, 8192, v{VD+1}
        v_add_u32 v{VD+2}, 16384, v{VD}
        v_add_u32 v{VD+3}, 16384, v{VD+1}
        """)
    else:
        A(f"""
        v_lshrrev_b32 v2, 4, v0
        v_mul_u32_u24 v1, 3456, v2
        v_and_b32 v3, 15, v0
        v_lshlrev_b32 v2, 2, v2
        v_xor_b32 v3, v3, v2
        v_lshl_add_u32 v1, v3, 4, v1
        s_lshl_b32 s53, s49, 8
        v_add_u32 v{VD}, s53, v1
        v_add_u32 v{VD+1}, 12800, v{VD}
        v_add_u32 v{VD+2}, 25600, v{VD}
        v_add_u32 v{VD+3}, 38400, v{VD}
        """)
    cs, gs = (128, 32*1152) if isx else (64*3456, 16*3456)
    lp = uid("ld")
    A(f"""
    {rot_code(cs)}
    s_mov_b32 s51, {0 if isx else 16384}
    s_mov_b32 s52, 0x18000
    s_mov_b32 s53, 0
    s_waitcnt lgkmcnt(0)
    """)
    if isx: srd(A, 4, P_U, 2048*1152)
    else: srd(A, 4, P_WQKV, 576*3456)
    stamp(A, 1)
    acc_t(A, None)
    A(f"{lp}:\ns_mov_b32 m0, s51\ns_add_u32 s54, s50, {gs}")
    for g in range(4):
        so = (50, 54, 55, 56)[g]
        for n in range(4): A(f"buffer_load_dwordx4 v{VD+n}, s[4:7], s{so} offen offset:{1024*n} lds")
        if g < 3: A(f"s_add_u32 m0, s51, {4096*(g+1)}")
        if g < 2: A(f"s_add_u32 s{(55, 56)[g]}, s50, {gs*(g+2)}")
        elif g == 2: A(f"s_add_u32 s50, s50, {cs}" + (f"\ns_cmp_eq_u32 s50, {9*cs}\ns_cselect_b32 s50, 0, s50" if ROT else ""))
    acc_t(A, 4)
    A(f"""
    s_xor_b32 s51, s51, s52
    s_xor_b32 s52, s52, 0x10000
    s_add_u32 s53, s53, 1
    s_cmp_lt_u32 s53, {LA}
    s_cbranch_scc1 {lp}
    s_waitcnt vmcnt({16*(LA-1)})
    """)
    acc_t(A, 5)
    A("s_barrier")
    acc_t(A, 6)
    A(f"s_cmp_lt_u32 s53, 9\ns_cbranch_scc1 {lp}")
    ws_setup(A)
    if LA == 3: A("s_waitcnt vmcnt(16)\ns_barrier")
    A("s_waitcnt vmcnt(0)\ns_barrier")
    get_nonce(A)
    stamp(A, 3)

def gemm_compute(A, done_label):
    AX, AW = 4, 8
    VFL, VDN, PT = 10, 11, 12
    FR = 16
    ACC = 80
    rgcg(A)
    A(f"""
    s_and_b32 s53, s3, 1
    s_lshr_b32 s54, s3, 1
    s_lshl_b32 s55, s53, 13
    v_and_b32 v1, 31, v0
    v_lshlrev_b32 v1, 7, v1
    v_add_u32 v1, s55, v1
    v_lshrrev_b32 v2, 5, v0
    v_bfe_u32 v3, v0, 1, 3
    v_xor_b32 v3, v3, v2
    v_lshl_add_u32 v{AX}, v3, 4, v1
    v_xor_b32 v{AX+1}, 32, v{AX}
    v_xor_b32 v{AX+2}, 0x40040, v{AX}
    v_xor_b32 v{AX+3}, 0x40060, v{AX}
    v_bfe_u32 v1, v0, 2, 2
    v_lshl_add_u32 v3, v2, 3, v1
    v_lshlrev_b32 v3, 8, v3
    s_lshl_b32 s55, s54, 1
    v_xor_b32 v1, s55, v1
    v_lshl_add_u32 v3, v1, 6, v3
    v_bfe_u32 v1, v0, 4, 1
    v_lshl_add_u32 v3, v1, 5, v3
    v_and_b32 v1, 3, v0
    v_lshl_add_u32 v3, v1, 3, v3
    v_add_u32 v{AW}, 0x44000, v3
    v_xor_b32 v{AW+1}, 64, v{AW}
    v_mov_b32 v{VFL}, {L_FL}
    s_lshl_b32 s56, s48, 1
    s_add_u32 s56, s56, s53
    s_lshl_b32 s57, s49, 1
    s_add_u32 s57, s57, s54
    s_waitcnt lgkmcnt(0)
    """)
    ws_setup(A); get_nonce(A)
    for i in range(32): A(f"v_mov_b32 v{FR+i}, 0")
    for i in range(64): A(f"v_mov_b32 v{ACC+i}, 0")
    A("s_setprio 2\ns_mov_b32 s62, 0\ns_mov_b32 s63, 0x40000\ns_mov_b32 s64, 0x18000")
    def reads(ks, part):
        b = FR + 16*ks
        if part == 0:
            for t in range(2): A(f"ds_read_b128 {v(b+4*t,4)}, v{AX+ks} offset:{4096*t}")
        else:
            f = part - 1
            for t in range(2): A(f"ds_read_b64_tr_b16 {v(b+8+4*f+2*t,2)}, v{AW+f} offset:{ks*4096+t*1024}")
    def mf(ks, i, vtype):
        b = FR + 16*ks
        t, f = i >> 1, i & 1
        d = v(ACC+16*i, 16); x = v(b+4*t, 4); w = v(b+8+4*f, 4)
        if "m" in os.environ.get("GX", ""): A("s_nop 0"); return
        A(f"v_mfma_f32_32x32x16_bf16 {d}, {x if vtype else w}, {w if vtype else x}, {d}")
    def main(vtype):
        lp = uid("gm"); nb = uid("gnb")
        A.raw(".p2align 6")
        A.label(lp)
        for ks in range(4):
            A(f"s_waitcnt lgkmcnt(6)")
            mf(ks, 0, vtype)
            if ks == 2:
                A(f"s_cbranch_scc1 {nb}")
                if LA == 3: A("s_waitcnt lgkmcnt(0)")
                if FINE and DIAG: A("s_memtime s[58:59]")
                A("s_barrier")
                if FINE and DIAG: A("s_memtime s[60:61]\ns_waitcnt lgkmcnt(0)\ns_sub_u32 s60, s60, s58\ns_add_u32 s86, s86, s60")
                if DIAG and os.environ.get("CS"):
                    sk = uid("sk"); A(f"s_cmp_lg_u32 s62, 0\ns_cbranch_scc1 {sk}"); stamp(A, 1); A(f"{sk}:")
                A(f"{nb}:")
            kn = (ks+2) & 3
            reads(kn, 0)
            mf(ks, 1, vtype)
            reads(kn, 1)
            if ks == 3: A("s_add_u32 s62, s62, 1")
            mf(ks, 2, vtype)
            reads(kn, 2)
            if ks == 1: A("s_cmp_eq_u32 s62, 9")
            if ks == 3: A(f"v_xor_b32 v{AX+kn}, s64, v{AX+kn}\ns_mov_b32 s63, s64\ns_xor_b32 s64, s64, 0x10000\ns_cmp_lt_u32 s62, 10")
            mf(ks, 3, vtype)
            if ks < 3: A(f"v_xor_b32 v{AX+kn}, s{63 if ks < 2 else 64}, v{AX+kn}")
            if ks == 1: A(f"v_xor_b32 v{AW}, s63, v{AW}\nv_xor_b32 v{AW+1}, s63, v{AW+1}")
        A(f"s_cbranch_scc1 {lp}")
        A(f"s_setprio {os.environ.get('EP', '2')}")
        stamp(A, 4)
        if os.environ.get("LD"):
            sk = uid("ld")
            A(f"s_and_b32 s58, s48, 6\ns_cbranch_scc0 {sk}\ns_cmp_lt_u32 s57, 9\ns_cbranch_scc1 {sk}\ns_setprio 0")
            lpoll(A, VFL, F_KP if os.environ.get("LD") == "1" else F_KRDY, 4, 1, PT, sleep=1)
            A(f"s_setprio 2\n{sk}:")
    A(f"s_cmp_eq_u32 s57, 27\ns_cbranch_scc1 L_g_gate\ns_cmp_ge_u32 s49, 9\ns_cbranch_scc1 L_g_vtype")
    main(False)
    A(f"""
    s_mul_i32 s58, s56, {2*QKQ_TT}
    s_lshl_b32 s59, s57, 12
    s_add_u32 s58, s58, s59
    s_add_u32 s59, s58, {QKQ_TT}
    s_mov_b32 s60, {f32(QSCALE)}
    s_cmp_lt_u32 s57, 9
    s_nop 0
    v_and_b32 v1, 15, v0
    v_lshlrev_b32 v1, 4, v1
    v_bfe_u32 v2, v0, 4, 1
    v_lshl_or_b32 v1, v2, 9, v1
    v_lshrrev_b32 v2, 5, v0
    v_lshl_or_b32 v1, v2, 8, v1
    """)
    for i in range(4):
        t, f = i >> 1, i & 1
        a = ACC + 16*i
        sk = uid("ns")
        A(f"s_cbranch_scc0 {sk}")
        for j in range(16): A(f"v_mul_f32 v{a+j}, s60, v{a+j}")
        A(f"{sk}:")
        for j in range(8): A(f"v_cvt_pk_bf16_f32 v{a+j}, v{a+2*j}, v{a+2*j+1}")
        A(f"v_permlane16_swap_b32 v{a}, v{a+2}\nv_permlane16_swap_b32 v{a+1}, v{a+3}")
        A(f"v_permlane16_swap_b32 v{a+4}, v{a+6}\nv_permlane16_swap_b32 v{a+5}, v{a+7}")
        for g in range(2):
            A(f"buffer_store_dwordx4 {v(a+4*g,4)}, v1, s[12:15], s{58+t} offen offset:{f*2048+g*1024} sc1")
    A(f"s_branch L_g_pub")
    A.label("L_g_gate")
    srd(A, 4, P_GW, 1152)
    A(f"""
    {rot_code(128)}
    s_lshl_b32 s51, s53, 11
    s_add_u32 s51, s51, {L_GW}
    s_mov_b32 m0, s51
    v_lshlrev_b32 v1, 4, v0
    buffer_load_dwordx4 v1, s[4:7], 0 offen lds
    buffer_load_dwordx4 v1, s[4:7], 0 offen offset:1024 lds
    v_lshl_add_u32 v{AW+1}, v2, 4, s51
    s_waitcnt vmcnt(0)
    L_gt_loop:
    """)
    for ks in range(4):
        kn = (ks+2) & 3; b = FR + 16*ks; bn = FR + 16*kn
        A(f"s_waitcnt lgkmcnt(3)\nv_mfma_f32_32x32x16_bf16 {v(ACC,16)}, {v(b+8,4)}, {v(b,4)}, {v(ACC,16)}")
        if ks == 2: A("s_cbranch_scc1 L_gt_nb\ns_barrier\nL_gt_nb:")
        reads(kn, 0)
        A(f"ds_read_b128 {v(bn+8,4)}, v{AW} offset:{32*kn}")
        A(f"v_mfma_f32_32x32x16_bf16 {v(ACC+16,16)}, {v(b+8,4)}, {v(b+4,4)}, {v(ACC+16,16)}")
        A(f"v_xor_b32 v{AX+kn}, s{63 if ks < 2 else 64}, v{AX+kn}")
        if ks == 1: A(f"v_add_u32 v{AW}, s50, v{AW+1}\ns_add_u32 s50, s50, 128\ns_cmp_eq_u32 s50, 1152\ns_cselect_b32 s50, 0, s50\ns_cmp_eq_u32 s62, 9")
        if ks == 3: A("s_mov_b32 s63, s64\ns_xor_b32 s64, s64, 0x10000\ns_add_u32 s62, s62, 1\ns_cmp_lt_u32 s62, 10")
    Z = ACC
    A(f"""
    s_cbranch_scc1 L_gt_loop
    s_lshl_b32 s52, s56, 9
    s_add_u32 s52, s52, {G_OFF}
    v_lshlrev_b32 v1, 3, v0
    s_nop 3
    s_mov_b32 exec_lo, 0
    v_mov_b32 v{Z}, v{Z+16}
    s_mov_b32 exec_lo, -1
    v_cvt_pk_bf16_f32 v{Z}, v{Z}, v{Z}
    v_and_b32 v{Z}, 0xffff0000, v{Z}
    v_mul_f32 v{Z}, {f32(-LOG2E)}, v{Z}
    v_exp_f32 v{Z}, v{Z}
    s_nop 0
    v_add_f32 v{Z}, 1.0, v{Z}
    v_rcp_f32 v{Z}, v{Z}
    s_nop 0
    v_cvt_pk_bf16_f32 v{Z}, v{Z}, v{Z}
    v_and_b32 v{Z}, 0xffff0000, v{Z}
    v_sub_f32 v{Z+1}, 1.0, v{Z}
    v_cvt_pk_bf16_f32 v{Z+1}, v{Z+1}, v{Z+1}
    v_and_b32 v{Z+1}, 0xffff0000, v{Z+1}
    buffer_store_dwordx2 {v(Z,2)}, v1, s[12:15], s52 offen sc1
    s_branch L_g_pub
    """)
    A.label("L_g_vtype")
    main(True)
    A(f"""
    s_mul_i32 s58, s56, {2*VT_TT}
    s_lshl_b32 s59, s57, 10
    s_add_u32 s58, s58, s59
    s_add_u32 s58, s58, {VT_OFF - 18*1024}
    s_add_u32 s59, s58, {2*VT_ROW}
    s_add_u32 s60, s58, {VT_TT}
    s_add_u32 s61, s59, {VT_TT}
    v_lshrrev_b32 v2, 5, v0
    v_mul_u32_u24 v2, {VT_ROW}, v2
    v_and_b32 v1, 31, v0
    v_lshl_add_u32 v1, v1, 4, v2
    s_nop 1
    """)
    for i in range(4):
        t, f = i >> 1, i & 1
        a = ACC + 16*i
        if i == 1: A("s_nop 1")
        for j in range(8): A(f"v_cvt_pk_bf16_f32 v{a+j}, v{a+2*j}, v{a+2*j+1}")
        for m in range(2):
            A(f"buffer_store_dwordx4 {v(a+4*m,4)}, v1, s[12:15], s{58+2*t+m} offen offset:{f*512} sc1")
    A.label("L_g_pub")
    A(f"""
    s_lshl_b32 s58, s57, 5
    s_add_u32 s58, s58, s56
    s_mul_i32 s58, s58, {FS}
    s_add_u32 s58, s58, {FQ_OFF}
    v_mov_b32 v{PT+2}, s{NONCE}
    v_mov_b32 v{PT+3}, 0
    """)
    stamp(A, 1)
    A("s_waitcnt vmcnt(0)")
    stamp(A, 2)
    A(f"""
    v_mov_b32 v{PT}, 1
    s_mov_b64 exec, 1
    buffer_store_dword v{PT+2}, v{PT+3}, s[12:15], s58 offen sc1
    ds_add_u32 v{VFL}, v{PT} offset:{F_STD}
    s_mov_b64 exec, -1
    s_waitcnt lgkmcnt(0)
    s_branch {done_label}
    """)

NROW = [[0,1,2,3,4,5,6,7, 14,15,16,16, 20,21,22,23], [9,9,10,11,11,11,12,13, 17,18,19,19, 24,25,26,27]]
def kg_rowaddr(side, n):
    a = side*128 + n*KG_ROW
    if side == 1 and n >= 30: a -= 2*KG_ROW + 128
    return a
def kgen_table():
    T = []
    for lane in range(64):
        i = lane & 31; hh = lane >> 5
        g, h2, ii = i >> 3, (i >> 2) & 1, i & 3
        n = NROW[h2][4*g + ii]
        ra = kg_rowaddr(0, n) + 16*hh
        b = 8*(i & 3) + (i >> 2)
        rb = kg_rowaddr(1, b) + 16*hh
        if b > 0: pb, ph = b-1, hh
        else: pb, ph = 31, 0
        pl = 32*ph + 4*(pb & 7) + (pb >> 3)
        so = (7 - (b & 7))*KC_ROW + (16 + (b >> 3))*32
        T += [ra, rb, pl*4, so]
    return T

KPTS = (0, 10, 21, 31)
KFIRST = int(os.environ.get('KFIRST', '31'))
KB7 = int(os.environ.get('KB7', '0'))
def kgen(A, pre):
    PR = 4
    VRL = 11; T = 12
    TB = 16; vDT, vDS = 20, 21
    C1R, C1I, C2R, C2I = 22, 23, 24, 25
    M = 40
    X = 50; U = 52
    AC = 46
    R = 62
    ptrs = [P_ARE, P_AIM, P_BRE, P_BIM, P_CRE, P_CIM]
    A(f"""
    s_getpc_b64 s[50:51]
    L_kg_pc:
    s_add_u32 s50, s50, kgen_tab-L_kg_pc
    s_addc_u32 s51, s51, 0
    v_and_b32 v1, 31, v0
    s_lshl_b32 s52, s48, 8
    s_lshl_b32 s53, s63, 7
    s_add_u32 s52, s52, s53
    v_lshl_add_u32 v2, v1, 2, s52
    s_lshl_b32 s52, s48, 1
    v_mov_b32 v10, s52
    v_lshlrev_b32 v{T}, 4, v0
    s_waitcnt lgkmcnt(0)
    global_load_ushort v{vDT}, v10, {s(P_LDT,2)}
    """)
    for i in range(6): A(f"global_load_dword v{PR+i}, v2, {s(ptrs[i],2)}")
    A(f"global_load_ushort v{vDS}, v10, {s(P_DSK,2)}\nglobal_load_dwordx4 {v(TB,4)}, v{T}, s[50:51]")
    A("s_cmp_lt_u32 s2, 224\ns_cbranch_scc1 L_kg_nb\ns_barrier\nL_kg_nb:")
    ws_setup(A)
    A(f"""
    v_mov_b32 v{C1R}, {f32(LOG2E)}
    v_mov_b32 v{C1I}, {f32(1/(2*math.pi))}
    v_mov_b32 v{C2R}, {f32(248*LOG2E)}
    v_mov_b32 v{C2I}, {f32(248/(2*math.pi))}
    s_mov_b32 exec_lo, 0
    v_mov_b32 v{C1R}, {f32(8*LOG2E)}
    v_mov_b32 v{C1I}, {f32(-8/(2*math.pi))}
    v_mov_b32 v{C2R}, v{C1R}
    v_mov_b32 v{C2I}, v{C1I}
    s_mov_b32 exec_lo, -1
    s_sub_u32 m0, s49, {KG_IB}
    v_lshrrev_b32 v27, 5, v0
    v_mul_u32_u24 v58, {KC_ROW}, v27
    v_lshl_add_u32 v1, v1, 4, v58
    v_add_u32 v1, s67, v1
    v_lshl_add_u32 v2, v0, 4, s49
    v_lshl_add_u32 v11, v0, 4, s64
    v_xor_b32 v26, 4, v3
    """)
    pre(A)
    get_nonce(A)
    A(f"""
    s_mov_b32 vcc_lo, 0xf0f0f0f0
    s_mov_b32 vcc_hi, 0xf0f0f0f0
    """)
    KP = [int(x) for x in os.environ.get("KP", "-1,5,17,29,32,43,54").split(",")]
    if -1 in KP: gb(A)
    A(f"""
    s_waitcnt vmcnt(2)
    v_lshlrev_b32 v{vDT}, 16, v{vDT}
    v_mul_f32 v{vDT}, {f32(LOG2E)}, v{vDT}
    v_exp_f32 v{vDT}, v{vDT}
    s_nop 0
    v_cvt_pk_bf16_f32 v{vDT}, v{vDT}, v{vDT}
    v_and_b32 v{vDT}, 0xffff0000, v{vDT}
    """)
    stamp(A, 1)
    Mx = lambda j: M + 2*j
    mult = [0]*8 + [4] + [1]*4 + [4] + [2]*2 + [4] + [2]*2 + [4, 3, 4, 3, 4, 3, 4, 3] + [3]*4
    KP = [int(x) for x in os.environ.get("KP", "-1,5,17,29,32,43,54").split(",")]
    for tr in range(2):
        for i in range(6): A(f"v_and_b32 v{U+i}, 0xffff0000, v{PR+i}" if tr else f"v_lshlrev_b32 v{U+i}, 16, v{PR+i}")
        A(f"""
        v_mul_f32 v{U}, v{vDT}, v{U}
        v_mul_f32 v{U+1}, v{vDT}, v{U+1}
        v_mul_f32 v{T}, v{C1R}, v{U}
        v_mul_f32 v{T+1}, v{C1I}, v{U+1}
        v_mul_f32 v{T+2}, v{C2R}, v{U}
        v_mul_f32 v{T+3}, v{C2I}, v{U+1}
        v_fract_f32 v{T+1}, v{T+1}
        v_fract_f32 v{T+3}, v{T+3}
        v_exp_f32 v{T}, v{T}
        v_cos_f32 v{Mx(0)}, v{T+1}
        v_sin_f32 v{Mx(0)+1}, v{T+1}
        v_exp_f32 v{T+2}, v{T+2}
        v_cos_f32 v{Mx(4)}, v{T+3}
        v_sin_f32 v{Mx(4)+1}, v{T+3}
        v_mul_f32 v{U+2}, v{vDT}, v{U+2}
        v_mul_f32 v{U+3}, v{vDT}, v{U+3}
        v_mul_f32 v{X}, v{U+3}, v{U+5}
        v_mul_f32 v{X+1}, v{U+3}, v{U+4}
        v_fmac_f32 v{X+1}, v{U+2}, v{U+5}
        v_fma_f32 v{X}, v{U+2}, v{U+4}, -v{X}
        v_mul_f32 v{Mx(0)}, v{T}, v{Mx(0)}
        v_mul_f32 v{Mx(0)+1}, v{T}, v{Mx(0)+1}
        v_mul_f32 v{Mx(4)}, v{T+2}, v{Mx(4)}
        v_mul_f32 v{Mx(4)+1}, v{T+2}, v{Mx(4)+1}
        """)
        for j in (1, 2, 3):
            d, x = Mx(j), Mx(j-1)
            A(f"v_mul_f32 v{d}, v{x+1}, v{x+1}\nv_add_f32 v{d+1}, v{x}, v{x}\nv_mul_f32 v{d+1}, v{d+1}, v{x+1}\nv_fma_f32 v{d}, v{x}, v{x}, -v{d}")
        A("s_mov_b32 exec_lo, 0")
        for j in (1, 2, 3): A(f"v_mov_b32 v{Mx(j)}, v{Mx(0)}\nv_mov_b32 v{Mx(j)+1}, v{Mx(0)+1}")
        A(f"v_mov_b32 v{X}, 1.0\nv_mov_b32 v{X+1}, 0\ns_mov_b32 exec_lo, -1")
        for n in range(32):
            A(f"v_cvt_pk_bf16_f32 v{R+32*tr+n}, v{X}, v{X+1}")
            if n < 31:
                m = Mx(mult[n])
                A(f"v_mul_f32 v{T}, v{X+1}, v{m+1}\nv_mul_f32 v{X+1}, v{X+1}, v{m}\nv_fmac_f32 v{X+1}, v{X}, v{m+1}\nv_fma_f32 v{X}, v{X}, v{m}, -v{T}")
            if 32*tr + n in KP: gb(A)
    A("s_waitcnt vmcnt(0)")
    stamp(A, 2)
    O = AC; PV = 12; P3 = 13; P4 = 14; D = R; Z = 4
    A(f"""
    v_add_u32 v{TB}, s49, v{TB}
    v_add_u32 v{TB+1}, s49, v{TB+1}
    v_lshlrev_b32 v{vDS}, 16, v{vDS}
    v_mov_b32 v{Z}, 0
    v_mov_b32 v{Z+1}, 0
    v_mov_b32 v{Z+2}, 0
    v_mov_b32 v{Z+3}, 0
    v_add_u32 v{TB+3}, s67, v{TB+3}
    v_lshl_add_u32 v9, v27, 7, v{TB+3}
    v_lshl_add_u32 v10, v27, 8, v{TB+3}
    """)
    gb(A, 9 - len(KP))
    if os.environ.get("KPRIO", "1") == "0": A("s_setprio 1")
    stamp(A, 3)
    for p in range(2):
        r = R + 32*p
        for n in range(32):
            if n == 28: A("s_mov_b32 exec_lo, 0")
            A(f"ds_write_addtid_b32 v{r+n} offset:{KG_IB + kg_rowaddr(1, n) - 128}")
        A("s_mov_b32 exec_lo, -1")
        if FINE: stamp(A, 1 if p == 0 else 2)
        if os.environ.get("KPRIO", "1") == str(p+1): A("s_setprio 1")
        for q in range(4): A(f"ds_read_b128 {v(r+8*q,4)}, v{TB} offset:{32*q}\nds_read_b128 {v(r+8*q+4,4)}, v{TB+1} offset:{32*q}")
    if FINE: stamp(A, 4)
    A("s_waitcnt lgkmcnt(15)")
    for q in range(4): A(f"v_mfma_f32_32x32x16_bf16 {v(AC,16)}, {v(R+8*q,4)}, {v(R+8*q+4,4)}, {'0' if q == 0 else v(AC,16)}")
    for q in range(4):
        A(f"s_waitcnt lgkmcnt({6-2*q})")
        A(f"v_mfma_f32_32x32x16_bf16 {v(AC,16)}, {v(R+32+8*q,4)}, {v(R+32+8*q+4,4)}, {v(AC,16)}")
    if FINE: stamp(A, 6)
    def pack(o, pv, areg, off, d):
        c0 = [o[6], o[5], o[4], o[3], o[2], o[1], o[0], pv]
        c1 = [o[7], o[6], o[5], o[4], o[3], o[2], o[1], o[0]]
        for j in range(4): A(f"v_cvt_pk_bf16_f32 v{d+4+j}, v{c1[2*j]}, v{c1[2*j+1]}")
        for j in range(4):
            if pv == PV and j == 3: A(f"s_waitcnt lgkmcnt(2)\ns_mov_b64 exec, 1\nv_mov_b32 v{PV}, 0\ns_mov_b64 exec, -1")
            A(f"v_cvt_pk_bf16_f32 v{d+j}, v{c0[2*j]}, v{c0[2*j+1]}")
        A(f"ds_write_b128 v{areg}, {v(d,4)} offset:{off}\nds_write_b128 v{areg}, {v(d+4,4)} offset:{off+16}")
    def xchg(send, ns, keep, nk):
        for i in range(ns): A(f"ds_write_b128 v2, {v(AC+send+4*i,4)} offset:{1024*i}")
        lset(A, 3, F_KP, 1, 12)
        if nk == 1:
            for i in range(4): A(f"ds_write_b128 v1, {v(Z,4)} offset:{2*KC_ROW*i}")
        l = uid("kx"); e = uid("ke")
        A(f"s_mov_b32 s{CAP}, 0x100000\n{l}:\nds_read_b32 v12, v26 offset:{F_KP}")
        for i in range(nk): A(f"ds_read_b128 {v(R+32+4*i,4)}, v11 offset:{1024*i}")
        A(f"s_sub_u32 s{CAP}, s{CAP}, 1\ns_cbranch_scc1 {e}\ns_waitcnt lgkmcnt({nk})\nv_readfirstlane_b32 s69, v12\ns_cmp_eq_u32 s69, 0\ns_cbranch_scc1 {l}\n{e}:\ns_waitcnt lgkmcnt(0)")
        if FINE: stamp(A, 7)
    add = lambda r, keep: A(f"v_add_f32 v{AC+r}, v{AC+r}, v{R+32+r-keep}")
    A("s_cmp_eq_u32 s63, 0\ns_cbranch_scc1 L_kg_h0\ns_nop 9")
    xchg(0, 3, 12, 1)
    for r in range(12, 16): add(r, 12)
    A(f"v_cndmask_b32 v{P3}, v{O+12}, v{O+13}, vcc\nv_cndmask_b32 v{P4}, v{O+14}, v{O+15}, vcc")
    pack([O+12]*4 + [P3] + [O+13]*3, O+12, 10, 16*32, D)
    pack([O+14]*4 + [P4] + [O+15]*3, O+14, 10, 20*32, D+8)
    A("s_branch L_kg_end\nL_kg_h0:\ns_nop 9")
    xchg(12, 1, 0, 3)
    add(7, 0)
    A(f"ds_bpermute_b32 v{PV}, v{TB+2}, v{O+7}")
    for r in (8, 9, 10): add(r, 0)
    pack([O+8]*3 + [O+9]*3 + [O+10]*2, O+8, 9, 8*32, D+8)
    for r in range(7): add(r, 0)
    A(f"s_mov_b64 exec, 1\nv_add_f32 v{O}, v{O}, v{vDS}\ns_mov_b64 exec, -1")
    pack([O+i for i in range(8)], PV, 9, 0, D)
    A("L_kg_end:")
    if FINE: stamp(A, 8)
    lset(A, 3, F_KRDY, 4, 15)

TRS = os.environ.get("TRS", "b")
def trans_u(A):
    A(f"""
    s_mul_i32 s52, s50, {64*1152}
    s_lshl_b32 s53, s51, 7
    s_add_u32 s53, s52, s53
    v_lshrrev_b32 v1, 3, v0
    v_mul_u32_u24 v2, 1152, v1
    v_bfe_u32 v3, v0, 4, 1
    v_lshlrev_b32 v3, 2, v3
    v_and_b32 v4, 7, v0
    v_xor_b32 v3, v3, v4
    v_lshl_add_u32 v2, v3, 4, v2
    s_mov_b32 m0, s49
    s_waitcnt lgkmcnt(0)
    """)
    srd(A, 4, P_U, 2048*1152)
    for n in range(8):
        if n: A("s_add_u32 m0, m0, 1024\ns_add_u32 s53, s53, 9216")
        A(f"buffer_load_dwordx4 v2, s[4:7], s53 offen lds")
    ws_setup(A)
    A(f"""
    v_bfe_u32 v3, v0, 2, 2
    v_and_b32 v5, 1, v0
    v_lshl_add_u32 v3, v5, 5, v3
    v_lshlrev_b32 v3, 7, v3
    v_and_b32 v5, 0x30, v0
    v_add_u32 v3, v3, v5
    v_bfe_u32 v5, v0, 1, 1
    v_lshl_add_u32 v3, v5, 3, v3
    v_bfe_u32 v5, v0, 3, 1
    v_lshl_add_u32 v3, v5, 6, v3
    v_add_u32 v5, s49, v3
    v_xor_b32 v6, 64, v5
    v_mul_u32_u24 v2, {4*UT_ROW}, v1
    v_lshl_add_u32 v2, v4, 4, v2
    s_mul_i32 s52, s51, {64*UT_ROW}
    s_add_u32 s52, s52, {UT_OFF}
    s_lshl_b32 s54, s51, 5
    s_add_u32 s54, s54, s50
    s_mul_i32 s54, s54, {FS}
    s_add_u32 s54, s54, {FU_OFF}
    s_lshl_b32 s53, s50, 7
    s_add_u32 s55, s52, s53
    s_mov_b32 s56, 0
    """)
    B0, B1 = 8, 40
    get_nonce(A)
    A("L_tu_loop:")
    for G in range(8):
        for t in range(2): A(f"ds_read_b64_tr_b16 {v(B0+4*G+2*t,2)}, v{5+(G>>2)} offset:{(8*(G&3)+4*t)*128}")
    def stage(src, dst, bit, qp, m0):
        for sel in range(2):
            m = m0 if sel == 0 else (~m0 & 0xffffffff)
            A(f"s_mov_b32 vcc_lo, {hex(m)}\ns_mov_b32 vcc_hi, {hex(m)}")
            for G in range(8):
                if ((G >> bit) & 1) != sel: continue
                for k in range(4):
                    A(f"v_cndmask_b32_dpp v{dst+4*G+k}, v{src+4*(G^(1<<bit))+k}, v{src+4*G+k}, vcc quad_perm:{qp} row_mask:0xf bank_mask:0xf")
    A("s_waitcnt lgkmcnt(0)")
    stage(B0, B1, 0, "[1,0,3,2]", 0x55555555)
    stage(B1, B0, 1, "[2,3,0,1]", 0x33333333)
    A("s_cmp_lg_u32 s56, 0\ns_cbranch_scc1 L_tu_st\ns_mov_b32 s56, 1")
    if TRS == "b": A("s_barrier")
    A("s_waitcnt vmcnt(0)")
    stamp(A, 1)
    A("s_branch L_tu_loop\nL_tu_st:")
    A("s_barrier")
    for G in range(8):
        if TRS == "c" and G == 4: A("s_barrier")
        A(f"s_add_u32 s53, s55, {(32*(G>>2)+(G&3))*UT_ROW}")
        A(f"buffer_store_dwordx4 {v(B0+4*G,4)}, v2, s[12:15], s53 offen sc1")
    A("s_barrier\n"*(3 if TRS == "a" else 2))
    A("s_waitcnt vmcnt(0)")
    gflag(A, "s54", 72)
    stamp(A, 2)

def trans_wo(A):
    L = 20
    srd(A, 4, P_WO, 576*1152)
    A(f"""
    s_and_b32 s50, s2, 7
    s_lshr_b32 s51, s2, 3
    s_mul_i32 s52, s50, {72*1152}
    s_lshl_b32 s53, s51, 6
    s_add_u32 s52, s52, s53
    v_and_b32 v1, 3, v0
    v_bfe_u32 v2, v0, 2, 1
    v_lshl_or_b32 v1, v2, 4, v1
    v_bfe_u32 v2, v0, 3, 2
    v_lshl_or_b32 v1, v2, 2, v1
    v_lshlrev_b32 v1, 1, v1
    v_lshrrev_b32 v2, 5, v0
    v_mul_u32_u24 v2, {4*1152}, v2
    v_add_u32 v2, v2, v1
    """)
    for h in range(4):
        for t in range(2):
            A(f"s_add_u32 s53, s52, {(18*h+8*t)*1152}")
            for r in range(4): A(f"buffer_load_ushort v{L+8*h+4*t+r}, v2, s[4:7], s53 offen offset:{r*1152}")
        A(f"s_add_u32 s53, s52, {(18*h+16)*1152}")
        for r in range(2): A(f"buffer_load_ushort v{L+32+2*h+r}, v1, s[4:7], s53 offen offset:{r*1152}")
    A(f"""
    v_lshlrev_b32 v2, 4, v0
    s_mul_i32 s52, s50, {4*18*1024}
    s_lshl_b32 s53, s51, 10
    s_add_u32 s53, s53, {WOT_OFF}
    s_add_u32 s52, s52, s53
    s_lshr_b32 s54, s50, 1
    s_add_u32 s54, s54, 32
    s_mul_i32 s54, s54, {18*1024}
    s_add_u32 s54, s54, s53
    s_and_b32 s55, s50, 1
    s_lshl_b32 s55, s55, 9
    s_add_u32 s54, s54, s55
    s_waitcnt vmcnt(0)
    """)
    for k in range(20): A(f"v_lshl_or_b32 v{L+k}, v{L+2*k+1}, 16, v{L+2*k}")
    for h in range(4):
        A(f"buffer_store_dwordx4 {v(L+4*h,4)}, v2, s[12:15], s52 offen sc1")
        if h < 3: A(f"s_add_u32 s52, s52, {18*1024}")
    A(f"""
    s_mov_b32 exec_hi, 0
    buffer_store_dwordx4 {v(L+16,4)}, v2, s[12:15], s54 offen sc1
    s_mov_b32 exec_hi, -1
    s_mul_i32 s54, s2, {FS}
    s_add_u32 s54, s54, {FW_OFF}
    s_waitcnt vmcnt(0)
    """)
    gflag(A, "s54", 4)
```

```python
import math
from asmlib import *
from lay2 import *
LOG2E = 1.4426950408889634
QSCALE = LOG2E / math.sqrt(18.0)
FINE = int(os.environ.get("FINE", "0"))
if FINE:
    _st = stamp
    import asmlib
PFF = os.environ.get("PFF", "")
LSL = int(os.environ.get("LSL", "0"))
NOKG = os.environ.get("NOKG")
NOTR = os.environ.get("NOTR")
NONCE = 70
CAP = 71
_uid = [0]
def uid(p):
    _uid[0] += 1
    return f"L_{p}{_uid[0]}"

def ws_setup(A):
    srd(A, 12, P_WS, WS_USED)
    A(f"s_add_u32 s100, s{P_WS}, {EP_OFF}\ns_addc_u32 s101, s{P_WS+1}, 0\ns_load_dword s{NONCE}, s[100:101], 0")
def get_nonce(A):
    A(f"s_waitcnt lgkmcnt(0)\ns_mul_i32 s{NONCE}, s{NONCE}, 0x9e3779b1\ns_add_u32 s{NONCE}, s{NONCE}, 0x7f4a7c15")
def gpoll(A, voffs, vt, soff="0", sleep=2):
    l = uid("gp"); e = uid("ge")
    A(f"s_mov_b32 s{CAP}, 0x40000\n{l}:")
    for i, vo in enumerate(voffs): A(f"buffer_load_dword v{vt+i}, v{vo}, s[12:15], {soff} offen sc1")
    A(f"s_sub_u32 s{CAP}, s{CAP}, 1\ns_cbranch_scc1 {e}\ns_waitcnt vmcnt(0)")
    for i in range(len(voffs)): A(f"v_xor_b32 v{vt+i}, s{NONCE}, v{vt+i}")
    for i in range(1, len(voffs)): A(f"v_or_b32 v{vt}, v{vt}, v{vt+i}")
    A(f"v_cmp_ne_u32 vcc, 0, v{vt}\ns_cbranch_vccz {e}\n{('s_sleep %d' % sleep) if sleep else ''}\ns_branch {l}\n{e}:")
def gflag(A, soff, vt):
    A(f"""
    v_mov_b32 v{vt}, s{NONCE}
    v_mov_b32 v{vt+1}, 0
    s_mov_b64 exec, 1
    buffer_store_dword v{vt}, v{vt+1}, s[12:15], {soff} offen sc1
    s_mov_b64 exec, -1
    """)
def lpoll(A, va, off, n, val, vt, st=69, sleep=1):
    l = uid("lp"); e = uid("le")
    if sleep and os.environ.get("BIGSL"): sleep = 40
    op = {1: "ds_read_b32", 2: "ds_read_b64", 4: "ds_read_b128"}[n]
    A(f"s_mov_b32 s{CAP}, 0x100000\n{l}:\n{op} {v(vt,n)}, v{va} offset:{off}\ns_sub_u32 s{CAP}, s{CAP}, 1\ns_cbranch_scc1 {e}\ns_waitcnt lgkmcnt(0)")
    if n == 2: A(f"v_min_u32 v{vt}, v{vt}, v{vt+1}\ns_nop 0")
    if n == 4: A(f"v_min3_u32 v{vt}, v{vt}, v{vt+1}, v{vt+2}\nv_min_u32 v{vt}, v{vt}, v{vt+3}\ns_nop 0")
    A(f"v_readfirstlane_b32 s{st}, v{vt}\ns_cmp_ge_u32 s{st}, {val}\ns_cbranch_scc1 {e}\n{('s_sleep %d' % sleep) if sleep else ''}\ns_branch {l}\n{e}:")
def lset(A, va, off, val, vt):
    A(f"v_mov_b32 v{vt}, {val}\ns_mov_b64 exec, 1\nds_write_b32 v{va}, v{vt} offset:{off}\ns_mov_b64 exec, -1")

def acc_t(A, slot):
    if FINE and DIAG:
        A(f"s_memtime s[58:59]\ns_waitcnt lgkmcnt(0)\ns_sub_u32 s61, s58, s60\ns_mov_b32 s60, s58")
        if slot is not None: A(f"s_add_u32 s{72+2*slot}, s{72+2*slot}, s61")
def gb(A, n=1):
    sk = uid("gb")
    A(f"s_cmp_ge_u32 s2, 224\ns_cbranch_scc1 {sk}\n" + "s_barrier\n"*n + f"{sk}:")
def rgcg(A):
    A(f"""
    s_and_b32 s53, s2, 7
    s_lshr_b32 s54, s2, 3
    s_lshr_b32 s55, s53, 1
    s_lshl_b32 s55, s55, 2
    s_and_b32 s56, s54, 3
    s_add_u32 s48, s55, s56
    s_and_b32 s53, s53, 1
    s_mul_i32 s53, s53, 7
    s_lshr_b32 s54, s54, 2
    s_add_u32 s49, s53, s54
    """)

LA = int(os.environ.get('LA', '2'))
ROT = int(os.environ.get("ROT", "2"))
def rot_code(cs):
    if ROT == 0: return "s_mov_b32 s50, 0"
    if ROT == 1:
        return f"""s_bfe_u32 s50, s2, 0x20003
    s_lshr_b32 s51, s2, 5
    s_add_u32 s50, s50, s51
    s_lshl_b32 s50, s50, 1
    s_cmp_ge_u32 s50, 9
    s_cselect_b32 s51, 9, 0
    s_sub_u32 s50, s50, s51
    s_cmp_ge_u32 s50, 9
    s_cselect_b32 s51, 9, 0
    s_sub_u32 s50, s50, s51
    s_mul_i32 s50, s50, {cs}"""
    if ROT == 2:
        return f"""s_and_b32 s50, s2, 7
    s_lshr_b32 s51, s50, 1
    s_lshl_b32 s51, s51, 1
    s_and_b32 s50, s50, 1
    s_mul_i32 s50, s50, 4
    s_add_u32 s50, s50, s51
    s_cmp_ge_u32 s50, 9
    s_cselect_b32 s51, 9, 0
    s_sub_u32 s50, s50, s51
    s_mul_i32 s50, s50, {cs}"""
    if ROT == 4:
        return f"""s_bfe_u32 s50, s2, 0x10003
    s_bfe_u32 s51, s2, 0x10005
    s_xor_b32 s50, s50, s51
    s_lshl_b32 s50, s50, 1
    s_bfe_u32 s51, s2, 0x10001
    s_xor_b32 s51, s51, s2
    s_and_b32 s51, s51, 1
    s_add_u32 s50, s50, s51
    s_mul_i32 s50, s50, {2*cs}"""
    if ROT == 5:
        return f"""s_bfe_u32 s50, s2, 0x20003
    s_lshr_b32 s51, s2, 5
    s_add_u32 s50, s50, s51
    s_mul_i32 s51, s50, 86
    s_lshr_b32 s51, s51, 8
    s_mul_i32 s51, s51, 3
    s_sub_u32 s50, s50, s51
    s_mul_i32 s50, s50, {3*cs}"""
    if ROT == 6:
        return f"""s_bfe_u32 s50, s2, 0x10003
    s_bfe_u32 s51, s2, 0x10005
    s_xor_b32 s50, s50, s51
    s_mul_i32 s50, s50, {2*cs}"""
    if ROT == 3:
        return f"""s_bfe_u32 s50, s2, 0x10003
    s_bfe_u32 s51, s2, 0x10005
    s_xor_b32 s50, s50, s51
    s_mul_i32 s50, s50, {4*cs}"""
def gemm_loader(A, isx):
    VD = 4; VF = 8; VT = 10
    rgcg(A)
    if isx:
        A(f"""
        s_lshl_b32 s53, s48, 7
        v_lshrrev_b32 v1, 3, v0
        v_add_u32 v1, s53, v1
        v_mul_u32_u24 v1, 1152, v1
        v_lshrrev_b32 v2, 4, v0
        v_and_b32 v3, 7, v0
        v_xor_b32 v3, v3, v2
        v_lshl_add_u32 v{VD}, v3, 4, v1
        v_xor_b32 v3, 4, v3
        v_lshl_add_u32 v{VD+1}, v3, 4, v1
        v_add_u32 v{VD+1}, 8192, v{VD+1}
        v_add_u32 v{VD+2}, 16384, v{VD}
        v_add_u32 v{VD+3}, 16384, v{VD+1}
        """)
    else:
        A(f"""
        v_lshrrev_b32 v2, 4, v0
        v_mul_u32_u24 v1, 3456, v2
        v_and_b32 v3, 15, v0
        v_lshlrev_b32 v2, 2, v2
        v_xor_b32 v3, v3, v2
        v_lshl_add_u32 v1, v3, 4, v1
        s_lshl_b32 s53, s49, 8
        v_add_u32 v{VD}, s53, v1
        v_add_u32 v{VD+1}, 12800, v{VD}
        v_add_u32 v{VD+2}, 25600, v{VD}
        v_add_u32 v{VD+3}, 38400, v{VD}
        """)
    cs, gs = (128, 32*1152) if isx else (64*3456, 16*3456)
    lp = uid("ld")
    A(f"""
    {rot_code(cs)}
    s_mov_b32 s51, {0 if isx else 16384}
    s_mov_b32 s52, 0x18000
    s_mov_b32 s53, 0
    s_waitcnt lgkmcnt(0)
    """)
    if isx: srd(A, 4, P_U, 2048*1152)
    else: srd(A, 4, P_WQKV, 576*3456)
    stamp(A, 1)
    acc_t(A, None)
    A(f"{lp}:\ns_mov_b32 m0, s51\ns_add_u32 s54, s50, {gs}")
    for g in range(4):
        so = (50, 54, 55, 56)[g]
        for n in range(4): A(f"buffer_load_dwordx4 v{VD+n}, s[4:7], s{so} offen offset:{1024*n} lds")
        if g < 3: A(f"s_add_u32 m0, s51, {4096*(g+1)}")
        if g < 2: A(f"s_add_u32 s{(55, 56)[g]}, s50, {gs*(g+2)}")
        elif g == 2: A(f"s_add_u32 s50, s50, {cs}" + (f"\ns_cmp_eq_u32 s50, {9*cs}\ns_cselect_b32 s50, 0, s50" if ROT else ""))
    acc_t(A, 4)
    A(f"""
    s_xor_b32 s51, s51, s52
    s_xor_b32 s52, s52, 0x10000
    s_add_u32 s53, s53, 1
    s_cmp_lt_u32 s53, {LA}
    s_cbranch_scc1 {lp}
    s_waitcnt vmcnt({16*(LA-1)})
    """)
    acc_t(A, 5)
    A("s_barrier")
    acc_t(A, 6)
    A(f"s_cmp_lt_u32 s53, 9\ns_cbranch_scc1 {lp}")
    ws_setup(A)
    if LA == 3: A("s_waitcnt vmcnt(16)\ns_barrier")
    A("s_waitcnt vmcnt(0)\ns_barrier")
    get_nonce(A)
    stamp(A, 3)

def gemm_compute(A, done_label):
    AX, AW = 4, 8
    VFL, VDN, PT = 10, 11, 12
    FR = 16
    ACC = 80
    rgcg(A)
    A(f"""
    s_and_b32 s53, s3, 1
    s_lshr_b32 s54, s3, 1
    s_lshl_b32 s55, s53, 13
    v_and_b32 v1, 31, v0
    v_lshlrev_b32 v1, 7, v1
    v_add_u32 v1, s55, v1
    v_lshrrev_b32 v2, 5, v0
    v_bfe_u32 v3, v0, 1, 3
    v_xor_b32 v3, v3, v2
    v_lshl_add_u32 v{AX}, v3, 4, v1
    v_xor_b32 v{AX+1}, 32, v{AX}
    v_xor_b32 v{AX+2}, 0x40040, v{AX}
    v_xor_b32 v{AX+3}, 0x40060, v{AX}
    v_bfe_u32 v1, v0, 2, 2
    v_lshl_add_u32 v3, v2, 3, v1
    v_lshlrev_b32 v3, 8, v3
    s_lshl_b32 s55, s54, 1
    v_xor_b32 v1, s55, v1
    v_lshl_add_u32 v3, v1, 6, v3
    v_bfe_u32 v1, v0, 4, 1
    v_lshl_add_u32 v3, v1, 5, v3
    v_and_b32 v1, 3, v0
    v_lshl_add_u32 v3, v1, 3, v3
    v_add_u32 v{AW}, 0x44000, v3
    v_xor_b32 v{AW+1}, 64, v{AW}
    v_mov_b32 v{VFL}, {L_FL}
    s_lshl_b32 s56, s48, 1
    s_add_u32 s56, s56, s53
    s_lshl_b32 s57, s49, 1
    s_add_u32 s57, s57, s54
    s_waitcnt lgkmcnt(0)
    """)
    ws_setup(A); get_nonce(A)
    for i in range(32): A(f"v_mov_b32 v{FR+i}, 0")
    for i in range(64): A(f"v_mov_b32 v{ACC+i}, 0")
    A("s_setprio 2\ns_mov_b32 s62, 0\ns_mov_b32 s63, 0x40000\ns_mov_b32 s64, 0x18000")
    def reads(ks, part):
        b = FR + 16*ks
        if part == 0:
            for t in range(2): A(f"ds_read_b128 {v(b+4*t,4)}, v{AX+ks} offset:{4096*t}")
        else:
            f = part - 1
            for t in range(2): A(f"ds_read_b64_tr_b16 {v(b+8+4*f+2*t,2)}, v{AW+f} offset:{ks*4096+t*1024}")
    def mf(ks, i, vtype):
        b = FR + 16*ks
        t, f = i >> 1, i & 1
        d = v(ACC+16*i, 16); x = v(b+4*t, 4); w = v(b+8+4*f, 4)
        if "m" in os.environ.get("GX", ""): A("s_nop 0"); return
        A(f"v_mfma_f32_32x32x16_bf16 {d}, {x if vtype else w}, {w if vtype else x}, {d}")
    def main(vtype):
        lp = uid("gm"); nb = uid("gnb")
        A.raw(".p2align 6")
        A.label(lp)
        for ks in range(4):
            A(f"s_waitcnt lgkmcnt(6)")
            mf(ks, 0, vtype)
            if ks == 2:
                A(f"s_cbranch_scc1 {nb}")
                if LA == 3: A("s_waitcnt lgkmcnt(0)")
                if FINE and DIAG: A("s_memtime s[58:59]")
                A("s_barrier")
                if FINE and DIAG: A("s_memtime s[60:61]\ns_waitcnt lgkmcnt(0)\ns_sub_u32 s60, s60, s58\ns_add_u32 s86, s86, s60")
                if DIAG and os.environ.get("CS"):
                    sk = uid("sk"); A(f"s_cmp_lg_u32 s62, 0\ns_cbranch_scc1 {sk}"); stamp(A, 1); A(f"{sk}:")
                A(f"{nb}:")
            kn = (ks+2) & 3
            reads(kn, 0)
            mf(ks, 1, vtype)
            reads(kn, 1)
            if ks == 3: A("s_add_u32 s62, s62, 1")
            mf(ks, 2, vtype)
            reads(kn, 2)
            if ks == 1: A("s_cmp_eq_u32 s62, 9")
            if ks == 3: A(f"v_xor_b32 v{AX+kn}, s64, v{AX+kn}\ns_mov_b32 s63, s64\ns_xor_b32 s64, s64, 0x10000\ns_cmp_lt_u32 s62, 10")
            mf(ks, 3, vtype)
            if ks < 3: A(f"v_xor_b32 v{AX+kn}, s{63 if ks < 2 else 64}, v{AX+kn}")
            if ks == 1: A(f"v_xor_b32 v{AW}, s63, v{AW}\nv_xor_b32 v{AW+1}, s63, v{AW+1}")
        A(f"s_cbranch_scc1 {lp}")
        A(f"s_setprio {os.environ.get('EP', '2')}")
        stamp(A, 4)
        if os.environ.get("LD"):
            sk = uid("ld")
            A(f"s_and_b32 s58, s48, 6\ns_cbranch_scc0 {sk}\ns_cmp_lt_u32 s57, 9\ns_cbranch_scc1 {sk}\ns_setprio 0")
            lpoll(A, VFL, F_KP if os.environ.get("LD") == "1" else F_KRDY, 4, 1, PT, sleep=1)
            A(f"s_setprio 2\n{sk}:")
    A(f"s_cmp_eq_u32 s57, 27\ns_cbranch_scc1 L_g_gate\ns_cmp_ge_u32 s49, 9\ns_cbranch_scc1 L_g_vtype")
    main(False)
    A(f"""
    s_mul_i32 s58, s56, {2*QKQ_TT}
    s_lshl_b32 s59, s57, 12
    s_add_u32 s58, s58, s59
    s_add_u32 s59, s58, {QKQ_TT}
    s_mov_b32 s60, {f32(QSCALE)}
    s_cmp_lt_u32 s57, 9
    s_mov_b32 s61, s60
    v_and_b32 v1, 15, v0
    v_lshlrev_b32 v1, 4, v1
    v_bfe_u32 v2, v0, 4, 1
    v_lshl_or_b32 v1, v2, 9, v1
    v_lshrrev_b32 v2, 5, v0
    v_lshl_or_b32 v1, v2, 8, v1
    """)
    for i in range(4):
        t, f = i >> 1, i & 1
        a = ACC + 16*i
        sk = uid("ns")
        A(f"s_cbranch_scc0 {sk}")
        if os.environ.get("PKQ", "1") == "1":
            for j in range(8): A(f"v_pk_mul_f32 {v(a+2*j,2)}, {v(a+2*j,2)}, s[60:61]")
        else:
            for j in range(16): A(f"v_mul_f32 v{a+j}, s60, v{a+j}")
        A(f"{sk}:")
        for j in range(8): A(f"v_cvt_pk_bf16_f32 v{a+j}, v{a+2*j}, v{a+2*j+1}")
        A(f"v_permlane16_swap_b32 v{a}, v{a+2}\nv_permlane16_swap_b32 v{a+1}, v{a+3}")
        A(f"v_permlane16_swap_b32 v{a+4}, v{a+6}\nv_permlane16_swap_b32 v{a+5}, v{a+7}")
        for g in range(2):
            A(f"buffer_store_dwordx4 {v(a+4*g,4)}, v1, s[12:15], s{58+t} offen offset:{f*2048+g*1024} sc1")
    A(f"s_branch L_g_pub")
    A.label("L_g_gate")
    srd(A, 4, P_GW, 1152)
    A(f"""
    {rot_code(128)}
    s_lshl_b32 s51, s53, 11
    s_add_u32 s51, s51, {L_GW}
    s_mov_b32 m0, s51
    v_lshlrev_b32 v1, 4, v0
    buffer_load_dwordx4 v1, s[4:7], 0 offen lds
    buffer_load_dwordx4 v1, s[4:7], 0 offen offset:1024 lds
    v_lshl_add_u32 v{AW+1}, v2, 4, s51
    s_waitcnt vmcnt(0)
    L_gt_loop:
    """)
    for ks in range(4):
        kn = (ks+2) & 3; b = FR + 16*ks; bn = FR + 16*kn
        A(f"s_waitcnt lgkmcnt(3)\nv_mfma_f32_32x32x16_bf16 {v(ACC,16)}, {v(b+8,4)}, {v(b,4)}, {v(ACC,16)}")
        if ks == 2: A("s_cbranch_scc1 L_gt_nb\ns_barrier\nL_gt_nb:")
        reads(kn, 0)
        A(f"ds_read_b128 {v(bn+8,4)}, v{AW} offset:{32*kn}")
        A(f"v_mfma_f32_32x32x16_bf16 {v(ACC+16,16)}, {v(b+8,4)}, {v(b+4,4)}, {v(ACC+16,16)}")
        A(f"v_xor_b32 v{AX+kn}, s{63 if ks < 2 else 64}, v{AX+kn}")
        if ks == 1: A(f"v_add_u32 v{AW}, s50, v{AW+1}\ns_add_u32 s50, s50, 128\ns_cmp_eq_u32 s50, 1152\ns_cselect_b32 s50, 0, s50\ns_cmp_eq_u32 s62, 9")
        if ks == 3: A("s_mov_b32 s63, s64\ns_xor_b32 s64, s64, 0x10000\ns_add_u32 s62, s62, 1\ns_cmp_lt_u32 s62, 10")
    Z = ACC
    A(f"""
    s_cbranch_scc1 L_gt_loop
    s_lshl_b32 s52, s56, 9
    s_add_u32 s52, s52, {G_OFF}
    v_lshlrev_b32 v1, 3, v0
    s_nop 3
    s_mov_b32 exec_lo, 0
    v_mov_b32 v{Z}, v{Z+16}
    s_mov_b32 exec_lo, -1
    v_cvt_pk_bf16_f32 v{Z}, v{Z}, v{Z}
    v_and_b32 v{Z}, 0xffff0000, v{Z}
    v_mul_f32 v{Z}, {f32(-LOG2E)}, v{Z}
    v_exp_f32 v{Z}, v{Z}
    s_nop 0
    v_add_f32 v{Z}, 1.0, v{Z}
    v_rcp_f32 v{Z}, v{Z}
    s_nop 0
    v_cvt_pk_bf16_f32 v{Z}, v{Z}, v{Z}
    v_and_b32 v{Z}, 0xffff0000, v{Z}
    v_sub_f32 v{Z+1}, 1.0, v{Z}
    v_cvt_pk_bf16_f32 v{Z+1}, v{Z+1}, v{Z+1}
    v_and_b32 v{Z+1}, 0xffff0000, v{Z+1}
    buffer_store_dwordx2 {v(Z,2)}, v1, s[12:15], s52 offen sc1
    s_branch L_g_pub
    """)
    A.label("L_g_vtype")
    main(True)
    A(f"""
    s_mul_i32 s58, s56, {2*VT_TT}
    s_lshl_b32 s59, s57, 10
    s_add_u32 s58, s58, s59
    s_add_u32 s58, s58, {VT_OFF - 18*1024}
    s_add_u32 s59, s58, {2*VT_ROW}
    s_add_u32 s60, s58, {VT_TT}
    s_add_u32 s61, s59, {VT_TT}
    v_lshrrev_b32 v2, 5, v0
    v_mul_u32_u24 v2, {VT_ROW}, v2
    v_and_b32 v1, 31, v0
    v_lshl_add_u32 v1, v1, 4, v2
    s_nop 1
    """)
    for i in range(4):
        t, f = i >> 1, i & 1
        a = ACC + 16*i
        if i == 1: A("s_nop 1")
        for j in range(8): A(f"v_cvt_pk_bf16_f32 v{a+j}, v{a+2*j}, v{a+2*j+1}")
        for m in range(2):
            A(f"buffer_store_dwordx4 {v(a+4*m,4)}, v1, s[12:15], s{58+2*t+m} offen offset:{f*512} sc1")
    A.label("L_g_pub")
    A(f"""
    s_lshl_b32 s58, s57, 5
    s_add_u32 s58, s58, s56
    s_mul_i32 s58, s58, {FS}
    s_add_u32 s58, s58, {FQ_OFF}
    v_mov_b32 v{PT+2}, s{NONCE}
    v_mov_b32 v{PT+3}, 0
    """)
    stamp(A, 1)
    A("s_waitcnt vmcnt(0)")
    stamp(A, 2)
    A(f"""
    v_mov_b32 v{PT}, 1
    s_mov_b64 exec, 1
    buffer_store_dword v{PT+2}, v{PT+3}, s[12:15], s58 offen sc1
    ds_add_u32 v{VFL}, v{PT} offset:{F_STD}
    s_mov_b64 exec, -1
    s_waitcnt lgkmcnt(0)
    s_branch {done_label}
    """)

NROW = [[0,1,2,3,4,5,6,7, 14,15,16,16, 20,21,22,23], [9,9,10,11,11,11,12,13, 17,18,19,19, 24,25,26,27]]
def kg_rowaddr(side, n):
    a = side*128 + n*KG_ROW
    if side == 1 and n >= 30: a -= 2*KG_ROW + 128
    return a
def kgen_table():
    T = []
    for lane in range(64):
        i = lane & 31; hh = lane >> 5
        g, h2, ii = i >> 3, (i >> 2) & 1, i & 3
        n = NROW[h2][4*g + ii]
        ra = kg_rowaddr(0, n) + 16*hh
        b = 8*(i & 3) + (i >> 2)
        rb = kg_rowaddr(1, b) + 16*hh
        if b > 0: pb, ph = b-1, hh
        else: pb, ph = 31, 0
        pl = 32*ph + 4*(pb & 7) + (pb >> 3)
        so = (7 - (b & 7))*KC_ROW + (16 + (b >> 3))*32
        T += [ra, rb, pl*4, so]
    return T

KPTS = (0, 10, 21, 31)
KFIRST = int(os.environ.get('KFIRST', '31'))
KB7 = int(os.environ.get('KB7', '0'))
def kgen(A, pre):
    PR = 4
    VRL = 11; T = 12
    TB = 16; vDT, vDS = 20, 21
    C1R, C1I, C2R, C2I = 22, 23, 24, 25
    M = 40
    X = 50; U = 52
    AC = 46
    R = 62
    ptrs = [P_ARE, P_AIM, P_BRE, P_BIM, P_CRE, P_CIM]
    A(f"""
    s_getpc_b64 s[50:51]
    L_kg_pc:
    s_add_u32 s50, s50, kgen_tab-L_kg_pc
    s_addc_u32 s51, s51, 0
    v_and_b32 v1, 31, v0
    s_lshl_b32 s52, s48, 8
    s_lshl_b32 s53, s63, 7
    s_add_u32 s52, s52, s53
    v_lshl_add_u32 v2, v1, 2, s52
    s_lshl_b32 s52, s48, 1
    v_mov_b32 v10, s52
    v_lshlrev_b32 v{T}, 4, v0
    s_waitcnt lgkmcnt(0)
    global_load_ushort v{vDT}, v10, {s(P_LDT,2)}
    """)
    for i in range(6): A(f"global_load_dword v{PR+i}, v2, {s(ptrs[i],2)}")
    A(f"global_load_ushort v{vDS}, v10, {s(P_DSK,2)}\nglobal_load_dwordx4 {v(TB,4)}, v{T}, s[50:51]")
    A("s_cmp_lt_u32 s2, 224\ns_cbranch_scc1 L_kg_nb\ns_barrier\nL_kg_nb:")
    ws_setup(A)
    A(f"""
    v_mov_b32 v{C1R}, {f32(LOG2E)}
    v_mov_b32 v{C1I}, {f32(1/(2*math.pi))}
    v_mov_b32 v{C2R}, {f32(248*LOG2E)}
    v_mov_b32 v{C2I}, {f32(248/(2*math.pi))}
    s_mov_b32 exec_lo, 0
    v_mov_b32 v{C1R}, {f32(8*LOG2E)}
    v_mov_b32 v{C1I}, {f32(-8/(2*math.pi))}
    v_mov_b32 v{C2R}, v{C1R}
    v_mov_b32 v{C2I}, v{C1I}
    s_mov_b32 exec_lo, -1
    s_sub_u32 m0, s49, {KG_IB}
    v_lshrrev_b32 v27, 5, v0
    v_mul_u32_u24 v58, {KC_ROW}, v27
    v_lshl_add_u32 v1, v1, 4, v58
    v_add_u32 v1, s67, v1
    v_lshl_add_u32 v2, v0, 4, s49
    v_lshl_add_u32 v11, v0, 4, s64
    v_xor_b32 v26, 4, v3
    """)
    pre(A)
    get_nonce(A)
    A(f"""
    s_mov_b32 vcc_lo, 0xf0f0f0f0
    s_mov_b32 vcc_hi, 0xf0f0f0f0
    """)
    KP = [int(x) for x in os.environ.get("KP", "-1,5,17,29,32,43,54").split(",")]
    if -1 in KP: gb(A)
    A(f"""
    s_waitcnt vmcnt(2)
    v_lshlrev_b32 v{vDT}, 16, v{vDT}
    v_mul_f32 v{vDT}, {f32(LOG2E)}, v{vDT}
    v_exp_f32 v{vDT}, v{vDT}
    s_nop 0
    v_cvt_pk_bf16_f32 v{vDT}, v{vDT}, v{vDT}
    v_and_b32 v{vDT}, 0xffff0000, v{vDT}
    """)
    stamp(A, 1)
    Mx = lambda j: M + 2*j
    mult = [0]*8 + [4] + [1]*4 + [4] + [2]*2 + [4] + [2]*2 + [4, 3, 4, 3, 4, 3, 4, 3] + [3]*4
    KP = [int(x) for x in os.environ.get("KP", "-1,5,17,29,32,43,54").split(",")]
    for tr in range(2):
        for i in range(6): A(f"v_and_b32 v{U+i}, 0xffff0000, v{PR+i}" if tr else f"v_lshlrev_b32 v{U+i}, 16, v{PR+i}")
        A(f"""
        v_mul_f32 v{U}, v{vDT}, v{U}
        v_mul_f32 v{U+1}, v{vDT}, v{U+1}
        v_mul_f32 v{T}, v{C1R}, v{U}
        v_mul_f32 v{T+1}, v{C1I}, v{U+1}
        v_mul_f32 v{T+2}, v{C2R}, v{U}
        v_mul_f32 v{T+3}, v{C2I}, v{U+1}
        v_fract_f32 v{T+1}, v{T+1}
        v_fract_f32 v{T+3}, v{T+3}
        v_exp_f32 v{T}, v{T}
        v_cos_f32 v{Mx(0)}, v{T+1}
        v_sin_f32 v{Mx(0)+1}, v{T+1}
        v_exp_f32 v{T+2}, v{T+2}
        v_cos_f32 v{Mx(4)}, v{T+3}
        v_sin_f32 v{Mx(4)+1}, v{T+3}
        v_mul_f32 v{U+2}, v{vDT}, v{U+2}
        v_mul_f32 v{U+3}, v{vDT}, v{U+3}
        v_mul_f32 v{X}, v{U+3}, v{U+5}
        v_mul_f32 v{X+1}, v{U+3}, v{U+4}
        v_fmac_f32 v{X+1}, v{U+2}, v{U+5}
        v_fma_f32 v{X}, v{U+2}, v{U+4}, -v{X}
        v_mul_f32 v{Mx(0)}, v{T}, v{Mx(0)}
        v_mul_f32 v{Mx(0)+1}, v{T}, v{Mx(0)+1}
        v_mul_f32 v{Mx(4)}, v{T+2}, v{Mx(4)}
        v_mul_f32 v{Mx(4)+1}, v{T+2}, v{Mx(4)+1}
        """)
        for j in (1, 2, 3):
            d, x = Mx(j), Mx(j-1)
            A(f"v_mul_f32 v{d}, v{x+1}, v{x+1}\nv_add_f32 v{d+1}, v{x}, v{x}\nv_mul_f32 v{d+1}, v{d+1}, v{x+1}\nv_fma_f32 v{d}, v{x}, v{x}, -v{d}")
        A("s_mov_b32 exec_lo, 0")
        for j in (1, 2, 3): A(f"v_mov_b32 v{Mx(j)}, v{Mx(0)}\nv_mov_b32 v{Mx(j)+1}, v{Mx(0)+1}")
        A(f"v_mov_b32 v{X}, 1.0\nv_mov_b32 v{X+1}, 0\ns_mov_b32 exec_lo, -1")
        for n in range(32):
            A(f"v_cvt_pk_bf16_f32 v{R+32*tr+n}, v{X}, v{X+1}")
            if n < 31:
                m = Mx(mult[n])
                A(f"v_mul_f32 v{T}, v{X+1}, v{m+1}\nv_mul_f32 v{X+1}, v{X+1}, v{m}\nv_fmac_f32 v{X+1}, v{X}, v{m+1}\nv_fma_f32 v{X}, v{X}, v{m}, -v{T}")
            if 32*tr + n in KP: gb(A)
    A("s_waitcnt vmcnt(0)")
    stamp(A, 2)
    O = AC; PV = 12; P3 = 13; P4 = 14; D = R; Z = 4
    A(f"""
    v_add_u32 v{TB}, s49, v{TB}
    v_add_u32 v{TB+1}, s49, v{TB+1}
    v_lshlrev_b32 v{vDS}, 16, v{vDS}
    v_mov_b32 v{Z}, 0
    v_mov_b32 v{Z+1}, 0
    v_mov_b32 v{Z+2}, 0
    v_mov_b32 v{Z+3}, 0
    v_add_u32 v{TB+3}, s67, v{TB+3}
    v_lshl_add_u32 v9, v27, 7, v{TB+3}
    v_lshl_add_u32 v10, v27, 8, v{TB+3}
    """)
    gb(A, 9 - len(KP))
    if os.environ.get("KPRIO", "1") == "0": A("s_setprio 1")
    stamp(A, 3)
    for p in range(2):
        r = R + 32*p
        for n in range(32):
            if n == 28: A("s_mov_b32 exec_lo, 0")
            A(f"ds_write_addtid_b32 v{r+n} offset:{KG_IB + kg_rowaddr(1, n) - 128}")
        A("s_mov_b32 exec_lo, -1")
        if FINE: stamp(A, 1 if p == 0 else 2)
        if os.environ.get("KPRIO", "1") == str(p+1): A("s_setprio 1")
        for q in range(4): A(f"ds_read_b128 {v(r+8*q,4)}, v{TB} offset:{32*q}\nds_read_b128 {v(r+8*q+4,4)}, v{TB+1} offset:{32*q}")
    if FINE: stamp(A, 4)
    A("s_waitcnt lgkmcnt(15)")
    for q in range(4): A(f"v_mfma_f32_32x32x16_bf16 {v(AC,16)}, {v(R+8*q,4)}, {v(R+8*q+4,4)}, {'0' if q == 0 else v(AC,16)}")
    for q in range(4):
        A(f"s_waitcnt lgkmcnt({6-2*q})")
        A(f"v_mfma_f32_32x32x16_bf16 {v(AC,16)}, {v(R+32+8*q,4)}, {v(R+32+8*q+4,4)}, {v(AC,16)}")
    if FINE: stamp(A, 6)
    def pack(o, pv, areg, off, d):
        c0 = [o[6], o[5], o[4], o[3], o[2], o[1], o[0], pv]
        c1 = [o[7], o[6], o[5], o[4], o[3], o[2], o[1], o[0]]
        for j in range(4): A(f"v_cvt_pk_bf16_f32 v{d+4+j}, v{c1[2*j]}, v{c1[2*j+1]}")
        for j in range(4):
            if pv == PV and j == 3: A(f"s_waitcnt lgkmcnt(2)\ns_mov_b64 exec, 1\nv_mov_b32 v{PV}, 0\ns_mov_b64 exec, -1")
            A(f"v_cvt_pk_bf16_f32 v{d+j}, v{c0[2*j]}, v{c0[2*j+1]}")
        A(f"ds_write_b128 v{areg}, {v(d,4)} offset:{off}\nds_write_b128 v{areg}, {v(d+4,4)} offset:{off+16}")
    def xchg(send, ns, keep, nk):
        for i in range(ns): A(f"ds_write_b128 v2, {v(AC+send+4*i,4)} offset:{1024*i}")
        lset(A, 3, F_KP, 1, 12)
        if nk == 1:
            for i in range(4): A(f"ds_write_b128 v1, {v(Z,4)} offset:{2*KC_ROW*i}")
        l = uid("kx"); e = uid("ke")
        A(f"s_mov_b32 s{CAP}, 0x100000\n{l}:\nds_read_b32 v12, v26 offset:{F_KP}")
        for i in range(nk): A(f"ds_read_b128 {v(R+32+4*i,4)}, v11 offset:{1024*i}")
        A(f"s_sub_u32 s{CAP}, s{CAP}, 1\ns_cbranch_scc1 {e}\ns_waitcnt lgkmcnt({nk})\nv_readfirstlane_b32 s69, v12\ns_cmp_eq_u32 s69, 0\ns_cbranch_scc1 {l}\n{e}:\ns_waitcnt lgkmcnt(0)")
        if FINE: stamp(A, 7)
    add = lambda r, keep: A(f"v_add_f32 v{AC+r}, v{AC+r}, v{R+32+r-keep}")
    A("s_cmp_eq_u32 s63, 0\ns_cbranch_scc1 L_kg_h0\ns_nop 9")
    xchg(0, 3, 12, 1)
    for r in range(12, 16): add(r, 12)
    A(f"v_cndmask_b32 v{P3}, v{O+12}, v{O+13}, vcc\nv_cndmask_b32 v{P4}, v{O+14}, v{O+15}, vcc")
    pack([O+12]*4 + [P3] + [O+13]*3, O+12, 10, 16*32, D)
    pack([O+14]*4 + [P4] + [O+15]*3, O+14, 10, 20*32, D+8)
    A("s_branch L_kg_end\nL_kg_h0:\ns_nop 9")
    xchg(12, 1, 0, 3)
    add(7, 0)
    A(f"ds_bpermute_b32 v{PV}, v{TB+2}, v{O+7}")
    for r in (8, 9, 10): add(r, 0)
    pack([O+8]*3 + [O+9]*3 + [O+10]*2, O+8, 9, 8*32, D+8)
    for r in range(7): add(r, 0)
    A(f"s_mov_b64 exec, 1\nv_add_f32 v{O}, v{O}, v{vDS}\ns_mov_b64 exec, -1")
    pack([O+i for i in range(8)], PV, 9, 0, D)
    A("L_kg_end:")
    if FINE: stamp(A, 8)
    lset(A, 3, F_KRDY, 4, 15)

TRS = os.environ.get("TRS", "b")
def trans_u(A):
    A(f"""
    s_mul_i32 s52, s50, {64*1152}
    s_lshl_b32 s53, s51, 7
    s_add_u32 s53, s52, s53
    v_lshrrev_b32 v1, 3, v0
    v_mul_u32_u24 v2, 1152, v1
    v_bfe_u32 v3, v0, 4, 1
    v_lshlrev_b32 v3, 2, v3
    v_and_b32 v4, 7, v0
    v_xor_b32 v3, v3, v4
    v_lshl_add_u32 v2, v3, 4, v2
    s_mov_b32 m0, s49
    s_waitcnt lgkmcnt(0)
    """)
    srd(A, 4, P_U, 2048*1152)
    for n in range(8):
        if n: A("s_add_u32 m0, m0, 1024\ns_add_u32 s53, s53, 9216")
        A(f"buffer_load_dwordx4 v2, s[4:7], s53 offen lds")
    ws_setup(A)
    A(f"""
    v_bfe_u32 v3, v0, 2, 2
    v_and_b32 v5, 1, v0
    v_lshl_add_u32 v3, v5, 5, v3
    v_lshlrev_b32 v3, 7, v3
    v_and_b32 v5, 0x30, v0
    v_add_u32 v3, v3, v5
    v_bfe_u32 v5, v0, 1, 1
    v_lshl_add_u32 v3, v5, 3, v3
    v_bfe_u32 v5, v0, 3, 1
    v_lshl_add_u32 v3, v5, 6, v3
    v_add_u32 v5, s49, v3
    v_xor_b32 v6, 64, v5
    v_mul_u32_u24 v2, {4*UT_ROW}, v1
    v_lshl_add_u32 v2, v4, 4, v2
    s_mul_i32 s52, s51, {64*UT_ROW}
    s_add_u32 s52, s52, {UT_OFF}
    s_lshl_b32 s54, s51, 5
    s_add_u32 s54, s54, s50
    s_mul_i32 s54, s54, {FS}
    s_add_u32 s54, s54, {FU_OFF}
    s_lshl_b32 s53, s50, 7
    s_add_u32 s55, s52, s53
    s_mov_b32 s56, 0
    """)
    B0, B1 = 8, 40
    get_nonce(A)
    A("L_tu_loop:")
    for G in range(8):
        for t in range(2): A(f"ds_read_b64_tr_b16 {v(B0+4*G+2*t,2)}, v{5+(G>>2)} offset:{(8*(G&3)+4*t)*128}")
    def stage(src, dst, bit, qp, m0):
        for sel in range(2):
            m = m0 if sel == 0 else (~m0 & 0xffffffff)
            A(f"s_mov_b32 vcc_lo, {hex(m)}\ns_mov_b32 vcc_hi, {hex(m)}")
            for G in range(8):
                if ((G >> bit) & 1) != sel: continue
                for k in range(4):
                    A(f"v_cndmask_b32_dpp v{dst+4*G+k}, v{src+4*(G^(1<<bit))+k}, v{src+4*G+k}, vcc quad_perm:{qp} row_mask:0xf bank_mask:0xf")
    A("s_waitcnt lgkmcnt(0)")
    stage(B0, B1, 0, "[1,0,3,2]", 0x55555555)
    stage(B1, B0, 1, "[2,3,0,1]", 0x33333333)
    A("s_cmp_lg_u32 s56, 0\ns_cbranch_scc1 L_tu_st\ns_mov_b32 s56, 1")
    if TRS == "b": A("s_barrier")
    A("s_waitcnt vmcnt(0)")
    stamp(A, 1)
    A("s_branch L_tu_loop\nL_tu_st:")
    A("s_barrier")
    for G in range(8):
        if TRS == "c" and G == 4: A("s_barrier")
        A(f"s_add_u32 s53, s55, {(32*(G>>2)+(G&3))*UT_ROW}")
        A(f"buffer_store_dwordx4 {v(B0+4*G,4)}, v2, s[12:15], s53 offen sc1")
    A("s_barrier\n"*(3 if TRS == "a" else 2))
    A("s_waitcnt vmcnt(0)")
    gflag(A, "s54", 72)
    stamp(A, 2)

def trans_wo(A):
    L = 20
    srd(A, 4, P_WO, 576*1152)
    A(f"""
    s_and_b32 s50, s2, 7
    s_lshr_b32 s51, s2, 3
    s_mul_i32 s52, s50, {72*1152}
    s_lshl_b32 s53, s51, 6
    s_add_u32 s52, s52, s53
    v_and_b32 v1, 3, v0
    v_bfe_u32 v2, v0, 2, 1
    v_lshl_or_b32 v1, v2, 4, v1
    v_bfe_u32 v2, v0, 3, 2
    v_lshl_or_b32 v1, v2, 2, v1
    v_lshlrev_b32 v1, 1, v1
    v_lshrrev_b32 v2, 5, v0
    v_mul_u32_u24 v2, {4*1152}, v2
    v_add_u32 v2, v2, v1
    """)
    for h in range(4):
        for t in range(2):
            A(f"s_add_u32 s53, s52, {(18*h+8*t)*1152}")
            for r in range(4): A(f"buffer_load_ushort v{L+8*h+4*t+r}, v2, s[4:7], s53 offen offset:{r*1152}")
        A(f"s_add_u32 s53, s52, {(18*h+16)*1152}")
        for r in range(2): A(f"buffer_load_ushort v{L+32+2*h+r}, v1, s[4:7], s53 offen offset:{r*1152}")
    A(f"""
    v_lshlrev_b32 v2, 4, v0
    s_mul_i32 s52, s50, {4*18*1024}
    s_lshl_b32 s53, s51, 10
    s_add_u32 s53, s53, {WOT_OFF}
    s_add_u32 s52, s52, s53
    s_lshr_b32 s54, s50, 1
    s_add_u32 s54, s54, 32
    s_mul_i32 s54, s54, {18*1024}
    s_add_u32 s54, s54, s53
    s_and_b32 s55, s50, 1
    s_lshl_b32 s55, s55, 9
    s_add_u32 s54, s54, s55
    s_waitcnt vmcnt(0)
    """)
    for k in range(20): A(f"v_lshl_or_b32 v{L+k}, v{L+2*k+1}, 16, v{L+2*k}")
    for h in range(4):
        A(f"buffer_store_dwordx4 {v(L+4*h,4)}, v2, s[12:15], s52 offen sc1")
        if h < 3: A(f"s_add_u32 s52, s52, {18*1024}")
    A(f"""
    s_mov_b32 exec_hi, 0
    buffer_store_dwordx4 {v(L+16,4)}, v2, s[12:15], s54 offen sc1
    s_mov_b32 exec_hi, -1
    s_mul_i32 s54, s2, {FS}
    s_add_u32 s54, s54, {FW_OFF}
    s_waitcnt vmcnt(0)
    """)
    gflag(A, "s54", 4)
```

```python
from f1 import *
NV = 168
GRP = 20480
HOFF = 10240
PRIO = int(os.environ.get("PRIO", "1"))
ATD = 112
QS = int(os.environ.get('QS', '2'))
B2X = int(os.environ.get('B2X', '1'))
NE = 2

def head_qb(A):
    A("""
    s_and_b32 s96, s2, 7
    s_lshl_b32 s96, s96, 2
    s_lshr_b32 s97, s2, 6
    s_add_u32 s96, s96, s97
    s_bfe_u32 s97, s2, 0x30003
    """)

CVU, CVK, CVF, CVF2, CVA, CPT = 126, 127, 128, 129, 130, 132
CAC = 136
def conv_pre(A):
    PT = CPT
    A(f"""
    s_and_b32 s50, s3, 1
    s_bfe_u32 s51, s3, 0x10001
    s_mul_i32 s52, s50, {UC_CH}
    s_add_u32 s52, s52, {L_UC}
    s_sub_u32 s52, s52, s98
    s_lshl_b32 s53, s51, 10
    s_add_u32 s52, s52, s53
    s_mul_i32 s53, s50, {KC_CH}
    s_add_u32 s53, s53, {L_KC + 512 - 64}
    s_sub_u32 s53, s53, s98
    s_lshl_b32 s54, s51, 8
    s_sub_u32 s53, s53, s54
    v_and_b32 v{PT}, 3, v0
    v_mul_u32_u24 v{PT}, {UC_COPY}, v{PT}
    v_bfe_u32 v{PT+1}, v0, 2, 3
    v_lshrrev_b32 v{PT+2}, 5, v0
    v_add_u32 v{PT+1}, v{PT+1}, v{PT+2}
    v_lshl_add_u32 v{CVU}, v{PT+1}, 4, v{PT}
    v_add_u32 v{CVU}, s52, v{CVU}
    v_mul_u32_u24 v{PT+1}, {KC_ROW}, v{PT+2}
    v_and_b32 v{PT}, 31, v0
    v_lshl_add_u32 v{CVK}, v{PT}, 4, v{PT+1}
    v_add_u32 v{CVK}, s53, v{CVK}
    s_cmp_lg_u32 s98, 0
    s_cselect_b32 s56, 8, 0
    s_lshl_b32 s57, s50, 2
    s_add_u32 s56, s56, s57
    s_add_u32 s57, s56, {L_FL}
    v_mov_b32 v{CVF}, s57
    s_add_u32 s57, s57, s56
    v_mov_b32 v{CVF2}, s57
    v_bfe_u32 v{PT}, v0, 1, 4
    v_lshlrev_b32 v{PT}, 7, v{PT}
    v_and_b32 v{PT+1}, 1, v0
    v_lshl_add_u32 v{PT}, v{PT+1}, 5, v{PT}
    v_lshl_add_u32 v{CVA}, v{PT+2}, 4, v{PT}
    s_lshl_b32 s52, s99, 13
    s_lshl_b32 s53, s51, 12
    s_add_u32 s52, s52, s53
    s_add_u32 s98, s52, {AT_OFF}
    """)
    for i in range(32): A(f"v_mov_b32 v{CAC+i}, 0")
    A.l.extend(attn_common())

def conv(A):
    VU, VK, PT, AC = CVU, CVK, CPT, CAC
    BUFS = [4, 46, 94, 110]
    def reads(q, part):
        b = BUFS[q % 4]
        ko = 2*KC_ROW*(q % 4) + 32*(2 - q//4)
        if part == 0: A(f"ds_read_b128 {v(b,4)}, v{VU} offset:{32*q}\nds_read_b128 {v(b+4,4)}, v{VK} offset:{ko}")
        else: A(f"ds_read_b128 {v(b+8,4)}, v{VK} offset:{ko+512}\nds_read_b128 {v(b+12,4)}, v{VU} offset:{32*q+2048}")
    A(f"""
    s_mov_b32 s{CAP}, 0x100000
    s_mov_b32 s68, 0
    L_cv_w:
    ds_read_b64 {v(PT,2)}, v{CVF2} offset:{F_KRDY}
    ds_read_b32 v{PT+2}, v{CVF} offset:{F_URDY}
    s_sub_u32 s{CAP}, s{CAP}, 1
    s_cbranch_scc1 L_cv_go
    s_waitcnt lgkmcnt(0)
    v_min3_u32 v{PT}, v{PT}, v{PT+1}, v{PT+2}
    v_cmp_gt_u32 vcc, 4, v{PT}
    s_cbranch_vccnz L_cv_w
    L_cv_go:
    s_setprio 0
    """)
    stamp(A, 5)
    if os.environ.get("CVC"): stampc(A, 1)
    for q in range(3): reads(q, 0); reads(q, 1)
    for i in range(32): A(f"v_mov_b32 v{O+i}, 0")
    A.label("L_cv_loop")
    for q in range(8):
        b = BUFS[q % 4]
        A("s_waitcnt lgkmcnt(8)")
        A(f"v_mfma_f32_32x32x16_bf16 {v(AC,16)}, {v(b,4)}, {v(b+4,4)}, {v(AC,16)}")
        reads(q+3, 0)
        if q == 7: A("s_add_u32 s68, s68, 1\ns_cmp_lt_u32 s68, 4")
        A(f"v_mfma_f32_32x32x16_bf16 {v(AC+16,16)}, {v(b,4)}, {v(b+8,4)}, {v(AC+16,16)}")
        reads(q+3, 1)
        if q == 7: A(f"v_add_u32 v{VU}, 256, v{VU}\nv_subrev_u32 v{VK}, 64, v{VK}")
        A(f"v_mfma_f32_32x32x16_bf16 {v(AC+16,16)}, {v(b+12,4)}, {v(b+4,4)}, {v(AC+16,16)}")
    A("s_cbranch_scc1 L_cv_loop")
    stamp(A, 6)
    if os.environ.get("CVC"): stampc(A, 2)
    A(f"""
    s_waitcnt lgkmcnt(0)
    s_cmp_lt_u32 s3, 4
    s_cbranch_scc1 L_cv_s1
    s_setprio 3
    s_barrier
    s_branch L_at_qb
    L_cv_s1:
    s_lshl_b32 s63, s3, 2
    s_add_u32 s63, s63, {L_FL+F_CVD}
    v_mov_b32 v{PT}, s63
    """)
    lset(A, PT, 0, 1, PT+1)
    A("s_branch L_attn2")

def ucopy(A):
    UD = 16
    A(f"""
    s_setprio 3
    s_lshr_b32 s50, s99, 6
    s_mul_i32 s50, s50, {32*FS}
    s_add_u32 s50, s50, {FU_OFF}
    v_and_b32 v1, 31, v0
    v_mul_u32_u24 v1, {FS}, v1
    v_lshlrev_b32 v2, 2, v0
    s_and_b32 s51, s3, 1
    s_add_u32 s52, s99, s51
    s_mul_i32 s52, s52, {UT_ROW}
    s_add_u32 s52, s52, {UT_OFF}
    s_mul_i32 s53, s51, {UC_CH}
    s_add_u32 s53, s53, {L_UC}
    s_lshl_b32 s54, s51, 2
    s_add_u32 s54, s54, {L_FL}
    v_mov_b32 v3, s54
    v_mov_b32 v9, 0
    v_add_u32 v10, s53, v2
    """)
    for k in range(4): A(f"v_add_u32 v{11+k}, {k*UC_COPY + 124 - 4*k}, v10")
    A(f"""
    s_barrier
    s_barrier
    s_barrier
    buffer_load_dword v4, v1, s[12:15], s50 offen sc1
    s_mov_b32 s56, 1
    s_barrier
    s_waitcnt vmcnt(0)
    v_cmp_ne_u32 vcc, s{NONCE}, v4
    s_cbranch_vccz L_uc_set
    s_barrier
    s_mov_b32 s56, 0
    """)
    gpoll(A, [1], 4, "s50")
    A("L_uc_set:")
    stamp(A, 3)
    for n in range(16): A(f"buffer_load_dword v{UD+n}, v2, s[12:15], s52 offen offset:{256*n} sc1")
    A("s_cmp_eq_u32 s56, 0\ns_cbranch_scc1 L_uc_nb\ns_barrier\nL_uc_nb:\ns_setprio 0\ns_mov_b64 exec, 0x7fffffff")
    for k in range(4): A(f"ds_write_b32 v10, v9 offset:{k*UC_COPY}")
    A("s_mov_b64 exec, -1")
    for n in range(0, 16, 2):
        A(f"s_waitcnt vmcnt({14-n})")
        for k in range(4): A(f"ds_write2st64_b32 v{11+k}, v{UD+n}, v{UD+n+1} offset0:{n} offset1:{n+1}")
    lset(A, 3, F_URDY, 4, 4)

def ugather(A):
    RW = 16; PK = 32
    A(f"""
    s_setprio 3
    s_and_b32 s51, s3, 3
    v_mul_u32_u24 v1, 2304, v0
    s_mul_i32 s52, s51, {512*1152}
    s_lshl_b32 s53, s99, 1
    s_add_u32 s52, s52, s53
    s_waitcnt lgkmcnt(0)
    """)
    srd(A, 4, P_U, 2048*1152)
    A("s_barrier")
    for j in range(4):
        for e in range(2): A(f"buffer_load_dwordx2 {v(RW+4*j+2*e,2)}, v1, s[4:7], s52 offen offset:{1152*e}")
        if j < 3: A(f"s_add_u32 s52, s52, {128*1152}")
    ws_setup(A)
    A(f"""
    v_lshlrev_b32 v10, 2, v0
    s_lshl_b32 s53, s51, 10
    v_add_u32 v2, s53, v10
    v_mov_b32 v9, 0
    v_mov_b32 v8, {L_FL}
    v_mov_b32 v3, 1
    s_mov_b32 s54, 0x05040100
    s_mov_b32 s55, 0x07060302
    """)
    get_nonce(A)
    for j in range(4):
        A(f"s_waitcnt vmcnt({6-2*j})")
        for c in (2, 3, 0, 1): A(f"v_perm_b32 v{PK+4*c+j}, v{RW+4*j+2+(c>>1)}, v{RW+4*j+(c>>1)}, s{54+(c&1)}")
    stamp(A, 1)
    for st in (1, 0):
        base = L_UC - SET1*st
        if st == 0: lpoll(A, 8, F_KRDY+16, 4, 1, 4, sleep=1)
        sk = uid("ug")
        A(f"s_cmp_lg_u32 s51, 0\ns_cbranch_scc1 {sk}\nv_add_u32 v11, {base}, v10\ns_mov_b64 exec, 0x7fffffff")
        for k in range(8): A(f"ds_write_b32 v11, v9 offset:{k*UC_COPY}")
        A(f"s_mov_b64 exec, -1\n{sk}:")
        for ch in range(2):
            for k in range(4):
                r = 11 + (k & 1)
                A(f"v_add_u32 v{r}, {base + ch*UC_CH + k*UC_COPY + 124 - 4*k}, v2")
                p = PK + 4*(2*st + ch)
                A(f"ds_write2st64_b32 v{r}, v{p}, v{p+1} offset0:0 offset1:1\nds_write2st64_b32 v{r}, v{p+2}, v{p+3} offset0:2 offset1:3")
        A(f"s_mov_b64 exec, 1\nds_add_u32 v8, v3 offset:{F_URDY+8*st}\nds_add_u32 v8, v3 offset:{F_URDY+8*st+4}\ns_mov_b64 exec, -1")
    stamp(A, 2)

L_O = 40960
L_WE = 98304
L_RED = L_O + OF_TT
L_QR = 7*GRP + 5120 + 19*16
L_FR = L_QR + 320
L_XR = L_QR + 640
L_OK = L_QR + 1600
L_PG = L_QR + 960
IDX, AK, AV, OMG, TMP = 28, 29, 30, 31, 32
FWQ = [48, 52, 56, 126, 130, 24, 32, 36]
CST = [48, 102]
QM = 4; QE = 12; KF = 14; KE = 18; VF = 40; O = 62; S = 94; X = 136

def attn_common():
    B = Asm()
    head_qb(B)
    B(f"""
    s_and_b32 s50, s3, 3
    s_lshr_b32 s51, s3, 2
    s_lshl_b32 s52, s97, 3
    s_lshl_b32 s50, s50, 1
    s_add_u32 s52, s52, s50
    s_add_u32 s53, s52, s51
    s_lshr_b32 s55, s96, 1
    s_mul_i32 s55, s55, {9*256}
    s_and_b32 s56, s96, 1
    s_mul_i32 s57, s56, {5*256}
    s_add_u32 s57, s57, s55
    s_add_u32 s55, s55, {4*256}
    v_and_b32 v{TMP+4}, 15, v0
    v_lshlrev_b32 v{TMP+4}, 4, v{TMP+4}
    v_bfe_u32 v{TMP+5}, v0, 4, 1
    v_lshl_or_b32 v{TMP+4}, v{TMP+5}, 3, v{TMP+4}
    v_lshrrev_b32 v{TMP+1}, 5, v0
    v_lshl_or_b32 v{TMP+5}, v{TMP+1}, 8, v{TMP+4}
    v_and_b32 v{TMP+6}, 31, v0
    v_lshlrev_b32 v{TMP+7}, 3, v{TMP+6}
    s_lshl_b32 s62, s52, 8
    s_add_u32 s62, s62, {G_OFF}
    s_lshl_b32 s59, s50, 11
    s_add_u32 s59, s59, {L_QP}
    v_lshl_add_u32 v{TMP+3}, v0, 4, s59
    s_lshl_b32 s60, s51, 5
    v_xor_b32 v{TMP+2}, s60, v0
    v_lshl_add_u32 v{TMP+2}, v{TMP+2}, 3, s59
    v_and_b32 v{AK}, 0x13f, v{TMP+5}
    v_bfe_u32 v{TMP}, v0, 2, 1
    v_lshl_or_b32 v{AK}, v{TMP}, 7, v{AK}
    v_bfe_u32 v{TMP}, v0, 3, 1
    v_lshl_or_b32 v{AK}, v{TMP}, 6, v{AK}
    s_mul_i32 s59, s51, {HOFF}
    v_add_u32 v{AK}, s59, v{AK}
    v_mad_u32_u24 v{TMP}, v{TMP+1}, 20, v{TMP+6}
    s_add_u32 s59, s59, 5120
    v_lshl_add_u32 v{AV}, v{TMP}, 4, s59
    s_mul_i32 s59, s53, {OF_TT}
    s_add_u32 s59, s59, {OF_OFF}
    s_lshl_b32 s100, s96, 10
    s_add_u32 s100, s100, s59
    s_lshl_b32 s101, s96, 7
    s_add_u32 s101, s101, s59
    s_add_u32 s101, s101, {32*1024}
    s_mov_b32 vcc_lo, 0x7ffff
    s_mov_b32 vcc_hi, 0x7ffff
    v_mov_b32 v{IDX}, 0x80000
    v_cndmask_b32 v{AV}, v{IDX}, v{AV}, vcc
    v_mov_b32 v{IDX}, 0xdddddddd
    """)
    return B.l

def attn(A):
    A.l.extend(attn_common())
    for i in range(32): A(f"v_mov_b32 v{O+i}, 0")
    A.label("L_attn2")
    A(f"""
    s_cmp_ge_u32 s3, 4
    s_cbranch_scc1 L_at_qb
    s_mul_i32 s58, s53, {QKQ_TT}
    s_add_u32 s60, s58, s55
    s_add_u32 s58, s58, s57
    s_add_u32 s59, s58, {QKQ_TT}
    v_mul_u32_u24 v{TMP+1}, {QKQ_TT}, v{TMP+1}
    v_add_u32 v{TMP+4}, v{TMP+4}, v{TMP+1}
    s_min_u32 s63, s55, s57
    s_add_u32 s64, s63, {4*256}
    s_lshr_b32 s63, s63, 12
    s_lshr_b32 s64, s64, 12
    s_lshr_b32 s65, s52, 1
    s_lshl_b32 s63, s63, 5
    s_lshl_b32 s64, s64, 5
    s_add_u32 s63, s63, s65
    s_add_u32 s64, s64, s65
    s_mul_i32 s63, s63, {FS}
    s_mul_i32 s64, s64, {FS}
    s_mul_i32 s65, s65, {FS}
    s_add_u32 s65, s65, {27*32*FS}
    v_mov_b32 v{TMP}, s63
    v_writelane_b32 v{TMP}, s64, 1
    v_writelane_b32 v{TMP}, s65, 2
    s_mov_b32 s63, {FQ_OFF}
    """)
    gpoll(A, [TMP], TMP+1, "s63", sleep=QS)
    stamp(A, 3)
    A(f"buffer_load_dwordx2 {v(QE,2)}, v{TMP+4}, s[12:15], s60 offen sc1")
    for j in range(2):
        A(f"""
        buffer_load_dwordx2 {v(QM+4*j,2)}, v{TMP+5}, s[12:15], s{58+j} offen sc1
        buffer_load_dwordx2 {v(QM+4*j+2,2)}, v{TMP+5}, s[12:15], s{58+j} offen offset:512 sc1
        """)
    A(f"v_mov_b32 v{TMP}, {L_FL}")
    lpoll(A, TMP, F_KRDY, 4, 1, KF, sleep=1)
    A(f"""
    s_cmp_eq_u32 s56, 0
    s_cselect_b32 s64, -1, 0
    s_not_b32 s65, s64
    s_waitcnt vmcnt(0)
    v_and_b32 v{QE}, s64, v{QE}
    v_and_b32 v{QE+1}, s65, v{QE+1}
    ds_write_b128 v{TMP+3}, {v(QM,4)}
    ds_write_b128 v{TMP+3}, {v(QM+4,4)} offset:1024
    ds_write_b64 v{TMP+2}, {v(QE,2)} offset:2048
    v_lshlrev_b32 v22, 4, v0
    v_lshlrev_b32 v23, 2, v0
    s_branch L_at_cm
    L_at_qb:
    buffer_load_dword v{OMG}, v{TMP+7}, s[12:15], s62 offen offset:260 sc1
    buffer_load_dword v25, v{TMP+7}, s[12:15], s62 offen offset:4 sc1
    s_lshl_b32 s58, s52, 5
    s_add_u32 s58, s58, s96
    s_mul_i32 s58, s58, {FS}
    s_add_u32 s58, s58, {FO_OFF}
    v_mov_b32 v24, s{NONCE}
    v_mul_u32_u24 v26, {32*FS}, v0
    v_lshlrev_b32 v22, 4, v0
    v_lshlrev_b32 v23, 2, v0
    ds_read_b128 {v(QM+4,4)}, v{TMP+3}
    ds_read_b128 {v(QM,4)}, v{TMP+3} offset:1024
    ds_read_b64 {v(QE,2)}, v{TMP+2} offset:2048
    L_at_cm:
    """)
    for i in range(8): A(f"v_mov_b32 v{S+16+8+i}, 0")
    for i in range(4): A(f"v_mov_b32 v{VF+4+i}, 0")
    A("s_mov_b32 s66, 0\ns_waitcnt lgkmcnt(0)\ns_barrier\nL_at_go:")
    stamp(A, 9)
    if os.environ.get('CLK'): stampc(A, 1)
    GU = GRP//512
    rdK = lambda t: f"ds_read2st64_b64 {v(KF,4)}, v{AK} offset0:{(t//4)*GU+2*(t%4)} offset1:{(t//4)*GU+2*(t%4)+1}"
    rdE = lambda g: f"ds_read2st64_b64 {v(KE,4)}, v{AK} offset0:{g*GU+8} offset1:{g*GU+9}"
    rdV = lambda t, m: f"ds_read_b128 {v(VF+4*m,4)}, v{AV} offset:{(t//4)*GRP+(4*(t%4)+2*m)*320}"
    M16 = lambda q: f"v_mfma_f32_32x32x16_bf16 {v(S+16*q,16)}, {v(KF,4)}, {v(QM+4*q,4)}, {v(X+16*q,16)}"
    M2 = lambda t: f"v_mfma_f32_32x32x4_2b_bf16 {v(X,32)}, {v(KE+2*((t%4)>>1),2)}, {v(QE,2)}, 0 cbsz:1 abid:{t&1}"
    PV = lambda q, m: f"v_smfmac_f32_32x32x32_bf16 {v(O+16*q,16)}, {v(VF+4*m,4)}, {v(S+16*q+8*m,8)}, v{IDX}"
    E = lambda q, i: f"v_exp_f32 v{S+16*q+i}, v{S+16*q+i}"
    A(rdE(0)); A(rdK(0)); A(rdV(0, 0))
    A("s_cmp_eq_u32 s98, 0\ns_cbranch_scc1 L_at_nost2")
    for cb in range(2):
        for j in range(8): A(f"v_cvt_pk_bf16_f32 v{CST[cb]+j}, v{CAC+16*cb+2*j}, v{CAC+16*cb+2*j+1}")
    for cb in range(2):
        for m in range(2): A(f"buffer_store_dwordx4 {v(CST[cb]+4*m,4)}, v{CVA}, s[12:15], s98 offen offset:{2048*cb+64*m} sc1")
    A(f"""
    L_at_nost2:
    s_waitcnt lgkmcnt(2)
    """)
    A(M2(0)); A("s_cmp_ge_u32 s3, 4\ns_cbranch_scc1 L_at_nb\ns_barrier\nL_at_nb:\ns_nop 13\ns_waitcnt lgkmcnt(1)\ns_setprio 2"); A(M16(0)); A("s_nop 11")
    A.raw(".p2align 6")
    A.label("L_at_loop")
    def ex(q, a, b):
        for i in range(a, b): A(E(q, i))
    for t in range(4):
        ex(0, 0, 2); A(PV(1, 1)); A(rdV(t, 1))
        ex(0, 2, 5); A(M16(1)); A("s_waitcnt lgkmcnt(1)"); A(rdK(t+1))
        ex(0, 5, 10); A(PV(0, 0)); A("s_waitcnt lgkmcnt(1)")
        if t == 2: A(f"s_bitcmp0_b32 {0x8a if os.environ.get('HE', '3') == '3' else 10}, s66")
        ex(0, 10, 13); A(M2(t+1)); ex(0, 13, 16)
        ex(1, 0, 5); A(PV(0, 1)); A("s_waitcnt lgkmcnt(0)")
        if t == 2: A("s_cbranch_scc0 L_at_bar\nL_at_bar_ret:")
        ex(1, 5, 8); A(M16(0))
        if t == 2: A(rdE(1))
        elif t == 3: A("s_add_u32 s66, s66, 1")
        elif t == 0 and PRIO: A(f"s_bitcmp1_b32 {os.environ.get('PM', '0x8a' if B2X else '0x82')}, s66")
        ex(1, 8, 12); A(PV(1, 0))
        if t == 3: A("s_cmp_lt_u32 s66, 8")
        elif t == 0 and PRIO: A("s_cbranch_scc1 L_at_lowprio\nL_at_lowprio_ret:")
        A(rdV(t+1, 0))
        ex(1, 12, 16)
    A(f"v_add_u32 v{AK}, {GRP}, v{AK}\nv_add_u32 v{AV}, {GRP}, v{AV}")
    A("s_cbranch_scc1 L_at_loop")
    A(PV(1, 1))
    stamp(A, 10)
    if os.environ.get('CLK'): stampc(A, 2)
    PP = S
    A(f"""
    s_and_b32 s64, s3, 3
    s_mul_i32 s63, s64, 5120
    v_add_u32 v{AK}, s63, v22
    s_lshl_b32 s63, s64, 2
    s_add_u32 s63, s63, {L_XR}
    v_mov_b32 v{AV}, s63
    s_cmp_ge_u32 s3, 4
    s_cbranch_scc1 L_at_late
    ds_write_b128 v{AK}, {v(O,4)} offset:2560
    ds_write_b128 v{AK}, {v(O+4,4)} offset:3584
    s_mov_b32 exec_hi, 0
    ds_write_b128 v{AK}, {v(O+8,4)} offset:4608
    s_nop 1
    ds_write_b128 v{AK}, {v(O+24,4)} offset:2048
    s_mov_b32 exec_hi, -1
    ds_write_b128 v{AK}, {v(O+16,4)}
    ds_write_b128 v{AK}, {v(O+20,4)} offset:1024
    """)
    lset(A, AV, 0, 1, 1)
    ofetch(A)
    A(f"""
    s_branch L_end
    L_at_late:
    s_mov_b32 s{CAP}, 0x100000
    s_mov_b32 s61, {f32(2.0**-60)}
    s_mov_b32 s62, {f32(2.0**40)}
    L_at_xw:
    ds_read_b32 v{TMP}, v{AV}
    """)
    for b in range(2): A(f"ds_read_b128 {v(PP+12*b+8,4)}, v{AK} offset:{2560*b+2048}")
    for b in range(2):
        for i in range(2): A(f"ds_read_b128 {v(PP+12*b+4*i,4)}, v{AK} offset:{2560*b+1024*i}")
    A(f"""
    s_sub_u32 s59, s100, {OF_TT}
    s_sub_u32 s60, s101, {OF_TT}
    {"s_mov_b64 exec, 3" + chr(10) + "buffer_store_dword v24, v26, s[12:15], s58 offen sc1" + chr(10) + "s_mov_b64 exec, -1" if os.environ.get("HE", "3") == "2" else ""}
    s_sub_u32 s{CAP}, s{CAP}, 1
    s_cbranch_scc1 L_at_xok
    s_waitcnt lgkmcnt(6)
    v_readfirstlane_b32 s63, v{TMP}
    s_cmp_eq_u32 s63, 0
    s_cbranch_scc1 L_at_xw
    L_at_xok:
    s_waitcnt lgkmcnt(4)
    v_add_f32 v{O+10}, v{O+10}, v{PP+10}
    v_add_f32 v{O+26}, v{O+26}, v{PP+22}
    v_add_f32 v{O+8}, v{O+8}, v{PP+8}
    v_add_f32 v{O+9}, v{O+9}, v{PP+9}
    v_add_f32 v{O+24}, v{O+24}, v{PP+20}
    v_add_f32 v{O+25}, v{O+25}, v{PP+21}
    v_cmp_le_f32 vcc, s61, v{O+10}
    v_cmp_ge_f32 s[64:65], s62, v{O+10}
    v_cmp_le_f32 s[66:67], s61, v{O+26}
    v_cmp_ge_f32 s[68:69], s62, v{O+26}
    s_waitcnt lgkmcnt(0)
    """)
    for b in range(2):
        for i in range(8): A(f"v_add_f32 v{O+16*b+i}, v{O+16*b+i}, v{PP+12*b+i}")
    A(f"""
    s_and_b32 s64, s64, vcc_lo
    s_and_b32 s66, s66, s68
    s_and_b32 s64, s64, s66
    s_cmp_eq_u32 s64, -1
    s_cbranch_scc0 L_at_fallback
    L_at_fin:
    {"s_mov_b64 exec, 3" + chr(10) + "buffer_store_dword v24, v26, s[12:15], s58 offen sc1" + chr(10) + "s_mov_b64 exec, -1" if os.environ.get("HE", "3") == "1" else ""}
    v_rcp_f32 v{TMP}, v{O+10}
    v_rcp_f32 v{TMP+2}, v{O+26}
    v_mul_f32 v{TMP}, v{TMP}, v{OMG}
    v_mul_f32 v{TMP+2}, v{TMP+2}, v25
    v_mov_b32 v{TMP+1}, v{TMP}
    v_mov_b32 v{TMP+3}, v{TMP+2}
    v_mul_f32 v{O+8}, v{TMP}, v{O+8}
    v_mul_f32 v{O+9}, v{TMP}, v{O+9}
    v_permlane32_swap_b32 v{TMP}, v{TMP+1}
    v_permlane32_swap_b32 v{TMP+2}, v{TMP+3}
    """)
    for b in range(2):
        o = O + 16*b
        for i in range(8): A(f"v_mul_f32 v{o+i}, v{TMP+2*b}, v{o+i}")
        for i in range(4): A(f"v_cvt_pk_bf16_f32 v{o+i}, v{o+2*i}, v{o+2*i+1}")
        A(f"buffer_store_dwordx4 {v(o,4)}, v22, s[12:15], s{(100, 59)[b]} offen sc1")
    A(f"""
    v_mul_f32 v{O+24}, v{TMP+2}, v{O+24}
    v_mul_f32 v{O+25}, v{TMP+2}, v{O+25}
    v_cvt_pk_bf16_f32 v{O+8}, v{O+8}, v{O+9}
    v_cvt_pk_bf16_f32 v{O+24}, v{O+24}, v{O+25}
    s_mov_b32 exec_hi, 0
    buffer_store_dword v{O+8}, v23, s[12:15], s101 offen sc1
    buffer_store_dword v{O+24}, v23, s[12:15], s60 offen sc1
    s_mov_b32 exec_lo, 3
    {"" if os.environ.get("HE", "3") else "buffer_store_dword v24, v26, s[12:15], s58 offen sc1"}
    """)
    stamp(A, 7)
    A(f"""
    s_branch L_end
    L_at_hint:
    s_cmp_lt_u32 s3, 4
    s_cbranch_scc1 L_at_lead
    s_mov_b64 exec, 3
    buffer_store_dword v24, v26, s[12:15], s58 offen sc1
    s_mov_b64 exec, -1
    s_branch L_at_bar_ret
    L_at_bar:
    s_cmp_eq_u32 s66, 7
    s_cbranch_scc1 L_at_hint
    s_waitcnt vmcnt(0)
    s_barrier
    s_setprio 2
    s_branch L_at_bar_ret
    L_at_lp2:
    s_cmp_ge_u32 s3, 4
    s_cbranch_scc1 L_at_lowprio_ret
    s_setprio 1
    s_branch L_at_lowprio_ret
    L_at_lowprio:
    s_cmp_lg_u32 s66, 7
    s_cbranch_scc1 L_at_lp2
    s_mul_i32 s63, s51, {320-16}
    s_lshl_b32 s64, s3, 2
    s_add_u32 s63, s63, s64
    s_add_u32 s63, s63, {L_PG}
    v_mov_b32 v{TMP}, s63
    """)
    lset(A, TMP, 0, 1, TMP+1)
    A("s_branch L_at_lowprio_ret\nL_at_lead:\ns_setprio 1")
    op_ids(A, True)
    A(f"v_mov_b32 v60, {L_OK}")
    lpoll(A, 60, 0, 1, 1, 61, sleep=4)
    A(f"""
    s_cmp_ge_u32 s2, 128
    s_cbranch_scc1 L_at_bar_ret
    s_lshl_b32 s52, s49, 10
    s_add_u32 s52, s52, {WOT_OFF}
    s_mul_i32 s54, s50, {8*18*1024}
    s_add_u32 s52, s52, s54
    s_waitcnt lgkmcnt(0)
    """)
    for k in range(8): A(f"buffer_load_dwordx4 {v(FWQ[k],4)}, v22, s[12:15], s52 offen sc1\ns_add_u32 s52, s52, {18*1024}")
    A("s_branch L_at_bar_ret")
    MX = TMP + 4; FS_ = S; FQ = S + 16; FO_ = X
    A.label("L_at_fallback")
    A(f"""
    v_and_b32 v{TMP+1}, 3, v0
    v_lshlrev_b32 v{TMP+1}, 4, v{TMP+1}
    v_bfe_u32 v{TMP}, v0, 2, 1
    v_lshl_or_b32 v{TMP+1}, v{TMP}, 7, v{TMP+1}
    v_bfe_u32 v{TMP}, v0, 3, 1
    v_lshl_or_b32 v{TMP+1}, v{TMP}, 6, v{TMP+1}
    v_bfe_u32 v{TMP}, v0, 4, 1
    v_lshl_or_b32 v{TMP+1}, v{TMP}, 3, v{TMP+1}
    v_lshrrev_b32 v{AV}, 5, v0
    v_lshl_or_b32 v{AK}, v{AV}, 8, v{TMP+1}
    v_and_b32 v{TMP}, 31, v0
    s_mul_i32 s63, s96, 18
    v_add_u32 v{TMP+2}, s63, v{TMP}
    v_mul_u32_u24 v{AV}, {VT_ROW}, v{AV}
    v_lshl_add_u32 v{AV}, v{TMP+2}, 4, v{AV}
    s_mov_b32 s69, 0
    v_mov_b32 v{FQ+4}, v{QE}
    v_mov_b32 v{FQ+5}, v{QE+1}
    s_mov_b32 exec_lo, 0
    v_mov_b32 v{FQ+4}, 0
    v_mov_b32 v{FQ+5}, 0
    s_mov_b32 exec_lo, -1
    """)
    for i in range(4): A(f"v_mov_b32 v{FQ+i}, v{QM+i}")
    for i in range(8): A(f"v_mov_b32 v{VF+i}, 0x3f803f80")
    A(f"L_fb_blk:\nv_mov_b32 v{MX}, 0xff800000\ns_mov_b32 s67, 0")
    for i in range(16): A(f"v_mov_b32 v{FO_+i}, 0")
    A(f"""
    L_fb_pass:
    s_add_u32 s63, s57, {144*256}
    s_add_u32 s64, s55, {144*256}
    s_mov_b32 s65, {VT_OFF}
    s_mov_b32 s66, 0
    L_fb_loop:
    s_add_u32 s68, s65, {2*VT_ROW}
    buffer_load_dwordx2 {v(KF,2)}, v{AK}, s[12:15], s63 offen sc1
    buffer_load_dwordx2 {v(KF+2,2)}, v{AK}, s[12:15], s63 offen offset:512 sc1
    buffer_load_dwordx2 {v(KE,2)}, v{TMP+1}, s[12:15], s64 offen sc1
    s_mov_b32 exec_lo, 0x3ffff
    s_mov_b32 exec_hi, 0x3ffff
    buffer_load_dwordx4 {v(VF,4)}, v{AV}, s[12:15], s65 offen sc1
    buffer_load_dwordx4 {v(VF+4,4)}, v{AV}, s[12:15], s68 offen sc1
    s_mov_b64 exec, -1
    s_waitcnt vmcnt(0)
    v_mfma_f32_32x32x16_bf16 {v(FS_,16)}, {v(KF,4)}, {v(FQ,4)}, 0
    s_nop 10
    v_mfma_f32_32x32x8_bf16 {v(FS_,16)}, {v(KE,2)}, {v(FQ+4,2)}, {v(FS_,16)}
    s_add_u32 s63, s63, {QKQ_TT}
    s_add_u32 s64, s64, {QKQ_TT}
    s_add_u32 s65, s65, {VT_TT}
    s_add_u32 s66, s66, 1
    s_nop 15
    s_cmp_lg_u32 s67, 0
    s_cbranch_scc1 L_fb_p2
    """)
    for i in range(8): A(f"v_max3_f32 v{MX}, v{MX}, v{FS_+2*i}, v{FS_+2*i+1}")
    A(f"""
    s_cmp_lt_u32 s66, 64
    s_cbranch_scc1 L_fb_loop
    v_mov_b32 v{MX+1}, v{MX}
    s_nop 1
    v_permlane32_swap_b32 v{MX}, v{MX+1}
    s_mov_b32 s67, 1
    v_max_f32 v{MX}, v{MX}, v{MX+1}
    s_branch L_fb_pass
    L_fb_p2:
    """)
    for i in range(16): A(f"v_sub_f32 v{FS_+i}, v{FS_+i}, v{MX}")
    for i in range(16): A(f"v_exp_f32 v{FS_+i}, v{FS_+i}")
    A(f"""
    s_nop 2
    v_smfmac_f32_32x32x32_bf16 {v(FO_,16)}, {v(VF,4)}, {v(FS_,8)}, v{IDX}
    v_smfmac_f32_32x32x32_bf16 {v(FO_,16)}, {v(VF+4,4)}, {v(FS_+8,8)}, v{IDX}
    s_cmp_lt_u32 s66, 64
    s_cbranch_scc1 L_fb_loop
    s_nop 15
    s_cmp_lg_u32 s69, 0
    s_cbranch_scc1 L_fb_done
    s_mov_b32 s69, 1
    v_mov_b32 v{FQ+4}, 0
    v_mov_b32 v{FQ+5}, 0
    """)
    for i in range(12): A(f"v_mov_b32 v{O+i}, v{FO_+i}")
    for i in range(4): A(f"v_mov_b32 v{FQ+i}, v{QM+4+i}")
    A(f"v_permlane32_swap_b32 v{QE}, v{FQ+4}\nv_permlane32_swap_b32 v{QE+1}, v{FQ+5}\ns_branch L_fb_blk\nL_fb_done:")
    for i in range(12): A(f"v_mov_b32 v{O+16+i}, v{FO_+i}")
    A("s_branch L_at_fin")

def kv_loader(A):
    VD = 4; VP = 9; PT = 12
    A("s_setprio 3")
    head_qb(A)
    A(f"""
    s_and_b32 s50, s3, 1
    s_bfe_u32 s51, s3, 0x10001
    s_mul_i32 s52, s51, {HOFF}
    s_cmp_eq_u32 s50, 0
    s_cbranch_scc0 L_kv_v
    s_lshr_b32 s55, s96, 1
    s_mul_i32 s55, s55, {9*256}
    s_and_b32 s56, s96, 1
    s_mul_i32 s57, s56, {5*256}
    v_lshl_add_u32 v{VD}, v0, 4, s57
    v_add_u32 v{VD+1}, {QKQ_TT-1024}, v{VD}
    v_add_u32 v{VD+2}, {2*(QKQ_TT-1024)}, v{VD}
    v_add_u32 v{VD+3}, {3*(QKQ_TT-1024)}, v{VD}
    v_lshrrev_b32 v1, 4, v0
    v_mul_u32_u24 v1, {QKQ_TT}, v1
    v_and_b32 v2, 15, v0
    v_lshl_add_u32 v1, v2, 4, v1
    v_add_u32 v{VD+4}, 1024, v1
    s_add_u32 s55, s55, {144*256}
    s_mul_i32 s53, s51, {32*QKQ_TT}
    s_add_u32 s53, s53, s55
    s_mov_b32 s54, {4*QKQ_TT}
    s_lshl_b32 s56, s56, 10
    s_add_u32 s58, s55, s56
    s_add_u32 s59, s58, {4*256}
    s_lshr_b32 s58, s58, 12
    s_lshr_b32 s59, s59, 12
    s_branch L_kv_go
    L_kv_v:
    s_mul_i32 s55, s96, 18
    s_and_b32 s56, s2, 15
    s_mul_i32 s56, s56, {VT_ROW}
    s_add_u32 s56, s56, {576*16}
    s_mul_i32 s53, s51, {32*VT_TT}
    s_add_u32 s53, s53, {VT_OFF}
    v_mul_u32_u24 v1, {4*VT_TT}, v0
    v_add_u32 v1, s56, v1
    v_mov_b32 v16, 0x3f803f80
    v_mov_b32 v17, v16
    v_mov_b32 v18, v16
    v_mov_b32 v19, v16
    s_mov_b64 exec, 0xff
    buffer_store_dwordx4 v[16:19], v1, s[12:15], s53 offen sc1
    s_mov_b64 exec, -1
    v_mov_b32 v10, s56
    """)
    for n in range(5):
        A(f"""
        v_add_u32 v1, {64*n}, v0
        v_mul_u32_u24 v2, 3277, v1
        v_lshrrev_b32 v2, 16, v2
        v_mul_u32_u24 v3, 20, v2
        v_sub_u32 v1, v1, v3
        v_cmp_gt_u32 vcc, 18, v1
        v_add_u32 v1, s55, v1
        v_mul_u32_u24 v2, {VT_ROW}, v2
        v_lshl_add_u32 v1, v1, 4, v2
        v_cndmask_b32 v{VD+n}, v10, v1, vcc
        """)
        if n % 4: A(f"v_subrev_u32 v{VD+n}, {1024*n}, v{VD+n}")
    A(f"""
    s_mov_b32 s54, {4*VT_TT}
    s_add_u32 s52, s52, 5120
    s_lshr_b32 s58, s55, 6
    s_add_u32 s59, s55, 17
    s_lshr_b32 s59, s59, 6
    s_add_u32 s58, s58, 18
    s_add_u32 s59, s59, 18
    L_kv_go:
    s_sub_u32 s59, s59, s58
    s_lshl_b32 s59, s59, 5
    v_bfe_u32 v1, v0, 4, 1
    v_mul_u32_u24 v1, s59, v1
    v_and_b32 v2, 15, v0
    v_add_u32 v1, v1, v2
    v_mul_u32_u24 v{VP}, {FS}, v1
    s_lshl_b32 s58, s58, 5
    s_lshl_b32 s59, s51, 4
    s_add_u32 s58, s58, s59
    s_mul_i32 s58, s58, {FS}
    s_add_u32 s58, s58, {FQ_OFF}
    v_mov_b32 v3, {L_FL}
    """)
    A(f"s_cmp_lt_u32 s2, 224\ns_cbranch_scc1 L_kv_g")
    lpoll(A, 3, F_CVD, 4, 1, PT, sleep=4)
    A("s_branch L_kv_g1\nL_kv_g:")
    lpoll(A, 3, F_STD, 1, 4, PT, sleep=2)
    A("L_kv_g1:")
    stamp(A, 4)
    if not os.environ.get('RG'): A(f"s_mov_b32 s59, 0\ns_mov_b32 exec_lo, {hex(((1 << 2*NE)-1)*0x10001 if not os.environ.get('ALLF') else 0xffffffff)}\ns_mov_b32 exec_hi, 0")
    else: A(f"s_lshl_b32 s59, s54, 2\ns_add_u32 s53, s53, s59\ns_lshl_b32 s59, s54, 3\ns_mov_b32 exec_lo, {hex(((1 << 2*NE)-1)*0x10001 << 8)}\ns_mov_b32 exec_hi, 0")
    gpoll(A, [VP], PT, "s58", sleep=QS)
    A("s_mov_b64 exec, -1")
    stamp(A, 5)
    A("s_mov_b32 s66, 0")
    A.label("L_kv_loop")
    A("s_mov_b32 m0, s52\ns_add_u32 s66, s66, 1")
    for n in range(4): A(f"buffer_load_dwordx4 v{VD+n}, s[12:15], s53 offen offset:{1024*n} sc1 lds")
    A(f"""
    s_add_u32 m0, s52, 4096
    s_add_u32 s52, s52, {GRP}
    buffer_load_dwordx4 v{VD+4}, s[12:15], s53 offen sc1 lds
    s_add_u32 s53, s53, s54
    s_cmp_eq_u32 s66, 4
    s_cselect_b32 s60, s59, 0
    s_sub_u32 s53, s53, s60
    s_cmp_lg_u32 s66, {NE}
    s_cbranch_scc1 L_kv_nb
    buffer_load_dword v{PT}, v{VP}, s[12:15], s58 offen sc1
    s_waitcnt vmcnt({5*(NE-1)+1})
    """)
    stamp(A, 6)
    A(f"""
    s_barrier
    s_waitcnt vmcnt(0)
    v_cmp_ne_u32 vcc, s{NONCE}, v{PT}
    s_barrier
    s_cbranch_vccz L_kv_nb
    """)
    gpoll(A, [VP], PT, "s58", sleep=4)
    A(f"""
    L_kv_nb:
    s_cmp_lt_u32 s66, 8
    s_cbranch_scc1 L_kv_loop
    s_waitcnt vmcnt(20)
    s_barrier
    s_cmp_lg_u32 s3, 10
    s_cbranch_scc1 L_kv_ns
    s_mul_i32 s58, s97, {8*OF_TT}
    s_add_u32 s58, s58, {OF_OFF}
    s_lshl_b32 s59, s96, 7
    s_add_u32 s59, s59, s58
    s_add_u32 s59, s59, {32*1024}
    s_lshl_b32 s60, s96, 10
    s_add_u32 s58, s58, s60
    v_lshlrev_b32 v1, 4, v0
    v_lshrrev_b32 v2, 3, v0
    v_mul_u32_u24 v2, {OF_TT-128}, v2
    v_add_u32 v2, v2, v1
    v_mov_b32 v16, -1
    v_mov_b32 v17, -1
    v_mov_b32 v18, -1
    v_mov_b32 v19, -1
    buffer_store_dwordx4 v[16:19], v2, s[12:15], s59 offen sc1
    """)
    for k in range(8): A(f"buffer_store_dwordx4 v[16:19], v1, s[12:15], s58 offen sc1\ns_add_u32 s58, s58, {OF_TT}")
    A("L_kv_ns:\ns_waitcnt vmcnt(0)\ns_cmp_lg_u32 s3, 11\ns_cbranch_scc1 L_kv_nw\ns_cmp_ge_u32 s2, 144\ns_cbranch_scc1 L_kv_nw")
    trans_wo(A)
    A("L_kv_nw:")
    stamp(A, 7)
    A(f"""
    s_cmp_lg_u32 s3, 9
    s_cbranch_scc1 L_kv_nz
    v_mul_u32_u24 v1, 320, v0
    v_add_u32 v1, {L_QR}, v1
    v_mov_b32 v16, 0
    v_mov_b32 v17, 0
    v_mov_b32 v18, 0
    v_mov_b32 v19, 0
    s_mov_b64 exec, 63
    ds_write_b128 v1, v[16:19]
    s_mov_b64 exec, -1
    s_waitcnt lgkmcnt(0)
    L_kv_nz:
    s_barrier
    """)
    A(f"s_cmp_lg_u32 s3, 8\ns_cbranch_scc1 L_kv_nf\ns_mul_i32 s58, s2, {FS}\ns_add_u32 s58, s58, {FB_OFF}")
    gflag(A, "s58", PT)
    A("L_kv_nf:")

def op_ids(A, fifth):
    A(f"""
    s_and_b32 s48, s2, 7
    s_lshl_b32 s48, s48, 3
    s_bfe_u32 s49, s2, 0x30003
    s_add_u32 s48, s48, s49
    s_lshr_b32 s51, s2, 6
    s_mul_i32 s49, s51, 5
    s_cmp_eq_u32 s51, 3
    s_subb_u32 s49, s49, 0
    s_and_b32 s50, s3, 3
    s_add_u32 s49, s49, {4 if fifth else 's50'}
    """)
def op_poll(A, t, sleep, oprod=True):
    A(f"""
    s_lshl_b32 s52, s49, 4
    s_lshl_b32 s54, s49, 3
    s_add_u32 s51, s54, 112
    s_cmp_lt_u32 s49, 14
    s_cselect_b32 s52, s52, s51
    s_cselect_b32 s51, 15, 7
    v_and_b32 v{t}, s51, v0
    v_add_u32 v{t}, s52, v{t}
    s_add_u32 s54, s54, 256
    v_and_or_b32 v{t+1}, v0, 7, s54
    s_mov_b32 vcc_lo, 0x00ff0000
    s_mov_b32 vcc_hi, 0
    v_cndmask_b32 v{t}, v{t}, v{t+1}, vcc
    s_lshr_b32 s52, s48, 4
    s_lshl_b32 s52, s52, 1
    s_bfe_u32 s51, s48, 0x20002
    s_lshl_b32 s51, s51, 3
    s_add_u32 s52, s52, s51
    s_add_u32 s52, s52, 193
    v_writelane_b32 v{t}, s52, 24
    """ + (f"""
    s_and_b32 s52, s48, 0x38
    s_mov_b32 exec_lo, 0
    v_and_or_b32 v{t}, v0, 7, s52
    v_bfe_u32 v{t+1}, v0, 3, 2
    v_lshl_or_b32 v{t}, v{t+1}, 6, v{t}
    s_mov_b32 exec_lo, -1
    """ if oprod else "") + f"""
    v_mul_u32_u24 v{t}, {FS}, v{t}
    s_mov_b32 s54, {FB_OFF}
    """)
    gpoll(A, [t], t+1, "s54", sleep=sleep)
def op_aaddr(A, va, vg, t):
    A(f"""
    v_and_b32 v{va}, 3, v0
    v_bfe_u32 v{t}, v0, 2, 1
    v_lshl_or_b32 v{va}, v{t}, 4, v{va}
    v_bfe_u32 v{t}, v0, 3, 2
    v_lshl_or_b32 v{va}, v{t}, 2, v{va}
    v_lshlrev_b32 v{va}, 13, v{va}
    v_lshrrev_b32 v{t}, 5, v0
    v_lshl_or_b32 v{va}, v{t}, 4, v{va}
    v_and_b32 v{vg}, 31, v0
    v_lshlrev_b32 v{vg}, 3, v{vg}
    s_lshl_b32 s52, s48, 8
    s_add_u32 s52, s52, {G_OFF}
    s_lshl_b32 s51, s49, 18
    s_lshl_b32 s54, s48, 6
    s_add_u32 s51, s51, s54
    s_add_u32 s51, s51, {AT_OFF}
    """)

def pg_wait(A, va, t, sleep, lane=0):
    l = uid("pg"); e = uid("pe")
    A(f"""
    v_bfe_u32 v{va}, v{lane}, 2, 1
    v_mul_u32_u24 v{va}, 304, v{va}
    v_and_b32 v{t}, 7, v{lane}
    v_lshl_add_u32 v{va}, v{t}, 2, v{va}
    v_add_u32 v{va}, {L_PG}, v{va}
    s_mov_b32 s{CAP}, 0x100000
    {l}:
    ds_read_b32 v{t}, v{va}
    s_sub_u32 s{CAP}, s{CAP}, 1
    s_cbranch_scc1 {e}
    s_waitcnt lgkmcnt(0)
    v_cmp_eq_u32 vcc, 0, v{t}
    s_cbranch_vccz {e}
    s_sleep {sleep}
    s_branch {l}
    {e}:
    """)

def ofetch(A):
    D = 90; F_E = 160; F_AC = 136; F_A = 164; F_DG = 152; F_G = 156
    A(f"s_setprio {os.environ.get('OP', '3')}\ns_cmp_ge_u32 s2, 128\ns_cbranch_scc1 L_of_n5")
    op_aaddr(A, F_G+1, F_G+2, F_G+3)
    A(f"""
    s_and_b32 s54, s50, 1
    s_lshl_b32 s54, s54, 5
    s_add_u32 s51, s51, s54
    s_lshr_b32 s54, s50, 1
    s_lshl_b32 s54, s54, 12
    s_add_u32 s51, s51, s54
    buffer_load_dword v{F_G}, v{F_G+2}, s[12:15], s52 offen sc1
    buffer_load_dwordx4 {v(F_A,4)}, v{F_G+1}, s[12:15], s51 offen sc1
    s_lshl_b32 s52, s49, 10
    s_mul_i32 s54, s50, {18*1024}
    s_add_u32 s51, s54, s52
    s_add_u32 s51, s51, {WOT_OFF + 32*18*1024}
    buffer_load_dwordx4 {v(F_E,4)}, v22, s[12:15], s51 offen sc1
    """)
    A(f"""
    L_of_n5:
    s_mul_i32 s57, s48, {OF_TT}
    s_add_u32 s57, s57, {OF_OFF}
    s_lshl_b32 s58, s50, 13
    s_lshl_b32 s59, s50, 10
    s_add_u32 s59, s59, {32*1024}
    s_add_u32 s60, s57, s58
    s_add_u32 s61, s60, 4096
    s_add_u32 s62, s57, s59
    s_add_u32 s58, s58, {L_O}
    s_add_u32 s59, s59, {L_O}
    v_add_u32 v4, s58, v22
    v_add_u32 v5, s59, v22
    s_lshl_b32 s52, s50, 2
    s_add_u32 s52, s52, {L_QR}
    v_mov_b32 v6, s52
    s_lshl_b32 s55, s48, 5
    s_lshl_b32 s56, s50, 3
    s_add_u32 s55, s55, s56
    s_mul_i32 s55, s55, {FS}
    s_add_u32 s55, s55, {FO_OFF}
    v_and_b32 v8, 7, v0
    v_mul_u32_u24 v8, {FS}, v8
    """)
    pg_wait(A, 9, 10, 3)
    EM = 16
    for n in range(9): A(f"s_mov_b64 s[{EM+2*n}:{EM+2*n+1}], -1")
    stamp(A, 5)
    if os.environ.get("HP"):
        A(f"""
        s_mov_b32 s{CAP}, 0x40000
        buffer_load_dword v9, v8, s[12:15], s55 offen sc1
        s_sleep {os.environ.get("HP")}
        L_hp:
        buffer_load_dword v10, v8, s[12:15], s55 offen sc1
        s_waitcnt vmcnt(1)
        v_cmp_ne_u32 vcc, s{NONCE}, v9
        s_cbranch_vccz L_hp_e
        buffer_load_dword v9, v8, s[12:15], s55 offen sc1
        s_waitcnt vmcnt(1)
        v_cmp_ne_u32 vcc, s{NONCE}, v10
        s_cbranch_vccz L_hp_e
        s_sub_u32 s{CAP}, s{CAP}, 1
        s_cbranch_scc0 L_hp
        L_hp_e:
        """)
    else: gpoll(A, [8], 9, "s55", sleep=int(os.environ.get("HS", "10")))
    A(f"s_mov_b32 s{CAP}, 0x40000")
    stamp(A, 6)
    A("s_setprio 3\nL_of_loop:")
    for n in range(9):
        A(f"s_mov_b64 exec, s[{EM+2*n}:{EM+2*n+1}]")
        A(f"buffer_load_dwordx4 {v(D+4*n,4)}, v22, s[12:15], s{60+n//4} offen offset:{1024*(n%4)} sc1")
    A(f"s_mov_b64 exec, -1\ns_mov_b64 s[34:35], 0\ns_cmp_ge_u32 s2, 128\ns_cbranch_scc1 L_of_na")
    A(f"""
    v_lshrrev_b32 v41, 5, v0
    v_and_b32 v42, 31, v0
    v_lshlrev_b32 v43, 9, v41
    v_lshl_add_u32 v43, v42, 2, v43
    s_lshl_b32 s52, s50, 10
    s_add_u32 s54, s52, {L_O + 32*1024}
    v_add_u32 v43, s54, v43
    v_mul_u32_u24 v42, 1152, v42
    v_lshl_add_u32 v42, v41, 5, v42
    s_add_u32 s54, s52, {L_RED}
    v_add_u32 v45, s54, v22
    s_lshl_b32 s52, s50, 12
    s_add_u32 s52, s52, {L_RED}
    v_add_u32 v44, s52, v22
    v_mov_b32 v47, {L_FR}
    s_mul_i32 s53, s48, {32*1152}
    s_lshl_b32 s56, s49, 6
    s_add_u32 s53, s53, s56
    s_lshl_b32 s56, s50, 3
    s_add_u32 s53, s53, s56
    v_bfe_u32 v{F_G+2}, v0, 1, 1
    v_lshlrev_b32 v{F_G+2}, 4, v{F_G+2}
    v_sub_u32 v{F_G+2}, 16, v{F_G+2}
    s_and_b32 s54, s50, 1
    v_lshrrev_b32 v{F_G+1}, v{F_G+2}, v{F_G}
    """)
    for r in range(4):
        m = 0x5 << (16*(r >> 1) + 4*(r & 1))
        A(f"s_lshl_b32 vcc_lo, {hex(m)}, s54\ns_lshl_b32 vcc_hi, vcc_lo, 8\nv_cndmask_b32 v{F_DG+r}, 0, v{F_G+1}, vcc")
    A(f"s_nop 1\nv_mfma_f32_32x32x16_bf16 {v(F_AC,16)}, {v(F_A,4)}, {v(F_DG,4)}, 0\nL_of_na:")
    for n in range(9):
        A(f"s_waitcnt vmcnt({8-n})")
        A(f"ds_write_b128 v4, {v(D+4*n,4)} offset:{1024*n}" if n < 8 else f"ds_write_b128 v5, {v(D+32,4)}")
        A(f"v_max3_u32 v7, v{D+4*n}, v{D+4*n+1}, v{D+4*n+2}\nv_max_u32 v7, v7, v{D+4*n+3}\nv_cmp_eq_u32 s[{EM+2*n}:{EM+2*n+1}], -1, v7")
        if n: A(f"s_or_b64 s[34:35], s[34:35], s[{EM+2*n-2}:{EM+2*n-1}]")
    A(f"""
    s_sub_u32 s{CAP}, s{CAP}, 1
    s_cbranch_scc1 L_of_ok
    s_or_b64 s[34:35], s[34:35], s[{EM+16}:{EM+17}]
    s_cbranch_scc0 L_of_ok
    s_waitcnt lgkmcnt(0)
    s_branch L_of_loop
    L_of_ok:
    """)
    lset(A, 6, 0, 1, 7)
    stamp(A, 7)
    if DIAG: A(f"s_sub_u32 s88, 0x40000, s{CAP}")
    A(f"""
    s_cmp_ge_u32 s2, 128
    s_cbranch_scc1 L_end
    s_setprio {os.environ.get('FP', '0')}
    ds_read2_b32 v[10:11], v43 offset0:0 offset1:32
    ds_read2_b32 v[12:13], v43 offset0:64 offset1:96
    """)
    for k in range(8): A(f"v_mfma_f32_32x32x16_bf16 {v(F_AC,16)}, {v(FWQ[k],4)}, {v(D+4*k,4)}, {v(F_AC,16)}")
    A(f"s_waitcnt lgkmcnt(0)\nv_mfma_f32_32x32x16_bf16 {v(F_AC,16)}, {v(F_E,4)}, v[10:13], {v(F_AC,16)}\ns_setprio 3\ns_nop 10")
    for i in range(4): A(f"ds_write_b128 v44, {v(F_AC+4*i,4)} offset:{1024*i}")
    lset(A, 6, 320, 1, 7)
    srd(A, 8, P_OUT, 2048*1152)
    lpoll(A, 47, 0, 4, 1, 10, sleep=1)
    OB = 94
    for i in range(4): A(f"ds_read_b128 {v(OB+4*i,4)}, v45 offset:{4096*i}")
    A("s_waitcnt lgkmcnt(2)")
    for i in range(4): A(f"v_add_f32 v{OB+i}, v{OB+i}, v{OB+4+i}")
    A("s_waitcnt lgkmcnt(0)")
    for i in range(4): A(f"v_add_f32 v{OB+8+i}, v{OB+8+i}, v{OB+12+i}")
    for i in range(4): A(f"v_add_f32 v{OB+i}, v{OB+i}, v{OB+8+i}")
    A(f"v_cvt_pk_bf16_f32 v{OB}, v{OB}, v{OB+1}\nv_cvt_pk_bf16_f32 v{OB+1}, v{OB+2}, v{OB+3}")
    A(f"buffer_store_dwordx2 {v(OB,2)}, v42, s[8:11], s53 offen")

def outproj(A):
    AC = 4; AP = 20; WF = 36; OB = 148
    FT = 164
    AF = WF; DG = WF + 16; G = WF + 24; ND = 7
    A("s_cmp_lg_u32 s3, 8\ns_cbranch_scc1 L_op_n5")
    op_ids(A, True)
    A("s_min_u32 s49, s49, 17")
    op_poll(A, 4, 8)
    A(f"v_mov_b32 v4, {L_OK}")
    lset(A, 4, 0, 1, 5)
    A("L_op_n5:")
    op_ids(A, False)
    op_poll(A, 4, 16, False)
    stamp(A, 8)
    op_aaddr(A, 1, G+1, 2)
    A(f"""
    buffer_load_dword v{G}, v{G+1}, s[12:15], s52 offen sc1
    buffer_load_dwordx4 {v(AF,4)}, v1, s[12:15], s51 offen sc1
    buffer_load_dwordx4 {v(AF+4,4)}, v1, s[12:15], s51 offen offset:32 sc1
    s_add_u32 s51, s51, 4096
    buffer_load_dwordx4 {v(AF+8,4)}, v1, s[12:15], s51 offen sc1
    buffer_load_dwordx4 {v(AF+12,4)}, v1, s[12:15], s51 offen offset:32 sc1
    v_lshlrev_b32 v1, 4, v0
    s_lshl_b32 s52, s49, 10
    s_add_u32 s52, s52, {WOT_OFF}
    s_lshl_b32 s54, s50, 13
    s_add_u32 s54, s54, {L_WE}
    """)
    wld = lambda i: A(f"s_add_u32 s63, s52, {(8*(i//7) + i%7)*18*1024}\nbuffer_load_dwordx4 {v(WF+4*i,4)}, v1, s[12:15], s63 offen sc1")
    for i in range(ND, 28): wld(i)
    A(f"""
    v_bfe_u32 v{G+2}, v0, 1, 1
    v_lshlrev_b32 v{G+2}, 4, v{G+2}
    v_sub_u32 v{G+2}, 16, v{G+2}
    s_waitcnt vmcnt({28-ND})
    v_lshrrev_b32 v{G}, v{G+2}, v{G}
    """)
    for c in range(2):
        for r in range(4):
            m = 0x5 << (16*(r >> 1) + 4*(r & 1) + c)
            A(f"s_mov_b32 vcc_lo, {hex(m)}\ns_mov_b32 vcc_hi, {hex(m << 8)}\nv_cndmask_b32 v{DG+4*c+r}, 0, v{G}, vcc")
    A("s_nop 1")
    for c in range(4): A(f"v_mfma_f32_32x32x16_bf16 {v(AP,16)}, {v(AF+4*c,4)}, {v(DG+4*(c&1),4)}, {'0' if c == 0 else v(AP,16)}")
    for i in range(ND): wld(i)
    srd(A, 8, P_OUT, 2048*1152)
    A(f"""
    s_lshl_b32 s55, s2, 4
    s_add_u32 s55, s55, s3
    s_cmp_lg_u32 s55, 11
    s_cbranch_scc1 L_op_noep
    v_mul_u32_u24 v{OB}, {FS}, v0
    v_add_u32 v{OB+1}, {64*FS}, v{OB}
    v_add_u32 v{OB+2}, {128*FS}, v{OB}
    v_add_u32 v{OB+3}, {192*FS}, v{OB}
    s_mov_b32 s55, {FB_OFF}
    """)
    gpoll(A, [OB, OB+1, OB+2, OB+3], OB+4, "s55", sleep=16)
    A(f"s_mov_b32 s55, {EP_OFF}")
    gflag(A, "s55", OB)
    A(f"""
    L_op_noep:
    v_mov_b32 v{OB+2}, v0
    v_lshrrev_b32 v3, 5, v0
    v_and_b32 v2, 31, v0
    v_and_b32 v{FT+1}, 3, v0
    v_lshlrev_b32 v{FT+1}, 2, v{FT+1}
    v_add_u32 v{FT+1}, {L_QR}, v{FT+1}
    v_lshlrev_b32 v0, 9, v3
    v_lshl_add_u32 v0, v2, 2, v0
    v_add_u32 v0, {L_O + 32*1024}, v0
    v_mul_u32_u24 v2, 1152, v2
    v_lshl_add_u32 v2, v3, 5, v2
    v_add_u32 v3, s54, v1
    s_mul_i32 s53, s48, {32*1152}
    s_lshl_b32 s56, s49, 6
    s_add_u32 s53, s53, s56
    s_mov_b32 m0, s54
    {"buffer_load_dword v%d, v2, s[8:11], s53 offen" % (OB+4) if os.environ.get("PT", "0") != "0" else ""}
    s_mov_b32 s56, 15
    """)
    pg_wait(A, OB, OB+1, int(os.environ.get("PGS", "12")), lane=OB+2)
    stamp(A, 9)
    for e in range(8):
        ks = 32 + e//2 if e % 2 == 0 else 8*(e//2) + 7
        A(f"s_add_u32 s63, s52, {ks*18*1024}\nbuffer_load_dwordx4 v1, s[12:15], s63 offen sc1 lds\ns_add_u32 m0, m0, 1024")
    A(f"""
    v_add_u32 v1, {L_O}, v1
    s_mov_b32 s{CAP}, 0x400000
    s_setprio 0
    s_waitcnt vmcnt(0)
    L_op_poll:
    {"s_sleep 1" if os.environ.get("OS") else ""}
    ds_read_b32 v{FT}, v{FT+1}
    s_sub_u32 s{CAP}, s{CAP}, 1
    s_cselect_b32 s57, 15, 0
    s_cselect_b32 s{CAP}, 0, s{CAP}
    s_waitcnt lgkmcnt(0)
    v_cmp_ne_u32 vcc, 0, v{FT}
    s_or_b32 s57, s57, vcc_lo
    s_and_b32 s57, s57, s56
    s_cbranch_scc0 L_op_poll
    s_ff1_i32_b32 s58, s57
    s_lshl_b32 s59, s58, 13
    v_add_u32 v{FT+3}, s59, v1
    """)
    for i in range(4): A(f"ds_read_b128 {v(OB+4*i,4)}, v{FT+3} offset:{i*1024}")
    A("""
    L_op_disp:
    s_cmp_eq_u32 s58, 0
    s_cbranch_scc1 L_op_q0
    s_cmp_eq_u32 s58, 1
    s_cbranch_scc1 L_op_q1
    s_cmp_eq_u32 s58, 2
    s_cbranch_scc1 L_op_q2
    """)
    for q in (3, 0, 1, 2):
        A(f"L_op_q{q}:")
        if DIAG and os.environ.get("BLK"): A("s_mov_b32 s74, s76\ns_mov_b32 s76, s78\ns_mov_b32 s78, s80"); stamp(A, 4)
        w = WF + 28*q
        def mf(a, b_, c=None, d=AC): A(f"v_mfma_f32_32x32x16_bf16 {v(d,16)}, {v(a,4)}, {v(b_,4)}, {c or v(AC,16)}")
        A(f"ds_read_b32 v{FT}, v{FT+1}\nv_add_u32 v{FT+2}, {1024*q}, v0\ns_bitset0_b32 s56, {q}")
        for i in range(4):
            A(f"s_waitcnt lgkmcnt({[4,4,4,8][i]})")
            mf(w+4*i, OB+4*i, None if i else (v(AP,16) if q == 0 else "0"))
            A(f"ds_read_b128 {v(OB+4*i,4)}, v1 offset:{(8*q+4+i)*1024}")
            if i == 2:
                A(f"ds_read_b128 {v(w,4)}, v3 offset:{2048*q}\nds_read_b128 {v(w+8,4)}, v3 offset:{2048*q+1024}")
                A(f"ds_read2_b32 {v(w+4,2)}, v{FT+2} offset0:0 offset1:32\nds_read2_b32 {v(w+6,2)}, v{FT+2} offset0:64 offset1:96")
        A(f"""
        s_waitcnt lgkmcnt(7)
        v_cmp_ne_u32 vcc, 0, v{FT}
        """)
        mf(w+16, OB)
        A(f"""
        s_and_b32 s57, vcc_lo, s56
        s_ff1_i32_b32 s58, s57
        s_lshl_b32 s59, s58, 13
        v_add_u32 v{FT+3}, s59, v1
        ds_read_b128 {v(OB,4)}, v{FT+3}
        s_waitcnt lgkmcnt(7)
        """)
        mf(w+20, OB+4)
        A(f"ds_read_b128 {v(OB+4,4)}, v{FT+3} offset:1024\ns_waitcnt lgkmcnt(7)")
        mf(w+24, OB+8)
        A(f"ds_read_b128 {v(OB+8,4)}, v{FT+3} offset:2048\ns_waitcnt lgkmcnt(3)")
        mf(w+8, OB+12)
        A(f"ds_read_b128 {v(OB+12,4)}, v{FT+3} offset:3072\ns_cmp_lg_u32 s57, 0")
        mf(w, w+4, None, w+12)
        A("s_cbranch_scc1 L_op_disp\ns_cmp_lg_u32 s56, 0\ns_cbranch_scc1 L_op_poll")
        if q != 2: A("s_branch L_op_fin")
    A("L_op_fin:")
    stamp(A, 10)
    A("s_nop 8")
    R_ = [WF + 28*q + 12 for q in range(4)]
    for m in range(2):
        for j in range(4*m, 4*m+4):
            A(f"v_pk_add_f32 {v(R_[0]+2*j,2)}, {v(R_[0]+2*j,2)}, {v(R_[1]+2*j,2)}\nv_pk_add_f32 {v(R_[2]+2*j,2)}, {v(R_[2]+2*j,2)}, {v(R_[3]+2*j,2)}")
        for j in range(4*m, 4*m+4): A(f"v_pk_add_f32 {v(R_[0]+2*j,2)}, {v(R_[0]+2*j,2)}, {v(R_[2]+2*j,2)}")
        for j in range(4*m, 4*m+4): A(f"v_cvt_pk_bf16_f32 v{AP+j}, v{R_[0]+2*j}, v{R_[0]+2*j+1}")
        A(f"buffer_store_dwordx4 {v(AP+4*m,4)}, v2, s[8:11], s53 offen offset:{16*m}")

def fused(A, name):
    head(A, name)
    stamp_init(A)
    A(f"""
    s_load_dwordx16 s[16:31], s[0:1], 0
    s_load_dwordx16 s[32:47], s[0:1], 64
    v_lshrrev_b32 v1, 6, v0
    v_and_b32 v0, 63, v0
    v_readfirstlane_b32 s3, v1
    s_cmp_ge_u32 s2, 224
    s_cbranch_scc1 L_aux
    s_lshl_b32 s99, s2, 1
    s_mov_b32 s98, 0
    s_cmp_eq_u32 s3, 8
    s_cbranch_scc1 L_ldx
    s_cmp_eq_u32 s3, 9
    s_cbranch_scc1 L_ldw
    s_cmp_eq_u32 s3, 11
    s_cbranch_scc1 L_util
    s_cmp_lt_u32 s3, 4
    s_cbranch_scc1 L_gemm
    s_cmp_lt_u32 s3, 8
    s_cbranch_scc1 L_kgen
    s_lshr_b32 s48, s2, 3
    s_mov_b32 s49, {L_TR}
    s_and_b32 s52, s2, 1
    s_mul_i32 s52, s52, 28
    s_add_u32 s48, s48, s52
    s_mul_i32 s50, s48, 9363
    s_lshr_b32 s50, s50, 16
    s_mul_i32 s51, s50, 7
    s_sub_u32 s51, s48, s51
    s_and_b32 s52, s2, 6
    s_lshl_b32 s52, s52, 2
    s_add_u32 s50, s50, s52
    L_tru:
    s_setprio 3
    """)
    trans_u(A)
    A("s_branch L_ucopy")
    A.label("L_ldx"); gemm_loader(A, True); A("s_branch L_kv")
    A.label("L_ldw"); gemm_loader(A, False); A("s_branch L_kv")
    A.label("L_gemm")
    gemm_compute(A, "L_attn")
    A.label("L_gate")
    ugather(A)
    A("s_branch L_kv")
    A.label("L_aux")
    A(f"""
    s_cmp_ge_u32 s2, 256
    s_cbranch_scc1 L_exit
    s_cmp_lg_u32 s3, 9
    s_cbranch_scc1 L_aux1
    v_mov_b32 v2, 0
    v_lshlrev_b32 v3, 2, v0
    v_add_u32 v3, {L_FL}, v3
    ds_write_b32 v3, v2
    L_aux1:
    s_sub_u32 s50, s2, 224
    s_lshl_b32 s99, s50, 2
    s_add_u32 s99, s99, 448
    s_mov_b32 s98, 0
    s_cmp_ge_u32 s3, 8
    s_cbranch_scc1 L_gate
    s_cmp_ge_u32 s3, 4
    s_cbranch_scc1 L_kgen
    s_mov_b32 s98, {SET1}
    s_add_u32 s99, s99, 2
    L_kgen:
    s_and_b32 s50, s3, 1
    s_add_u32 s99, s99, s50
    s_mov_b32 s48, s99
    s_bfe_u32 s63, s3, 0x10001
    s_cmp_lg_u32 s98, 0
    s_cselect_b32 s51, 32768, 0
    s_cselect_b32 s53, 16, 0
    s_add_u32 s51, s51, {L_KG}
    s_add_u32 s53, s53, {L_FL}
    s_and_b32 s52, s3, 3
    s_mul_i32 s49, s52, {KG_SZ}
    s_add_u32 s49, s49, s51
    s_xor_b32 s52, s52, 2
    s_mul_i32 s64, s52, {KG_SZ}
    s_add_u32 s64, s64, s51
    s_mul_i32 s67, s50, {KC_CH}
    s_add_u32 s67, s67, {L_KC}
    s_sub_u32 s67, s67, s98
    s_lshl_b32 s50, s50, 3
    s_lshl_b32 s51, s63, 2
    s_add_u32 s50, s50, s51
    s_add_u32 s50, s50, s53
    v_mov_b32 v3, s50
    """)
    kgen(A, conv_pre)
    A.label("L_conv")
    if FINE: STAMP_ON[0] = False
    conv(A)
    A.label("L_attn")
    attn(A)
    A.label("L_util")
    A(f"""
    v_mov_b32 v2, 0
    v_lshlrev_b32 v3, 2, v0
    v_add_u32 v3, {L_FL}, v3
    ds_write_b32 v3, v2
    s_getpc_b64 s[50:51]
    L_pf_pc:
    s_sub_u32 s50, s50, L_pf_pc-{name}
    s_subb_u32 s51, s51, 0
    v_lshlrev_b32 v2, 7, v0
    s_bfe_u32 s52, s2, 0x20003
    s_mul_i32 s52, s52, 6912
    v_add_u32 v2, s52, v2
    global_load_dword v100, v2, s[50:51]
    """)
    A("s_waitcnt lgkmcnt(0)")
    ws_setup(A); get_nonce(A)
    if os.environ.get("PT", "0") == "2":
        A(f"s_mov_b32 s100, s{P_WS}\ns_mov_b32 s101, s{P_WS+1}")
        for k in range(0, WS_USED, 1 << 20):
            A(f"s_load_dword s{50+(k >> 20)}, s[100:101], 0\ns_add_u32 s100, s100, {1 << 20}\ns_addc_u32 s101, s101, 0")
    A("s_barrier\n"*4)
    A("s_waitcnt lgkmcnt(0)")
    A.label("L_ucopy")
    ucopy(A)
    A.label("L_kv")
    kv_loader(A)
    outproj(A)
    A.label("L_end")
    endpgm(A, 0)
    A("L_exit:\ns_endpgm")
    A.raw(".p2align 4\n.type kgen_tab,@object\nkgen_tab:")
    T = kgen_table()
    for i in range(0, len(T), 8): A.raw("    .long " + ", ".join(str(x) for x in T[i:i+8]))
    A.raw(f".size kgen_tab, {4*len(T)}")
    A.raw(f".type code_pad,@object\ncode_pad:\n.fill (28928 - (code_pad - {name})) / 4, 4, 0\n.size code_pad, . - code_pad")

if __name__ == "__main__":
    import sys
    NAME = "gated_mix__ssm_conv_s4__mha_block__prompt_kernel"
    HDR = open("gated_mix__ssm_conv_s4__mha_block__prompt.s.ref").read().split("; Override launch")[0]
    A = Asm(); fused(A, NAME)
    aslist = len(sys.argv) > 2
    out = HDR + (f"; @launch kernel={NAME} grid=(256,1,1) block=(768,1,1) lds=163840\n" if aslist else "; @launch grid=(256,1,1) block=(768,1,1) lds=163840\n")
    out += '.amdgcn_target "amdgcn-amd-amdhsa--gfx950"\n.text\n' + A.text() + '.section .rodata,"a"\n' + kd(NAME, NV)
    open(sys.argv[1], "w").write(out)
```
